```python
import torch

def _softmax(x, axis=-1):
    return torch.softmax(x, dim=axis)
def _gelu(x):
    return torch.nn.functional.gelu(x, approximate="tanh")
def _silu(x):
    return torch.nn.functional.silu(x)
def _sigmoid(x):
    return torch.sigmoid(x)
def _layernorm(x, axis=-1, eps=1e-5):
    m = x.mean(dim=axis, keepdim=True)
    v = x.var(dim=axis, keepdim=True, unbiased=False)
    return (x - m) / torch.sqrt(v + eps)
def _scatter_add(tgt, idx, src, axis=0):
    return tgt.clone().index_add_(axis, idx, src)
def _segment_sum(src, seg, n):
    out = torch.zeros((n,) + src.shape[1:], dtype=src.dtype)
    return out.index_add_(0, seg, src)
def _pad(x, pw):
    flat = tuple(v for pair in reversed(pw) for v in pair)
    return torch.nn.functional.pad(x, flat)

kernel_name = 'concat_heads__gqa_block_cached__compressed_kv_cla__decode'

def setup_inputs():

    _w = (lambda a: (lambda t: t.to(torch.bfloat16) if t.is_floating_point() else t)(torch.as_tensor(a)))
    def _A_setup():
        B, Sq, D = 1, 1, 448
        Hq, Hkv, Sk, Dh = 16, 8, 8192, 256
        assert Hq % Hkv == 0, (Hq, Hkv)
        return {
            "x": _w((lambda *s: torch.randn(*s, dtype=torch.bfloat16) * 1.6)(B, Sq, D)),
            "k_cache": _w((lambda *s: torch.randn(*s, dtype=torch.bfloat16) * 1.6)(B, Hkv, Sk, Dh)),
            "v_cache": _w((lambda *s: torch.randn(*s, dtype=torch.bfloat16) * 0.05)(B, Hkv, Sk, Dh)),
            "wq": _w((lambda *s: torch.randn(*s, dtype=torch.bfloat16) * 1.6)(D, Hq * Dh) * (D ** -0.5)),
            "wo": _w((lambda *s: torch.randn(*s, dtype=torch.bfloat16) * 0.05)(Hq * Dh, D) * ((Hq * Dh) ** -0.5)),
        }
    _A_in = _A_setup()

    def _B_setup():
        B, H, Sq, Sk, D, M = 1, 16, 1, 8192, 256, 448
        Dc = 4 * D
        return {
            "x": _w((lambda *s: torch.randn(*s, dtype=torch.bfloat16) * 3.2)(B, Sq, M)),
            "c_kv": _w((lambda *s: torch.randn(*s, dtype=torch.bfloat16) * 0.1)(B, Sk, Dc)),
            "w_q": _w((lambda *s: torch.randn(*s, dtype=torch.bfloat16) * 6.4)(M, H, D) * (M ** -0.5)),
            "w_uk": _w((lambda *s: torch.randn(*s, dtype=torch.bfloat16) * 6.4)(Dc, H, D) * (Dc ** -0.5)),
            "w_uv": _w((lambda *s: torch.randn(*s, dtype=torch.bfloat16) * 0.1)(Dc, H, D) * (Dc ** -0.5)),
            "w_o": _w((lambda *s: torch.randn(*s, dtype=torch.bfloat16) * 0.1)(H, D, M) * ((H * D) ** -0.5)),
        }
    _B_in = _B_setup()

    return {
        "A_x": _A_in["x"],
        "A_k_cache": _A_in["k_cache"],
        "A_v_cache": _A_in["v_cache"],
        "A_wq": _A_in["wq"],
        "A_wo": _A_in["wo"],
        "B_x": _B_in["x"],
        "B_c_kv": _B_in["c_kv"],
        "B_w_q": _B_in["w_q"],
        "B_w_uk": _B_in["w_uk"],
        "B_w_uv": _B_in["w_uv"],
        "B_w_o": _B_in["w_o"],
    }

def reference(A_x, A_k_cache, A_v_cache, A_wq, A_wo, B_x, B_c_kv, B_w_q, B_w_uk, B_w_uv, B_w_o):
    def _A_ref(x, k_cache, v_cache, wq, wo):
        B, Sq, D = x.shape
        Hq, Dh = 16, 256
        Hkv = k_cache.shape[1]
        rep = Hq // Hkv
        q = (lambda x, *d: x.permute(*d))((x @ wq).reshape(B, Sq, Hq, Dh), 0, 2, 1, 3)
        k = (lambda x, n, axis: torch.repeat_interleave(x, n, dim=axis))(k_cache, rep, axis=1)
        v = (lambda x, n, axis: torch.repeat_interleave(x, n, dim=axis))(v_cache, rep, axis=1)
        scores = torch.einsum("bhqd,bhkd->bhqk", q, k) * (Dh ** -0.5)
        p = _softmax(scores, axis=-1)
        o = torch.einsum("bhqk,bhkd->bhqd", p, v)
        return (lambda x, *d: x.permute(*d))(o, 0, 2, 1, 3).reshape(B, Sq, Hq * Dh) @ wo

    def _B_ref(x, c_kv, w_q, w_uk, w_uv, w_o):
        B, Sq, M = x.shape[0], x.shape[1], x.shape[2]
        Sk = c_kv.shape[1]
        H, D = w_q.shape[1], w_q.shape[2]
        q = torch.einsum("bqm,mhd->bhqd", x, w_q)
        k = torch.einsum("bkc,chd->bhkd", c_kv, w_uk)
        v = torch.einsum("bkc,chd->bhkd", c_kv, w_uv)
        scores = torch.einsum("bhqd,bhkd->bhqk", q, k) * (D ** -0.5)
        off = Sk - Sq
        qi = torch.arange(Sq)[:, None]
        kj = torch.arange(Sk)[None, :]
        cmask = kj <= (qi + off)
        scores = torch.where(cmask[None, None], scores, -1e9)
        p = _softmax(scores, axis=-1)
        ctx = torch.einsum("bhqk,bhkd->bhqd", p, v)
        return torch.einsum("bhqd,hdm->bqm", ctx, w_o)

    a = _A_ref(A_x, A_k_cache, A_v_cache, A_wq, A_wo)
    b = _B_ref(B_x, B_c_kv, B_w_q, B_w_uk, B_w_uv, B_w_o)
    return torch.concatenate([a, b], axis=-1)
```

```python
import re
_TRANS = ("v_exp_", "v_log_", "v_rcp_", "v_rsq_", "v_sqrt_", "v_sin_", "v_cos_")
def _regs(tok):
    tok = tok.strip()
    tok = tok.lstrip('-')
    m = re.fullmatch(r"(?:abs\()?\|?([vsa])(\d+)\|?\)?", tok)
    if m: return {(m.group(1), int(m.group(2)))}
    m = re.fullmatch(r"([vsa])\[(\d+):(\d+)\]", tok)
    if m: return {(m.group(1), i) for i in range(int(m.group(2)), int(m.group(3))+1)}
    if tok == "vcc": return {('s',106),('s',107)}
    if tok == "vcc_lo": return {('s',106)}
    if tok == "vcc_hi": return {('s',107)}
    if tok == "m0": return {('s',124)}
    if tok == "exec": return {('s',126),('s',127)}
    return set()
class Ins:
    def __init__(self, text):
        self.text = text
        t = text.split(';')[0].strip()
        self.label = t.endswith(':')
        self.kind = None; self.w = set(); self.r = set(); self.mn = ""
        self.dpp = False; self.A=set(); self.B=set(); self.C=set(); self.data=set(); self.wide=False; self.lds=False
        if self.label or not t or t.startswith('.'):
            self.kind = 'label' if self.label else 'none'; return
        parts = t.split(None, 1)
        mn = self.mn = parts[0]
        rest = parts[1] if len(parts) > 1 else ""
        ops = []; cur = ""; depth = 0
        for ch in rest:
            if ch in "[(": depth += 1
            if ch in "])": depth -= 1
            if ch == ',' and depth == 0: ops.append(cur.strip()); cur = ""
            else: cur += ch
        if cur.strip(): ops.append(cur.strip())
        mods = ""
        if ops:
            last = ops[-1].split(None, 1)
            ops[-1] = last[0]
            mods = last[1] if len(last) > 1 else ""
        self.ops = ops; self.mods = mods
        R = [_regs(o) for o in ops]
        if mn.startswith("v_mfma"):
            self.kind = 'mfma'; self.w = R[0]; self.A, self.B, self.C = R[1], R[2], R[3]; self.r = R[1]|R[2]|R[3]
            self.passes = 8 if "32x32" in mn else 4
        elif mn.startswith("v_"):
            self.kind = 'valu'
            self.dpp = ("quad_perm" in mods or "row_" in mods)
            if "permlane" in mn and "swap" in mn:
                self.w = R[0] | R[1]; self.r = R[0] | R[1]
            elif mn.startswith(("v_add_co","v_sub_co","v_addc_co","v_subb_co")):
                self.w = R[0] | R[1]; self.r = set().union(*R[2:])
            else:
                self.w = R[0]; self.r = set().union(*R[1:]) if len(R) > 1 else set()
                if mn.startswith(("v_fmac","v_dot2c","v_pk_fmac")) or self.dpp: self.r |= R[0]
                if mn.startswith("v_cndmask") and len(ops) == 3: self.r |= _regs("vcc")
        elif mn.startswith(("buffer_","global_")):
            self.kind = 'vmem'
            self.lds = bool(re.search(r"\blds\b", mods)) or "_lds_" in mn
            if "load" in mn and not self.lds:
                self.w = R[0]; self.r = set().union(*R[1:])
            elif self.lds:
                self.r = set().union(*R) | _regs("m0")
            else:
                self.r = set().union(*R)
                self.data = R[0] if mn.startswith("buffer_") else R[1]
                self.wide = mn.endswith(("x3","x4"))
        elif mn.startswith("ds_"):
            self.kind = 'ds'
            if mn.startswith(("ds_read","ds_bpermute","ds_permute","ds_swizzle")):
                self.w = R[0]; self.r = set().union(*R[1:])
            else:
                self.r = set().union(*R)
        elif mn.startswith("s_"):
            self.kind = 'salu'
            if mn.startswith(("s_cmp","s_cbranch","s_branch","s_waitcnt","s_barrier","s_nop","s_sleep","s_endpgm","s_setprio","s_setpc","s_bitcmp")):
                self.r = set().union(*R) if R else set()
            else:
                self.w = R[0] if R else set(); self.r = set().union(*R[1:]) if len(R) > 1 else set()
                if "saveexec" in mn: self.w |= _regs("exec")
        else:
            raise ValueError("unknown instr " + t)
    def states(self):
        if self.kind in ('label','none'): return 0
        if self.mn == "s_nop": return int(self.ops[0], 0) + 1
        return 1
def need(p, c):
    n = 0
    V = lambda s: {x for x in s if x[0] in 'va'}
    S = lambda s: {x for x in s if x[0] == 's'}
    if p.kind == 'valu':
        vw, sw = V(p.w), S(p.w)
        if c.kind == 'mfma' and vw & c.r: n = max(n, 2)
        if c.kind == 'valu':
            if c.dpp and vw & c.r: n = max(n, 2)
            if "permlane" in c.mn and vw & c.r: n = max(n, 2)
            if c.mn.startswith(("v_readlane","v_readfirstlane")) and vw & c.r: n = max(n, 1)
            if sw & c.r: n = max(n, 4 if c.mn.startswith(("v_readlane","v_writelane")) else 2)
            if p.mn.startswith(_TRANS) and vw & (c.r | c.w): n = max(n, 1)
        if c.kind in ('vmem','ds') and p.mn.startswith(_TRANS) and vw & c.r: n = max(n, 1)
        if c.kind == 'vmem' and sw & c.r: n = max(n, 5)
        if c.kind == 'salu' and sw & c.r: n = max(n, 1)
    if p.kind in ('vmem','ds') and c.kind == 'valu' and c.dpp and V(p.w) & c.r: n = max(n, 2)
    if p.kind == 'mfma':
        big = 8 if p.passes == 4 else 12
        if c.kind == 'mfma':
            if p.w & (c.A | c.B): n = max(n, big)
            if p.w & c.C:
                if not (p.w == c.C and p.passes == c.passes): n = max(n, big - 2)
            elif p.w & c.w: n = max(n, big)
        elif c.kind in ('valu','vmem','ds'):
            if p.w & (c.r | c.w): n = max(n, big)
            if c.kind == 'valu' and p.C & c.w: n = max(n, 3 if p.passes == 4 else 7)
    if p.kind == 'salu' and ('s',124) in p.w and c.kind == 'vmem' and c.lds: n = max(n, 1)
    if p.kind == 'vmem' and p.wide and p.data & c.w: n = max(n, 2)
    if p.kind == 'salu' and (('s',126) in p.w) and c.kind == 'valu' and c.dpp: n = max(n, 1)
    return n
class Asm:
    def __init__(self):
        self.lines = []
        self.uid = 0
    def __call__(self, text):
        for l in text.split("\n"):
            l = l.strip()
            if l: self.lines.append(l)
    def label(self, base):
        self.uid += 1
        return f"{base}_{self.uid}"
    def finish(self):
        out = []; hist = []
        W = 14
        def push(i):
            out.append(i);
            if i.kind not in ('label','none'): hist.append(i)
            del hist[:-W]
        for l in self.lines:
            i = Ins(l)
            if i.kind in ('label','none'):
                out.append(i); continue
            req = 0; d = 0
            isbr = i.mn.startswith(("s_cbranch","s_branch","s_setpc","s_call","s_swappc"))
            for p in reversed(hist):
                if isbr:
                    worst = 0
                    if p.kind == 'mfma': worst = 8 if p.passes == 4 else 12
                    elif p.kind == 'valu': worst = 5 if any(x[0]=='s' for x in p.w) else 2
                    elif p.kind == 'vmem' and p.wide: worst = 2
                    elif p.kind == 'salu' and (('s',124) in p.w or ('s',126) in p.w): worst = 1
                    req = max(req, worst - d - 1, need(p, i) - d)
                else:
                    req = max(req, need(p, i) - d)
                d += p.states()
                if d >= 13: break
            while req > 0:
                k = min(req, 16)
                push(Ins(f"s_nop {k-1}")); req -= k
            push(i)
        return "\n".join(("" if x.kind == 'label' or x.text.startswith('.') else "  ") + x.text for x in out) + "\n"
```

```python
import sys, math
from asmlib import Asm
KN = "concat_heads__gqa_block_cached__compressed_kv_cla__decode_kernel"
OFF_QB, OFF_QA, OFF_QABS, OFF_ST3, OFF_STA, OFF_H4, OFF_HA, OFF_FIN, OFF_H3 = \
    0x0, 0x4000, 0x10000, 0x20000, 0x24000, 0x40000, 0x80000, 0x200000, 0x400000
FIN_AB = 56*128*64
OFF_STAMP = 0x8000000
ROW = 2080; SLOT = 16*ROW
CEXP = math.log2(math.e)/16.0
import struct
def f32(x): return "0x%08x" % struct.unpack("<I", struct.pack("<f", x))[0]
def q(b): return f"v[{b}:{b+3}]"
def p2(b): return f"v[{b}:{b+1}]"
DPPF = "row_mask:0xf bank_mask:0xf"

class Gen:
    def __init__(s, **cfg):
        s.c = dict(stamp=False, kpre23=0, kpre1=4, nt="nt", sleep=4, timeout=200000, v1=10, v2=16, gat=6, rnd=True)
        s.c.update(cfg)
        s.a = Asm()
    def srd(s, base, ptr, nbytes):
        a = s.a
        a(f"s_mov_b32 s{base}, s{ptr}\ns_mov_b32 s{base+1}, s{ptr+1}\ns_mov_b32 s{base+2}, {nbytes}\ns_mov_b32 s{base+3}, 0x20000")
    def stamp(s, k):
        if s.c['stamp']:
            s.a(f"s_memrealtime s[98:99]\ns_waitcnt lgkmcnt(0)\ns_mov_b32 s{84+k}, s98")
    def stamp_out(s):
        if not s.c['stamp']: return
        a = s.a
        a("s_mov_b64 exec, -1")
        a("v_mov_b32 v8, 0")
        for k in range(12): a(f"v_writelane_b32 v8, s{84+k}, {k}")
        a("v_lshlrev_b32 v9, 2, v1")
        a("s_lshl_b32 s4, s2, 3\ns_add_u32 s4, s4, s3\ns_lshl_b32 s4, s4, 6")
        a(f"s_add_u32 s4, s4, {OFF_STAMP}")
        a("s_mov_b32 exec_lo, 0xffff\ns_mov_b32 exec_hi, 0")
        a("buffer_store_dword v8, v9, s[44:47], s4 offen")
    def exec_set(s, lo, hi):
        s.a(f"s_mov_b32 exec_lo, {lo:#x}\ns_mov_b32 exec_hi, {hi:#x}")
    def exec_all(s): s.a("s_mov_b64 exec, -1")
    def check_tags(s, groups, t0, t1):
        a = s.a
        a("s_mov_b64 s[80:81], exec")
        for exp, tags in groups:
            regs = [f"v{t}" for t in tags]
            if exp[0] == 'v': regs = [exp] + regs
            if len(regs) == 1:
                mn = mx = regs[0]
            else:
                mn, mx = f"v{t0}", f"v{t1}"
                first = regs[:3] if len(regs) >= 3 else regs + [regs[-1]]
                a(f"v_min3_u32 {mn}, {', '.join(first)}\nv_max3_u32 {mx}, {', '.join(first)}")
                rest = regs[3:]
                for i in range(0, len(rest), 2):
                    x = rest[i]; y = rest[i+1] if i+1 < len(rest) else rest[i]
                    a(f"v_min3_u32 {mn}, {mn}, {x}, {y}\nv_max3_u32 {mx}, {mx}, {x}, {y}")
            if exp[0] == 'v':
                if mn != mx:
                    a(f"v_cmp_eq_u32 vcc, {mn}, {mx}\ns_and_b64 s[80:81], s[80:81], vcc")
                a(f"v_cmp_ne_u32 vcc, 0, {mn}\ns_and_b64 s[80:81], s[80:81], vcc")
            else:
                a(f"v_cmp_eq_u32 vcc, {exp}, {mn}\ns_and_b64 s[80:81], s[80:81], vcc")
                a(f"v_cmp_eq_u32 vcc, {exp}, {mx}\ns_and_b64 s[80:81], s[80:81], vcc")
        a("s_cmp_eq_u64 s[80:81], exec")
    def poll(s, issue, groups, t0, t1, pre_issued=False, sleep=None):
        a = s.a
        L = a.label("Lpoll"); Lw = a.label("Lpw"); Ld = a.label("Lpd")
        a(f"s_mov_b32 s78, {s.c['timeout']}")
        if pre_issued: a(f"s_branch {Lw}")
        a(f"{L}:")
        issue()
        a(f"{Lw}:")
        a("s_waitcnt vmcnt(0)")
        s.check_tags(groups, t0, t1)
        a(f"s_cbranch_scc1 {Ld}")
        sl = s.c['sleep'] if sleep is None else sleep
        if sl: a(f"s_sleep {sl}")
        a("s_sub_u32 s78, s78, 1\ns_cmp_lg_u32 s78, 0")
        a(f"s_cbranch_scc1 {L}")
        a(f"{Ld}:")
    def dpp_sum4(s, t, D):
        a = s.a
        a(f"v_mov_b32_dpp v{t}, v{D} quad_perm:[0,0,0,0] {DPPF}")
        for r in (1,2,3):
            a(f"v_add_f32_dpp v{t}, v{D+r}, v{t} quad_perm:[{r},{r},{r},{r}] {DPPF}")
    def allred_rows(s, op, x, t):
        a = s.a
        for sw in ("v_permlane32_swap_b32", "v_permlane16_swap_b32"):
            a(f"v_mov_b32 v{t}, v{x}\n{sw} v{x}, v{t}\n{op} v{x}, v{x}, v{t}")
    def allred_inrow(s, op, x):
        a = s.a
        for m in ("quad_perm:[1,0,3,2]", "quad_perm:[2,3,0,1]", "row_half_mirror", "row_mirror"):
            a(f"{op}_dpp v{x}, v{x}, v{x} {m} {DPPF}")
    def prologue(s):
        a = s.a
        a("s_cmp_ge_u32 s2, 256\ns_cbranch_scc1 L_end")
        a("s_load_dwordx16 s[16:31], s[0:1], 0\ns_load_dwordx8 s[32:39], s[0:1], 64\ns_load_dwordx4 s[40:43], s[0:1], 96")
        a("s_memrealtime s[4:5]")
        a("v_and_b32 v1, 63, v0\nv_lshrrev_b32 v7, 6, v0")
        a("v_lshlrev_b32 v6, 4, v1")
        a("v_readfirstlane_b32 s3, v7")
        a("v_and_b32 v7, 1, v1\nv_lshlrev_b32 v7, 4, v7\nv_mov_b32 v8, 0xffff\nv_lshlrev_b32 v7, v7, v8")
        a("v_bfe_u32 v8, v1, 1, 2")
        for r in range(4):
            a(f"v_cmp_eq_u32 vcc, {r}, v8\nv_cndmask_b32 v{2+r}, 0, v7, vcc")
        a("s_waitcnt lgkmcnt(0)")
        a("s_or_b32 s77, s4, 1")
        if s.c['stamp']:
            for k in range(12): a(f"s_mov_b32 s{84+k}, 0")
            a("s_mov_b32 s84, s4")
        s.srd(44, 42, 0x10000000)
        s.srd(48, 40, 256)
        a("s_cmp_lt_u32 s2, 64\ns_cbranch_scc1 L_G1")
        a("s_cmp_lt_u32 s2, 128\ns_cbranch_scc1 L_G0")
    def kv_load(s, idx, base, voff, srd, soff):
        a = s.a
        g, hf = idx//2, idx % 2
        blk = g//2
        imm = (g % 2)*2048 + hf*256
        if idx % 4 == 0 or s._last_blk != (soff, blk):
            a(f"s_add_u32 s79, s{soff}, {blk*4096}")
            s._last_blk = (soff, blk)
        a(f"buffer_load_dwordx4 {q(base+idx*4)}, v{voff}, s[{srd}:{srd+3}], s79 offen offset:{imm} {s.c['nt']}")
    def kv_addr(s, AD):
        a = s.a
        a(f"v_bfe_u32 v{AD}, v1, 2, 2\nv_lshlrev_b32 v{AD}, 9, v{AD}")
        a(f"v_lshrrev_b32 v{AD+2}, 4, v1")
        a(f"v_lshl_add_u32 v{AD}, v{AD+2}, 6, v{AD}")
        a(f"v_and_b32 v{AD+3}, 3, v1\nv_lshl_add_u32 v{AD}, v{AD+3}, 4, v{AD}")
        a(f"v_and_b32 v{AD+1}, 15, v1\nv_lshlrev_b32 v{AD+1}, 4, v{AD+1}\nv_lshl_add_u32 v{AD+1}, v{AD+2}, 9, v{AD+1}")
    def gather_qa(s, T, sg):
        a = s.a
        a(f"s_lshl_b32 s5, s{sg}, 11\ns_add_u32 s5, s5, {OFF_QA}")
        a(f"s_lshl_b32 s6, s{sg}, 5")
        a(f"v_lshrrev_b32 v{T+11}, 4, v1\nv_lshlrev_b32 v{T+11}, 2, v{T+11}\nv_mov_b32 v{T+12}, 0")
        def issue():
            a(f"buffer_load_dwordx4 {q(T)}, v6, s[44:47], s5 offen sc1")
            a(f"buffer_load_dwordx4 {q(T+4)}, v6, s[44:47], s5 offen offset:1024 sc1")
            a(f"buffer_load_dword v{T+8}, v{T+11}, s[48:51], s6 offen sc1")
            a(f"buffer_load_dword v{T+9}, v{T+11}, s[48:51], s6 offen offset:16 sc1")
            a(f"buffer_load_dword v{T+10}, v{T+12}, s[48:51], 0 offen sc1")
        s.poll(issue, [(f"v{T+8}", [T+1, T+3]), (f"v{T+9}", [T+5, T+7]), (f"v{T+10}", [])], T+13, T+14)
        a(f"v_lshlrev_b32 v{T+11}, 3, v1\nv_add_u32 v{T+11}, 0x4000, v{T+11}")
        a(f"ds_write2_b32 v{T+11}, v{T}, v{T+2} offset0:0 offset1:1")
        a(f"ds_write2_b32 v{T+11}, v{T+4}, v{T+6} offset0:128 offset1:129")
        a(f"v_mov_b32 v{T+12}, 0x4400\nds_write_b32 v{T+12}, v{T+10}")
        a("s_waitcnt lgkmcnt(0)")
    def attention(s, Kb, Vb, NG, T, AD, sKV, sg, ssplit, srdV, extra_after_v=None):
        a = s.a; c = s.c
        vK, vV = AD, AD+1
        NL = 2*NG
        v1n, v2n = min(c['v1'], NL), min(c['v2'], NL)
        s._last_blk = None
        for i in range(v1n): s.kv_load(i, Vb, vV, srdV, sKV)
        a("s_barrier")
        QF = T; D = T+8; TS = T+20
        a(f"v_bfe_u32 v{AD+4}, v1, 3, 1\nv_lshlrev_b32 v{AD+4}, 9, v{AD+4}")
        a(f"v_lshl_add_u32 v{AD+4}, v{AD+2}, 6, v{AD+4}\nv_lshl_add_u32 v{AD+4}, v{AD+3}, 4, v{AD+4}")
        a(f"ds_read_b128 {q(QF)}, v{AD+4} offset:{0x4000}\nds_read_b128 {q(QF+4)}, v{AD+4} offset:{0x4000+256}")
        a(f"v_mov_b32 v{AD+5}, 0x4400\nds_read_b32 v{AD+5}, v{AD+5}")
        a("s_waitcnt lgkmcnt(0)")
        a(f"v_readfirstlane_b32 s76, v{AD+5}")
        s.stamp(3)
        for i in range(NG+1):
            if i < NG:
                a(f"s_waitcnt vmcnt({NL-2*(i+1)+v1n})")
                d = D + (i % 3)*4
                a(f"v_mfma_f32_16x16x32_bf16 {q(d)}, {q(Kb+i*8)}, {q(QF)}, 0")
                a(f"v_mfma_f32_16x16x32_bf16 {q(d)}, {q(Kb+i*8+4)}, {q(QF+4)}, {q(d)}")
            if i >= 1:
                s.dpp_sum4(TS+i-1, D + ((i-1) % 3)*4)
        s.stamp(4)
        if c['rnd']:
            for i in range(0, NG, 2):
                j = min(i+1, NG-1)
                a(f"v_cvt_pk_bf16_f32 v{D}, v{TS+i}, v{TS+j}")
                a(f"v_lshlrev_b32 v{TS+i}, 16, v{D}")
                if j != i: a(f"v_and_b32 v{TS+j}, 0xffff0000, v{D}")
        M = D+1
        a(f"v_max3_f32 v{M}, v{TS}, v{TS+1}, v{TS+2}")
        for i in range(3, NG, 2):
            j = min(i+1, NG-1)
            a(f"v_max3_f32 v{M}, v{M}, v{TS+i}, v{TS+j}")
        a(f"v_bfe_u32 v{AD+6}, v1, 3, 1\nv_lshlrev_b32 v{AD+6}, 7, v{AD+6}")
        a(f"v_lshl_add_u32 v{AD+7}, v{AD+2}, 2, v{AD+6}")
        a(f"s_lshl_b32 s5, s3, 4\nv_add_u32 v{AD+7}, s5, v{AD+7}")
        a(f"ds_write_b32 v{AD+7}, v{M} offset:{0x4800}")
        a("s_waitcnt lgkmcnt(0)\ns_barrier")
        X = Kb + 4*NG
        for i in range(8): a(f"ds_read_b128 {q(X+4*i)}, v{AD+6} offset:{0x4800+16*i}")
        s._last_blk = None
        for i in range(v1n, v2n): s.kv_load(i, Vb, vV, srdV, sKV)
        a("s_waitcnt lgkmcnt(0)")
        a(f"v_max3_f32 v{M}, v{X}, v{X+1}, v{X+2}")
        for i in range(3, 32, 2):
            j = min(i+1, 31)
            a(f"v_max3_f32 v{M}, v{M}, v{X+i}, v{X+j}")
        a(f"s_mov_b32 s5, {f32(CEXP)}")
        a(f"v_mul_f32 v{M}, s5, v{M}")
        Lr = D+2
        for i in range(NG):
            a(f"v_fma_f32 v{TS+i}, v{TS+i}, s5, -v{M}")
        for i in range(NG):
            a(f"v_exp_f32 v{TS+i}, v{TS+i}")
        a(f"v_add_f32 v{Lr}, v{TS}, v{TS+1}")
        for i in range(2, NG): a(f"v_add_f32 v{Lr}, v{Lr}, v{TS+i}")
        a(f"ds_write_b32 v{AD+7}, v{Lr} offset:{0x4900}")
        for i in range(NG):
            a(f"v_cvt_pk_bf16_f32 v{TS+i}, v{TS+i}, v{TS+i}")
        for i in range(NG):
            for r in range(4): a(f"v_and_b32 v{Kb+4*i+r}, v{TS+i}, v{2+r}")
        a("s_waitcnt lgkmcnt(0)\ns_barrier")
        s._last_blk = None
        for i in range(v2n, NL): s.kv_load(i, Vb, vV, srdV, sKV)
        if extra_after_v: extra_after_v()
        Ls = a.label("Lst")
        a(f"s_cmp_lg_u32 s3, 3\ns_cbranch_scc1 {Ls}")
        for i in range(8): a(f"ds_read_b128 {q(X+4*i)}, v{AD+6} offset:{0x4900+16*i}")
        a("s_waitcnt lgkmcnt(0)")
        for st in (16, 8, 4, 2):
            for i in range(0, st, 2): a(f"v_pk_add_f32 {p2(X+i)}, {p2(X+i)}, {p2(X+st+i)}")
        a(f"v_add_f32 v{X+2}, v{X}, v{X+1}")
        a(f"v_mov_b32 v{X}, v{M}\nv_mov_b32 v{X+1}, s76\nv_mov_b32 v{X+3}, s76")
        a(f"v_lshlrev_b32 v{X+4}, 2, v{AD+6}")
        a(f"s_lshl_b32 s5, s{sg}, 10\ns_lshl_b32 s6, s{ssplit}, 4\ns_add_u32 s5, s5, s6\ns_add_u32 s5, s5, {OFF_STA}")
        s.exec_set(0x101, 0)
        a(f"buffer_store_dwordx4 {q(X)}, v{X+4}, s[44:47], s5 offen sc1")
        s.exec_all()
        a(f"{Ls}:")
        s.stamp(5)
        AC = T
        for i in range(NG):
            a(f"s_waitcnt vmcnt({NL-2*(i+1)})")
            for hf in range(2):
                cc = "0" if i == 0 else q(AC+4*hf)
                a(f"v_mfma_f32_16x16x32_bf16 {q(AC+4*hf)}, {q(Kb+4*i)}, {q(Vb+8*i+4*hf)}, {cc}")
        s.stamp(6)
        a(f"s_lshl_b32 s5, s3, 11\nv_add_u32 v{AD+4}, s5, v6")
        a(f"ds_write_b128 v{AD+4}, {q(AC)} offset:{0x5000}\nds_write_b128 v{AD+4}, {q(AC+4)} offset:{0x5000+1024}")
        E = T+8
        a(f"v_bfe_u32 v{E}, v0, 7, 1\nv_lshlrev_b32 v{E}, 7, v{E}")
        a(f"v_bfe_u32 v{E+1}, v0, 1, 4\nv_lshl_add_u32 v{E}, v{E+1}, 3, v{E}")
        a(f"v_bfe_u32 v{E+1}, v0, 5, 1\nv_lshl_add_u32 v{E}, v{E+1}, 2, v{E}")
        a(f"v_and_b32 v{E+1}, 1, v0\nv_lshl_add_u32 v{E}, v{E+1}, 1, v{E}")
        a(f"v_bfe_u32 v{E+1}, v0, 6, 1")
        a(f"v_lshrrev_b32 v{E+2}, 5, v{E}\nv_lshl_add_u32 v{E+2}, v{E+1}, 3, v{E+2}")
        a(f"v_mul_u32_u24 v{E+2}, 6144, v{E+2}")
        a(f"v_and_b32 v{E}, 31, v{E}\nv_lshl_add_u32 v{E+2}, v{E}, 3, v{E+2}")
        a(f"s_mul_i32 s5, s{sg}, {16*6144}\ns_lshl_b32 s6, s{ssplit}, 8\ns_add_u32 s5, s5, s6\ns_add_u32 s5, s5, {OFF_HA}")
        a(f"v_lshlrev_b32 v{E+3}, 3, v0")
        a("s_waitcnt lgkmcnt(0)\ns_barrier")
        Le = a.label("Lep")
        a(f"s_cmp_ge_u32 s3, 4\ns_cbranch_scc1 {Le}")
        for i in range(8): a(f"ds_read_b64 {p2(X+2*i)}, v{E+3} offset:{0x5000+2048*i}")
        a("s_waitcnt lgkmcnt(0)")
        for st in (8, 4, 2):
            for i in range(0, st, 2): a(f"v_pk_add_f32 {p2(X+i)}, {p2(X+i)}, {p2(X+st+i)}")
        a(f"v_mov_b32 v{X+2}, v{X+1}\nv_mov_b32 v{X+1}, s76\nv_mov_b32 v{X+3}, s76")
        a(f"buffer_store_dwordx4 {q(X)}, v{E+2}, s[44:47], s5 offen sc1")
        s.stamp(7)
        s.stamp_out()
        a("s_endpgm")
        a(f"{Le}:")
    def proj_tail(s, A0, W, T, scb, sfin):
        a = s.a
        a(f"v_permlane32_swap_b32 v{A0}, v{A0+1}\nv_add_f32 v{A0}, v{A0}, v{A0+1}")
        a(f"v_mov_b32 v{A0+1}, v{A0}\nv_permlane16_swap_b32 v{A0}, v{A0+1}\nv_add_f32 v{A0}, v{A0}, v{A0+1}")
        a(f"v_cvt_pk_bf16_f32 v{A0}, v{A0}, v{A0}")
        a(f"v_mov_b32 v{A0+1}, v{A0}")
        a(f"v_mov_b32_dpp v{A0}, v{A0+1} row_ror:8 row_mask:0xa bank_mask:0xf")
        AC = T+8
        for g in range(8):
            ab = T + (g % 2)*4
            for r in range(4): a(f"v_and_b32_dpp v{ab+r}, v{A0}, v{2+r} row_newbcast:{g} {DPPF}")
            cc = "0" if g == 0 else q(AC)
            a(f"v_mfma_f32_16x16x32_bf16 {q(AC)}, {q(ab)}, {q(W[g])}, {cc}")
        S = T+12
        a(f"v_and_b32 v{T}, 15, v1\ns_lshl_b32 s5, s{scb}, 4\nv_add_u32 v{T}, s5, v{T}")
        a(f"v_cmp_gt_u32 s[82:83], 56, v{T}")
        a(f"v_lshlrev_b32 v{T}, 13, v{T}")
        a(f"v_bfe_u32 v{T+1}, v1, 4, 1\nv_lshl_add_u32 v{T}, v{T+1}, 5, v{T}")
        a(f"v_lshrrev_b32 v{T+1}, 5, v1\nv_lshl_add_u32 v{T}, v{T+1}, 4, v{T}")
        a(f"v_cmp_gt_u32 vcc, 32, v1")
        a(f"v_mov_b32 v{S+1}, s76\nv_mov_b32 v{S+3}, s76")
        a(f"v_cndmask_b32 v{S}, v{AC+2}, v{AC}, vcc\nv_cndmask_b32 v{S+2}, v{AC+3}, v{AC+1}, vcc")
        a("s_mov_b64 exec, s[82:83]")
        a(f"buffer_store_dwordx4 {q(S)}, v{T}, s[44:47], s{sfin} offen sc1")
        s.exec_all()
    def proj_wload(s, W, vo, srd, srow, scb):
        a = s.a
        a(f"v_bfe_u32 v{vo}, v1, 4, 1\nv_lshlrev_b32 v{vo}, 4, v{vo}\nv_lshrrev_b32 v{vo+1}, 5, v1\nv_add_u32 v{vo}, v{vo}, v{vo+1}")
        a(f"v_mul_u32_u24 v{vo}, 896, v{vo}\nv_and_b32 v{vo+1}, 15, v1\nv_lshl_add_u32 v{vo}, v{vo+1}, 4, v{vo}")
        a(f"s_lshl_b32 s5, s{scb}, 8\ns_add_u32 s{srow}, s{srow}, s5")
        a(f"s_cmp_eq_u32 s{scb}, 3\ns_cselect_b32 s82, 0x00ff00ff, -1")
    def proj_wload_one(s, g, W, vo, srd, srow):
        a = s.a
        a("s_mov_b32 exec_lo, s82\ns_mov_b32 exec_hi, s82")
        a(f"s_add_u32 s79, s{srow}, {(g//2)*3584}")
        a(f"buffer_load_dwordx4 {q(W[g])}, v{vo}, s[{srd}:{srd+3}], s79 offen offset:{(g%2)*1792} {s.c['nt']}")
        s.exec_all()
    def g1(s):
        a = s.a; c = s.c; nt = c['nt']
        a("L_G1:")
        s.srd(52, 26, 896); s.srd(56, 30, 448*8192); s.srd(60, 16, 896); s.srd(64, 22, 448*8192)
        XB, XA, WB, WA, Kb, Vb, T, AD = 8, 12, 16, 48, 80, 160, 16, 240
        L = a.label("Lep7")
        a(f"s_cmp_lg_u32 s3, 7\ns_cbranch_scc1 {L}")
        a("v_mov_b32 v248, s77\nv_mov_b32 v249, 0\ns_lshl_b32 s5, s2, 2")
        s.exec_set(1, 0)
        a("buffer_store_dword v248, v249, s[48:51], s5 offen sc1")
        s.exec_all()
        a(f"{L}:")
        a("v_lshrrev_b32 v250, 3, v0\nv_lshlrev_b32 v251, 4, v250")
        a("v_lshlrev_b32 v250, 16, v250\nv_and_b32 v252, 7, v1\nv_lshl_add_u32 v250, v252, 4, v250")
        a(f"buffer_load_dwordx4 {q(XB)}, v251, s[52:55], 0 offen")
        a("s_lshl_b32 s6, s2, 7")
        for i in range(8):
            a(f"s_add_u32 s79, s6, {i*8192}")
            a(f"buffer_load_dwordx4 {q(WB+4*i)}, v250, s[56:59], s79 offen {nt}")
        a(f"buffer_load_dwordx4 {q(XA)}, v251, s[60:63], 0 offen")
        for i in range(8):
            a(f"s_add_u32 s79, s6, {i*8192}")
            a(f"buffer_load_dwordx4 {q(WA+4*i)}, v250, s[64:67], s79 offen {nt}")
        s.srd(68, 18, 8*8192*512); s.srd(72, 20, 8*8192*512)
        s.kv_addr(AD)
        a("s_lshr_b32 s9, s2, 3\ns_and_b32 s10, s2, 7")
        a(f"s_mul_i32 s8, s10, {320*512}\ns_mul_i32 s5, s3, {40*512}\ns_add_u32 s8, s8, s5\ns_lshl_b32 s5, s9, 22\ns_add_u32 s8, s8, s5")
        kp = c['kpre1']
        s._last_blk = None
        for i in range(kp): s.kv_load(i, Kb, AD, 68, 8)
        a("s_mov_b32 s12, 0x01000100\ns_mov_b32 s13, 0x03020302")
        a("s_lshl_b32 s5, s3, 10\nv_add_u32 v253, s5, v6")
        a("v_and_b32 v254, 3, v1\nv_lshlrev_b32 v254, 11, v254")
        a("v_bfe_u32 v255, v1, 2, 1\nv_lshl_add_u32 v254, v255, 8, v254")
        a("v_lshrrev_b32 v255, 3, v1\nv_lshl_add_u32 v254, v255, 4, v254")
        a("v_lshrrev_b32 v255, 2, v1\nv_lshlrev_b32 v255, 4, v255")
        for (X, W, wait, lds, off, st) in ((XB, WB, 9+kp, 0x0, OFF_QB, 1), (XA, WA, kp, 0x2000, OFF_QA, 2)):
            a(f"s_waitcnt vmcnt({wait})")
            AC = 244; AB = 248
            AB = Vb
            for i in range(8):
                ab = AB + (i % 2)*4
                a(f"v_perm_b32 v{AB+8}, v{X+i//2}, v{X+i//2}, s{12+i%2}")
                for r in range(4): a(f"v_and_b32 v{ab+r}, v{AB+8}, v{2+r}")
                cc = "0" if i == 0 else q(AC)
                a(f"v_mfma_f32_16x16x32_bf16 {q(AC)}, {q(ab)}, {q(W+4*i)}, {cc}")
            a(f"ds_write_b128 v253, {q(AC)} offset:{lds}")
            a("s_waitcnt lgkmcnt(0)\ns_barrier")
            L = a.label("Lred")
            a(f"s_cmp_lg_u32 s3, 7\ns_cbranch_scc1 {L}")
            R = Vb+16
            for kk in range(4):
                a(f"ds_read_b128 {q(R+4*kk)}, v254 offset:{lds + (kk//2)*1024 + (kk%2)*640}")
            a("s_waitcnt lgkmcnt(0)")
            for st2 in (8, 4):
                for i in range(0, st2, 2): a(f"v_pk_add_f32 {p2(R+i)}, {p2(R+i)}, {p2(R+st2+i)}")
            for m in ("quad_perm:[1,0,3,2]", "quad_perm:[2,3,0,1]"):
                for r in range(4): a(f"v_add_f32_dpp v{R+r}, v{R+r}, v{R+r} {m} {DPPF}")
            a(f"v_cvt_pk_bf16_f32 v{R}, v{R}, v{R+1}\nv_cvt_pk_bf16_f32 v{R+2}, v{R+2}, v{R+3}")
            a(f"v_mov_b32 v{R+1}, s77\nv_mov_b32 v{R+3}, s77")
            a(f"s_lshl_b32 s5, s2, 8\ns_add_u32 s5, s5, {off}")
            s.exec_set(0x11111111, 0x11111111)
            a(f"buffer_store_dwordx4 {q(R)}, v255, s[44:47], s5 offen sc1")
            s.exec_all()
            a(f"{L}:")
            s.stamp(st)
        s._last_blk = None
        kmid = max(kp, 10)
        for i in range(kp, kmid): s.kv_load(i, Kb, AD, 68, 8)
        L = a.label("Lqa")
        a(f"s_cmp_lg_u32 s3, 0\ns_cbranch_scc1 {L}")
        s.gather_qa(T, 9)
        a(f"{L}:")
        s._last_blk = None
        for i in range(kmid, 20): s.kv_load(i, Kb, AD, 68, 8)
        s.attention(Kb, Vb, 10, T, AD, 8, 9, 10, 72)
        s.stamp_out()
        a("s_endpgm")
    def g23(s):
        a = s.a; c = s.c; nt = c['nt']
        s.srd(52, 32, 1024*8192); s.srd(56, 24, 4096*896)
        s.srd(68, 18, 8*8192*512); s.srd(72, 20, 8*8192*512)
        UK, Kb, Vb, T, AD = 16, 48, 136, 224, 8
        a("s_sub_u32 s11, s2, 128")
        a("s_lshr_b32 s12, s11, 3\ns_and_b32 s13, s11, 7")
        s.kv_addr(AD)
        a(f"v_bfe_u32 v{T}, v1, 2, 2\nv_lshlrev_b32 v{T}, 15, v{T}")
        a(f"v_lshl_add_u32 v{T}, v{AD+2}, 6, v{T}\nv_lshl_add_u32 v{T}, v{AD+3}, 4, v{T}")
        a("s_lshl_b32 s5, s13, 20\ns_lshl_b32 s6, s3, 17\ns_add_u32 s5, s5, s6\ns_lshl_b32 s6, s12, 9\ns_add_u32 s5, s5, s6")
        for i in range(4):
            a(f"s_add_u32 s79, s5, {i*8192}")
            for hf in range(2):
                a(f"buffer_load_dwordx4 {q(UK+8*i+4*hf)}, v{T}, s[52:55], s79 offen offset:{hf*256} {nt}")
        a("s_lshr_b32 s9, s11, 4\ns_and_b32 s10, s11, 15")
        a(f"s_mul_i32 s8, s10, {352*512}\ns_mul_i32 s5, s3, {44*512}\ns_add_u32 s8, s8, s5\ns_lshl_b32 s5, s9, 22\ns_add_u32 s8, s8, s5")
        a(f"s_add_u32 s8, s8, {2560*512}\ns_add_u32 s10, s10, 8")
        kp = c['kpre23']
        s._last_blk = None
        for i in range(kp): s.kv_load(i, Kb, AD, 68, 8)
        L = a.label("Lqb")
        a(f"s_cmp_lg_u32 s3, 0\ns_cbranch_scc1 {L}")
        G = T+4
        a(f"s_lshl_b32 s5, s12, 10\ns_add_u32 s5, s5, {OFF_QB}\ns_lshl_b32 s6, s12, 4")
        a(f"v_lshlrev_b32 v{G+6}, 2, v{AD+2}\nv_mov_b32 v{G+7}, 0")
        def issue():
            a(f"buffer_load_dwordx4 {q(G)}, v6, s[44:47], s5 offen sc1")
            a(f"buffer_load_dword v{G+4}, v{G+6}, s[48:51], s6 offen sc1")
            a(f"buffer_load_dword v{G+5}, v{G+7}, s[48:51], 0 offen sc1")
        s.poll(issue, [(f"v{G+4}", [G+1, G+3]), (f"v{G+5}", [])], G+8, G+9, sleep=1)
        a(f"v_lshlrev_b32 v{G+6}, 3, v1")
        a(f"ds_write2_b32 v{G+6}, v{G}, v{G+2} offset0:0 offset1:1")
        a(f"ds_write_b32 v{G+7}, v{G+5} offset:512")
        a("s_waitcnt lgkmcnt(0)")
        a(f"{L}:")
        a(f"v_lshlrev_b32 v{T}, 6, v{AD+2}\nv_lshl_add_u32 v{T}, v{AD+3}, 4, v{T}\nv_mov_b32 v{T+1}, 0")
        a("s_barrier")
        s.stamp(1)
        QF = T+4; D = T+12
        a(f"ds_read_b128 {q(QF)}, v{T}\nds_read_b128 {q(QF+4)}, v{T} offset:256\nds_read_b32 v{T+1}, v{T+1} offset:512")
        a(f"s_waitcnt vmcnt({kp}) lgkmcnt(0)")
        for i in range(4):
            a(f"v_mfma_f32_16x16x32_bf16 {q(D+4*i)}, {q(UK+8*i)}, {q(QF)}, 0")
            a(f"v_mfma_f32_16x16x32_bf16 {q(D+4*i)}, {q(UK+8*i+4)}, {q(QF+4)}, {q(D+4*i)}")
        a(f"v_lshlrev_b32 v{T}, 4, v{AD+2}")
        a(f"s_lshl_b32 s5, s12, 12\ns_lshl_b32 s6, s13, 9\ns_add_u32 s5, s5, s6\ns_lshl_b32 s6, s3, 6\ns_add_u32 s5, s5, s6\ns_add_u32 s5, s5, {OFF_QABS}")
        R = T+28
        for i in range(4): s.dpp_sum4(R+i, D+4*i)
        a(f"v_cvt_pk_bf16_f32 v{R}, v{R}, v{R+1}\nv_cvt_pk_bf16_f32 v{R+2}, v{R+2}, v{R+3}")
        a(f"v_mov_b32 v{R+1}, v{T+1}\nv_mov_b32 v{R+3}, v{T+1}")
        s.exec_set(0x00010001, 0x00010001)
        a(f"buffer_store_dwordx4 {q(R)}, v{T}, s[44:47], s5 offen sc1")
        s.exec_all()
        s.stamp(2)
        L = a.label("Lqa")
        a(f"s_cmp_lg_u32 s3, 0\ns_cbranch_scc1 {L}")
        s.gather_qa(T, 9)
        a(f"{L}:")
        s._last_blk = None
        for i in range(kp, 22): s.kv_load(i, Kb, AD, 68, 8)
        W = [UK+4*i for i in range(8)]
        def extra():
            L = a.label("Lwo")
            a(f"s_cmp_lt_u32 s3, 4\ns_cbranch_scc1 {L}")
            a("s_sub_u32 s14, s3, 4")
            a(f"s_mul_i32 s15, s11, {32*896}")
            s.proj_wload(W, T+12, 56, 15, 14)
            for g in range(8): s.proj_wload_one(g, W, T+12, 56, 15)
            a(f"{L}:")
        s.attention(Kb, Vb, 11, T, AD, 8, 9, 10, 72, extra)
        ST = Kb; OG = Kb+24; WT = Kb+48; X = Kb+56
        a(f"v_lshlrev_b32 v{X}, 4, v{AD+2}")
        a(f"s_lshl_b32 s5, s12, 9\ns_add_u32 s5, s5, {OFF_STA}")
        def issue_st():
            for i in range(6): a(f"buffer_load_dwordx4 {q(ST+4*i)}, v{X}, s[44:47], s5 offen offset:{64*i} sc1")
        a(f"s_mul_i32 s6, s11, 6144\ns_add_u32 s6, s6, {OFF_HA}\ns_add_u32 s7, s6, 4096")
        def issue_o():
            for i in range(6):
                so, im = ("s6", 1024*i) if i < 4 else ("s7", 1024*(i-4))
                a(f"buffer_load_dwordx4 {q(OG+4*i)}, v6, s[44:47], {so} offen offset:{im} sc1")
        s.poll(issue_st, [("s76", [ST+4*i+k for i in range(6) for k in (1,3)])], X+1, X+2)
        issue_o()
        M = X+1
        a(f"v_max3_f32 v{M}, v{ST}, v{ST+4}, v{ST+8}\nv_max3_f32 v{M}, v{M}, v{ST+12}, v{ST+16}\nv_max_f32 v{M}, v{M}, v{ST+20}")
        s.allred_rows("v_max_f32", M, X+2)
        for i in range(6): a(f"v_sub_f32 v{WT+i}, v{ST+4*i}, v{M}")
        for i in range(6): a(f"v_exp_f32 v{WT+i}, v{WT+i}")
        Lr = X+3
        a(f"v_mul_f32 v{Lr}, v{WT}, v{ST+2}")
        for i in range(1, 6): a(f"v_fmac_f32 v{Lr}, v{WT+i}, v{ST+4*i+2}")
        s.allred_rows("v_add_f32", Lr, X+2)
        a(f"v_rcp_f32 v{Lr}, v{Lr}")
        for i in range(6): a(f"v_mul_f32 v{WT+i}, v{WT+i}, v{Lr}")
        s.stamp(8)
        s.poll(issue_o, [("s76", [OG+4*i+k for i in range(6) for k in (1,3)])], X+1, X+2, pre_issued=True, sleep=1)
        s.stamp(9)
        A0 = X+4
        a(f"v_mul_f32 v{A0}, v{WT}, v{OG}\nv_mul_f32 v{A0+1}, v{WT}, v{OG+2}")
        for i in range(1, 6): a(f"v_fmac_f32 v{A0}, v{WT+i}, v{OG+4*i}\nv_fmac_f32 v{A0+1}, v{WT+i}, v{OG+4*i+2}")
        a(f"s_lshl_b32 s15, s11, 6\ns_add_u32 s15, s15, {OFF_FIN}")
        s.proj_tail(A0, W, T, 14, 15)
        s.stamp(10)
        s.stamp_out()
        a("s_endpgm")
    def g0(s):
        a = s.a; c = s.c; nt = c['nt']
        a("L_G0:")
        s.srd(52, 28, 8192*2048); s.srd(56, 34, 1024*8192); s.srd(60, 36, 4096*896); s.srd(64, 38, 1792)
        L1, PV, C4, T = 16, 144, 208, 224
        vTR, vTR2, vL, vL2, vSX = 8, 9, 10, 11, 12
        a("s_sub_u32 s11, s2, 64")
        a("s_lshl_b32 s8, s11, 18\ns_lshl_b32 s5, s3, 12\ns_add_u32 s8, s8, s5")
        a(f"s_mul_i32 s9, s3, {2*ROW}")
        def dma(i):
            for rr in range(2):
                a(f"s_add_u32 m0, s9, {(i%4)*SLOT + rr*ROW}")
                a(f"s_add_u32 s79, s8, {i*32768 + rr*2048}")
                a(f"buffer_load_dwordx4 v6, s[52:55], s79 offen {nt} lds")
                a(f"buffer_load_dwordx4 v6, s[52:55], s79 offen offset:1024 {nt} lds")
        for i in range(3): dma(i)
        a(f"v_lshrrev_b32 v13, 2, v1\nv_mul_u32_u24 v{vTR}, {ROW}, v13")
        a(f"v_and_b32 v13, 3, v1\nv_lshl_add_u32 v{vTR}, v13, 3, v{vTR}")
        a(f"s_lshl_b32 s5, s3, 8\nv_add_u32 v{vTR}, s5, v{vTR}\nv_add_u32 v{vTR2}, {2*SLOT}, v{vTR}")
        a(f"v_and_b32 v13, 15, v1\nv_mul_u32_u24 v{vL}, {ROW}, v13\nv_lshrrev_b32 v14, 4, v1\nv_lshl_add_u32 v{vL}, v14, 4, v{vL}")
        a(f"s_lshr_b32 s12, s3, 2\ns_and_b32 s13, s3, 3\ns_lshl_b32 s5, s12, 10\nv_add_u32 v{vL}, s5, v{vL}\nv_add_u32 v{vL2}, {2*SLOT}, v{vL}")
        a(f"v_add_u32 v{vSX}, {4*SLOT}, v6")
        a("v_mov_b32 v15, 0")
        a(f"s_lshl_b32 s6, s3, 13\ns_add_u32 s6, s6, {OFF_QABS}\ns_add_u32 s7, s6, 4096")
        def issue_q():
            for i in range(8):
                so = "s6" if i < 4 else "s7"
                a(f"buffer_load_dwordx4 {q(T+4*i)}, v6, s[44:47], {so} offen offset:{1024*(i%4)} sc1")
            a(f"buffer_load_dword v7, v15, s[48:51], 0 offen sc1")
        def tr(i, dst):
            sl = i % 4
            v, o = (vTR, sl*SLOT) if sl < 2 else (vTR2, (sl-2)*SLOT)
            for t in range(8): a(f"ds_read_b64_tr_b16 {p2(dst(t))}, v{v} offset:{o+32*t}")
        gat = c['gat']
        for i in range(8):
            younger = 4*(min(i+2, 7) - i) + (9 if i > gat else 0)
            a(f"s_waitcnt vmcnt({younger}) lgkmcnt(0)\ns_barrier")
            if i+3 <= 7: dma(i+3)
            if i == gat: issue_q()
            if i < 4: tr(i, lambda t: PV + ((i//2)*8+t)*4 + (i%2)*2)
            elif i == 4: tr(i, lambda t: C4 + 2*t)
            L = a.label("Ll1")
            a(f"s_cmp_lg_u32 s13, {i//2}\ns_cbranch_scc1 {L}")
            sl = i % 4
            v, o = (vL, sl*SLOT) if sl < 2 else (vL2, (sl-2)*SLOT)
            for ks in range(16):
                a(f"ds_read_b128 {q(L1+((i%2)*16+ks)*4)}, v{v} offset:{o+64*ks}")
                if ks == 11: a("s_waitcnt lgkmcnt(4)")
            a(f"{L}:")
        s.stamp(1)
        s.poll(issue_q, [("v7", [T+4*i+k for i in range(8) for k in (1,3)])], 13, 14, pre_issued=True)
        a("v_readfirstlane_b32 s76, v7")
        a(f"v_lshlrev_b32 v13, 3, v1\nv_add_u32 v13, s9, v13\nv_add_u32 v14, {ROW}, v13")
        for i in range(8):
            o = (i % 4)*128
            if o+1 > 255:
                pass
        a("v_add_u32 v15, 1024, v13\nv_add_u32 v7, 1024, v14")
        for i in range(8):
            base = {0:13, 1:15, 2:14, 3:7}[(i//4)*2 + (i%4)//2]
            o = (i % 2)*128
            a(f"ds_write2_b32 v{base}, v{T+4*i}, v{T+4*i+2} offset0:{o} offset1:{o+1}")
        a("s_waitcnt lgkmcnt(0)\ns_barrier")
        s.stamp(2)
        S0, S1 = T+24, T+28
        NB = 6
        for ks in range(NB): a(f"ds_read_b128 {q(T+4*ks)}, v{vL} offset:{64*ks}")
        for ks in range(16):
            out = min(NB-1, 15-ks)
            a(f"s_waitcnt lgkmcnt({out})")
            qf = T + 4*(ks % NB)
            for tl, S in ((0, S0), (1, S1)):
                cc = "0" if ks == 0 else q(S)
                a(f"v_mfma_f32_16x16x32_bf16 {q(S)}, {q(L1+(tl*16+ks)*4)}, {q(qf)}, {cc}")
            if ks+NB < 16: a(f"ds_read_b128 {q(qf)}, v{vL} offset:{64*(ks+NB)}")
        a(f"s_lshl_b32 s5, s12, 13\ns_lshl_b32 s6, s13, 11\ns_add_u32 s5, s5, s6\nv_add_u32 v13, s5, v{vSX}")
        a(f"ds_write_b128 v13, {q(S0)}\nds_write_b128 v13, {q(S1)} offset:1024")
        a("s_waitcnt lgkmcnt(0)\ns_barrier")
        s.stamp(3)
        SR = L1; PV2 = L1+64; PV3 = L1+96
        for i in range(16):
            a(f"ds_read_b128 {q(SR+4*i)}, v{vSX} offset:{1024*i}")
            if i == 11: a("s_waitcnt lgkmcnt(4)")
        for t in range(8): a(f"v_mov_b64 {p2(PV2+4*t)}, {p2(C4+2*t)}")
        a("s_waitcnt lgkmcnt(0)")
        tr(5, lambda t: PV2+4*t+2)
        for i in range(0, 32, 2): a(f"v_pk_add_f32 {p2(SR+i)}, {p2(SR+i)}, {p2(SR+32+i)}")
        a("s_waitcnt lgkmcnt(0)")
        tr(6, lambda t: PV3+4*t)
        M, Lr, TT = T+16, T+18, T+20
        a(f"v_max3_f32 v{M}, v{SR}, v{SR+1}, v{SR+2}")
        for i in range(3, 32, 2):
            j = min(i+1, 31)
            a(f"v_max3_f32 v{M}, v{M}, v{SR+i}, v{SR+j}")
        s.allred_rows("v_max_f32", M, TT)
        a(f"s_mov_b32 s5, {f32(CEXP)}\nv_mul_f32 v{M}, s5, v{M}")
        a("s_waitcnt lgkmcnt(0)")
        tr(7, lambda t: PV3+4*t+2)
        for i in range(32): a(f"v_fma_f32 v{SR+i}, v{SR+i}, s5, -v{M}")
        for i in range(32): a(f"v_exp_f32 v{SR+i}, v{SR+i}")
        P = T
        for i in range(16): a(f"v_cvt_pk_bf16_f32 v{P+i}, v{SR+2*i}, v{SR+2*i+1}")
        for st in (16, 8, 4, 2):
            for i in range(0, st, 2): a(f"v_pk_add_f32 {p2(SR+i)}, {p2(SR+i)}, {p2(SR+st+i)}")
        a(f"v_add_f32 v{Lr}, v{SR}, v{SR+1}")
        s.allred_rows("v_add_f32", Lr, TT)
        a(f"v_mov_b32 v{M+1}, s76\nv_mov_b32 v{Lr+1}, s76")
        L = a.label("Lst3")
        a(f"v_lshlrev_b32 v{TT}, 10, v1")
        a(f"s_cmp_lg_u32 s3, 0\ns_cbranch_scc1 {L}")
        a(f"s_lshl_b32 s5, s11, 4\ns_add_u32 s5, s5, {OFF_ST3}")
        s.exec_set(0xffff, 0)
        a(f"buffer_store_dwordx4 {q(M)}, v{TT}, s[44:47], s5 offen sc1")
        s.exec_all()
        a(f"{L}:")
        O, SQ = L1, L1+32
        for t in range(8): a(f"v_mov_b32 v{SQ+4*t+1}, s76\nv_mov_b32 v{SQ+4*t+3}, s76")
        a(f"v_and_b32 v13, 15, v1\nv_lshlrev_b32 v13, 18, v13\nv_lshrrev_b32 v14, 4, v1\nv_lshl_add_u32 v13, v14, 4, v13")
        a(f"s_lshl_b32 s6, s3, 15\ns_lshl_b32 s5, s11, 7\ns_add_u32 s6, s6, s5\ns_add_u32 s6, s6, {OFF_H3}")
        a(f"v_and_b32 v15, 15, v1\nv_lshlrev_b32 v15, 4, v15\nv_lshl_add_u32 v15, v14, 13, v15")
        a("s_lshr_b32 s12, s11, 2\ns_and_b32 s13, s11, 3")
        a("s_lshl_b32 s7, s13, 21\ns_lshl_b32 s5, s3, 18\ns_add_u32 s7, s7, s5\ns_lshl_b32 s5, s12, 9\ns_add_u32 s7, s7, s5")
        a("s_and_b32 s14, s3, 3\ns_lshr_b32 s10, s3, 2")
        a(f"s_lshl_b32 s15, s11, 1\ns_add_u32 s15, s15, s10\ns_mul_i32 s15, s15, {32*896}")
        WO = [PV2+4*t for t in range(8)]
        s.proj_wload(WO, T+20, 60, 15, 14)
        a("s_waitcnt lgkmcnt(0)")
        ops = [lambda t: PV+4*t, lambda t: PV+32+4*t, lambda t: PV2+4*t, lambda t: PV3+4*t]
        def fin(t):
            a(f"v_cvt_pk_bf16_f32 v{SQ+4*t}, v{O+4*t}, v{O+4*t+1}\nv_cvt_pk_bf16_f32 v{SQ+4*t+2}, v{O+4*t+2}, v{O+4*t+3}")
            a(f"s_add_u32 s79, s6, {(t//2)*8192}")
            a(f"buffer_store_dwordx4 {q(SQ+4*t)}, v13, s[44:47], s79 offen offset:{(t%2)*64} sc1")
        for t in range(8):
            for pr in range(4):
                cc = "0" if pr == 0 else q(O+4*t)
                a(f"v_mfma_f32_16x16x32_bf16 {q(O+4*t)}, {q(ops[pr](t))}, {q(P+4*pr)}, {cc}")
            if t >= 2: fin(t-2)
        fin(6); fin(7)
        s.stamp(4)
        for t in range(8):
            a(f"s_add_u32 s79, s7, {t*4*8192}")
            a(f"buffer_load_dwordx4 {q(PV+4*t)}, v15, s[56:59], s79 offen {nt}")
            a(f"buffer_load_dwordx4 {q(PV+32+4*t)}, v15, s[56:59], s79 offen offset:256 {nt}")
        for t in range(8): s.proj_wload_one(t, WO, T+20, 60, 15)
        HG = PV3; STQ = T
        a(f"v_and_b32 v13, 7, v1\nv_lshlrev_b32 v13, 3, v13\nv_lshrrev_b32 v14, 3, v1\nv_add_u32 v13, v13, v14\nv_lshlrev_b32 v13, 4, v13")
        a(f"s_lshl_b32 s5, s12, 10\ns_add_u32 s5, s5, {OFF_ST3}")
        a(f"s_lshl_b32 s6, s11, 16\ns_lshl_b32 s7, s3, 13\ns_add_u32 s6, s6, s7\ns_add_u32 s6, s6, {OFF_H3}\ns_add_u32 s7, s6, 4096")
        def issue_h3():
            a(f"buffer_load_dwordx4 {q(STQ)}, v13, s[44:47], s5 offen sc1")
            for i in range(8):
                so = "s6" if i < 4 else "s7"
                a(f"buffer_load_dwordx4 {q(HG+4*i)}, v6, s[44:47], {so} offen offset:{1024*(i%4)} sc1")
        s.poll(issue_h3, [("s76", [STQ+1, STQ+3] + [HG+4*i+k for i in range(8) for k in (1,3)])], T+4, T+5)
        s.stamp(5)
        M, E_, Lr, TT = T+4, T+5, T+6, T+7
        a(f"v_mov_b32 v{M}, v{STQ}")
        s.allred_inrow("v_max_f32", M); s.allred_rows("v_max_f32", M, TT)
        a(f"v_sub_f32 v{E_}, v{STQ}, v{M}\nv_exp_f32 v{E_}, v{E_}\nv_mul_f32 v{Lr}, v{E_}, v{STQ+2}")
        s.allred_inrow("v_add_f32", Lr); s.allred_rows("v_add_f32", Lr, TT)
        a(f"v_rcp_f32 v{Lr}, v{Lr}\nv_mul_f32 v{E_}, v{E_}, v{Lr}")
        WB = 4*SLOT + 16384
        a(f"s_lshl_b32 s5, s3, 8\ns_add_u32 s5, s5, {WB}")
        a(f"v_lshlrev_b32 v13, 2, v1\nv_add_u32 v13, s5, v13\nv_lshlrev_b32 v14, 5, v14\nv_add_u32 v14, s5, v14")
        a(f"ds_write_b32 v13, v{E_}\ns_waitcnt lgkmcnt(0)")
        WW = T+8
        a(f"ds_read_b128 {q(WW)}, v14\nds_read_b128 {q(WW+4)}, v14 offset:16")
        for i in range(8):
            b = HG+4*i
            a(f"v_and_b32 v{b+1}, 0xffff0000, v{b}\nv_lshlrev_b32 v{b}, 16, v{b}\nv_and_b32 v{b+3}, 0xffff0000, v{b+2}\nv_lshlrev_b32 v{b+2}, 16, v{b+2}")
        a("s_waitcnt lgkmcnt(0)")
        AC = T+16
        for i in range(8):
            for k in range(4):
                a(f"v_mul_f32 v{AC+k}, v{WW}, v{HG+k}" if i == 0 else f"v_fmac_f32 v{AC+k}, v{WW+i}, v{HG+4*i+k}")
        for k in range(4): a(f"v_add_f32_dpp v{AC+k}, v{AC+k}, v{AC+k} row_ror:8 {DPPF}")
        a(f"v_permlane32_swap_b32 v{AC}, v{AC+2}\nv_permlane32_swap_b32 v{AC+1}, v{AC+3}")
        a(f"v_add_f32 v{AC}, v{AC}, v{AC+2}\nv_add_f32 v{AC+1}, v{AC+1}, v{AC+3}")
        a(f"v_permlane16_swap_b32 v{AC}, v{AC+1}\nv_add_f32 v{AC}, v{AC}, v{AC+1}")
        a(f"v_cvt_pk_bf16_f32 v{AC}, v{AC}, v{AC}")
        DD = T+24
        for g in range(8):
            ab = T + (g % 2)*4
            for r in range(4): a(f"v_and_b32_dpp v{ab+r}, v{AC}, v{2+r} row_newbcast:{g} {DPPF}")
            for hf in range(2):
                cc = "0" if g == 0 else q(DD+4*hf)
                a(f"v_mfma_f32_16x16x32_bf16 {q(DD+4*hf)}, {q(ab)}, {q(PV+32*hf+4*g)}, {cc}")
        a(f"s_lshl_b32 s5, s3, 11\nv_add_u32 v13, s5, v6")
        E = T+8
        a(f"v_bfe_u32 v{E}, v0, 7, 1\nv_lshlrev_b32 v{E}, 7, v{E}")
        a(f"v_bfe_u32 v{E+1}, v0, 1, 4\nv_lshl_add_u32 v{E}, v{E+1}, 3, v{E}")
        a(f"v_bfe_u32 v{E+1}, v0, 5, 1\nv_lshl_add_u32 v{E}, v{E+1}, 2, v{E}")
        a(f"v_and_b32 v{E+1}, 1, v0\nv_lshl_add_u32 v{E}, v{E+1}, 1, v{E}\nv_lshlrev_b32 v{E}, 3, v{E}")
        a(f"v_lshlrev_b32 v{E+3}, 3, v0")
        a(f"s_lshl_b32 s5, s11, 11\ns_add_u32 s5, s5, {OFF_H4}")
        a(f"ds_write_b128 v13, {q(DD)}\nds_write_b128 v13, {q(DD+4)} offset:1024")
        a("s_waitcnt lgkmcnt(0)\ns_barrier")
        L = a.label("Lb4e")
        a(f"s_and_b32 s6, s3, 5\ns_cmp_lg_u32 s6, 0\ns_cbranch_scc1 {L}")
        X = L1
        for i in range(8): a(f"ds_read_b64 {p2(X+2*i)}, v{E+3} offset:{2048*i}")
        a("s_waitcnt lgkmcnt(0)")
        for st in (8, 4, 2):
            for i in range(0, st, 2): a(f"v_pk_add_f32 {p2(X+i)}, {p2(X+i)}, {p2(X+st+i)}")
        a(f"v_mov_b32 v{X+2}, v{X+1}\nv_mov_b32 v{X+1}, s76\nv_mov_b32 v{X+3}, s76")
        a(f"buffer_store_dwordx4 {q(X)}, v{E}, s[44:47], s5 offen sc1")
        a(f"{L}:")
        s.stamp(6)
        a(f"v_lshrrev_b32 v13, 4, v1\nv_lshlrev_b32 v13, 11, v13\nv_and_b32 v14, 15, v1\nv_lshl_add_u32 v13, v14, 4, v13")
        a(f"s_lshl_b32 s5, s12, 13\ns_lshl_b32 s6, s13, 9\ns_add_u32 s5, s5, s6\ns_lshl_b32 s6, s10, 8\ns_add_u32 s5, s5, s6\ns_add_u32 s5, s5, {OFF_H4}")
        G = L1+16
        s.poll(lambda: a(f"buffer_load_dwordx4 {q(G)}, v13, s[44:47], s5 offen sc1"), [("s76", [G+1, G+3])], G+4, G+5, sleep=1)
        a(f"v_mov_b32 v{G+1}, v{G+2}")
        a(f"s_lshl_b32 s15, s11, 1\ns_add_u32 s15, s15, s10\ns_lshl_b32 s15, s15, 6\ns_add_u32 s15, s15, {OFF_FIN+FIN_AB}")
        s.proj_tail(G, WO, T, 14, 15)
        s.stamp(7)
        a("s_cmp_ge_u32 s11, 56\ns_cbranch_scc1 L_g0end\ns_cmp_ge_u32 s3, 2\ns_cbranch_scc1 L_g0end")
        a("s_xor_b32 s10, s3, 1")
        a(f"s_mul_i32 s6, s10, {FIN_AB}\ns_lshl_b32 s5, s11, 13\ns_add_u32 s6, s6, s5\ns_add_u32 s6, s6, {OFF_FIN}\ns_add_u32 s7, s6, 4096")
        F = L1+32
        def issue_f():
            for i in range(8):
                so = "s6" if i < 4 else "s7"
                a(f"buffer_load_dwordx4 {q(F+4*i)}, v6, s[44:47], {so} offen offset:{1024*(i%4)} sc1")
        a("s_mul_i32 s15, s10, 896\ns_lshl_b32 s5, s11, 4\ns_add_u32 s15, s15, s5\nv_lshlrev_b32 v13, 2, v1")
        s.poll(issue_f, [("s76", [F+4*i+k for i in range(8) for k in (1,3)])], T, T+1, sleep=c.get('fsleep', 2))
        s.stamp(8)
        for st in (16, 8, 4):
            for i in range(0, st, 4):
                a(f"v_add_f32 v{F+i}, v{F+i}, v{F+st+i}\nv_add_f32 v{F+i+2}, v{F+i+2}, v{F+st+i+2}")
        for m in ("row_ror:8", "row_ror:4"):
            for k in (0, 2): a(f"v_add_f32_dpp v{F+k}, v{F+k}, v{F+k} {m} {DPPF}")
        for k in (0, 2): s.allred_rows("v_add_f32", F+k, F+k+1)
        a(f"v_cvt_pk_bf16_f32 v{F}, v{F}, v{F+2}")
        s.exec_set(0xf, 0)
        a(f"buffer_store_dword v{F}, v13, s[64:67], s15 offen")
        s.exec_all()
        s.stamp(9)
        a("L_g0end:")
        s.stamp_out()
        a("s_endpgm")
    def build(s):
        a = s.a
        s.prologue()
        s.g23(); s.g1(); s.g0()
        a("L_end:\ns_endpgm")
        body = a.finish()
        hdr = open("concat_heads__gqa_block_cached__compressed_kv_cla__decode.s.ref").read().split("; @launch")[0]
        out = hdr + "; @launch grid=(256,1,1) block=(512,1,1) lds=163840\n"
        out += "; generated by scratch/gen.py (own generator)\n"
        out += f'.amdgcn_target "amdgcn-amd-amdhsa--gfx950"\n.text\n.globl {KN}\n.p2align 8\n.type {KN},@function\n{KN}:\n'
        out += body
        out += f""".section .rodata,"a"
.p2align 6
.amdhsa_kernel {KN}
  .amdhsa_next_free_vgpr 256
  .amdhsa_next_free_sgpr 102
  .amdhsa_accum_offset 256
  .amdhsa_group_segment_fixed_size 0
  .amdhsa_kernarg_size 112
  .amdhsa_user_sgpr_count 2
  .amdhsa_user_sgpr_kernarg_segment_ptr 1
  .amdhsa_system_sgpr_workgroup_id_x 1
.end_amdhsa_kernel
"""
        return out
if __name__ == "__main__":
    from build import build
    name = sys.argv[1]
    cfg = {}
    for kv in sys.argv[2:]:
        k, v = kv.split("=")
        cfg[k] = v if k == "nt" else int(v)
    open(name, "w").write(Gen(**cfg).build())
    print(build(name))
```

```python
import sys, math
from asmlib import Asm
KN = "concat_heads__gqa_block_cached__compressed_kv_cla__decode_kernel"
OFF_QB, OFF_QA, OFF_QABS, OFF_ST3, OFF_STA, OFF_H4, OFF_HA, OFF_FIN, OFF_H3 = \
    0x0, 0x4000, 0x10000, 0x20000, 0x24000, 0x40000, 0x80000, 0x200000, 0x400000
FIN_CG = 8192+128
FIN_AB = 56*FIN_CG
HA_U = 6144+128
H3_W = 8192+128
H3_C = 8*H3_W+128
OFF_STAMP = 0x8000000
ROW = 2080; SLOT = 16*ROW
CEXP = math.log2(math.e)/16.0
import struct
def f32(x): return "0x%08x" % struct.unpack("<I", struct.pack("<f", x))[0]
def q(b): return f"v[{b}:{b+3}]"
def p2(b): return f"v[{b}:{b+1}]"
DPPF = "row_mask:0xf bank_mask:0xf"

class Gen:
    def __init__(s, **cfg):
        s.c = dict(stamp=False, kpre23=0, kpre1=4, nt="nt", sleep=4, timeout=200000, v1=10, v2=16, gat=6, rnd=True, tj=1, pk=4, pv=4, pw=4, pf=0, xnt=0)
        s.c.update(cfg)
        s.a = Asm()
    def srd(s, base, ptr, nbytes):
        a = s.a
        a(f"s_mov_b32 s{base}, s{ptr}\ns_mov_b32 s{base+1}, s{ptr+1}\ns_mov_b32 s{base+2}, {nbytes}\ns_mov_b32 s{base+3}, 0x20000")
    def stamp(s, k):
        if s.c['stamp']:
            s.a(f"s_memrealtime s[98:99]\ns_waitcnt lgkmcnt(0)\ns_mov_b32 s{84+k}, s98")
    def stamp_out(s):
        if not s.c['stamp']: return
        a = s.a
        a("s_mov_b64 exec, -1")
        a("v_mov_b32 v8, 0")
        for k in range(12): a(f"v_writelane_b32 v8, s{84+k}, {k}")
        a("v_lshlrev_b32 v9, 2, v1")
        a("s_lshl_b32 s4, s2, 3\ns_add_u32 s4, s4, s3\ns_lshl_b32 s4, s4, 6")
        a(f"s_add_u32 s4, s4, {OFF_STAMP}")
        a("s_mov_b32 exec_lo, 0xffff\ns_mov_b32 exec_hi, 0")
        a("buffer_store_dword v8, v9, s[44:47], s4 offen")
    def exec_set(s, lo, hi):
        s.a(f"s_mov_b32 exec_lo, {lo:#x}\ns_mov_b32 exec_hi, {hi:#x}")
    def exec_all(s): s.a("s_mov_b64 exec, -1")
    def check_tags(s, groups, t0, t1):
        a = s.a
        a("s_mov_b64 s[80:81], exec")
        for exp, tags in groups:
            regs = [f"v{t}" for t in tags]
            if exp[0] == 'v': regs = [exp] + regs
            if len(regs) == 1:
                mn = mx = regs[0]
            else:
                mn, mx = f"v{t0}", f"v{t1}"
                first = regs[:3] if len(regs) >= 3 else regs + [regs[-1]]
                a(f"v_min3_u32 {mn}, {', '.join(first)}\nv_max3_u32 {mx}, {', '.join(first)}")
                rest = regs[3:]
                for i in range(0, len(rest), 2):
                    x = rest[i]; y = rest[i+1] if i+1 < len(rest) else rest[i]
                    a(f"v_min3_u32 {mn}, {mn}, {x}, {y}\nv_max3_u32 {mx}, {mx}, {x}, {y}")
            if exp[0] == 'v':
                if mn != mx:
                    a(f"v_cmp_eq_u32 vcc, {mn}, {mx}\ns_and_b64 s[80:81], s[80:81], vcc")
                a(f"v_cmp_ne_u32 vcc, 0, {mn}\ns_and_b64 s[80:81], s[80:81], vcc")
            else:
                a(f"v_cmp_eq_u32 vcc, {exp}, {mn}\ns_and_b64 s[80:81], s[80:81], vcc")
                a(f"v_cmp_eq_u32 vcc, {exp}, {mx}\ns_and_b64 s[80:81], s[80:81], vcc")
        a("s_cmp_eq_u64 s[80:81], exec")
    def poll(s, issue, groups, t0, t1, pre_issued=False, sleep=None):
        a = s.a
        L = a.label("Lpoll"); Lw = a.label("Lpw"); Ld = a.label("Lpd")
        a(f"s_mov_b32 s78, {s.c['timeout']}")
        if pre_issued: a(f"s_branch {Lw}")
        a(f"{L}:")
        issue()
        a(f"{Lw}:")
        a("s_waitcnt vmcnt(0)")
        s.check_tags(groups, t0, t1)
        a(f"s_cbranch_scc1 {Ld}")
        sl = s.c['sleep'] if sleep is None else sleep
        if sl: a(f"s_sleep {sl}")
        a("s_sub_u32 s78, s78, 1\ns_cmp_lg_u32 s78, 0")
        a(f"s_cbranch_scc1 {L}")
        a(f"{Ld}:")
    def dpp_sum4(s, t, D):
        a = s.a
        a(f"v_mov_b32_dpp v{t}, v{D} quad_perm:[0,0,0,0] {DPPF}")
        for r in (1,2,3):
            a(f"v_add_f32_dpp v{t}, v{D+r}, v{t} quad_perm:[{r},{r},{r},{r}] {DPPF}")
    def allred_rows(s, op, x, t):
        a = s.a
        for sw in ("v_permlane32_swap_b32", "v_permlane16_swap_b32"):
            a(f"v_mov_b32 v{t}, v{x}\n{sw} v{x}, v{t}\n{op} v{x}, v{x}, v{t}")
    def allred_inrow(s, op, x):
        a = s.a
        for m in ("quad_perm:[1,0,3,2]", "quad_perm:[2,3,0,1]", "row_half_mirror", "row_mirror"):
            a(f"{op}_dpp v{x}, v{x}, v{x} {m} {DPPF}")
    def prologue(s):
        a = s.a
        a("s_cmp_ge_u32 s2, 256\ns_cbranch_scc1 L_end")
        a("s_load_dwordx16 s[16:31], s[0:1], 0\ns_load_dwordx8 s[32:39], s[0:1], 64\ns_load_dwordx4 s[40:43], s[0:1], 96")
        a("s_memrealtime s[4:5]")
        a("v_and_b32 v1, 63, v0\nv_lshrrev_b32 v7, 6, v0")
        a("v_lshlrev_b32 v6, 4, v1")
        a("v_readfirstlane_b32 s3, v7")
        if s.c['pf']:
            a("s_getpc_b64 s[6:7]")
            a("s_and_b32 s6, s6, 0xffffff00")
            a("v_lshlrev_b32 v9, 6, v0")
            a(f"v_min_u32 v9, L_end-{KN}, v9")
            a(f"global_load_dword v140, v9, s[6:7]" + (" nt" if s.c['pf'] == 2 else ""))
        a("v_and_b32 v7, 1, v1\nv_lshlrev_b32 v7, 4, v7\nv_mov_b32 v8, 0xffff\nv_lshlrev_b32 v7, v7, v8")
        a("v_bfe_u32 v8, v1, 1, 2")
        for r in range(4):
            a(f"v_cmp_eq_u32 vcc, {r}, v8\nv_cndmask_b32 v{2+r}, 0, v7, vcc")
        a("s_waitcnt lgkmcnt(0)")
        a("s_or_b32 s77, s4, 1")
        if s.c['stamp']:
            for k in range(12): a(f"s_mov_b32 s{84+k}, 0")
            a("s_mov_b32 s84, s4")
        s.srd(44, 42, 0x10000000)
        s.srd(48, 40, 256)
        a("s_cmp_lt_u32 s2, 64\ns_cbranch_scc1 L_G1")
        a("s_cmp_lt_u32 s2, 128\ns_cbranch_scc1 L_G0")
    def kv_load(s, idx, base, voff, srd, soff, pace=0):
        a = s.a
        g, hf = idx//2, idx % 2
        blk = g//2
        imm = (g % 2)*2048 + hf*256
        if idx % 4 == 0 or s._last_blk != (soff, blk):
            a(f"s_add_u32 s79, s{soff}, {blk*4096}")
            s._last_blk = (soff, blk)
        if pace: a(f"s_waitcnt vmcnt({pace-1})")
        a(f"buffer_load_dwordx4 {q(base+idx*4)}, v{voff}, s[{srd}:{srd+3}], s79 offen offset:{imm} {s.c['nt']}")
    def kv_addr(s, AD):
        a = s.a
        a(f"v_bfe_u32 v{AD}, v1, 2, 2\nv_lshlrev_b32 v{AD}, 9, v{AD}")
        a(f"v_lshrrev_b32 v{AD+2}, 4, v1")
        a(f"v_lshl_add_u32 v{AD}, v{AD+2}, 6, v{AD}")
        a(f"v_and_b32 v{AD+3}, 3, v1\nv_lshl_add_u32 v{AD}, v{AD+3}, 4, v{AD}")
        a(f"v_and_b32 v{AD+1}, 15, v1\nv_lshlrev_b32 v{AD+1}, 4, v{AD+1}\nv_lshl_add_u32 v{AD+1}, v{AD+2}, 9, v{AD+1}")
    def gather_qa(s, T, sg):
        a = s.a
        a(f"s_lshl_b32 s5, s{sg}, 11\ns_add_u32 s5, s5, {OFF_QA}")
        a(f"s_lshl_b32 s6, s{sg}, 5")
        a(f"v_lshrrev_b32 v{T+11}, 4, v1\nv_lshlrev_b32 v{T+11}, 2, v{T+11}\nv_mov_b32 v{T+12}, 0")
        def issue():
            a(f"buffer_load_dwordx4 {q(T)}, v6, s[44:47], s5 offen sc1")
            a(f"buffer_load_dwordx4 {q(T+4)}, v6, s[44:47], s5 offen offset:1024 sc1")
            a(f"buffer_load_dword v{T+8}, v{T+11}, s[48:51], s6 offen sc1")
            a(f"buffer_load_dword v{T+9}, v{T+11}, s[48:51], s6 offen offset:16 sc1")
            a(f"buffer_load_dword v{T+10}, v{T+12}, s[48:51], 0 offen sc1")
        s.poll(issue, [(f"v{T+8}", [T+1, T+3]), (f"v{T+9}", [T+5, T+7]), (f"v{T+10}", [])], T+13, T+14)
        a(f"v_lshlrev_b32 v{T+11}, 3, v1\nv_add_u32 v{T+11}, 0x4000, v{T+11}")
        a(f"ds_write2_b32 v{T+11}, v{T}, v{T+2} offset0:0 offset1:1")
        a(f"ds_write2_b32 v{T+11}, v{T+4}, v{T+6} offset0:128 offset1:129")
        a(f"v_mov_b32 v{T+12}, 0x4400\nds_write_b32 v{T+12}, v{T+10}")
        a("s_waitcnt lgkmcnt(0)")
    def attention(s, Kb, Vb, NG, T, AD, sKV, sg, ssplit, srdV, extra_after_v=None):
        a = s.a; c = s.c
        vK, vV = AD, AD+1
        NL = 2*NG
        v1n, v2n = min(c['v1'], NL), min(c['v2'], NL)
        s._last_blk = None
        for i in range(v1n): s.kv_load(i, Vb, vV, srdV, sKV, c['pv'])
        a("s_barrier")
        QF = T; D = T+8; TS = T+20
        a(f"v_bfe_u32 v{AD+4}, v1, 3, 1\nv_lshlrev_b32 v{AD+4}, 9, v{AD+4}")
        a(f"v_lshl_add_u32 v{AD+4}, v{AD+2}, 6, v{AD+4}\nv_lshl_add_u32 v{AD+4}, v{AD+3}, 4, v{AD+4}")
        a(f"ds_read_b128 {q(QF)}, v{AD+4} offset:{0x4000}\nds_read_b128 {q(QF+4)}, v{AD+4} offset:{0x4000+256}")
        a(f"v_mov_b32 v{AD+5}, 0x4400\nds_read_b32 v{AD+5}, v{AD+5}")
        a("s_waitcnt lgkmcnt(0)")
        a(f"v_readfirstlane_b32 s76, v{AD+5}")
        s.stamp(3)
        for i in range(NG+1):
            if i < NG:
                a(f"s_waitcnt vmcnt({NL-2*(i+1)+v1n})")
                d = D + (i % 3)*4
                a(f"v_mfma_f32_16x16x32_bf16 {q(d)}, {q(Kb+i*8)}, {q(QF)}, 0")
                a(f"v_mfma_f32_16x16x32_bf16 {q(d)}, {q(Kb+i*8+4)}, {q(QF+4)}, {q(d)}")
            if i >= 1:
                s.dpp_sum4(TS+i-1, D + ((i-1) % 3)*4)
        s.stamp(4)
        if c['rnd']:
            for i in range(0, NG, 2):
                j = min(i+1, NG-1)
                a(f"v_cvt_pk_bf16_f32 v{D}, v{TS+i}, v{TS+j}")
                a(f"v_lshlrev_b32 v{TS+i}, 16, v{D}")
                if j != i: a(f"v_and_b32 v{TS+j}, 0xffff0000, v{D}")
        M = D+1
        a(f"v_max3_f32 v{M}, v{TS}, v{TS+1}, v{TS+2}")
        for i in range(3, NG, 2):
            j = min(i+1, NG-1)
            a(f"v_max3_f32 v{M}, v{M}, v{TS+i}, v{TS+j}")
        a(f"v_bfe_u32 v{AD+6}, v1, 3, 1\nv_lshlrev_b32 v{AD+6}, 7, v{AD+6}")
        a(f"v_lshl_add_u32 v{AD+7}, v{AD+2}, 2, v{AD+6}")
        a(f"s_lshl_b32 s5, s3, 4\nv_add_u32 v{AD+7}, s5, v{AD+7}")
        a(f"ds_write_b32 v{AD+7}, v{M} offset:{0x4800}")
        a("s_waitcnt lgkmcnt(0)\ns_barrier")
        X = Kb + 4*NG
        for i in range(8): a(f"ds_read_b128 {q(X+4*i)}, v{AD+6} offset:{0x4800+16*i}")
        s._last_blk = None
        for i in range(v1n, v2n): s.kv_load(i, Vb, vV, srdV, sKV, c['pv'])
        a("s_waitcnt lgkmcnt(0)")
        a(f"v_max3_f32 v{M}, v{X}, v{X+1}, v{X+2}")
        for i in range(3, 32, 2):
            j = min(i+1, 31)
            a(f"v_max3_f32 v{M}, v{M}, v{X+i}, v{X+j}")
        a(f"s_mov_b32 s5, {f32(CEXP)}")
        a(f"v_mul_f32 v{M}, s5, v{M}")
        Lr = D+2
        for i in range(NG):
            a(f"v_fma_f32 v{TS+i}, v{TS+i}, s5, -v{M}")
        for i in range(NG):
            a(f"v_exp_f32 v{TS+i}, v{TS+i}")
        a(f"v_add_f32 v{Lr}, v{TS}, v{TS+1}")
        for i in range(2, NG): a(f"v_add_f32 v{Lr}, v{Lr}, v{TS+i}")
        a(f"ds_write_b32 v{AD+7}, v{Lr} offset:{0x4900}")
        for i in range(NG):
            a(f"v_cvt_pk_bf16_f32 v{TS+i}, v{TS+i}, v{TS+i}")
        for i in range(NG):
            for r in range(4): a(f"v_and_b32 v{Kb+4*i+r}, v{TS+i}, v{2+r}")
        a("s_waitcnt lgkmcnt(0)\ns_barrier")
        Ls = a.label("Lst")
        a(f"s_cmp_lg_u32 s3, 3\ns_cbranch_scc1 {Ls}")
        for i in range(8): a(f"ds_read_b128 {q(X+4*i)}, v{AD+6} offset:{0x4900+16*i}")
        a("s_waitcnt lgkmcnt(0)")
        for st in (16, 8, 4, 2):
            for i in range(0, st, 2): a(f"v_pk_add_f32 {p2(X+i)}, {p2(X+i)}, {p2(X+st+i)}")
        a(f"v_add_f32 v{X+2}, v{X}, v{X+1}")
        a(f"v_mov_b32 v{X}, v{M}\nv_mov_b32 v{X+1}, s76\nv_mov_b32 v{X+3}, s76")
        a(f"v_lshlrev_b32 v{X+4}, 2, v{AD+6}")
        a(f"s_lshl_b32 s5, s{sg}, 10\ns_lshl_b32 s6, s{ssplit}, 4\ns_add_u32 s5, s5, s6\ns_add_u32 s5, s5, {OFF_STA}")
        s.exec_set(0x101, 0)
        a(f"buffer_store_dwordx4 {q(X)}, v{X+4}, s[44:47], s5 offen sc1")
        s.exec_all()
        a(f"{Ls}:")
        s.stamp(5)
        AC = T
        s._last_blk = None
        for i in range(v2n, NL): s.kv_load(i, Vb, vV, srdV, sKV, c['pv'])
        if extra_after_v: extra_after_v()
        for i in range(NG):
            a(f"s_waitcnt vmcnt({NL-2*(i+1)})")
            for hf in range(2):
                cc = "0" if i == 0 else q(AC+4*hf)
                a(f"v_mfma_f32_16x16x32_bf16 {q(AC+4*hf)}, {q(Kb+4*i)}, {q(Vb+8*i+4*hf)}, {cc}")
        s.stamp(6)
        a(f"s_lshl_b32 s5, s3, 11\nv_add_u32 v{AD+4}, s5, v6")
        a(f"ds_write_b128 v{AD+4}, {q(AC)} offset:{0x5000}\nds_write_b128 v{AD+4}, {q(AC+4)} offset:{0x5000+1024}")
        E = T+8
        a(f"v_bfe_u32 v{E+3}, v0, 6, 1\nv_lshlrev_b32 v{E+3}, 10, v{E+3}")
        a(f"v_bfe_u32 v{E+1}, v0, 7, 1\nv_lshl_add_u32 v{E+3}, v{E+1}, 9, v{E+3}")
        a(f"v_bfe_u32 v{E+1}, v0, 1, 1\nv_lshl_add_u32 v{E+3}, v{E+1}, 8, v{E+3}")
        a(f"v_bfe_u32 v{E+1}, v0, 2, 4\nv_lshl_add_u32 v{E+3}, v{E+1}, 4, v{E+3}")
        a(f"v_and_b32 v{E+1}, 1, v0\nv_lshl_add_u32 v{E+3}, v{E+1}, 3, v{E+3}")
        a(f"v_bfe_u32 v{E+2}, v0, 4, 4\nv_mul_u32_u24 v{E+2}, {HA_U}, v{E+2}")
        a(f"v_and_b32 v{E}, 15, v0\nv_lshl_add_u32 v{E+2}, v{E}, 4, v{E+2}")
        a(f"s_mul_i32 s5, s{sg}, {16*HA_U}\ns_lshl_b32 s6, s{ssplit}, 8\ns_add_u32 s5, s5, s6\ns_add_u32 s5, s5, {OFF_HA}")
        a("s_waitcnt lgkmcnt(0)\ns_barrier")
        Le = a.label("Lep")
        a(f"s_cmp_ge_u32 s3, 4\ns_cbranch_scc1 {Le}")
        for i in range(8): a(f"ds_read_b64 {p2(X+2*i)}, v{E+3} offset:{0x5000+2048*i}")
        a("s_waitcnt lgkmcnt(0)")
        for st in (8, 4, 2):
            for i in range(0, st, 2): a(f"v_pk_add_f32 {p2(X+i)}, {p2(X+i)}, {p2(X+st+i)}")
        a(f"v_mov_b32 v{X+2}, v{X+1}\nv_mov_b32 v{X+1}, s76\nv_mov_b32 v{X+3}, s76")
        a(f"buffer_store_dwordx4 {q(X)}, v{E+2}, s[44:47], s5 offen sc1")
        s.stamp(7)
        s.stamp_out()
        a("s_endpgm")
        a(f"{Le}:")
    def proj_tail(s, A0, W, T, scb, sfin):
        a = s.a
        a(f"v_permlane32_swap_b32 v{A0}, v{A0+1}\nv_add_f32 v{A0}, v{A0}, v{A0+1}")
        a(f"v_mov_b32 v{A0+1}, v{A0}\nv_permlane16_swap_b32 v{A0}, v{A0+1}\nv_add_f32 v{A0}, v{A0}, v{A0+1}")
        a(f"v_cvt_pk_bf16_f32 v{A0}, v{A0}, v{A0}")
        a(f"v_mov_b32 v{A0+1}, v{A0}")
        a(f"v_mov_b32_dpp v{A0}, v{A0+1} row_ror:8 row_mask:0xa bank_mask:0xf")
        AC = T+8
        for g in range(8):
            ab = T + (g % 2)*4
            for r in range(4): a(f"v_and_b32_dpp v{ab+r}, v{A0}, v{2+r} row_newbcast:{g} {DPPF}")
            cc = "0" if g == 0 else q(AC)
            a(f"v_mfma_f32_16x16x32_bf16 {q(AC)}, {q(ab)}, {q(W[g])}, {cc}")
        S = T+12
        a(f"v_and_b32 v{T}, 15, v1\ns_lshl_b32 s5, s{scb}, 4\nv_add_u32 v{T}, s5, v{T}")
        a(f"v_cmp_gt_u32 s[82:83], 56, v{T}")
        a(f"v_mul_u32_u24 v{T}, {FIN_CG}, v{T}")
        a(f"v_bfe_u32 v{T+1}, v1, 4, 1\nv_lshl_add_u32 v{T}, v{T+1}, 5, v{T}")
        a(f"v_lshrrev_b32 v{T+1}, 5, v1\nv_lshl_add_u32 v{T}, v{T+1}, 4, v{T}")
        a(f"v_cmp_gt_u32 vcc, 32, v1")
        a(f"v_mov_b32 v{S+1}, s76\nv_mov_b32 v{S+3}, s76")
        a(f"v_cndmask_b32 v{S}, v{AC+2}, v{AC}, vcc\nv_cndmask_b32 v{S+2}, v{AC+3}, v{AC+1}, vcc")
        a("s_mov_b64 exec, s[82:83]")
        a(f"buffer_store_dwordx4 {q(S)}, v{T}, s[44:47], s{sfin} offen sc1")
        s.exec_all()
    def proj_wload(s, W, vo, srd, srow, scb):
        a = s.a
        a(f"v_bfe_u32 v{vo}, v1, 4, 1\nv_lshlrev_b32 v{vo}, 4, v{vo}\nv_lshrrev_b32 v{vo+1}, 5, v1\nv_add_u32 v{vo}, v{vo}, v{vo+1}")
        a(f"v_mul_u32_u24 v{vo}, 896, v{vo}\nv_and_b32 v{vo+1}, 15, v1\nv_lshl_add_u32 v{vo}, v{vo+1}, 4, v{vo}")
        a(f"s_lshl_b32 s5, s{scb}, 8\ns_add_u32 s{srow}, s{srow}, s5")
        a(f"s_cmp_eq_u32 s{scb}, 3\ns_cselect_b32 s82, 0x00ff00ff, -1")
    def proj_wload_one(s, g, W, vo, srd, srow):
        a = s.a
        a("s_mov_b32 exec_lo, s82\ns_mov_b32 exec_hi, s82")
        a(f"s_add_u32 s79, s{srow}, {(g//2)*3584}")
        a(f"buffer_load_dwordx4 {q(W[g])}, v{vo}, s[{srd}:{srd+3}], s79 offen offset:{(g%2)*1792} {s.c['nt']}")
        s.exec_all()
    def g1(s):
        a = s.a; c = s.c; nt = c['nt']
        a("L_G1:")
        s.srd(52, 26, 896); s.srd(56, 30, 448*8192); s.srd(60, 16, 896); s.srd(64, 22, 448*8192)
        XB, XA, WB, WA, Kb, Vb, T, AD = 8, 12, 16, 48, 80, 160, 16, 240
        if c['tj']: a("s_and_b32 s11, s2, 7\ns_lshl_b32 s11, s11, 3\ns_lshr_b32 s5, s2, 3\ns_add_u32 s11, s11, s5")
        else: a("s_mov_b32 s11, s2")
        L = a.label("Lep7")
        a(f"s_cmp_lg_u32 s3, 7\ns_cbranch_scc1 {L}")
        a("v_mov_b32 v248, s77\nv_mov_b32 v249, 0\ns_lshl_b32 s5, s11, 2")
        s.exec_set(1, 0)
        a("buffer_store_dword v248, v249, s[48:51], s5 offen sc1")
        s.exec_all()
        a(f"{L}:")
        a("v_lshrrev_b32 v250, 3, v0\nv_lshlrev_b32 v251, 4, v250")
        a("v_lshlrev_b32 v250, 16, v250\nv_and_b32 v252, 7, v1\nv_lshl_add_u32 v250, v252, 4, v250")
        a(f"buffer_load_dwordx4 {q(XB)}, v251, s[52:55], 0 offen {nt if c['xnt'] else ''}")
        a("s_lshl_b32 s6, s11, 7")
        for i in range(8):
            a(f"s_add_u32 s79, s6, {i*8192}")
            a(f"buffer_load_dwordx4 {q(WB+4*i)}, v250, s[56:59], s79 offen {nt}")
        a(f"buffer_load_dwordx4 {q(XA)}, v251, s[60:63], 0 offen {nt if c['xnt'] else ''}")
        s.stamp(8)
        if c['stamp']:
            a("s_waitcnt vmcnt(9)")
            s.stamp(11)
        s.srd(68, 18, 8*8192*512); s.srd(72, 20, 8*8192*512)
        s.kv_addr(AD)
        a("s_lshr_b32 s9, s11, 3\ns_and_b32 s10, s11, 7")
        a(f"s_mul_i32 s8, s10, {320*512}\ns_mul_i32 s5, s3, {40*512}\ns_add_u32 s8, s8, s5\ns_lshl_b32 s5, s9, 22\ns_add_u32 s8, s8, s5")
        kp = c['kpre1']
        a("s_mov_b32 s12, 0x01000100\ns_mov_b32 s13, 0x03020302")
        a("s_lshl_b32 s5, s3, 10\nv_add_u32 v253, s5, v6")
        a("v_and_b32 v254, 3, v1\nv_lshlrev_b32 v254, 11, v254")
        a("v_bfe_u32 v255, v1, 2, 1\nv_lshl_add_u32 v254, v255, 8, v254")
        a("v_lshrrev_b32 v255, 3, v1\nv_lshl_add_u32 v254, v255, 4, v254")
        a("v_lshrrev_b32 v255, 2, v1\nv_lshlrev_b32 v255, 4, v255")
        for (X, W, wait, lds, off, st) in ((XB, WB, 8, 0x0, OFF_QB, 1), (XA, WA, kp, 0x2000, OFF_QA, 2)):
            if st == 1:
                for i in range(8):
                    a(f"s_add_u32 s79, s6, {i*8192}")
                    a(f"s_waitcnt vmcnt({c['pw']+3})")
                    a(f"buffer_load_dwordx4 {q(WA+4*i)}, v250, s[64:67], s79 offen {nt}")
            else:
                s._last_blk = None
                for i in range(kp): s.kv_load(i, Kb, AD, 68, 8, kp)
            a(f"s_waitcnt vmcnt({wait})")
            s.stamp(8+st)
            AC = 244; AB = 248
            AB = Vb
            for i in range(8):
                ab = AB + (i % 2)*4
                a(f"v_perm_b32 v{AB+8}, v{X+i//2}, v{X+i//2}, s{12+i%2}")
                for r in range(4): a(f"v_and_b32 v{ab+r}, v{AB+8}, v{2+r}")
                cc = "0" if i == 0 else q(AC)
                a(f"v_mfma_f32_16x16x32_bf16 {q(AC)}, {q(ab)}, {q(W+4*i)}, {cc}")
            a(f"ds_write_b128 v253, {q(AC)} offset:{lds}")
            a("s_waitcnt lgkmcnt(0)\ns_barrier")
            L = a.label("Lred")
            a(f"s_cmp_lg_u32 s3, 7\ns_cbranch_scc1 {L}")
            R = Vb+16
            for kk in range(4):
                a(f"ds_read_b128 {q(R+4*kk)}, v254 offset:{lds + (kk//2)*1024 + (kk%2)*640}")
            a("s_waitcnt lgkmcnt(0)")
            for st2 in (8, 4):
                for i in range(0, st2, 2): a(f"v_pk_add_f32 {p2(R+i)}, {p2(R+i)}, {p2(R+st2+i)}")
            for m in ("quad_perm:[1,0,3,2]", "quad_perm:[2,3,0,1]"):
                for r in range(4): a(f"v_add_f32_dpp v{R+r}, v{R+r}, v{R+r} {m} {DPPF}")
            a(f"v_cvt_pk_bf16_f32 v{R}, v{R}, v{R+1}\nv_cvt_pk_bf16_f32 v{R+2}, v{R+2}, v{R+3}")
            a(f"v_mov_b32 v{R+1}, s77\nv_mov_b32 v{R+3}, s77")
            a(f"s_lshl_b32 s5, s11, 8\ns_add_u32 s5, s5, {off}")
            s.exec_set(0x11111111, 0x11111111)
            a(f"buffer_store_dwordx4 {q(R)}, v255, s[44:47], s5 offen sc1")
            s.exec_all()
            a(f"{L}:")
            s.stamp(st)
        s._last_blk = None
        kmid = max(kp, 10)
        for i in range(kp, kmid): s.kv_load(i, Kb, AD, 68, 8, c['pk'])
        L = a.label("Lqa")
        a(f"s_cmp_lg_u32 s3, 0\ns_cbranch_scc1 {L}")
        s.gather_qa(T, 9)
        a(f"{L}:")
        s._last_blk = None
        for i in range(kmid, 20): s.kv_load(i, Kb, AD, 68, 8, c['pk'])
        s.attention(Kb, Vb, 10, T, AD, 8, 9, 10, 72)
        s.stamp_out()
        a("s_endpgm")
    def g23(s):
        a = s.a; c = s.c; nt = c['nt']
        s.srd(52, 32, 1024*8192); s.srd(56, 24, 4096*896)
        s.srd(68, 18, 8*8192*512); s.srd(72, 20, 8*8192*512)
        UK, Kb, Vb, T, AD = 16, 48, 136, 224, 8
        a("s_sub_u32 s11, s2, 128")
        a("s_lshr_b32 s12, s11, 3\ns_and_b32 s13, s11, 7")
        s.kv_addr(AD)
        a(f"v_bfe_u32 v{T}, v1, 2, 2\nv_lshlrev_b32 v{T}, 15, v{T}")
        a(f"v_lshl_add_u32 v{T}, v{AD+2}, 6, v{T}\nv_lshl_add_u32 v{T}, v{AD+3}, 4, v{T}")
        a("s_lshl_b32 s5, s13, 20\ns_lshl_b32 s6, s3, 17\ns_add_u32 s5, s5, s6\ns_lshl_b32 s6, s12, 9\ns_add_u32 s5, s5, s6")
        for i in range(4):
            a(f"s_add_u32 s79, s5, {i*8192}")
            for hf in range(2):
                a(f"buffer_load_dwordx4 {q(UK+8*i+4*hf)}, v{T}, s[52:55], s79 offen offset:{hf*256} {nt}")
        a("s_lshr_b32 s9, s11, 4\ns_and_b32 s10, s11, 15")
        a(f"s_mul_i32 s8, s10, {352*512}\ns_mul_i32 s5, s3, {44*512}\ns_add_u32 s8, s8, s5\ns_lshl_b32 s5, s9, 22\ns_add_u32 s8, s8, s5")
        a(f"s_add_u32 s8, s8, {2560*512}\ns_add_u32 s10, s10, 8")
        kp = c['kpre23']
        s._last_blk = None
        L = a.label("Lqb"); L0 = a.label("Lqb0")
        a(f"s_cmp_eq_u32 s3, 0\ns_cbranch_scc1 {L0}")
        for i in range(kp): s.kv_load(i, Kb, AD, 68, 8, c['pk'])
        a(f"s_branch {L}")
        a(f"{L0}:")
        G = T+4
        a(f"s_lshl_b32 s5, s12, 10\ns_add_u32 s5, s5, {OFF_QB}\ns_lshl_b32 s6, s12, 4")
        a(f"v_lshlrev_b32 v{G+6}, 2, v{AD+2}\nv_mov_b32 v{G+7}, 0")
        def issue():
            a(f"buffer_load_dwordx4 {q(G)}, v6, s[44:47], s5 offen sc1")
            a(f"buffer_load_dword v{G+4}, v{G+6}, s[48:51], s6 offen sc1")
            a(f"buffer_load_dword v{G+5}, v{G+7}, s[48:51], 0 offen sc1")
        s.poll(issue, [(f"v{G+4}", [G+1, G+3]), (f"v{G+5}", [])], G+8, G+9, sleep=1)
        a(f"v_lshlrev_b32 v{G+6}, 3, v1")
        a(f"ds_write2_b32 v{G+6}, v{G}, v{G+2} offset0:0 offset1:1")
        a(f"ds_write_b32 v{G+7}, v{G+5} offset:512")
        a("s_waitcnt lgkmcnt(0)")
        a(f"{L}:")
        a(f"v_lshlrev_b32 v{T}, 6, v{AD+2}\nv_lshl_add_u32 v{T}, v{AD+3}, 4, v{T}\nv_mov_b32 v{T+1}, 0")
        a("s_barrier")
        s.stamp(1)
        QF = T+4; D = T+12
        a(f"ds_read_b128 {q(QF)}, v{T}\nds_read_b128 {q(QF+4)}, v{T} offset:256\nds_read_b32 v{T+1}, v{T+1} offset:512")
        a(f"s_waitcnt vmcnt({kp}) lgkmcnt(0)")
        for i in range(4):
            a(f"v_mfma_f32_16x16x32_bf16 {q(D+4*i)}, {q(UK+8*i)}, {q(QF)}, 0")
            a(f"v_mfma_f32_16x16x32_bf16 {q(D+4*i)}, {q(UK+8*i+4)}, {q(QF+4)}, {q(D+4*i)}")
        a(f"v_lshlrev_b32 v{T}, 4, v{AD+2}")
        a(f"s_lshl_b32 s5, s12, 12\ns_lshl_b32 s6, s13, 9\ns_add_u32 s5, s5, s6\ns_lshl_b32 s6, s3, 6\ns_add_u32 s5, s5, s6\ns_add_u32 s5, s5, {OFF_QABS}")
        R = T+28
        for i in range(4): s.dpp_sum4(R+i, D+4*i)
        a(f"v_cvt_pk_bf16_f32 v{R}, v{R}, v{R+1}\nv_cvt_pk_bf16_f32 v{R+2}, v{R+2}, v{R+3}")
        a(f"v_mov_b32 v{R+1}, v{T+1}\nv_mov_b32 v{R+3}, v{T+1}")
        s.exec_set(0x00010001, 0x00010001)
        a(f"buffer_store_dwordx4 {q(R)}, v{T}, s[44:47], s5 offen sc1")
        s.exec_all()
        s.stamp(2)
        L = a.label("Lqa")
        a(f"s_cmp_lg_u32 s3, 0\ns_cbranch_scc1 {L}")
        s._last_blk = None
        for i in range(kp): s.kv_load(i, Kb, AD, 68, 8, 0)
        s.gather_qa(T, 9)
        a(f"{L}:")
        s._last_blk = None
        for i in range(kp, 22): s.kv_load(i, Kb, AD, 68, 8, c['pk'])
        W = [UK+4*i for i in range(8)]
        def extra():
            L = a.label("Lwo")
            a(f"s_cmp_lt_u32 s3, 4\ns_cbranch_scc1 {L}")
            a("s_sub_u32 s14, s3, 4")
            a(f"s_mul_i32 s15, s11, {32*896}")
            s.proj_wload(W, T+12, 56, 15, 14)
            for g in range(8): s.proj_wload_one(g, W, T+12, 56, 15)
            a(f"{L}:")
        s.attention(Kb, Vb, 11, T, AD, 8, 9, 10, 72, extra)
        ST = Kb; OG = Kb+24; WT = Kb+48; X = Kb+56
        a(f"v_lshlrev_b32 v{X}, 4, v{AD+2}")
        a(f"s_lshl_b32 s5, s12, 9\ns_add_u32 s5, s5, {OFF_STA}")
        def issue_st():
            for i in range(6): a(f"buffer_load_dwordx4 {q(ST+4*i)}, v{X}, s[44:47], s5 offen offset:{64*i} sc1")
        a(f"s_mul_i32 s6, s11, {HA_U}\ns_add_u32 s6, s6, {OFF_HA}\ns_add_u32 s7, s6, 4096")
        def issue_o():
            for i in range(6):
                so, im = ("s6", 1024*i) if i < 4 else ("s7", 1024*(i-4))
                a(f"buffer_load_dwordx4 {q(OG+4*i)}, v6, s[44:47], {so} offen offset:{im} sc1")
        s.poll(issue_st, [("s76", [ST+4*i+k for i in range(6) for k in (1,3)])], X+1, X+2)
        issue_o()
        M = X+1
        a(f"v_max3_f32 v{M}, v{ST}, v{ST+4}, v{ST+8}\nv_max3_f32 v{M}, v{M}, v{ST+12}, v{ST+16}\nv_max_f32 v{M}, v{M}, v{ST+20}")
        s.allred_rows("v_max_f32", M, X+2)
        for i in range(6): a(f"v_sub_f32 v{WT+i}, v{ST+4*i}, v{M}")
        for i in range(6): a(f"v_exp_f32 v{WT+i}, v{WT+i}")
        Lr = X+3
        a(f"v_mul_f32 v{Lr}, v{WT}, v{ST+2}")
        for i in range(1, 6): a(f"v_fmac_f32 v{Lr}, v{WT+i}, v{ST+4*i+2}")
        s.allred_rows("v_add_f32", Lr, X+2)
        a(f"v_rcp_f32 v{Lr}, v{Lr}")
        for i in range(6): a(f"v_mul_f32 v{WT+i}, v{WT+i}, v{Lr}")
        s.stamp(8)
        s.poll(issue_o, [("s76", [OG+4*i+k for i in range(6) for k in (1,3)])], X+1, X+2, pre_issued=True, sleep=1)
        s.stamp(9)
        A0 = X+4
        a(f"v_mul_f32 v{A0}, v{WT}, v{OG}\nv_mul_f32 v{A0+1}, v{WT}, v{OG+2}")
        for i in range(1, 6): a(f"v_fmac_f32 v{A0}, v{WT+i}, v{OG+4*i}\nv_fmac_f32 v{A0+1}, v{WT+i}, v{OG+4*i+2}")
        a(f"s_lshl_b32 s15, s11, 6\ns_add_u32 s15, s15, {OFF_FIN}")
        s.proj_tail(A0, W, T, 14, 15)
        s.stamp(10)
        s.stamp_out()
        a("s_endpgm")
    def g0(s):
        a = s.a; c = s.c; nt = c['nt']
        a("L_G0:")
        s.srd(52, 28, 8192*2048); s.srd(56, 34, 1024*8192); s.srd(60, 36, 4096*896); s.srd(64, 38, 1792)
        L1, PV, C4, T = 16, 144, 208, 224
        vTR, vTR2, vL, vL2, vSX = 8, 9, 10, 11, 12
        a("s_sub_u32 s5, s2, 64\ns_lshr_b32 s11, s5, 3\ns_and_b32 s6, s5, 1\ns_lshl_b32 s6, s6, 3\ns_add_u32 s11, s11, s6\ns_lshl_b32 s11, s11, 2\ns_bfe_u32 s6, s5, 0x20001\ns_add_u32 s11, s11, s6")
        a("s_lshl_b32 s8, s11, 18\ns_lshl_b32 s5, s3, 12\ns_add_u32 s8, s8, s5")
        a(f"s_mul_i32 s9, s3, {2*ROW}")
        def dma(i):
            for rr in range(2):
                a(f"s_add_u32 m0, s9, {(i%4)*SLOT + rr*ROW}")
                a(f"s_add_u32 s79, s8, {i*32768 + rr*2048}")
                a(f"buffer_load_dwordx4 v6, s[52:55], s79 offen {nt} lds")
                a(f"buffer_load_dwordx4 v6, s[52:55], s79 offen offset:1024 {nt} lds")
        for i in range(3): dma(i)
        a(f"v_lshrrev_b32 v13, 2, v1\nv_mul_u32_u24 v{vTR}, {ROW}, v13")
        a(f"v_and_b32 v13, 3, v1\nv_lshl_add_u32 v{vTR}, v13, 3, v{vTR}")
        a(f"s_lshl_b32 s5, s3, 8\nv_add_u32 v{vTR}, s5, v{vTR}\nv_add_u32 v{vTR2}, {2*SLOT}, v{vTR}")
        a(f"v_and_b32 v13, 15, v1\nv_mul_u32_u24 v{vL}, {ROW}, v13\nv_lshrrev_b32 v14, 4, v1\nv_lshl_add_u32 v{vL}, v14, 4, v{vL}")
        a(f"s_lshr_b32 s12, s3, 2\ns_and_b32 s13, s3, 3\ns_lshl_b32 s5, s12, 10\nv_add_u32 v{vL}, s5, v{vL}\nv_add_u32 v{vL2}, {2*SLOT}, v{vL}")
        a(f"v_add_u32 v{vSX}, {4*SLOT}, v6")
        a("v_mov_b32 v15, 0")
        a(f"s_lshl_b32 s6, s3, 13\ns_add_u32 s6, s6, {OFF_QABS}\ns_add_u32 s7, s6, 4096")
        def issue_q():
            for i in range(8):
                so = "s6" if i < 4 else "s7"
                a(f"buffer_load_dwordx4 {q(T+4*i)}, v6, s[44:47], {so} offen offset:{1024*(i%4)} sc1")
            a(f"buffer_load_dword v7, v15, s[48:51], 0 offen sc1")
        def tr(i, dst):
            sl = i % 4
            v, o = (vTR, sl*SLOT) if sl < 2 else (vTR2, (sl-2)*SLOT)
            for t in range(8): a(f"ds_read_b64_tr_b16 {p2(dst(t))}, v{v} offset:{o+32*t}")
        gat = c['gat']
        for i in range(8):
            younger = 4*(min(i+2, 7) - i) + (9 if i > gat else 0)
            a(f"s_waitcnt vmcnt({younger}) lgkmcnt(0)\ns_barrier")
            if i+3 <= 7: dma(i+3)
            if i == gat: issue_q()
            if i < 4: tr(i, lambda t: PV + ((i//2)*8+t)*4 + (i%2)*2)
            elif i == 4: tr(i, lambda t: C4 + 2*t)
            L = a.label("Ll1")
            a(f"s_cmp_lg_u32 s13, {i//2}\ns_cbranch_scc1 {L}")
            sl = i % 4
            v, o = (vL, sl*SLOT) if sl < 2 else (vL2, (sl-2)*SLOT)
            for ks in range(16):
                a(f"ds_read_b128 {q(L1+((i%2)*16+ks)*4)}, v{v} offset:{o+64*ks}")
                if ks == 11: a("s_waitcnt lgkmcnt(4)")
            a(f"{L}:")
        s.stamp(1)
        s.poll(issue_q, [("v7", [T+4*i+k for i in range(8) for k in (1,3)])], 13, 14, pre_issued=True)
        a("v_readfirstlane_b32 s76, v7")
        a(f"v_lshlrev_b32 v13, 3, v1\nv_add_u32 v13, s9, v13\nv_add_u32 v14, {ROW}, v13")
        for i in range(8):
            o = (i % 4)*128
            if o+1 > 255:
                pass
        a("v_add_u32 v15, 1024, v13\nv_add_u32 v7, 1024, v14")
        for i in range(8):
            base = {0:13, 1:15, 2:14, 3:7}[(i//4)*2 + (i%4)//2]
            o = (i % 2)*128
            a(f"ds_write2_b32 v{base}, v{T+4*i}, v{T+4*i+2} offset0:{o} offset1:{o+1}")
        a("s_waitcnt lgkmcnt(0)\ns_barrier")
        s.stamp(2)
        S0, S1 = T+24, T+28
        NB = 6
        for ks in range(NB): a(f"ds_read_b128 {q(T+4*ks)}, v{vL} offset:{64*ks}")
        for ks in range(16):
            out = min(NB-1, 15-ks)
            a(f"s_waitcnt lgkmcnt({out})")
            qf = T + 4*(ks % NB)
            for tl, S in ((0, S0), (1, S1)):
                cc = "0" if ks == 0 else q(S)
                a(f"v_mfma_f32_16x16x32_bf16 {q(S)}, {q(L1+(tl*16+ks)*4)}, {q(qf)}, {cc}")
            if ks+NB < 16: a(f"ds_read_b128 {q(qf)}, v{vL} offset:{64*(ks+NB)}")
        a(f"s_lshl_b32 s5, s12, 13\ns_lshl_b32 s6, s13, 11\ns_add_u32 s5, s5, s6\nv_add_u32 v13, s5, v{vSX}")
        a(f"ds_write_b128 v13, {q(S0)}\nds_write_b128 v13, {q(S1)} offset:1024")
        a("s_waitcnt lgkmcnt(0)\ns_barrier")
        s.stamp(3)
        SR = L1; PV2 = L1+64; PV3 = L1+96
        for i in range(16):
            a(f"ds_read_b128 {q(SR+4*i)}, v{vSX} offset:{1024*i}")
            if i == 11: a("s_waitcnt lgkmcnt(4)")
        for t in range(8): a(f"v_mov_b64 {p2(PV2+4*t)}, {p2(C4+2*t)}")
        a("s_waitcnt lgkmcnt(0)")
        tr(5, lambda t: PV2+4*t+2)
        for i in range(0, 32, 2): a(f"v_pk_add_f32 {p2(SR+i)}, {p2(SR+i)}, {p2(SR+32+i)}")
        a("s_waitcnt lgkmcnt(0)")
        tr(6, lambda t: PV3+4*t)
        M, Lr, TT = T+16, T+18, T+20
        a(f"v_max3_f32 v{M}, v{SR}, v{SR+1}, v{SR+2}")
        for i in range(3, 32, 2):
            j = min(i+1, 31)
            a(f"v_max3_f32 v{M}, v{M}, v{SR+i}, v{SR+j}")
        s.allred_rows("v_max_f32", M, TT)
        a(f"s_mov_b32 s5, {f32(CEXP)}\nv_mul_f32 v{M}, s5, v{M}")
        a("s_waitcnt lgkmcnt(0)")
        tr(7, lambda t: PV3+4*t+2)
        for i in range(32): a(f"v_fma_f32 v{SR+i}, v{SR+i}, s5, -v{M}")
        for i in range(32): a(f"v_exp_f32 v{SR+i}, v{SR+i}")
        P = T
        for i in range(16): a(f"v_cvt_pk_bf16_f32 v{P+i}, v{SR+2*i}, v{SR+2*i+1}")
        for st in (16, 8, 4, 2):
            for i in range(0, st, 2): a(f"v_pk_add_f32 {p2(SR+i)}, {p2(SR+i)}, {p2(SR+st+i)}")
        a(f"v_add_f32 v{Lr}, v{SR}, v{SR+1}")
        s.allred_rows("v_add_f32", Lr, TT)
        a(f"v_mov_b32 v{M+1}, s76\nv_mov_b32 v{Lr+1}, s76")
        L = a.label("Lst3")
        a(f"v_lshlrev_b32 v{TT}, 10, v1")
        a(f"s_cmp_lg_u32 s3, 0\ns_cbranch_scc1 {L}")
        a(f"s_lshl_b32 s5, s11, 4\ns_add_u32 s5, s5, {OFF_ST3}")
        s.exec_set(0xffff, 0)
        a(f"buffer_store_dwordx4 {q(M)}, v{TT}, s[44:47], s5 offen sc1")
        s.exec_all()
        a(f"{L}:")
        O, SQ = L1, L1+32
        for t in range(8): a(f"v_mov_b32 v{SQ+4*t+1}, s76\nv_mov_b32 v{SQ+4*t+3}, s76")
        a(f"v_lshrrev_b32 v13, 5, v1\nv_mul_u32_u24 v13, {4*H3_C}, v13\nv_bfe_u32 v14, v1, 3, 2\nv_mul_u32_u24 v14, {H3_W}, v14\nv_add_u32 v13, v13, v14")
        a(f"v_and_b32 v14, 7, v1\nv_lshl_add_u32 v13, v14, 4, v13")
        a(f"s_lshr_b32 s6, s3, 1\ns_mul_i32 s6, s6, {H3_C}\ns_and_b32 s5, s3, 1\ns_mul_i32 s5, s5, {4*H3_W}\ns_add_u32 s6, s6, s5\ns_lshl_b32 s5, s11, 7\ns_add_u32 s6, s6, s5\ns_add_u32 s6, s6, {OFF_H3}")
        a(f"s_mul_i32 s5, s3, 4224\ns_cmp_eq_u32 s3, 7\ns_cselect_b32 s5, {4*SLOT+16384+2048}, s5")
        a(f"v_lshrrev_b32 v14, 4, v1")
        a(f"v_and_b32 v10, 15, v1\nv_mul_u32_u24 v10, 264, v10\nv_lshl_add_u32 v10, v14, 3, v10\nv_add_u32 v10, s5, v10")
        a(f"v_lshrrev_b32 v11, 5, v1\nv_mul_u32_u24 v11, 264, v11\nv_and_b32 v12, 31, v1\nv_lshl_add_u32 v11, v12, 3, v11\nv_add_u32 v11, s5, v11")
        a(f"v_and_b32 v15, 15, v1\nv_lshlrev_b32 v15, 4, v15\nv_lshl_add_u32 v15, v14, 13, v15")
        a("s_lshr_b32 s12, s11, 2\ns_and_b32 s13, s11, 3")
        a("s_lshl_b32 s7, s13, 21\ns_lshl_b32 s5, s3, 18\ns_add_u32 s7, s7, s5\ns_lshl_b32 s5, s12, 9\ns_add_u32 s7, s7, s5")
        a("s_and_b32 s14, s3, 3\ns_lshr_b32 s10, s3, 2")
        a(f"s_lshl_b32 s15, s11, 1\ns_add_u32 s15, s15, s10\ns_mul_i32 s15, s15, {32*896}")
        WO = [PV2+4*t for t in range(8)]
        s.proj_wload(WO, T+20, 60, 15, 14)
        a("s_waitcnt lgkmcnt(0)")
        ops = [lambda t: PV+4*t, lambda t: PV+32+4*t, lambda t: PV2+4*t, lambda t: PV3+4*t]
        def fin(t):
            a(f"v_cvt_pk_bf16_f32 v{O+4*t}, v{O+4*t}, v{O+4*t+1}\nv_cvt_pk_bf16_f32 v{O+4*t+1}, v{O+4*t+2}, v{O+4*t+3}")
            a(f"ds_write_b64 v10, {p2(O+4*t)} offset:{32*t}")
        for t in range(8):
            for pr in range(4):
                cc = "0" if pr == 0 else q(O+4*t)
                a(f"v_mfma_f32_16x16x32_bf16 {q(O+4*t)}, {q(ops[pr](t))}, {q(P+4*pr)}, {cc}")
            if t >= 2: fin(t-2)
        fin(6); fin(7)
        a("s_waitcnt lgkmcnt(0)")
        for i in range(8):
            a(f"ds_read_b32 v{SQ+4*i}, v11 offset:{528*i}\nds_read_b32 v{SQ+4*i+2}, v11 offset:{528*i+4}")
        for i in range(8):
            a(f"s_add_u32 s79, s6, {i*8*H3_C}")
            a(f"s_waitcnt lgkmcnt({min(15,14-2*i)})")
            a(f"buffer_store_dwordx4 {q(SQ+4*i)}, v13, s[44:47], s79 offen sc1")
        a("s_barrier")
        s.stamp(4)
        for t in range(8):
            a(f"s_add_u32 s79, s7, {t*4*8192}")
            a(f"buffer_load_dwordx4 {q(PV+4*t)}, v15, s[56:59], s79 offen {nt}")
            a(f"buffer_load_dwordx4 {q(PV+32+4*t)}, v15, s[56:59], s79 offen offset:256 {nt}")
        for t in range(8): s.proj_wload_one(t, WO, T+20, 60, 15)
        HG = PV3; STQ = T
        a(f"v_and_b32 v13, 7, v1\nv_lshlrev_b32 v13, 3, v13\nv_lshrrev_b32 v14, 3, v1\nv_add_u32 v13, v13, v14\nv_lshlrev_b32 v13, 4, v13")
        a(f"s_lshl_b32 s5, s12, 10\ns_add_u32 s5, s5, {OFF_ST3}")
        a(f"s_mul_i32 s6, s11, {H3_C}\ns_mul_i32 s7, s3, {H3_W}\ns_add_u32 s6, s6, s7\ns_add_u32 s6, s6, {OFF_H3}\ns_add_u32 s7, s6, 4096")
        def issue_h3():
            a(f"buffer_load_dwordx4 {q(STQ)}, v13, s[44:47], s5 offen sc1")
            for i in range(8):
                so = "s6" if i < 4 else "s7"
                a(f"buffer_load_dwordx4 {q(HG+4*i)}, v6, s[44:47], {so} offen offset:{1024*(i%4)} sc1")
        s.poll(issue_h3, [("s76", [STQ+1, STQ+3] + [HG+4*i+k for i in range(8) for k in (1,3)])], T+4, T+5)
        s.stamp(5)
        M, E_, Lr, TT = T+4, T+5, T+6, T+7
        a(f"v_mov_b32 v{M}, v{STQ}")
        s.allred_inrow("v_max_f32", M); s.allred_rows("v_max_f32", M, TT)
        a(f"v_sub_f32 v{E_}, v{STQ}, v{M}\nv_exp_f32 v{E_}, v{E_}\nv_mul_f32 v{Lr}, v{E_}, v{STQ+2}")
        s.allred_inrow("v_add_f32", Lr); s.allred_rows("v_add_f32", Lr, TT)
        a(f"v_rcp_f32 v{Lr}, v{Lr}\nv_mul_f32 v{E_}, v{E_}, v{Lr}")
        WB = 4*SLOT + 16384
        a(f"s_lshl_b32 s5, s3, 8\ns_add_u32 s5, s5, {WB}")
        a(f"v_lshlrev_b32 v13, 2, v1\nv_add_u32 v13, s5, v13\nv_lshlrev_b32 v14, 5, v14\nv_add_u32 v14, s5, v14")
        a(f"ds_write_b32 v13, v{E_}\ns_waitcnt lgkmcnt(0)")
        WW = T+8
        a(f"ds_read_b128 {q(WW)}, v14\nds_read_b128 {q(WW+4)}, v14 offset:16")
        for i in range(8):
            b = HG+4*i
            a(f"v_and_b32 v{b+1}, 0xffff0000, v{b}\nv_lshlrev_b32 v{b}, 16, v{b}\nv_and_b32 v{b+3}, 0xffff0000, v{b+2}\nv_lshlrev_b32 v{b+2}, 16, v{b+2}")
        a("s_waitcnt lgkmcnt(0)")
        AC = T+16
        for i in range(8):
            for k in range(4):
                a(f"v_mul_f32 v{AC+k}, v{WW}, v{HG+k}" if i == 0 else f"v_fmac_f32 v{AC+k}, v{WW+i}, v{HG+4*i+k}")
        for k in range(4): a(f"v_add_f32_dpp v{AC+k}, v{AC+k}, v{AC+k} row_ror:8 {DPPF}")
        a(f"v_permlane32_swap_b32 v{AC}, v{AC+2}\nv_permlane32_swap_b32 v{AC+1}, v{AC+3}")
        a(f"v_add_f32 v{AC}, v{AC}, v{AC+2}\nv_add_f32 v{AC+1}, v{AC+1}, v{AC+3}")
        a(f"v_permlane16_swap_b32 v{AC}, v{AC+1}\nv_add_f32 v{AC}, v{AC}, v{AC+1}")
        a(f"v_cvt_pk_bf16_f32 v{AC}, v{AC}, v{AC}")
        DD = T+24
        for g in range(8):
            ab = T + (g % 2)*4
            for r in range(4): a(f"v_and_b32_dpp v{ab+r}, v{AC}, v{2+r} row_newbcast:{g} {DPPF}")
            for hf in range(2):
                cc = "0" if g == 0 else q(DD+4*hf)
                a(f"v_mfma_f32_16x16x32_bf16 {q(DD+4*hf)}, {q(ab)}, {q(PV+32*hf+4*g)}, {cc}")
        a(f"s_lshl_b32 s5, s3, 11\nv_add_u32 v13, s5, v6")
        E = T+8
        a(f"v_bfe_u32 v{E+3}, v0, 6, 1\nv_lshlrev_b32 v{E+3}, 10, v{E+3}")
        a(f"v_bfe_u32 v{E+1}, v0, 1, 1\nv_lshl_add_u32 v{E+3}, v{E+1}, 8, v{E+3}")
        a(f"v_bfe_u32 v{E+1}, v0, 2, 4\nv_lshl_add_u32 v{E+3}, v{E+1}, 4, v{E+3}")
        a(f"v_and_b32 v{E+1}, 1, v0\nv_lshl_add_u32 v{E+3}, v{E+1}, 3, v{E+3}")
        a(f"v_lshlrev_b32 v{E}, 4, v0")
        a(f"s_lshl_b32 s5, s11, 11\ns_add_u32 s5, s5, {OFF_H4}")
        a(f"ds_write_b128 v13, {q(DD)}\nds_write_b128 v13, {q(DD+4)} offset:1024")
        a("s_waitcnt lgkmcnt(0)\ns_barrier")
        L = a.label("Lb4e")
        a(f"s_cmp_ge_u32 s3, 2\ns_cbranch_scc1 {L}")
        X = L1
        for i in range(8): a(f"ds_read_b64 {p2(X+2*i)}, v{E+3} offset:{2048*i}")
        a("s_waitcnt lgkmcnt(0)")
        for st in (8, 4, 2):
            for i in range(0, st, 2): a(f"v_pk_add_f32 {p2(X+i)}, {p2(X+i)}, {p2(X+st+i)}")
        a(f"v_mov_b32 v{X+2}, v{X+1}\nv_mov_b32 v{X+1}, s76\nv_mov_b32 v{X+3}, s76")
        a(f"buffer_store_dwordx4 {q(X)}, v{E}, s[44:47], s5 offen sc1")
        a(f"{L}:")
        s.stamp(6)
        a(f"v_lshrrev_b32 v13, 4, v1\nv_lshlrev_b32 v13, 11, v13\nv_and_b32 v14, 15, v1\nv_lshl_add_u32 v13, v14, 4, v13")
        a(f"s_lshl_b32 s5, s12, 13\ns_lshl_b32 s6, s13, 9\ns_add_u32 s5, s5, s6\ns_lshl_b32 s6, s10, 8\ns_add_u32 s5, s5, s6\ns_add_u32 s5, s5, {OFF_H4}")
        G = L1+16
        s.poll(lambda: a(f"buffer_load_dwordx4 {q(G)}, v13, s[44:47], s5 offen sc1"), [("s76", [G+1, G+3])], G+4, G+5, sleep=1)
        a(f"v_mov_b32 v{G+1}, v{G+2}")
        a(f"s_lshl_b32 s15, s11, 1\ns_add_u32 s15, s15, s10\ns_lshl_b32 s15, s15, 6\ns_add_u32 s15, s15, {OFF_FIN+FIN_AB}")
        s.proj_tail(G, WO, T, 14, 15)
        s.stamp(7)
        a("s_cmp_ge_u32 s11, 56\ns_cbranch_scc1 L_g0end\ns_cmp_ge_u32 s3, 2\ns_cbranch_scc1 L_g0end")
        a("s_xor_b32 s10, s3, 1")
        a(f"s_mul_i32 s6, s10, {FIN_AB}\ns_mul_i32 s5, s11, {FIN_CG}\ns_add_u32 s6, s6, s5\ns_add_u32 s6, s6, {OFF_FIN}\ns_add_u32 s7, s6, 4096")
        F = L1+32
        def issue_f():
            for i in range(8):
                so = "s6" if i < 4 else "s7"
                a(f"buffer_load_dwordx4 {q(F+4*i)}, v6, s[44:47], {so} offen offset:{1024*(i%4)} sc1")
        a("s_mul_i32 s15, s10, 896\ns_lshl_b32 s5, s11, 4\ns_add_u32 s15, s15, s5\nv_lshlrev_b32 v13, 2, v1")
        s.poll(issue_f, [("s76", [F+4*i+k for i in range(8) for k in (1,3)])], T, T+1, sleep=c.get('fsleep', 2))
        s.stamp(8)
        for st in (16, 8, 4):
            for i in range(0, st, 4):
                a(f"v_add_f32 v{F+i}, v{F+i}, v{F+st+i}\nv_add_f32 v{F+i+2}, v{F+i+2}, v{F+st+i+2}")
        for m in ("row_ror:8", "row_ror:4"):
            for k in (0, 2): a(f"v_add_f32_dpp v{F+k}, v{F+k}, v{F+k} {m} {DPPF}")
        for k in (0, 2): s.allred_rows("v_add_f32", F+k, F+k+1)
        a(f"v_cvt_pk_bf16_f32 v{F}, v{F}, v{F+2}")
        s.exec_set(0xf, 0)
        a(f"buffer_store_dword v{F}, v13, s[64:67], s15 offen")
        s.exec_all()
        s.stamp(9)
        a("L_g0end:")
        s.stamp_out()
        a("s_endpgm")
    def build(s):
        a = s.a
        s.prologue()
        s.g23(); s.g1(); s.g0()
        a("L_end:\ns_endpgm")
        body = a.finish()
        hdr = open("concat_heads__gqa_block_cached__compressed_kv_cla__decode.s.ref").read().split("; @launch")[0]
        out = hdr + "; @launch grid=(256,1,1) block=(512,1,1) lds=163840\n"
        out += "; generated by scratch/gen.py (own generator)\n"
        out += f'.amdgcn_target "amdgcn-amd-amdhsa--gfx950"\n.text\n.globl {KN}\n.p2align 8\n.type {KN},@function\n{KN}:\n'
        out += body
        out += f""".section .rodata,"a"
.p2align 6
.amdhsa_kernel {KN}
  .amdhsa_next_free_vgpr 256
  .amdhsa_next_free_sgpr 102
  .amdhsa_accum_offset 256
  .amdhsa_group_segment_fixed_size 0
  .amdhsa_kernarg_size 112
  .amdhsa_user_sgpr_count 2
  .amdhsa_user_sgpr_kernarg_segment_ptr 1
  .amdhsa_system_sgpr_workgroup_id_x 1
.end_amdhsa_kernel
"""
        return out
if __name__ == "__main__":
    from build import build
    name = sys.argv[1]
    cfg = {}
    for kv in sys.argv[2:]:
        k, v = kv.split("=")
        cfg[k] = v if k == "nt" else int(v)
    open(name, "w").write(Gen(**cfg).build())
    print(build(name))
```

```python
import sys, math, struct
from asmlib import Asm
from gen import Gen, q, p2, f32, DPPF, KN, CEXP
OFF_QB, OFF_QA, OFF_QABS, OFF_CLR, OFF_ST3, OFF_STA, OFF_H4, OFF_HA, OFF_FIN, OFF_H3 = \
    0x0, 0x10000, 0x20000, 0x28000, 0x30000, 0x38000, 0x40000, 0x80000, 0x200000, 0x400000
FIN_CG = 8192+128; FIN_AB = 56*FIN_CG
HA_U = 8192+128
H3_C = 32768+256
OFF_STAMP = 0x8000000
ROW = 2080; SLOT = 16*ROW
import gen as G1
G1.FIN_CG = FIN_CG
MF = "v_mfma_f32_16x16x32_bf16"

class Gen2(Gen):
    def __init__(s, **cfg):
        s.c = dict(stamp=False, nt="nt", sleep=4, timeout=200000, rnd=True, pa=0, pb=8, prio=2, prioa=3, v1=8, fsleep=2, pf=0, pa0=1, na0=2, na1=6, lead=10, h3d=0)
        s.c.update(cfg)
        s.a = Asm()
    def stamp_out(s):
        if not s.c['stamp']: return
        a = s.a
        a("s_mov_b64 exec, -1\nv_mov_b32 v8, 0")
        for k in range(12): a(f"v_writelane_b32 v8, s{84+k}, {k}")
        a("v_lshlrev_b32 v9, 2, v1")
        a("s_lshl_b32 s4, s2, 2\ns_add_u32 s4, s4, s3\ns_lshl_b32 s4, s4, 6")
        a(f"s_add_u32 s4, s4, {OFF_STAMP}")
        a("s_mov_b32 exec_lo, 0xffff\ns_mov_b32 exec_hi, 0")
        a("buffer_store_dword v8, v9, s[44:47], s4 offen")
    def prologue(s):
        a = s.a
        a("s_cmp_ge_u32 s2, 512\ns_cbranch_scc1 L_end")
        a("s_load_dwordx16 s[16:31], s[0:1], 0\ns_load_dwordx8 s[32:39], s[0:1], 64\ns_load_dwordx4 s[40:43], s[0:1], 96")
        a("s_memrealtime s[4:5]")
        a("v_and_b32 v1, 63, v0\nv_lshrrev_b32 v7, 6, v0")
        a("v_lshlrev_b32 v6, 4, v1")
        a("v_readfirstlane_b32 s3, v7")
        a("v_and_b32 v7, 1, v1\nv_lshlrev_b32 v7, 4, v7\nv_mov_b32 v8, 0xffff\nv_lshlrev_b32 v7, v7, v8")
        a("v_bfe_u32 v8, v1, 1, 2")
        for r in range(4): a(f"v_cmp_eq_u32 s[{6+2*r}:{7+2*r}], {r}, v8")
        for r in range(4): a(f"v_cndmask_b32 v{2+r}, 0, v7, s[{6+2*r}:{7+2*r}]")
        a("s_waitcnt lgkmcnt(0)")
        a("s_or_b32 s77, s4, 1")
        if s.c['stamp']:
            for k in range(12): a(f"s_mov_b32 s{84+k}, 0")
            a("s_mov_b32 s84, s4")
        s.srd(44, 42, 0x10000000)
        s.srd(48, 40, 256)
        a("s_cmp_ge_u32 s2, 256\ns_cbranch_scc1 L_A")
        if s.c['prio']: a(f"s_setprio {s.c['prio']}")
        a("s_cmp_ge_u32 s2, 128\ns_cbranch_scc1 L_X")
    def get_epoch(s, vE, vZ):
        a = s.a
        L = a.label("Lge"); Ld = a.label("Lged")
        a(f"s_mov_b32 s78, {s.c['timeout']}")
        a(f"{L}:")
        a(f"v_readfirstlane_b32 s76, v{vE}")
        a(f"s_cmp_lg_u32 s76, 0\ns_cbranch_scc1 {Ld}")
        a(f"buffer_load_dword v{vE}, v{vZ}, s[48:51], 0 offen sc1\ns_waitcnt vmcnt(0)")
        a(f"s_sub_u32 s78, s78, 1\ns_cmp_lg_u32 s78, 0\ns_cbranch_scc1 {L}")
        a(f"{Ld}:")
    def poll_sent(s, issue, regs, t0, sleep=None, pre_issued=False):
        a = s.a
        L = a.label("Lps"); Ld = a.label("Lpsd")
        a(f"s_mov_b32 s78, {s.c['timeout']}")
        Lw = a.label("Lpsw")
        if pre_issued: a(f"s_branch {Lw}")
        a(f"{L}:")
        issue()
        a(f"{Lw}:")
        a("s_waitcnt vmcnt(0)")
        a(f"v_max3_u32 v{t0}, v{regs[0]}, v{regs[1]}, v{regs[2]}")
        rest = regs[3:]
        for i in range(0, len(rest), 2):
            y = rest[i+1] if i+1 < len(rest) else rest[i]
            a(f"v_max3_u32 v{t0}, v{t0}, v{rest[i]}, v{y}")
        a(f"v_cmp_eq_u32 vcc, -1, v{t0}")
        a(f"s_cbranch_vccz {Ld}")
        sl = s.c['sleep'] if sleep is None else sleep
        if sl: a(f"s_sleep {sl}")
        a(f"s_sub_u32 s78, s78, 1\ns_cmp_lg_u32 s78, 0\ns_cbranch_scc1 {L}")
        a(f"{Ld}:")
    def gather_q(s, T, soff, lds, n, between=None, nb=0, sleep=1):
        a = s.a
        a(f"s_add_u32 s7, s{soff}, 0x8000")
        def issue():
            for k in range(n):
                a(f"buffer_load_dwordx4 {q(T+8*k)}, v6, s[44:47], s{soff} offen offset:{1024*k} sc1")
                a(f"buffer_load_dwordx4 {q(T+8*k+4)}, v6, s[44:47], s7 offen offset:{1024*k} sc1")
        grp = [("s76", [T+4*k+j for k in range(2*n) for j in (1, 3)])]
        if between:
            Lok = a.label("Lgq")
            issue(); between()
            a(f"s_waitcnt vmcnt({nb})")
            s.check_tags(grp, T+8*n, T+8*n+1)
            a(f"s_cbranch_scc1 {Lok}")
            s.poll(issue, grp, T+8*n, T+8*n+1, sleep=sleep)
            a(f"{Lok}:")
        else:
            s.poll(issue, grp, T+8*n, T+8*n+1, sleep=sleep)
        for k in range(n):
            b = T+8*k
            a(f"v_add_f32 v{b}, v{b}, v{b+4}\nv_add_f32 v{b+2}, v{b+2}, v{b+6}\nv_cvt_pk_bf16_f32 v{b}, v{b}, v{b+2}")
            a(f"ds_write_b32 v{lds}, v{b} offset:{256*k}")
        a("s_waitcnt lgkmcnt(0)")
    def epi_addr(s, E, two_heads):
        a = s.a
        a(f"v_bfe_u32 v{E+3}, v0, 6, 1\nv_lshlrev_b32 v{E+3}, 10, v{E+3}")
        if two_heads: a(f"v_bfe_u32 v{E+1}, v0, 7, 1\nv_lshl_add_u32 v{E+3}, v{E+1}, 9, v{E+3}")
        a(f"v_bfe_u32 v{E+1}, v0, 1, 1\nv_lshl_add_u32 v{E+3}, v{E+1}, 8, v{E+3}")
        a(f"v_bfe_u32 v{E+1}, v0, 2, 4\nv_lshl_add_u32 v{E+3}, v{E+1}, 4, v{E+3}")
        a(f"v_and_b32 v{E+1}, 1, v0\nv_lshl_add_u32 v{E+3}, v{E+1}, 3, v{E+3}")
    def p1_setup(s, sI, T, V):
        a = s.a
        vX, vW, vSA, vSB, vLW, vRD, vPB = range(V, V+7)
        a(f"s_and_b32 s100, s{sI}, 7\ns_lshl_b32 s100, s100, 3\ns_bfe_u32 s5, s{sI}, 0x30003\ns_add_u32 s100, s100, s5\ns_lshr_b32 s101, s{sI}, 6")
        a("s_mul_i32 s96, s101, 224\ns_mul_i32 s5, s3, 56\ns_add_u32 s96, s96, s5\ns_lshl_b32 s97, s96, 1")
        a("s_lshl_b32 s96, s96, 13\ns_lshl_b32 s5, s100, 7\ns_add_u32 s96, s96, s5")
        a(f"v_lshrrev_b32 v{T}, 3, v1\nv_mul_u32_u24 v{vX}, 14, v{T}\nv_and_b32 v{vX}, 0x7c, v{vX}")
        a(f"v_mul_u32_u24 v{vW}, {7*8192}, v{T}\nv_and_b32 v{T+1}, 7, v1\nv_lshl_add_u32 v{vW}, v{T+1}, 4, v{vW}")
    def p1_loads(s, X, W, srdX, srdW, V):
        a = s.a
        a(f"buffer_load_dwordx4 {q(X)}, v{V}, s[{srdX}:{srdX+3}], s97 offen")
        for i in range(7):
            a(f"s_add_u32 s79, s96, {i*8192}")
            a(f"buffer_load_dwordx4 {q(W+4*i)}, v{V+1}, s[{srdW}:{srdW+3}], s79 offen {s.c['nt']}")
    def p1_setup2(s, T, V):
        a = s.a
        vX, vW, vSA, vSB, vLW, vRD, vPB = range(V, V+7)
        a(f"s_lshl_b32 s100, s100, 9\ns_lshl_b32 s101, s101, 15\ns_add_u32 s100, s100, s101")
        a(f"v_bfe_u32 v{T}, v1, 3, 1\nv_cmp_eq_u32 vcc, 1, v{T}")
        a(f"v_mov_b32 v{T+8}, 0x01000100\nv_mov_b32 v{T+9}, 0x03020302\nv_mov_b32 v{T+10}, 0x05040504")
        a(f"v_cndmask_b32 v{vSA}, v{T+8}, v{T+9}, vcc\nv_cndmask_b32 v{vSB}, v{T+9}, v{T+10}, vcc")
        a(f"s_lshl_b32 s5, s3, 10\nv_add_u32 v{vLW}, s5, v6")
        a(f"v_and_b32 v{T+3}, 3, v1")
        a(f"v_lshlrev_b32 v{vRD}, 10, v{T+3}\nv_bfe_u32 v{T}, v1, 2, 1\nv_lshl_add_u32 v{vRD}, v{T}, 8, v{vRD}")
        a(f"v_lshrrev_b32 v{T}, 3, v1\nv_lshl_add_u32 v{vRD}, v{T}, 4, v{vRD}")
        a(f"v_lshrrev_b32 v{T}, 2, v1\nv_lshlrev_b32 v{vPB}, 5, v{T}\nv_lshl_add_u32 v{vPB}, v{T+3}, 4, v{vPB}")
    def p1_compute(s, X, W, T, V, lds, off, flag_vZ=None):
        a = s.a
        vX, vW, vSA, vSB, vLW, vRD, vPB = range(V, V+7)
        AB, AC = T, T+12
        for i in range(7):
            ab = AB + (i % 2)*4
            k = i//2
            if i % 2 == 0: a(f"v_perm_b32 v{AB+8}, v{X+k}, v{X+k}, v{vSA}")
            else: a(f"v_perm_b32 v{AB+8}, v{X+k+1}, v{X+k}, v{vSB}")
            for r in range(4): a(f"v_and_b32 v{ab+r}, v{AB+8}, v{2+r}")
            a(f"{MF} {q(AC)}, {q(ab)}, {q(W+4*i)}, {'0' if i == 0 else q(AC)}")
        a(f"ds_write_b128 v{vLW}, {q(AC)} offset:{lds}")
        a("s_waitcnt lgkmcnt(0)\ns_barrier")
        L = a.label("Lred")
        a(f"s_cmp_lg_u32 s3, 3\ns_cbranch_scc1 {L}")
        R = T
        a(f"ds_read_b128 {q(R)}, v{vRD} offset:{lds}\nds_read_b128 {q(R+4)}, v{vRD} offset:{lds+640}")
        a(f"s_add_u32 s5, s100, {off}")
        a(f"v_and_b32 v{R+8}, 1, v1\nv_cmp_eq_u32 vcc, 1, v{R+8}")
        a("s_waitcnt lgkmcnt(0)")
        a(f"v_pk_add_f32 {p2(R)}, {p2(R)}, {p2(R+4)}\nv_pk_add_f32 {p2(R+2)}, {p2(R+2)}, {p2(R+6)}")
        for m in ("quad_perm:[1,0,3,2]", "quad_perm:[2,3,0,1]"):
            for r in range(4): a(f"v_add_f32_dpp v{R+r}, v{R+r}, v{R+r} {m} {DPPF}")
        a(f"v_cndmask_b32 v{R+4}, v{R}, v{R+2}, vcc\nv_cndmask_b32 v{R+6}, v{R+1}, v{R+3}, vcc")
        a(f"v_mov_b32 v{R+5}, s76\nv_mov_b32 v{R+7}, s76")
        s.exec_set(0x33333333, 0x33333333)
        a(f"buffer_store_dwordx4 {q(R+4)}, v{vPB}, s[44:47], s5 offen sc1")
        if flag_vZ is not None:
            a(f"s_lshl_b32 s5, s2, 2\ns_add_u32 s5, s5, {OFF_CLR}")
            s.exec_set(1, 0)
            a(f"buffer_store_dword v{R+5}, v{flag_vZ}, s[44:47], s5 offen sc1")
        s.exec_all()
        a(f"{L}:")
    def gy(s):
        a = s.a; c = s.c; nt = c['nt']; pb = c['pb']
        s.srd(52, 26, 896); s.srd(56, 30, 448*8192)
        XB, WB, UK, UV, T = 8, 16, 72, 136, 200
        PVv = T+40
        vLW = PVv+4
        vZ, vE, vU, vQ = range(T+47, T+51)
        s.p1_setup(2, T, PVv)
        s.p1_loads(XB, WB, 52, 56, PVv)
        a(f"v_mov_b32 v{vZ}, 0")
        L = a.label("Le0")
        a(f"s_add_u32 s5, s2, s3\ns_cmp_lg_u32 s5, 0\ns_cbranch_scc1 {L}")
        a(f"v_mov_b32 v{vE}, s77")
        s.exec_set(1, 0)
        a(f"buffer_store_dword v{vE}, v{vZ}, s[48:51], 0 offen sc1")
        s.exec_all()
        a(f"{L}:")
        a(f"buffer_load_dword v{vE}, v{vZ}, s[48:51], 0 offen sc1")
        s.srd(68, 32, 1024*8192); s.srd(72, 34, 1024*8192)
        a("s_lshr_b32 s12, s2, 3\ns_and_b32 s13, s2, 7")
        a(f"v_lshrrev_b32 v{T+2}, 4, v1\nv_lshlrev_b32 v{vQ}, 8, v{T+2}")
        a(f"s_lshl_b32 s14, s13, 2\ns_add_u32 s14, s14, s3\ns_lshl_b32 s14, s14, 10\ns_lshl_b32 s5, s12, 4\ns_add_u32 s14, s14, s5\ns_add_u32 s14, s14, {OFF_QABS}")
        for r in range(4): a(f"v_mov_b32 v{T+4+r}, -1")
        s.exec_set(0x00010001, 0x00010001)
        a(f"buffer_store_dwordx4 {q(T+4)}, v{vQ}, s[44:47], s14 offen sc1")
        s.exec_all()
        a(f"v_bfe_u32 v{vU}, v1, 2, 2\nv_lshlrev_b32 v{vU}, 16, v{vU}\nv_lshl_add_u32 v{vU}, v{T+2}, 6, v{vU}")
        a(f"v_and_b32 v{T+3}, 3, v1\nv_lshl_add_u32 v{vU}, v{T+3}, 4, v{vU}")
        a("s_lshl_b32 s15, s13, 20\ns_lshl_b32 s5, s3, 18\ns_add_u32 s15, s15, s5\ns_lshl_b32 s5, s12, 9\ns_add_u32 s15, s15, s5")
        s.p1_setup2(T, PVv)
        def ukload(n, pace):
            i, hf = n//2, n % 2
            a(f"s_add_u32 s79, s15, {i*8192}")
            if pace: a(f"s_waitcnt vmcnt({pace-1})")
            a(f"buffer_load_dwordx4 {q(UK+4*n)}, v{vU}, s[68:71], s79 offen offset:{hf*256} {nt}")
        n1 = 8
        if c.get('diag'):
            s.stamp(5)
            a("s_waitcnt vmcnt(9)"); s.stamp(9)
            a("s_waitcnt vmcnt(2)"); s.stamp(10)
            a("s_waitcnt vmcnt(1)"); s.stamp(11)
            a("s_waitcnt vmcnt(0)"); s.stamp(8)
        for n in range(n1): ukload(n, 10)
        a(f"s_waitcnt vmcnt({n1})")
        s.stamp(1)
        s.get_epoch(vE, vZ)
        s.p1_compute(XB, WB, T, PVv, 0, OFF_QB, vZ)
        s.stamp(2)
        for n in range(n1, 16): ukload(n, 0)
        L = a.label("Lqb")
        a(f"s_cmp_ge_u32 s3, 2\ns_cbranch_scc1 {L}")
        a(f"s_lshl_b32 s6, s12, 11\ns_lshl_b32 s5, s3, 10\ns_add_u32 s6, s6, s5\ns_add_u32 s6, s6, {OFF_QB}")
        a(f"v_lshlrev_b32 v{T+20}, 2, v0\nv_add_u32 v{T+20}, 0x2000, v{T+20}")
        s.gather_q(T, 6, T+20, 1)
        a(f"{L}:")
        a(f"v_lshrrev_b32 v{T+21}, 4, v1\nv_lshlrev_b32 v{T+21}, 6, v{T+21}\nv_and_b32 v{T+22}, 3, v1\nv_lshl_add_u32 v{T+21}, v{T+22}, 4, v{T+21}")
        a("s_waitcnt vmcnt(0)\ns_barrier")
        s.stamp(3)
        QF = T; D = WB
        a(f"ds_read_b128 {q(QF)}, v{T+21} offset:{0x2000}\nds_read_b128 {q(QF+4)}, v{T+21} offset:{0x2000+256}")
        a("s_waitcnt lgkmcnt(0)")
        for i in range(8):
            a(f"{MF} {q(D+4*i)}, {q(UK+8*i)}, {q(QF)}, 0")
            a(f"{MF} {q(D+4*i)}, {q(UK+8*i+4)}, {q(QF+4)}, {q(D+4*i)}")
        R = T+8
        for r in range(4):
            for i in range(8):
                if r == 0: a(f"v_mov_b32_dpp v{R+i}, v{D+4*i} quad_perm:[0,0,0,0] {DPPF}")
                else: a(f"v_add_f32_dpp v{R+i}, v{D+4*i+r}, v{R+i} quad_perm:[{r},{r},{r},{r}] {DPPF}")
        for k in range(4): a(f"v_cvt_pk_bf16_f32 v{R+8+k}, v{R+2*k}, v{R+2*k+1}")
        for k in range(4): a(f"v_min_u32 v{R+8+k}, -2, v{R+8+k}")
        s.exec_set(0x00010001, 0x00010001)
        a(f"buffer_store_dwordx4 {q(R+8)}, v{vQ}, s[44:47], s14 offen sc1")
        s.exec_all()
        s.stamp(4)
        a(f"v_lshrrev_b32 v{vU}, 4, v1\nv_lshlrev_b32 v{vU}, 13, v{vU}\nv_and_b32 v{T+22}, 15, v1\nv_lshl_add_u32 v{vU}, v{T+22}, 4, v{vU}")
        def uvload(n, pace):
            g, hf = n//2, n % 2
            a(f"s_add_u32 s79, s15, {g*4*8192}")
            if pace: a(f"s_waitcnt vmcnt({pace-1})")
            a(f"buffer_load_dwordx4 {q(UV+4*n)}, v{vU}, s[72:75], s79 offen offset:{hf*256} {nt}")
        for n in range(16): uvload(n, 0)
        HG = UK; ST = T
        WL = 0x3000
        a(f"s_mul_i32 s6, s2, {H3_C}\ns_lshl_b32 s5, s3, 13\ns_add_u32 s6, s6, s5\ns_add_u32 s6, s6, {OFF_H3}\ns_add_u32 s7, s6, 4096")
        L = a.label("Lst")
        a(f"s_cmp_lg_u32 s3, 0\ns_cbranch_scc1 {L}")
        a(f"s_lshl_b32 s5, s12, 11\ns_add_u32 s5, s5, {OFF_ST3}")
        def issue_st():
            for k in range(2): a(f"buffer_load_dwordx4 {q(ST+4*k)}, v6, s[44:47], s5 offen offset:{1024*k} sc1")
        s.poll(issue_st, [("s76", [ST+1, ST+3, ST+5, ST+7])], T+8, T+9, sleep=2)
        a(f"{L}:")
        a("s_barrier")
        s.stamp(6)
        def issue_hg():
            for i in range(8):
                a(f"buffer_load_dwordx4 {q(HG+4*i)}, v6, s[44:47], {'s6' if i < 4 else 's7'} offen offset:{1024*(i%4)} sc1")
        if c['h3d']: a(f"s_sleep {c['h3d']}")
        issue_hg()
        L = a.label("Lwt")
        a(f"s_cmp_lg_u32 s3, 0\ns_cbranch_scc1 {L}")
        M, Lr, TT, E0 = T+8, T+9, T+10, T+12
        a(f"v_max_f32 v{M}, v{ST}, v{ST+4}")
        s.allred_inrow("v_max_f32", M); s.allred_rows("v_max_f32", M, TT)
        a(f"v_sub_f32 v{E0}, v{ST}, v{M}\nv_sub_f32 v{E0+1}, v{ST+4}, v{M}\nv_exp_f32 v{E0}, v{E0}\nv_exp_f32 v{E0+1}, v{E0+1}")
        a(f"v_mul_f32 v{Lr}, v{E0}, v{ST+2}\nv_fmac_f32 v{Lr}, v{E0+1}, v{ST+6}")
        s.allred_inrow("v_add_f32", Lr); s.allred_rows("v_add_f32", Lr, TT)
        a(f"v_rcp_f32 v{Lr}, v{Lr}")
        a(f"v_and_b32 v{TT}, 3, v1\nv_lshlrev_b32 v{TT}, 7, v{TT}\nv_lshrrev_b32 v{TT+1}, 5, v1\nv_lshl_add_u32 v{TT}, v{TT+1}, 5, v{TT}")
        a(f"v_bfe_u32 v{TT+1}, v1, 2, 3\nv_lshl_add_u32 v{TT}, v{TT+1}, 2, v{TT}")
        for k in range(2):
            e = E0+k; hi = E0+2+k; lo = E0+4+k
            a(f"v_mul_f32 v{e}, v{e}, v{Lr}\nv_cvt_pk_bf16_f32 v{hi}, v{e}, v{e}\nv_and_b32 v{lo}, 0xffff0000, v{hi}\nv_sub_f32 v{lo}, v{e}, v{lo}\nv_cvt_pk_bf16_f32 v{lo}, v{lo}, v{lo}")
            a(f"ds_write_b32 v{TT}, v{hi} offset:{WL+64*k}\nds_write_b32 v{TT}, v{lo} offset:{WL+512+64*k}")
        a("s_waitcnt lgkmcnt(0)")
        a(f"{L}:")
        a(f"v_bfe_u32 v{T+20}, v1, 3, 1\nv_lshlrev_b32 v{T+20}, 9, v{T+20}\nv_lshrrev_b32 v{T+21}, 4, v1\nv_lshl_add_u32 v{T+20}, v{T+21}, 7, v{T+20}")
        a(f"s_lshl_b32 s5, s3, 5\nv_add_u32 v{T+20}, s5, v{T+20}")
        a(f"v_and_b32 v{T+22}, 1, v1\nv_lshlrev_b32 v{T+22}, 8, v{T+22}\nv_bfe_u32 v{T+23}, v1, 1, 2\nv_lshl_add_u32 v{T+22}, v{T+23}, 4, v{T+22}")
        a(f"v_lshl_add_u32 v{T+22}, v{T+21}, 2, v{T+22}\ns_lshl_b32 s5, s3, 6\nv_add_u32 v{T+22}, s5, v{T+22}")
        a("s_barrier")
        WW = T; AO = WB
        a(f"ds_read_b128 {q(WW)}, v{T+20} offset:{WL}\nds_read_b128 {q(WW+4)}, v{T+20} offset:{WL+16}")
        a("s_waitcnt lgkmcnt(0)")
        for i in range(8):
            for r in range(4): a(f"v_and_b32 v{AO+4*i+r}, v{WW+i}, v{2+r}")
        DC = T+8
        s.poll_sent(issue_hg, list(range(HG, HG+32)), T+24, sleep=1, pre_issued=True)
        for i in range(8):
            a(f"{MF} {q(DC)}, {q(AO+4*i)}, {q(HG+4*i)}, {'0' if i == 0 else q(DC)}")
        s.stamp(7)
        a(f"ds_write_b128 v{vLW}, {q(DC)}")
        a("s_waitcnt lgkmcnt(0)\ns_barrier")
        Z = T+12
        for k in range(8): a(f"ds_read_b32 v{Z+k}, v{T+22} offset:{512*k}")
        E = T+24
        s.epi_addr(E, False)
        a(f"v_lshlrev_b32 v{E}, 4, v0")
        a(f"s_lshl_b32 s5, s3, 11\nv_add_u32 v{E+2}, s5, v6")
        a(f"s_lshl_b32 s5, s2, 11\ns_add_u32 s5, s5, {OFF_H4}")
        a("s_waitcnt lgkmcnt(0)")
        for st in (4, 2):
            for i in range(0, st, 2): a(f"v_pk_add_f32 {p2(Z+i)}, {p2(Z+i)}, {p2(Z+st+i)}")
        a(f"v_add_f32 v{Z}, v{Z}, v{Z+1}\nv_cvt_pk_bf16_f32 v{Z}, v{Z}, v{Z}")
        DD = T+28
        for g in range(8):
            ab = T + (g % 2)*4
            for r in range(4): a(f"v_and_b32_dpp v{ab+r}, v{Z}, v{2+r} row_newbcast:{g} {DPPF}")
            for hf in range(2):
                a(f"{MF} {q(DD+4*hf)}, {q(ab)}, {q(UV+8*g+4*hf)}, {'0' if g == 0 else q(DD+4*hf)}")
        a(f"ds_write_b128 v{E+2}, {q(DD)} offset:{0x4000}\nds_write_b128 v{E+2}, {q(DD+4)} offset:{0x4000+1024}")
        a("s_waitcnt lgkmcnt(0)\ns_barrier")
        a(f"s_cmp_ge_u32 s3, 2\ns_cbranch_scc1 L_yend")
        X = T
        for i in range(4): a(f"ds_read_b64 {p2(X+2*i)}, v{E+3} offset:{0x4000+2048*i}")
        a("s_waitcnt lgkmcnt(0)")
        for st in (4, 2):
            for i in range(0, st, 2): a(f"v_pk_add_f32 {p2(X+i)}, {p2(X+i)}, {p2(X+st+i)}")
        a(f"v_mov_b32 v{X+2}, v{X+1}\nv_mov_b32 v{X+1}, s76\nv_mov_b32 v{X+3}, s76")
        a(f"buffer_store_dwordx4 {q(X)}, v{E}, s[44:47], s5 offen sc1")
        if not c.get('diag'): s.stamp(8)
        a("s_cmp_ge_u32 s2, 112\ns_cbranch_scc1 L_yend\ns_cmp_ge_u32 s3, 1\ns_cbranch_scc1 L_yend")
        s.srd(52, 38, 1792)
        a(f"s_mul_i32 s6, s2, {FIN_CG}\ns_add_u32 s6, s6, {OFF_FIN}\ns_add_u32 s7, s6, 4096")
        F = UK
        def issue_f():
            for i in range(8):
                a(f"buffer_load_dwordx4 {q(F+4*i)}, v6, s[44:47], {'s6' if i < 4 else 's7'} offen offset:{1024*(i%4)} sc1")
        a(f"s_lshl_b32 s15, s2, 4\nv_lshlrev_b32 v{T+8}, 2, v1")
        s.poll(lambda: a(f"buffer_load_dwordx4 {q(F)}, v6, s[44:47], s6 offen sc1"), [("s76", [F+1, F+3])], T+4, T+5, sleep=c['fsleep'])
        s.poll(issue_f, [("s76", [F+4*i+k for i in range(8) for k in (1, 3)])], T+4, T+5, sleep=0)
        if not c.get('diag'): s.stamp(9)
        for st in (16, 8, 4):
            for i in range(0, st, 4):
                a(f"v_add_f32 v{F+i}, v{F+i}, v{F+st+i}\nv_add_f32 v{F+i+2}, v{F+i+2}, v{F+st+i+2}")
        for m in ("row_ror:8", "row_ror:4"):
            for k in (0, 2): a(f"v_add_f32_dpp v{F+k}, v{F+k}, v{F+k} {m} {DPPF}")
        for k in (0, 2): s.allred_rows("v_add_f32", F+k, F+k+1)
        a(f"v_cvt_pk_bf16_f32 v{F}, v{F}, v{F+2}")
        s.exec_set(0xf, 0)
        a(f"buffer_store_dword v{F}, v{T+8}, s[52:55], s15 offen")
        s.exec_all()
        if not c.get('diag'): s.stamp(10)
        a("L_yend:")
        s.stamp_out()
        a("s_endpgm")
    def gx(s):
        a = s.a; c = s.c; nt = c['nt']; pb = c['pb']
        a("L_X:")
        s.srd(52, 28, 8192*2048); s.srd(56, 36, 4096*896); s.srd(60, 24, 4096*896)
        L1, PV, QF, S = 16, 144, 208, 240
        vTR, vL, vSX, vZ, vE = 8, 9, 10, 11, 12
        a("s_sub_u32 s11, s2, 128")
        a("s_lshl_b32 s8, s11, 17\ns_lshl_b32 s5, s3, 13\ns_add_u32 s8, s8, s5")
        a(f"s_mul_i32 s9, s3, {4*ROW}")
        def dma(i, pace):
            for rr in range(4):
                a(f"s_add_u32 m0, s9, {(i%2)*SLOT + rr*ROW}")
                a(f"s_add_u32 s79, s8, {i*32768 + rr*2048}")
                for hf in range(2):
                    if pace: a(f"s_waitcnt vmcnt({pace-1})")
                    a(f"buffer_load_dwordx4 v6, s[52:55], s79 offen offset:{1024*hf} {nt} lds")
        dma(0, 0)
        a(f"v_lshrrev_b32 v13, 2, v1\nv_mul_u32_u24 v{vTR}, {ROW}, v13\nv_and_b32 v13, 3, v1\nv_lshl_add_u32 v{vTR}, v13, 3, v{vTR}")
        a(f"s_lshl_b32 s5, s3, 9\nv_add_u32 v{vTR}, s5, v{vTR}")
        a(f"v_and_b32 v13, 15, v1\nv_mul_u32_u24 v{vL}, {ROW}, v13\nv_lshrrev_b32 v14, 4, v1\nv_lshl_add_u32 v{vL}, v14, 4, v{vL}\nv_add_u32 v{vL}, s5, v{vL}")
        a(f"v_add_u32 v{vSX}, {2*SLOT}, v6\nv_mov_b32 v{vZ}, 0")
        a(f"v_lshrrev_b32 v15, 5, v1\nv_lshlrev_b32 v15, 3, v15\nv_bfe_u32 v7, v1, 4, 1\nv_add_u32 v15, v15, v7\nv_mul_u32_u24 v15, {H3_C}, v15")
        a(f"v_and_b32 v7, 15, v1\nv_lshl_add_u32 v15, v7, 4, v15")
        a(f"s_mul_i32 s10, s3, {2*H3_C}\ns_lshl_b32 s5, s11, 8\ns_add_u32 s10, s10, s5\ns_add_u32 s10, s10, {OFF_H3}")
        for r in range(4): a(f"v_mov_b32 v{S+4+r}, -1")
        def clears():
            for i in range(8):
                a(f"s_add_u32 s79, s10, {i*16*H3_C}")
                a(f"buffer_store_dwordx4 {q(S+4)}, v15, s[44:47], s79 offen sc1")
        dma(1, 0)
        def tr(i, dst):
            for t in range(16): a(f"ds_read_b64_tr_b16 {p2(dst(t))}, v{vTR} offset:{(i%2)*SLOT+32*t}")
        def l1(i):
            for ks in range(8): a(f"ds_read_b128 {q(L1+(i*8+ks)*4)}, v{vL} offset:{(i%2)*SLOT+64*ks}")
        for i in range(4):
            a(f"s_waitcnt vmcnt({[8, 16, 8, 0][i]})\ns_barrier")
            l1(i)
            if i < 2:
                tr(i, lambda t: PV+4*t+2*i)
                a("s_waitcnt lgkmcnt(0)\ns_barrier")
                if i == 0: clears()
                dma(i+2, 0)
            if i == 2:
                L = a.label("Lclr")
                a(f"s_cmp_lg_u32 s3, 0\ns_cbranch_scc1 {L}")
                a(f"v_lshlrev_b32 v13, 3, v1\ns_mov_b32 s5, {OFF_CLR}")
                def issue_c():
                    a(f"buffer_load_dwordx2 {p2(S)}, v13, s[44:47], s5 offen sc1")
                    a(f"buffer_load_dword v{vE}, v{vZ}, s[48:51], 0 offen sc1")
                s.poll(issue_c, [(f"v{vE}", [S, S+1])], S+2, S+3, sleep=2)
                a(f"ds_write_b32 v{vSX}, v{vE} offset:12288\ns_waitcnt lgkmcnt(0)")
                a(f"{L}:")
        a(f"ds_read_b32 v{vE}, v{vSX} offset:12288")
        s.stamp(1)
        a(f"s_lshl_b32 s6, s3, 13\ns_add_u32 s6, s6, {OFF_QABS}\ns_add_u32 s7, s6, 4096")
        def issue_q():
            for i in range(8):
                a(f"buffer_load_dwordx4 {q(QF+4*i)}, v6, s[44:47], {'s6' if i < 4 else 's7'} offen offset:{1024*(i%4)} sc1")
        s.poll_sent(issue_q, list(range(QF, QF+32)), 13, sleep=2)
        a("s_waitcnt lgkmcnt(0)")
        a(f"v_readfirstlane_b32 s76, v{vE}")
        s.stamp(2)
        for ks in range(8):
            for ch in range(4):
                a(f"{MF} {q(S+4*ch)}, {q(L1+(ch*8+ks)*4)}, {q(QF+4*ks)}, {'0' if ks == 0 else q(S+4*ch)}")
        PV1 = L1
        Lx = a.label("Lsx")
        labs = [a.label("Lsxw") for _ in range(4)]
        for w in range(1, 4): a(f"s_cmp_eq_u32 s3, {w}\ns_cbranch_scc1 {labs[w]}")
        for w in range(4):
            a(f"{labs[w]}:")
            for ch in range(4):
                if ch == w: continue
                k = (w - ch - 1) % 4
                a(f"ds_write_b128 v{vSX}, {q(S+4*ch)} offset:{(ch*3+k)*1024}")
            a(f"v_mov_b64 {p2(QF)}, {p2(S+4*w)}\nv_mov_b64 {p2(QF+2)}, {p2(S+4*w+2)}")
            if w < 3: a(f"s_branch {Lx}")
        a(f"{Lx}:")
        a(f"s_mul_i32 s5, s3, 3072\nv_add_u32 v13, s5, v{vSX}")
        a("s_waitcnt lgkmcnt(0)\ns_barrier")
        for k in range(3): a(f"ds_read_b128 {q(QF+4+4*k)}, v13 offset:{1024*k}")
        tr(2, lambda t: PV1+4*t)
        a("s_waitcnt lgkmcnt(15)\ns_waitcnt lgkmcnt(14)")
        a(f"v_pk_add_f32 {p2(QF)}, {p2(QF)}, {p2(QF+4)}\nv_pk_add_f32 {p2(QF+2)}, {p2(QF+2)}, {p2(QF+6)}")
        a(f"v_pk_add_f32 {p2(QF+8)}, {p2(QF+8)}, {p2(QF+12)}\nv_pk_add_f32 {p2(QF+10)}, {p2(QF+10)}, {p2(QF+14)}")
        a(f"v_pk_add_f32 {p2(QF)}, {p2(QF)}, {p2(QF+8)}\nv_pk_add_f32 {p2(QF+2)}, {p2(QF+2)}, {p2(QF+10)}")
        a(f"ds_write_b128 v13, {q(QF)}")
        a("s_waitcnt lgkmcnt(0)\ns_barrier")
        s.stamp(3)
        SR = S
        for ch in range(4): a(f"ds_read_b128 {q(SR+4*ch)}, v{vSX} offset:{3072*ch}")
        a("s_waitcnt lgkmcnt(0)")
        tr(3, lambda t: PV1+4*t+2)
        M, Lr, TT, P = QF+8, QF+10, QF+12, QF
        a(f"v_max3_f32 v{M}, v{SR}, v{SR+1}, v{SR+2}")
        for i in range(3, 16, 2): a(f"v_max3_f32 v{M}, v{M}, v{SR+i}, v{SR+min(i+1,15)}")
        s.allred_rows("v_max_f32", M, TT)
        a(f"s_mov_b32 s5, {f32(CEXP)}\nv_mul_f32 v{M}, s5, v{M}")
        for i in range(16): a(f"v_fma_f32 v{SR+i}, v{SR+i}, s5, -v{M}")
        for i in range(16): a(f"v_exp_f32 v{SR+i}, v{SR+i}")
        for i in range(8): a(f"v_cvt_pk_bf16_f32 v{P+i}, v{SR+2*i}, v{SR+2*i+1}")
        O = L1+64
        a(f"v_and_b32 v13, 15, v1\nv_mul_u32_u24 v13, {ROW}, v13\nv_lshrrev_b32 v14, 4, v1\nv_lshl_add_u32 v13, v14, 3, v13")
        a(f"s_lshl_b32 s5, s3, 9\nv_add_u32 v13, s5, v13")
        a(f"v_lshrrev_b32 v14, 5, v1\nv_mul_u32_u24 v14, {ROW}, v14\nv_and_b32 v7, 31, v1\nv_lshl_add_u32 v14, v7, 4, v14\nv_add_u32 v14, s5, v14")
        a("s_waitcnt lgkmcnt(0)")
        def fin(t):
            a(f"v_cvt_pk_bf16_f32 v{O+4*t}, v{O+4*t}, v{O+4*t+1}\nv_cvt_pk_bf16_f32 v{O+4*t+1}, v{O+4*t+2}, v{O+4*t+3}")
            a(f"v_min_u32 v{O+4*t}, -2, v{O+4*t}\nv_min_u32 v{O+4*t+1}, -2, v{O+4*t+1}")
            a(f"ds_write_b64 v13, {p2(O+4*t)} offset:{32*t}")
        for t in range(16):
            a(f"{MF} {q(O+4*t)}, {q(PV+4*t)}, {q(P)}, 0")
            a(f"{MF} {q(O+4*t)}, {q(PV1+4*t)}, {q(P+4)}, {q(O+4*t)}")
            if t == 0:
                L = a.label("Lst3")
                a(f"s_cmp_lg_u32 s3, 0\ns_cbranch_scc1 {L}")
                for st in (8, 4, 2):
                    for i in range(0, st, 2): a(f"v_pk_add_f32 {p2(SR+i)}, {p2(SR+i)}, {p2(SR+st+i)}")
                a(f"v_add_f32 v{Lr}, v{SR}, v{SR+1}")
                s.allred_rows("v_add_f32", Lr, TT)
                a(f"v_mov_b32 v{M+1}, s76\nv_mov_b32 v{Lr+1}, s76\nv_lshlrev_b32 v{TT}, 11, v1")
                a(f"s_lshl_b32 s5, s11, 4\ns_add_u32 s5, s5, {OFF_ST3}")
                s.exec_set(0xffff, 0)
                a(f"buffer_store_dwordx4 {q(M)}, v{TT}, s[44:47], s5 offen sc1")
                s.exec_all()
                a(f"{L}:")
            if t >= 3: fin(t-3)
        fin(13); fin(14); fin(15)
        a("s_waitcnt lgkmcnt(0)")
        s.stamp(4)
        SQ = L1
        for i in range(8): a(f"ds_read_b128 {q(SQ+4*i)}, v14 offset:{2*ROW*i}")
        for i in range(8):
            a(f"s_add_u32 s79, s10, {i*16*H3_C}")
            a(f"s_waitcnt lgkmcnt({7-i})")
            a(f"buffer_store_dwordx4 {q(SQ+4*i)}, v15, s[44:47], s79 offen sc1")
        s.stamp(5)
        WOB = [PV+4*t for t in range(8)]; WOA = [PV+32+4*t for t in range(8)]
        T = QF
        a(f"s_mov_b32 s14, s3\ns_mul_i32 s15, s11, {32*896}")
        s.proj_wload(WOB, 13, 56, 15, 14)
        for t in range(8): s.proj_wload_one(t, WOB, 13, 56, 15)
        for t in range(8): s.proj_wload_one(t, WOA, 13, 60, 15)
        a("s_lshr_b32 s12, s11, 3\ns_and_b32 s13, s11, 7")
        G = L1+32
        a(f"v_lshrrev_b32 v13, 4, v1\nv_lshlrev_b32 v13, 11, v13\nv_and_b32 v14, 15, v1\nv_lshl_add_u32 v13, v14, 4, v13")
        a(f"s_lshl_b32 s5, s12, 14\ns_lshl_b32 s6, s13, 8\ns_add_u32 s5, s5, s6\ns_add_u32 s5, s5, {OFF_H4}\ns_add_u32 s6, s5, 8192")
        def issue_h4():
            a(f"buffer_load_dwordx4 {q(G)}, v13, s[44:47], s5 offen sc1\nbuffer_load_dwordx4 {q(G+4)}, v13, s[44:47], s6 offen sc1")
        s.poll(issue_h4, [("s76", [G+1, G+3, G+5, G+7])], G+8, G+9, sleep=c['sleep'])
        s.stamp(6)
        a(f"v_add_f32 v{G}, v{G}, v{G+4}\nv_add_f32 v{G+1}, v{G+2}, v{G+6}")
        a(f"s_lshl_b32 s15, s11, 6\ns_add_u32 s15, s15, {OFF_FIN+FIN_AB}")
        s.proj_tail(G, WOB, T, 14, 15)
        s.stamp(7)
        ST = L1+48
        a(f"v_and_b32 v13, 31, v1\nv_lshlrev_b32 v13, 4, v13")
        a(f"s_lshl_b32 s5, s12, 9\ns_add_u32 s5, s5, {OFF_STA}")
        s.poll(lambda: a(f"buffer_load_dwordx4 {q(ST)}, v13, s[44:47], s5 offen sc1"), [("s76", [ST+1, ST+3])], ST+4, ST+5, sleep=c['sleep'])
        M, Lr, TT, E0 = ST+4, ST+5, ST+6, ST+7
        a(f"v_mov_b32 v{M}, v{ST}")
        s.allred_inrow("v_max_f32", M); s.allred_rows("v_max_f32", M, TT)
        a(f"v_sub_f32 v{E0}, v{ST}, v{M}\nv_exp_f32 v{E0}, v{E0}\nv_mul_f32 v{Lr}, v{E0}, v{ST+2}")
        s.allred_inrow("v_add_f32", Lr); s.allred_rows("v_add_f32", Lr, TT)
        a(f"v_rcp_f32 v{Lr}, v{Lr}\nv_add_f32 v{E0}, v{E0}, v{E0}\nv_mul_f32 v{E0}, v{E0}, v{Lr}")
        W0 = ST+8
        a(f"v_lshrrev_b32 v13, 4, v1\ns_lshl_b32 s5, s3, 3\nv_add_u32 v13, s5, v13\nv_lshlrev_b32 v13, 2, v13\nv_add_u32 v14, 16, v13")
        a(f"ds_bpermute_b32 v{W0}, v13, v{E0}\nds_bpermute_b32 v{W0+1}, v14, v{E0}")
        OG = ST+12
        a(f"s_mul_i32 s6, s11, {HA_U}\ns_lshl_b32 s5, s3, 11\ns_add_u32 s6, s6, s5\ns_add_u32 s6, s6, {OFF_HA}")
        a(f"v_lshlrev_b32 v13, 3, v0\nv_add_u32 v13, {2*SLOT}, v13")
        a(f"v_lshlrev_b32 v14, 3, v1\nv_add_u32 v14, {2*SLOT}, v14")
        a(f"s_lshl_b32 s15, s11, 6\ns_add_u32 s15, s15, {OFF_FIN}")
        a("s_waitcnt lgkmcnt(0)")
        s.stamp(8)
        def issue_o():
            a(f"buffer_load_dwordx4 {q(OG)}, v6, s[44:47], s6 offen sc1\nbuffer_load_dwordx4 {q(OG+4)}, v6, s[44:47], s6 offen offset:1024 sc1")
        s.poll(issue_o, [("s76", [OG+1, OG+3, OG+5, OG+7])], OG+8, OG+9, sleep=c['fsleep'])
        A0 = OG+8
        a(f"v_mul_f32 v{A0}, v{W0}, v{OG}\nv_mul_f32 v{A0+1}, v{W0}, v{OG+2}")
        a(f"v_fmac_f32 v{A0}, v{W0+1}, v{OG+4}\nv_fmac_f32 v{A0+1}, v{W0+1}, v{OG+6}")
        a(f"ds_write_b64 v13, {p2(A0)}")
        a("s_waitcnt lgkmcnt(0)\ns_barrier")
        s.stamp(9)
        for k in range(4): a(f"ds_read_b64 {p2(OG+2*k)}, v14 offset:{512*k}")
        a("s_waitcnt lgkmcnt(0)")
        a(f"v_pk_add_f32 {p2(OG)}, {p2(OG)}, {p2(OG+2)}\nv_pk_add_f32 {p2(OG+4)}, {p2(OG+4)}, {p2(OG+6)}\nv_pk_add_f32 {p2(OG)}, {p2(OG)}, {p2(OG+4)}")
        s.proj_tail(OG, WOA, T, 14, 15)
        s.stamp(10)
        s.stamp_out()
        a("s_endpgm")
    def ga(s):
        a = s.a; c = s.c; pa = c['pa']
        a("L_A:")
        s.srd(68, 18, 8*8192*512); s.srd(72, 20, 8*8192*512)
        Kb, Vb, T, AD = 16, 144, 224, 8
        NG = 16; NL = 32; NV1 = 20
        def vreg(n): return Vb+4*n if n < 20 else Kb+64+4*(n-20)
        a("s_sub_u32 s11, s2, 256\ns_lshr_b32 s9, s11, 5\ns_and_b32 s10, s11, 31")
        vZ, vE = T+30, T+31
        a(f"v_mov_b32 v{vZ}, 0")
        a(f"ds_write_b32 v{vZ}, v{vZ} offset:{0x900}")
        Lnp = a.label("Lnp1"); Lj = a.label("Lp1j")
        a(f"s_cmp_ge_u32 s11, 128\ns_cbranch_scc1 {Lnp}")
        a(f"s_setprio {c['prioa']}")
        s.srd(52, 16, 896); s.srd(56, 22, 448*8192)
        XA, WA, PVv = Vb, Vb+4, T+16
        s.p1_setup(11, T, PVv)
        s.p1_loads(XA, WA, 52, 56, PVv)
        a(f"buffer_load_dword v{vE}, v{vZ}, s[48:51], 0 offen sc1")
        s.p1_setup2(T, PVv)
        a("s_waitcnt vmcnt(0)")
        s.get_epoch(vE, vZ)
        s.p1_compute(XA, WA, T, PVv, 0x1000, OFF_QA)
        a(f"s_setprio 0\ns_branch {Lj}")
        a(f"{Lnp}:")
        a("s_waitcnt lgkmcnt(0)\ns_barrier")
        a(f"{Lj}:")
        s.stamp(6)
        a("s_lshl_b32 s8, s11, 17\ns_lshl_b32 s5, s3, 15\ns_add_u32 s8, s8, s5")
        s.kv_addr(AD)
        vK, vV = AD, AD+1
        def ld(n, reg, voff, srd, pace):
            g, hf = n//2, n % 2
            a(f"s_add_u32 s79, s8, {(g//2)*4096}")
            if pace: a(f"s_waitcnt vmcnt({pace-1})")
            a(f"buffer_load_dwordx4 {q(reg)}, v{voff}, s[{srd}:{srd+3}], s79 offen offset:{(g%2)*2048+hf*256} {c['nt']}")
        for n in range(NL):
            ld(n, Kb+4*n, vK, 68, c['pa0'] if n < c['na0'] else pa)
            if n == NL-8: a(f"buffer_load_dword v{vE}, v{vZ}, s[48:51], 0 offen sc1")
        v1n = c['v1']
        QF = T; D = T+8; TS = T+16
        a(f"v_bfe_u32 v{AD+4}, v1, 3, 1\nv_lshlrev_b32 v{AD+4}, 9, v{AD+4}")
        a(f"v_lshl_add_u32 v{AD+4}, v{AD+2}, 6, v{AD+4}\nv_lshl_add_u32 v{AD+4}, v{AD+3}, 4, v{AD+4}")
        a("s_waitcnt vmcnt(7)")
        s.get_epoch(vE, vZ)
        def vfirst():
            for n in range(v1n): ld(n, vreg(n), vV, 72, pa)
        Lo = a.label("Lqo"); Lq = a.label("Lqj")
        a(f"s_cmp_lg_u32 s3, 0\ns_cbranch_scc1 {Lo}")
        GQ = Vb+4*v1n
        assert GQ+34 <= Vb+80
        a(f"s_lshl_b32 s6, s9, 12\ns_add_u32 s6, s6, {OFF_QA}")
        a(f"v_lshlrev_b32 v{T+20}, 2, v1")
        s.gather_q(GQ, 6, T+20, 4, vfirst, v1n, sleep=4)
        a(f"v_mov_b32 v{T+21}, 1\nds_write_b32 v{vZ}, v{T+21} offset:{0x900}")
        a(f"s_branch {Lq}")
        a(f"{Lo}:")
        vfirst()
        Ls = a.label("Lqs")
        a(f"s_mov_b32 s78, {c['timeout']*8}")
        a(f"{Ls}:")
        a(f"ds_read_b32 v{T+21}, v{vZ} offset:{0x900}\ns_waitcnt lgkmcnt(0)\nv_readfirstlane_b32 s5, v{T+21}")
        a(f"s_cmp_lg_u32 s5, 0\ns_cbranch_scc1 {Lq}")
        a(f"s_sleep 2\ns_sub_u32 s78, s78, 1\ns_cmp_lg_u32 s78, 0\ns_cbranch_scc1 {Ls}")
        a(f"{Lq}:")
        s.stamp(1)
        a(f"ds_read_b128 {q(QF)}, v{AD+4}\nds_read_b128 {q(QF+4)}, v{AD+4} offset:256")
        a(f"s_waitcnt vmcnt({v1n}) lgkmcnt(0)")
        s.stamp(2)
        nv = v1n
        def more(k=1):
            nonlocal nv
            for _ in range(k):
                if nv < NV1: ld(nv, vreg(nv), vV, 72, pa); nv += 1
        def dreg(i): return D+4*i if i < 2 else Kb+8*(i-2)
        for i in range(NG):
            a(f"{MF} {q(dreg(i))}, {q(Kb+i*8)}, {q(QF)}, 0")
            a(f"{MF} {q(dreg(i))}, {q(Kb+i*8+4)}, {q(QF+4)}, {q(dreg(i))}")
            if i % 8 == 7: more()
        for r in range(4):
            for i in range(NG):
                if r == 0: a(f"v_mov_b32_dpp v{TS+i}, v{dreg(i)} quad_perm:[0,0,0,0] {DPPF}")
                else: a(f"v_add_f32_dpp v{TS+i}, v{dreg(i)+r}, v{TS+i} quad_perm:[{r},{r},{r},{r}] {DPPF}")
        NV1_ = NV1
        NV1 = NL
        more()
        if c['rnd']:
            for i in range(0, NG, 2): a(f"v_cvt_pk_bf16_f32 v{D+(i//2)}, v{TS+i}, v{TS+i+1}")
            for i in range(0, NG, 2): a(f"v_lshlrev_b32 v{TS+i}, 16, v{D+i//2}\nv_and_b32 v{TS+i+1}, 0xffff0000, v{D+i//2}")
        M = QF; Lr = QF+1; TT = QF+2
        a(f"v_max3_f32 v{M}, v{TS}, v{TS+1}, v{TS+2}")
        for i in range(3, NG, 2): a(f"v_max3_f32 v{M}, v{M}, v{TS+i}, v{TS+min(i+1,NG-1)}")
        s.allred_rows("v_max_f32", M, TT)
        a(f"s_mov_b32 s5, {f32(CEXP)}\nv_mul_f32 v{M}, s5, v{M}")
        for i in range(NG): a(f"v_fma_f32 v{TS+i}, v{TS+i}, s5, -v{M}")
        more()
        for i in range(NG): a(f"v_exp_f32 v{TS+i}, v{TS+i}")
        for i in range(0, 8, 2): a(f"v_pk_add_f32 {p2(D+i)}, {p2(TS+i)}, {p2(TS+8+i)}")
        a(f"v_pk_add_f32 {p2(D)}, {p2(D)}, {p2(D+4)}\nv_pk_add_f32 {p2(D+2)}, {p2(D+2)}, {p2(D+6)}\nv_pk_add_f32 {p2(D)}, {p2(D)}, {p2(D+2)}")
        a(f"v_add_f32 v{Lr}, v{D}, v{D+1}")
        s.allred_rows("v_add_f32", Lr, TT)
        a(f"v_bfe_u32 v{AD+6}, v1, 3, 1\nv_lshlrev_b32 v{AD+6}, 5, v{AD+6}\ns_lshl_b32 s5, s3, 3\nv_add_u32 v{AD+7}, s5, v{AD+6}")
        a(f"ds_write_b64 v{AD+7}, {p2(M)} offset:{0x800}")
        more()
        for i in range(NG): a(f"v_cvt_pk_bf16_f32 v{TS+i}, v{TS+i}, v{TS+i}")
        for i in range(NG):
            for r in range(4): a(f"v_and_b32 v{Kb+4*i+r}, v{TS+i}, v{2+r}")
            if i % 8 == 7: more()
        s.stamp(3)
        X = Kb+112
        E = X
        s.epi_addr(E, True)
        a(f"v_bfe_u32 v{E+2}, v0, 4, 4\nv_mul_u32_u24 v{E+2}, {HA_U}, v{E+2}")
        a(f"v_and_b32 v{E}, 15, v0\nv_lshl_add_u32 v{E+2}, v{E}, 4, v{E+2}")
        a(f"s_mul_i32 s12, s9, {16*HA_U}\ns_lshl_b32 s6, s10, 8\ns_add_u32 s12, s12, s6\ns_add_u32 s12, s12, {OFF_HA}")
        a(f"s_lshl_b32 s5, s3, 11\nv_add_u32 v{AD+4}, s5, v6")
        a(f"v_lshrrev_b32 v{AD+5}, 5, v1\nv_lshlrev_b32 v{AD+5}, 5, v{AD+5}")
        AC = D
        def vr(n): return Vb+4*n if n < NV1_ else Kb+64+4*(n-NV1_)
        def pv(i):
            for hf in range(2):
                a(f"{MF} {q(AC+4*hf)}, {q(Kb+4*i)}, {q(vr(2*i+hf))}, {'0' if i == 0 else q(AC+4*hf)}")
        while nv < NL:
            ld(nv, vr(nv), vV, 72, pa); nv += 1
        lead = c['lead']
        a(f"s_waitcnt vmcnt({NL-2*lead})")
        for i in range(lead): pv(i)
        a("s_waitcnt lgkmcnt(0)\ns_barrier")
        Y = TS
        a(f"ds_read_b128 {q(Y)}, v{AD+5} offset:{0x800}\nds_read_b128 {q(Y+4)}, v{AD+5} offset:{0x810}")
        a(f"s_lshl_b32 s5, s3, 3\nv_add_u32 v{AD+7}, s5, v{AD+5}\nds_read_b32 v{Y+8}, v{AD+7} offset:{0x800}")
        a("s_waitcnt lgkmcnt(0)")
        a(f"v_max3_f32 v{Y+12}, v{Y}, v{Y+2}, v{Y+4}\nv_max_f32 v{Y+12}, v{Y+12}, v{Y+6}")
        a(f"v_sub_f32 v{Y+8}, v{Y+8}, v{Y+12}\nv_exp_f32 v{Y+8}, v{Y+8}")
        Ls = a.label("Lst")
        a(f"s_cmp_lg_u32 s3, 0\ns_cbranch_scc1 {Ls}")
        for k in range(4): a(f"v_sub_f32 v{Y+2*k}, v{Y+2*k}, v{Y+12}")
        for k in range(4): a(f"v_exp_f32 v{Y+2*k}, v{Y+2*k}")
        a(f"v_mul_f32 v{Y+14}, v{Y}, v{Y+1}")
        for k in range(1, 4): a(f"v_fmac_f32 v{Y+14}, v{Y+2*k}, v{Y+2*k+1}")
        a(f"v_mov_b32 v{Y+13}, s76\nv_mov_b32 v{Y+15}, s76\nv_lshlrev_b32 v{Y+9}, 4, v{AD+5}")
        a(f"s_lshl_b32 s5, s9, 10\ns_lshl_b32 s6, s10, 4\ns_add_u32 s5, s5, s6\ns_add_u32 s5, s5, {OFF_STA}")
        s.exec_set(1, 1)
        a(f"buffer_store_dwordx4 {q(Y+12)}, v{Y+9}, s[44:47], s5 offen sc1")
        s.exec_all()
        a(f"{Ls}:")
        for i in range(lead, NG):
            a(f"s_waitcnt vmcnt({NL-2*(i+1)})")
            pv(i)
        s.stamp(4)
        for k in range(8): a(f"v_mul_f32 v{AC+k}, v{AC+k}, v{Y+8}")
        a(f"ds_write_b128 v{AD+4}, {q(AC)} offset:{0x1000}\nds_write_b128 v{AD+4}, {q(AC+4)} offset:{0x1000+1024}")
        Z = X+4
        a(f"v_mov_b32 v{Z+9}, s76\nv_mov_b32 v{Z+11}, s76")
        a("s_waitcnt lgkmcnt(0)\ns_barrier")
        for i in range(4): a(f"ds_read_b64 {p2(Z+2*i)}, v{E+3} offset:{0x1000+2048*i}")
        a("s_waitcnt lgkmcnt(0)")
        a(f"v_pk_add_f32 {p2(Z)}, {p2(Z)}, {p2(Z+2)}\nv_pk_add_f32 {p2(Z+4)}, {p2(Z+4)}, {p2(Z+6)}")
        a(f"v_add_f32 v{Z+8}, v{Z}, v{Z+4}\nv_add_f32 v{Z+10}, v{Z+1}, v{Z+5}")
        a(f"buffer_store_dwordx4 {q(Z+8)}, v{E+2}, s[44:47], s12 offen sc1")
        s.stamp(5)
        s.stamp_out()
        a("s_endpgm")
    def build(s):
        a = s.a
        s.prologue()
        s.gy(); s.gx(); s.ga()
        a("L_end:\ns_endpgm")
        body = a.finish()
        hdr = open("concat_heads__gqa_block_cached__compressed_kv_cla__decode.s.ref").read().split("; @launch")[0]
        out = hdr + "; @launch grid=(512,1,1) block=(256,1,1) lds=81920\n"
        out += "; generated by my own generator script (gen2.py)\n"
        out += f'.amdgcn_target "amdgcn-amd-amdhsa--gfx950"\n.text\n.globl {KN}\n.p2align 8\n.type {KN},@function\n{KN}:\n'
        out += body
        out += f""".section .rodata,"a"
.p2align 6
.amdhsa_kernel {KN}
  .amdhsa_next_free_vgpr 256
  .amdhsa_next_free_sgpr 102
  .amdhsa_accum_offset 256
  .amdhsa_group_segment_fixed_size 0
  .amdhsa_kernarg_size 112
  .amdhsa_user_sgpr_count 2
  .amdhsa_user_sgpr_kernarg_segment_ptr 1
  .amdhsa_system_sgpr_workgroup_id_x 1
.end_amdhsa_kernel
"""
        return out
if __name__ == "__main__":
    from build import build
    name = sys.argv[1]
    cfg = {}
    for kv in sys.argv[2:]:
        k, v = kv.split("=")
        cfg[k] = v if k == "nt" else int(v)
    open(name, "w").write(Gen2(**cfg).build())
    print(build(name))
```

```python
import sys, math, struct
from asmlib import Asm
from gen import Gen, q, p2, f32, DPPF, KN, CEXP
OFF_QB, OFF_QA, OFF_QABS, OFF_CLR, OFF_ST3, OFF_STA, OFF_H4, OFF_HA, OFF_FIN, OFF_H3 = \
    0x0, 0x10000, 0x20000, 0x28000, 0x30000, 0x38000, 0x40000, 0x80000, 0x200000, 0x400000
FIN_CG = 8192+128; FIN_AB = 56*FIN_CG
HA_U = 8192+128
H3_C = 32768+256
OFF_STAMP = 0x8000000
ROW = 2080; SLOT = 16*ROW
import gen as G1
G1.FIN_CG = FIN_CG
MF = "v_mfma_f32_16x16x32_bf16"

class Gen2(Gen):
    def __init__(s, **cfg):
        s.c = dict(stamp=False, nt="nt", sleep=4, timeout=200000, rnd=True, pa=0, pb=8, prio=2, prioa=3, v1=8, fsleep=2, pf=0, pa0=1, na0=2, na1=6, lead=10, h3d=0)
        s.c.update(cfg)
        s.a = Asm()
    def stamp_out(s):
        if not s.c['stamp']: return
        a = s.a
        a("s_mov_b64 exec, -1\nv_mov_b32 v8, 0")
        for k in range(12): a(f"v_writelane_b32 v8, s{84+k}, {k}")
        a("v_lshlrev_b32 v9, 2, v1")
        a("s_lshl_b32 s4, s2, 2\ns_add_u32 s4, s4, s3\ns_lshl_b32 s4, s4, 6")
        a(f"s_add_u32 s4, s4, {OFF_STAMP}")
        a("s_mov_b32 exec_lo, 0xffff\ns_mov_b32 exec_hi, 0")
        a("buffer_store_dword v8, v9, s[44:47], s4 offen")
    def prologue(s):
        a = s.a
        a("s_cmp_ge_u32 s2, 512\ns_cbranch_scc1 L_end")
        a("s_load_dwordx16 s[16:31], s[0:1], 0\ns_load_dwordx8 s[32:39], s[0:1], 64\ns_load_dwordx4 s[40:43], s[0:1], 96")
        a("s_memrealtime s[4:5]")
        a("v_and_b32 v1, 63, v0\nv_lshrrev_b32 v7, 6, v0")
        a("v_lshlrev_b32 v6, 4, v1")
        a("v_readfirstlane_b32 s3, v7")
        a("v_and_b32 v7, 1, v1\nv_lshlrev_b32 v7, 4, v7\nv_mov_b32 v8, 0xffff\nv_lshlrev_b32 v7, v7, v8")
        a("v_bfe_u32 v8, v1, 1, 2")
        for r in range(4): a(f"v_cmp_eq_u32 s[{6+2*r}:{7+2*r}], {r}, v8")
        for r in range(4): a(f"v_cndmask_b32 v{2+r}, 0, v7, s[{6+2*r}:{7+2*r}]")
        a("s_waitcnt lgkmcnt(0)")
        a("s_or_b32 s77, s4, 1")
        if s.c['stamp']:
            for k in range(12): a(f"s_mov_b32 s{84+k}, 0")
            a("s_mov_b32 s84, s4")
        s.srd(44, 42, 0x10000000)
        s.srd(48, 40, 256)
        a("s_cmp_ge_u32 s2, 256\ns_cbranch_scc1 L_A")
        if s.c['prio']: a(f"s_setprio {s.c['prio']}")
        a("s_cmp_ge_u32 s2, 128\ns_cbranch_scc1 L_X")
    def get_epoch(s, vE, vZ):
        a = s.a
        L = a.label("Lge"); Ld = a.label("Lged")
        a(f"s_mov_b32 s78, {s.c['timeout']}")
        a(f"{L}:")
        a(f"v_readfirstlane_b32 s76, v{vE}")
        a(f"s_cmp_lg_u32 s76, 0\ns_cbranch_scc1 {Ld}")
        a(f"buffer_load_dword v{vE}, v{vZ}, s[48:51], 0 offen sc1\ns_waitcnt vmcnt(0)")
        a(f"s_sub_u32 s78, s78, 1\ns_cmp_lg_u32 s78, 0\ns_cbranch_scc1 {L}")
        a(f"{Ld}:")
    def poll_sent(s, issue, regs, t0, sleep=None, pre_issued=False):
        a = s.a
        L = a.label("Lps"); Ld = a.label("Lpsd")
        a(f"s_mov_b32 s78, {s.c['timeout']}")
        Lw = a.label("Lpsw")
        if pre_issued: a(f"s_branch {Lw}")
        a(f"{L}:")
        issue()
        a(f"{Lw}:")
        a("s_waitcnt vmcnt(0)")
        a(f"v_max3_u32 v{t0}, v{regs[0]}, v{regs[1]}, v{regs[2]}")
        rest = regs[3:]
        for i in range(0, len(rest), 2):
            y = rest[i+1] if i+1 < len(rest) else rest[i]
            a(f"v_max3_u32 v{t0}, v{t0}, v{rest[i]}, v{y}")
        a(f"v_cmp_eq_u32 vcc, -1, v{t0}")
        a(f"s_cbranch_vccz {Ld}")
        sl = s.c['sleep'] if sleep is None else sleep
        if sl: a(f"s_sleep {sl}")
        a(f"s_sub_u32 s78, s78, 1\ns_cmp_lg_u32 s78, 0\ns_cbranch_scc1 {L}")
        a(f"{Ld}:")
    def gather_q(s, T, soff, lds, n, between=None, nb=0, sleep=1):
        a = s.a
        a(f"s_add_u32 s7, s{soff}, 0x8000")
        def issue():
            for k in range(n):
                a(f"buffer_load_dwordx4 {q(T+8*k)}, v6, s[44:47], s{soff} offen offset:{1024*k} sc1")
                a(f"buffer_load_dwordx4 {q(T+8*k+4)}, v6, s[44:47], s7 offen offset:{1024*k} sc1")
        grp = [("s76", [T+4*k+j for k in range(2*n) for j in (1, 3)])]
        if between:
            Lok = a.label("Lgq")
            issue(); between()
            a(f"s_waitcnt vmcnt({nb})")
            s.check_tags(grp, T+8*n, T+8*n+1)
            a(f"s_cbranch_scc1 {Lok}")
            s.poll(issue, grp, T+8*n, T+8*n+1, sleep=sleep)
            a(f"{Lok}:")
        else:
            s.poll(issue, grp, T+8*n, T+8*n+1, sleep=sleep)
        for k in range(n):
            b = T+8*k
            a(f"v_add_f32 v{b}, v{b}, v{b+4}\nv_add_f32 v{b+2}, v{b+2}, v{b+6}\nv_cvt_pk_bf16_f32 v{b}, v{b}, v{b+2}")
            a(f"ds_write_b32 v{lds}, v{b} offset:{256*k}")
        a("s_waitcnt lgkmcnt(0)")
    def epi_addr(s, E, two_heads):
        a = s.a
        a(f"v_bfe_u32 v{E+3}, v0, 6, 1\nv_lshlrev_b32 v{E+3}, 10, v{E+3}")
        if two_heads: a(f"v_bfe_u32 v{E+1}, v0, 7, 1\nv_lshl_add_u32 v{E+3}, v{E+1}, 9, v{E+3}")
        a(f"v_bfe_u32 v{E+1}, v0, 1, 1\nv_lshl_add_u32 v{E+3}, v{E+1}, 8, v{E+3}")
        a(f"v_bfe_u32 v{E+1}, v0, 2, 4\nv_lshl_add_u32 v{E+3}, v{E+1}, 4, v{E+3}")
        a(f"v_and_b32 v{E+1}, 1, v0\nv_lshl_add_u32 v{E+3}, v{E+1}, 3, v{E+3}")
    def p1_setup(s, sI, T, V):
        a = s.a
        vX, vW, vSA, vSB, vLW, vRD, vPB = range(V, V+7)
        a(f"s_and_b32 s100, s{sI}, 7\ns_lshl_b32 s100, s100, 3\ns_bfe_u32 s5, s{sI}, 0x30003\ns_add_u32 s100, s100, s5\ns_lshr_b32 s101, s{sI}, 6")
        a("s_mul_i32 s96, s101, 224\ns_mul_i32 s5, s3, 56\ns_add_u32 s96, s96, s5\ns_lshl_b32 s97, s96, 1")
        a("s_lshl_b32 s96, s96, 13\ns_lshl_b32 s5, s100, 7\ns_add_u32 s96, s96, s5")
        a(f"v_lshrrev_b32 v{T}, 3, v1\nv_mul_u32_u24 v{vX}, 14, v{T}\nv_and_b32 v{vX}, 0x7c, v{vX}")
        a(f"v_mul_u32_u24 v{vW}, {7*8192}, v{T}\nv_and_b32 v{T+1}, 7, v1\nv_lshl_add_u32 v{vW}, v{T+1}, 4, v{vW}")
    def p1_loads(s, X, W, srdX, srdW, V):
        a = s.a
        a(f"buffer_load_dwordx4 {q(X)}, v{V}, s[{srdX}:{srdX+3}], s97 offen")
        for i in range(7):
            a(f"s_add_u32 s79, s96, {i*8192}")
            a(f"buffer_load_dwordx4 {q(W+4*i)}, v{V+1}, s[{srdW}:{srdW+3}], s79 offen {s.c['nt']}")
    def p1_setup2(s, T, V):
        a = s.a
        vX, vW, vSA, vSB, vLW, vRD, vPB = range(V, V+7)
        a(f"s_lshl_b32 s100, s100, 9\ns_lshl_b32 s101, s101, 15\ns_add_u32 s100, s100, s101")
        a(f"v_bfe_u32 v{T}, v1, 3, 1\nv_cmp_eq_u32 vcc, 1, v{T}")
        a(f"v_mov_b32 v{T+8}, 0x01000100\nv_mov_b32 v{T+9}, 0x03020302\nv_mov_b32 v{T+10}, 0x05040504")
        a(f"v_cndmask_b32 v{vSA}, v{T+8}, v{T+9}, vcc\nv_cndmask_b32 v{vSB}, v{T+9}, v{T+10}, vcc")
        a(f"s_lshl_b32 s5, s3, 10\nv_add_u32 v{vLW}, s5, v6")
        a(f"v_and_b32 v{T+3}, 3, v1")
        a(f"v_lshlrev_b32 v{vRD}, 10, v{T+3}\nv_bfe_u32 v{T}, v1, 2, 1\nv_lshl_add_u32 v{vRD}, v{T}, 8, v{vRD}")
        a(f"v_lshrrev_b32 v{T}, 3, v1\nv_lshl_add_u32 v{vRD}, v{T}, 4, v{vRD}")
        a(f"v_lshrrev_b32 v{T}, 2, v1\nv_lshlrev_b32 v{vPB}, 5, v{T}\nv_lshl_add_u32 v{vPB}, v{T+3}, 4, v{vPB}")
    def p1_compute(s, X, W, T, V, lds, off, flag_vZ=None):
        a = s.a
        vX, vW, vSA, vSB, vLW, vRD, vPB = range(V, V+7)
        AB, AC = T, T+12
        for i in range(7):
            ab = AB + (i % 2)*4
            k = i//2
            if i % 2 == 0: a(f"v_perm_b32 v{AB+8}, v{X+k}, v{X+k}, v{vSA}")
            else: a(f"v_perm_b32 v{AB+8}, v{X+k+1}, v{X+k}, v{vSB}")
            for r in range(4): a(f"v_and_b32 v{ab+r}, v{AB+8}, v{2+r}")
            a(f"{MF} {q(AC)}, {q(ab)}, {q(W+4*i)}, {'0' if i == 0 else q(AC)}")
        a(f"ds_write_b128 v{vLW}, {q(AC)} offset:{lds}")
        a("s_waitcnt lgkmcnt(0)\ns_barrier")
        L = a.label("Lred")
        a(f"s_cmp_lg_u32 s3, 3\ns_cbranch_scc1 {L}")
        R = T
        a(f"ds_read_b128 {q(R)}, v{vRD} offset:{lds}\nds_read_b128 {q(R+4)}, v{vRD} offset:{lds+640}")
        a(f"s_add_u32 s5, s100, {off}")
        a(f"v_and_b32 v{R+8}, 1, v1\nv_cmp_eq_u32 vcc, 1, v{R+8}")
        a("s_waitcnt lgkmcnt(0)")
        a(f"v_pk_add_f32 {p2(R)}, {p2(R)}, {p2(R+4)}\nv_pk_add_f32 {p2(R+2)}, {p2(R+2)}, {p2(R+6)}")
        for m in ("quad_perm:[1,0,3,2]", "quad_perm:[2,3,0,1]"):
            for r in range(4): a(f"v_add_f32_dpp v{R+r}, v{R+r}, v{R+r} {m} {DPPF}")
        a(f"v_cndmask_b32 v{R+4}, v{R}, v{R+2}, vcc\nv_cndmask_b32 v{R+6}, v{R+1}, v{R+3}, vcc")
        a(f"v_mov_b32 v{R+5}, s76\nv_mov_b32 v{R+7}, s76")
        s.exec_set(0x33333333, 0x33333333)
        a(f"buffer_store_dwordx4 {q(R+4)}, v{vPB}, s[44:47], s5 offen sc1")
        if flag_vZ is not None:
            a(f"s_lshl_b32 s5, s2, 2\ns_add_u32 s5, s5, {OFF_CLR}")
            s.exec_set(1, 0)
            a(f"buffer_store_dword v{R+5}, v{flag_vZ}, s[44:47], s5 offen sc1")
        s.exec_all()
        a(f"{L}:")
    def gy(s):
        a = s.a; c = s.c; nt = c['nt']; pb = c['pb']
        s.srd(52, 26, 896); s.srd(56, 30, 448*8192)
        XB, WB, UK, UV, T = 8, 16, 72, 136, 200
        PVv = T+40
        vLW = PVv+4
        vZ, vE, vU, vQ = range(T+47, T+51)
        s.p1_setup(2, T, PVv)
        s.p1_loads(XB, WB, 52, 56, PVv)
        a(f"v_mov_b32 v{vZ}, 0")
        L = a.label("Le0")
        a(f"s_add_u32 s5, s2, s3\ns_cmp_lg_u32 s5, 0\ns_cbranch_scc1 {L}")
        a(f"v_mov_b32 v{vE}, s77")
        s.exec_set(1, 0)
        a(f"buffer_store_dword v{vE}, v{vZ}, s[48:51], 0 offen sc1")
        s.exec_all()
        a(f"{L}:")
        a(f"buffer_load_dword v{vE}, v{vZ}, s[48:51], 0 offen sc1")
        s.srd(68, 32, 1024*8192); s.srd(72, 34, 1024*8192)
        a("s_lshr_b32 s12, s2, 3\ns_and_b32 s13, s2, 7")
        a(f"v_lshrrev_b32 v{T+2}, 4, v1\nv_lshlrev_b32 v{vQ}, 8, v{T+2}")
        a(f"s_lshl_b32 s14, s13, 2\ns_add_u32 s14, s14, s3\ns_lshl_b32 s14, s14, 10\ns_lshl_b32 s5, s12, 4\ns_add_u32 s14, s14, s5\ns_add_u32 s14, s14, {OFF_QABS}")
        for r in range(4): a(f"v_mov_b32 v{T+4+r}, -1")
        s.exec_set(0x00010001, 0x00010001)
        a(f"buffer_store_dwordx4 {q(T+4)}, v{vQ}, s[44:47], s14 offen sc1")
        s.exec_all()
        a(f"v_bfe_u32 v{vU}, v1, 2, 2\nv_lshlrev_b32 v{vU}, 16, v{vU}\nv_lshl_add_u32 v{vU}, v{T+2}, 6, v{vU}")
        a(f"v_and_b32 v{T+3}, 3, v1\nv_lshl_add_u32 v{vU}, v{T+3}, 4, v{vU}")
        a("s_lshl_b32 s15, s13, 20\ns_lshl_b32 s5, s3, 18\ns_add_u32 s15, s15, s5\ns_lshl_b32 s5, s12, 9\ns_add_u32 s15, s15, s5")
        s.p1_setup2(T, PVv)
        def ukload(n, pace):
            i, hf = n//2, n % 2
            a(f"s_add_u32 s79, s15, {i*8192}")
            if pace: a(f"s_waitcnt vmcnt({pace-1})")
            a(f"buffer_load_dwordx4 {q(UK+4*n)}, v{vU}, s[68:71], s79 offen offset:{hf*256} {nt}")
        n1 = 8
        if c.get('diag'):
            s.stamp(5)
            a("s_waitcnt vmcnt(9)"); s.stamp(9)
            a("s_waitcnt vmcnt(2)"); s.stamp(10)
            a("s_waitcnt vmcnt(1)"); s.stamp(11)
            a("s_waitcnt vmcnt(0)"); s.stamp(8)
        for n in range(n1): ukload(n, 10)
        a(f"s_waitcnt vmcnt({n1})")
        s.stamp(1)
        s.get_epoch(vE, vZ)
        s.p1_compute(XB, WB, T, PVv, 0, OFF_QB, vZ)
        s.stamp(2)
        for n in range(n1, 16): ukload(n, 0)
        L = a.label("Lqb")
        a(f"s_cmp_ge_u32 s3, 2\ns_cbranch_scc1 {L}")
        a(f"s_lshl_b32 s6, s12, 11\ns_lshl_b32 s5, s3, 10\ns_add_u32 s6, s6, s5\ns_add_u32 s6, s6, {OFF_QB}")
        a(f"v_lshlrev_b32 v{T+20}, 2, v0\nv_add_u32 v{T+20}, 0x2000, v{T+20}")
        s.gather_q(T, 6, T+20, 1)
        a(f"{L}:")
        a(f"v_lshrrev_b32 v{T+21}, 4, v1\nv_lshlrev_b32 v{T+21}, 6, v{T+21}\nv_and_b32 v{T+22}, 3, v1\nv_lshl_add_u32 v{T+21}, v{T+22}, 4, v{T+21}")
        a("s_waitcnt vmcnt(0)\ns_barrier")
        s.stamp(3)
        QF = T; D = WB
        a(f"ds_read_b128 {q(QF)}, v{T+21} offset:{0x2000}\nds_read_b128 {q(QF+4)}, v{T+21} offset:{0x2000+256}")
        a("s_waitcnt lgkmcnt(0)")
        for i in range(8):
            a(f"{MF} {q(D+4*i)}, {q(UK+8*i)}, {q(QF)}, 0")
            a(f"{MF} {q(D+4*i)}, {q(UK+8*i+4)}, {q(QF+4)}, {q(D+4*i)}")
        R = T+8
        for r in range(4):
            for i in range(8):
                if r == 0: a(f"v_mov_b32_dpp v{R+i}, v{D+4*i} quad_perm:[0,0,0,0] {DPPF}")
                else: a(f"v_add_f32_dpp v{R+i}, v{D+4*i+r}, v{R+i} quad_perm:[{r},{r},{r},{r}] {DPPF}")
        for k in range(4): a(f"v_cvt_pk_bf16_f32 v{R+8+k}, v{R+2*k}, v{R+2*k+1}")
        for k in range(4): a(f"v_min_u32 v{R+8+k}, -2, v{R+8+k}")
        s.exec_set(0x00010001, 0x00010001)
        a(f"buffer_store_dwordx4 {q(R+8)}, v{vQ}, s[44:47], s14 offen sc1")
        s.exec_all()
        s.stamp(4)
        a(f"v_lshrrev_b32 v{vU}, 4, v1\nv_lshlrev_b32 v{vU}, 13, v{vU}\nv_and_b32 v{T+22}, 15, v1\nv_lshl_add_u32 v{vU}, v{T+22}, 4, v{vU}")
        def uvload(n, pace):
            g, hf = n//2, n % 2
            a(f"s_add_u32 s79, s15, {g*4*8192}")
            if pace: a(f"s_waitcnt vmcnt({pace-1})")
            a(f"buffer_load_dwordx4 {q(UV+4*n)}, v{vU}, s[72:75], s79 offen offset:{hf*256} {nt}")
        for n in range(16): uvload(n, 0)
        HG = UK; ST = T
        WL = 0x3000
        a(f"s_mul_i32 s6, s2, {H3_C}\ns_lshl_b32 s5, s3, 13\ns_add_u32 s6, s6, s5\ns_add_u32 s6, s6, {OFF_H3}\ns_add_u32 s7, s6, 4096")
        L = a.label("Lst")
        a(f"s_cmp_lg_u32 s3, 0\ns_cbranch_scc1 {L}")
        a(f"s_lshl_b32 s5, s12, 11\ns_add_u32 s5, s5, {OFF_ST3}")
        def issue_st():
            for k in range(2): a(f"buffer_load_dwordx4 {q(ST+4*k)}, v6, s[44:47], s5 offen offset:{1024*k} sc1")
        s.poll(issue_st, [("s76", [ST+1, ST+3, ST+5, ST+7])], T+8, T+9, sleep=2)
        a(f"{L}:")
        a("s_barrier")
        s.stamp(6)
        def issue_hg():
            for i in range(8):
                a(f"buffer_load_dwordx4 {q(HG+4*i)}, v6, s[44:47], {'s6' if i < 4 else 's7'} offen offset:{1024*(i%4)} sc1")
        if c['h3d']: a(f"s_sleep {c['h3d']}")
        issue_hg()
        L = a.label("Lwt")
        a(f"s_cmp_lg_u32 s3, 0\ns_cbranch_scc1 {L}")
        M, Lr, TT, E0 = T+8, T+9, T+10, T+12
        a(f"v_max_f32 v{M}, v{ST}, v{ST+4}")
        s.allred_inrow("v_max_f32", M); s.allred_rows("v_max_f32", M, TT)
        a(f"v_sub_f32 v{E0}, v{ST}, v{M}\nv_sub_f32 v{E0+1}, v{ST+4}, v{M}\nv_exp_f32 v{E0}, v{E0}\nv_exp_f32 v{E0+1}, v{E0+1}")
        a(f"v_mul_f32 v{Lr}, v{E0}, v{ST+2}\nv_fmac_f32 v{Lr}, v{E0+1}, v{ST+6}")
        s.allred_inrow("v_add_f32", Lr); s.allred_rows("v_add_f32", Lr, TT)
        a(f"v_rcp_f32 v{Lr}, v{Lr}")
        a(f"v_and_b32 v{TT}, 3, v1\nv_lshlrev_b32 v{TT}, 7, v{TT}\nv_lshrrev_b32 v{TT+1}, 5, v1\nv_lshl_add_u32 v{TT}, v{TT+1}, 5, v{TT}")
        a(f"v_bfe_u32 v{TT+1}, v1, 2, 3\nv_lshl_add_u32 v{TT}, v{TT+1}, 2, v{TT}")
        for k in range(2):
            e = E0+k; hi = E0+2+k; lo = E0+4+k
            a(f"v_mul_f32 v{e}, v{e}, v{Lr}\nv_cvt_pk_bf16_f32 v{hi}, v{e}, v{e}\nv_and_b32 v{lo}, 0xffff0000, v{hi}\nv_sub_f32 v{lo}, v{e}, v{lo}\nv_cvt_pk_bf16_f32 v{lo}, v{lo}, v{lo}")
            a(f"ds_write_b32 v{TT}, v{hi} offset:{WL+64*k}\nds_write_b32 v{TT}, v{lo} offset:{WL+512+64*k}")
        a("s_waitcnt lgkmcnt(0)")
        a(f"{L}:")
        a(f"v_bfe_u32 v{T+20}, v1, 3, 1\nv_lshlrev_b32 v{T+20}, 9, v{T+20}\nv_lshrrev_b32 v{T+21}, 4, v1\nv_lshl_add_u32 v{T+20}, v{T+21}, 7, v{T+20}")
        a(f"s_lshl_b32 s5, s3, 5\nv_add_u32 v{T+20}, s5, v{T+20}")
        a(f"v_and_b32 v{T+22}, 1, v1\nv_lshlrev_b32 v{T+22}, 8, v{T+22}\nv_bfe_u32 v{T+23}, v1, 1, 2\nv_lshl_add_u32 v{T+22}, v{T+23}, 4, v{T+22}")
        a(f"v_lshl_add_u32 v{T+22}, v{T+21}, 2, v{T+22}\ns_lshl_b32 s5, s3, 6\nv_add_u32 v{T+22}, s5, v{T+22}")
        a("s_barrier")
        WW = T; AO = WB
        a(f"ds_read_b128 {q(WW)}, v{T+20} offset:{WL}\nds_read_b128 {q(WW+4)}, v{T+20} offset:{WL+16}")
        a("s_waitcnt lgkmcnt(0)")
        for i in range(8):
            for r in range(4): a(f"v_and_b32 v{AO+4*i+r}, v{WW+i}, v{2+r}")
        DC = T+8
        s.poll_sent(issue_hg, list(range(HG, HG+32)), T+24, sleep=1, pre_issued=True)
        for i in range(8):
            a(f"{MF} {q(DC)}, {q(AO+4*i)}, {q(HG+4*i)}, {'0' if i == 0 else q(DC)}")
        s.stamp(7)
        a(f"ds_write_b128 v{vLW}, {q(DC)}")
        a("s_waitcnt lgkmcnt(0)\ns_barrier")
        Z = T+12
        for k in range(8): a(f"ds_read_b32 v{Z+k}, v{T+22} offset:{512*k}")
        E = T+24
        s.epi_addr(E, False)
        a(f"v_lshlrev_b32 v{E}, 4, v0")
        a(f"s_lshl_b32 s5, s3, 11\nv_add_u32 v{E+2}, s5, v6")
        a(f"s_lshl_b32 s5, s2, 11\ns_add_u32 s5, s5, {OFF_H4}")
        a("s_waitcnt lgkmcnt(0)")
        for st in (4, 2):
            for i in range(0, st, 2): a(f"v_pk_add_f32 {p2(Z+i)}, {p2(Z+i)}, {p2(Z+st+i)}")
        a(f"v_add_f32 v{Z}, v{Z}, v{Z+1}\nv_cvt_pk_bf16_f32 v{Z}, v{Z}, v{Z}")
        DD = T+28
        for g in range(8):
            ab = T + (g % 2)*4
            for r in range(4): a(f"v_and_b32_dpp v{ab+r}, v{Z}, v{2+r} row_newbcast:{g} {DPPF}")
            for hf in range(2):
                a(f"{MF} {q(DD+4*hf)}, {q(ab)}, {q(UV+8*g+4*hf)}, {'0' if g == 0 else q(DD+4*hf)}")
        a(f"ds_write_b128 v{E+2}, {q(DD)} offset:{0x4000}\nds_write_b128 v{E+2}, {q(DD+4)} offset:{0x4000+1024}")
        a("s_waitcnt lgkmcnt(0)\ns_barrier")
        a(f"s_cmp_ge_u32 s3, 2\ns_cbranch_scc1 L_yend")
        X = T
        for i in range(4): a(f"ds_read_b64 {p2(X+2*i)}, v{E+3} offset:{0x4000+2048*i}")
        a("s_waitcnt lgkmcnt(0)")
        for st in (4, 2):
            for i in range(0, st, 2): a(f"v_pk_add_f32 {p2(X+i)}, {p2(X+i)}, {p2(X+st+i)}")
        a(f"v_mov_b32 v{X+2}, v{X+1}\nv_mov_b32 v{X+1}, s76\nv_mov_b32 v{X+3}, s76")
        a(f"buffer_store_dwordx4 {q(X)}, v{E}, s[44:47], s5 offen sc1")
        if not c.get('diag'): s.stamp(8)
        a("s_cmp_ge_u32 s2, 112\ns_cbranch_scc1 L_yend\ns_cmp_ge_u32 s3, 1\ns_cbranch_scc1 L_yend")
        s.srd(52, 38, 1792)
        a(f"s_mul_i32 s6, s2, {FIN_CG}\ns_add_u32 s6, s6, {OFF_FIN}\ns_add_u32 s7, s6, 4096")
        F = UK
        def issue_f():
            for i in range(8):
                a(f"buffer_load_dwordx4 {q(F+4*i)}, v6, s[44:47], {'s6' if i < 4 else 's7'} offen offset:{1024*(i%4)} sc1")
        a(f"s_lshl_b32 s15, s2, 4\nv_lshlrev_b32 v{T+8}, 2, v1")
        s.poll(lambda: a(f"buffer_load_dwordx4 {q(F)}, v6, s[44:47], s6 offen sc1"), [("s76", [F+1, F+3])], T+4, T+5, sleep=c['fsleep'])
        s.poll(issue_f, [("s76", [F+4*i+k for i in range(8) for k in (1, 3)])], T+4, T+5, sleep=0)
        if not c.get('diag'): s.stamp(9)
        for st in (16, 8, 4):
            for i in range(0, st, 4):
                a(f"v_add_f32 v{F+i}, v{F+i}, v{F+st+i}\nv_add_f32 v{F+i+2}, v{F+i+2}, v{F+st+i+2}")
        for m in ("row_ror:8", "row_ror:4"):
            for k in (0, 2): a(f"v_add_f32_dpp v{F+k}, v{F+k}, v{F+k} {m} {DPPF}")
        for k in (0, 2): s.allred_rows("v_add_f32", F+k, F+k+1)
        a(f"v_cvt_pk_bf16_f32 v{F}, v{F}, v{F+2}")
        if c.get('thr'):
            a(f"s_memrealtime s[98:99]\ns_waitcnt lgkmcnt(0)\ns_sub_u32 s5, s98, s76\ns_cmp_gt_u32 s5, {c['thr']}\ns_cselect_b32 s5, 0x7fc07fc0, 0\nv_or_b32 v{F}, s5, v{F}")
        if c.get('spin'):
            Lsp = a.label("Lspin")
            a(f"{Lsp}:\ns_memrealtime s[98:99]\ns_waitcnt lgkmcnt(0)\ns_sub_u32 s5, s98, s76\ns_cmp_lt_u32 s5, {c['spin']}\ns_cbranch_scc1 {Lsp}")
        if c.get('enc'):
            a("s_memrealtime s[98:99]\ns_waitcnt lgkmcnt(0)\ns_sub_u32 s5, s98, s76")
            a(f"v_mov_b32 v{F+4}, s5\nv_lshrrev_b32 v{F+4}, v{T+8}, v{F+4}")
            a(f"v_and_b32 v{F+5}, 3, v{F+4}\nv_bfe_u32 v{F+4}, v{F+4}, 2, 2\nv_lshl_or_b32 v{F+5}, v{F+4}, 16, v{F+5}")
            a(f"v_and_b32 v{F}, 0xfffcfffc, v{F}\nv_or_b32 v{F}, v{F}, v{F+5}")
        s.exec_set(0xf, 0)
        a(f"buffer_store_dword v{F}, v{T+8}, s[52:55], s15 offen")
        s.exec_all()
        if not c.get('diag'): s.stamp(10)
        a("L_yend:")
        s.stamp_out()
        a("s_endpgm")
    def gx(s):
        a = s.a; c = s.c; nt = c['nt']; pb = c['pb']
        a("L_X:")
        s.srd(52, 28, 8192*2048); s.srd(56, 36, 4096*896); s.srd(60, 24, 4096*896)
        L1, PV, QF, S = 16, 144, 208, 240
        vTR, vL, vSX, vZ, vE = 8, 9, 10, 11, 12
        a("s_sub_u32 s11, s2, 128")
        a("s_lshl_b32 s8, s11, 17\ns_lshl_b32 s5, s3, 13\ns_add_u32 s8, s8, s5")
        a(f"s_mul_i32 s9, s3, {4*ROW}")
        def dma(i, pace):
            for rr in range(4):
                a(f"s_add_u32 m0, s9, {(i%2)*SLOT + rr*ROW}")
                a(f"s_add_u32 s79, s8, {i*32768 + rr*2048}")
                for hf in range(2):
                    if pace: a(f"s_waitcnt vmcnt({pace-1})")
                    a(f"buffer_load_dwordx4 v6, s[52:55], s79 offen offset:{1024*hf} {nt} lds")
        dma(0, 0)
        a(f"v_lshrrev_b32 v13, 2, v1\nv_mul_u32_u24 v{vTR}, {ROW}, v13\nv_and_b32 v13, 3, v1\nv_lshl_add_u32 v{vTR}, v13, 3, v{vTR}")
        a(f"s_lshl_b32 s5, s3, 9\nv_add_u32 v{vTR}, s5, v{vTR}")
        a(f"v_and_b32 v13, 15, v1\nv_mul_u32_u24 v{vL}, {ROW}, v13\nv_lshrrev_b32 v14, 4, v1\nv_lshl_add_u32 v{vL}, v14, 4, v{vL}\nv_add_u32 v{vL}, s5, v{vL}")
        a(f"v_add_u32 v{vSX}, {2*SLOT}, v6\nv_mov_b32 v{vZ}, 0")
        a(f"v_lshrrev_b32 v15, 5, v1\nv_lshlrev_b32 v15, 3, v15\nv_bfe_u32 v7, v1, 4, 1\nv_add_u32 v15, v15, v7\nv_mul_u32_u24 v15, {H3_C}, v15")
        a(f"v_and_b32 v7, 15, v1\nv_lshl_add_u32 v15, v7, 4, v15")
        a(f"s_mul_i32 s10, s3, {2*H3_C}\ns_lshl_b32 s5, s11, 8\ns_add_u32 s10, s10, s5\ns_add_u32 s10, s10, {OFF_H3}")
        for r in range(4): a(f"v_mov_b32 v{S+4+r}, -1")
        def clears():
            for i in range(8):
                a(f"s_add_u32 s79, s10, {i*16*H3_C}")
                a(f"buffer_store_dwordx4 {q(S+4)}, v15, s[44:47], s79 offen sc1")
        dma(1, 0)
        def tr(i, dst):
            for t in range(16): a(f"ds_read_b64_tr_b16 {p2(dst(t))}, v{vTR} offset:{(i%2)*SLOT+32*t}")
        def l1(i):
            for ks in range(8): a(f"ds_read_b128 {q(L1+(i*8+ks)*4)}, v{vL} offset:{(i%2)*SLOT+64*ks}")
        for i in range(4):
            a(f"s_waitcnt vmcnt({[8, 16, 8, 0][i]})\ns_barrier")
            l1(i)
            if i < 2:
                tr(i, lambda t: PV+4*t+2*i)
                a("s_waitcnt lgkmcnt(0)\ns_barrier")
                if i == 0: clears()
                dma(i+2, 0)
            if i == 2:
                L = a.label("Lclr")
                a(f"s_cmp_lg_u32 s3, 0\ns_cbranch_scc1 {L}")
                a(f"v_lshlrev_b32 v13, 3, v1\ns_mov_b32 s5, {OFF_CLR}")
                def issue_c():
                    a(f"buffer_load_dwordx2 {p2(S)}, v13, s[44:47], s5 offen sc1")
                    a(f"buffer_load_dword v{vE}, v{vZ}, s[48:51], 0 offen sc1")
                s.poll(issue_c, [(f"v{vE}", [S, S+1])], S+2, S+3, sleep=2)
                a(f"ds_write_b32 v{vSX}, v{vE} offset:12288\ns_waitcnt lgkmcnt(0)")
                a(f"{L}:")
        a(f"ds_read_b32 v{vE}, v{vSX} offset:12288")
        s.stamp(1)
        a(f"s_lshl_b32 s6, s3, 13\ns_add_u32 s6, s6, {OFF_QABS}\ns_add_u32 s7, s6, 4096")
        def issue_q():
            for i in range(8):
                a(f"buffer_load_dwordx4 {q(QF+4*i)}, v6, s[44:47], {'s6' if i < 4 else 's7'} offen offset:{1024*(i%4)} sc1")
        s.poll_sent(issue_q, list(range(QF, QF+32)), 13, sleep=2)
        a("s_waitcnt lgkmcnt(0)")
        a(f"v_readfirstlane_b32 s76, v{vE}")
        s.stamp(2)
        for ks in range(8):
            for ch in range(4):
                a(f"{MF} {q(S+4*ch)}, {q(L1+(ch*8+ks)*4)}, {q(QF+4*ks)}, {'0' if ks == 0 else q(S+4*ch)}")
        PV1 = L1
        Lx = a.label("Lsx")
        labs = [a.label("Lsxw") for _ in range(4)]
        for w in range(1, 4): a(f"s_cmp_eq_u32 s3, {w}\ns_cbranch_scc1 {labs[w]}")
        for w in range(4):
            a(f"{labs[w]}:")
            for ch in range(4):
                if ch == w: continue
                k = (w - ch - 1) % 4
                a(f"ds_write_b128 v{vSX}, {q(S+4*ch)} offset:{(ch*3+k)*1024}")
            a(f"v_mov_b64 {p2(QF)}, {p2(S+4*w)}\nv_mov_b64 {p2(QF+2)}, {p2(S+4*w+2)}")
            if w < 3: a(f"s_branch {Lx}")
        a(f"{Lx}:")
        a(f"s_mul_i32 s5, s3, 3072\nv_add_u32 v13, s5, v{vSX}")
        a("s_waitcnt lgkmcnt(0)\ns_barrier")
        for k in range(3): a(f"ds_read_b128 {q(QF+4+4*k)}, v13 offset:{1024*k}")
        tr(2, lambda t: PV1+4*t)
        a("s_waitcnt lgkmcnt(15)\ns_waitcnt lgkmcnt(14)")
        a(f"v_pk_add_f32 {p2(QF)}, {p2(QF)}, {p2(QF+4)}\nv_pk_add_f32 {p2(QF+2)}, {p2(QF+2)}, {p2(QF+6)}")
        a(f"v_pk_add_f32 {p2(QF+8)}, {p2(QF+8)}, {p2(QF+12)}\nv_pk_add_f32 {p2(QF+10)}, {p2(QF+10)}, {p2(QF+14)}")
        a(f"v_pk_add_f32 {p2(QF)}, {p2(QF)}, {p2(QF+8)}\nv_pk_add_f32 {p2(QF+2)}, {p2(QF+2)}, {p2(QF+10)}")
        a(f"ds_write_b128 v13, {q(QF)}")
        a("s_waitcnt lgkmcnt(0)\ns_barrier")
        s.stamp(3)
        SR = S
        for ch in range(4): a(f"ds_read_b128 {q(SR+4*ch)}, v{vSX} offset:{3072*ch}")
        a("s_waitcnt lgkmcnt(0)")
        tr(3, lambda t: PV1+4*t+2)
        M, Lr, TT, P = QF+8, QF+10, QF+12, QF
        a(f"v_max3_f32 v{M}, v{SR}, v{SR+1}, v{SR+2}")
        for i in range(3, 16, 2): a(f"v_max3_f32 v{M}, v{M}, v{SR+i}, v{SR+min(i+1,15)}")
        s.allred_rows("v_max_f32", M, TT)
        a(f"s_mov_b32 s5, {f32(CEXP)}\nv_mul_f32 v{M}, s5, v{M}")
        for i in range(16): a(f"v_fma_f32 v{SR+i}, v{SR+i}, s5, -v{M}")
        for i in range(16): a(f"v_exp_f32 v{SR+i}, v{SR+i}")
        for i in range(8): a(f"v_cvt_pk_bf16_f32 v{P+i}, v{SR+2*i}, v{SR+2*i+1}")
        O = L1+64
        a(f"v_and_b32 v13, 15, v1\nv_mul_u32_u24 v13, {ROW}, v13\nv_lshrrev_b32 v14, 4, v1\nv_lshl_add_u32 v13, v14, 3, v13")
        a(f"s_lshl_b32 s5, s3, 9\nv_add_u32 v13, s5, v13")
        a(f"v_lshrrev_b32 v14, 5, v1\nv_mul_u32_u24 v14, {ROW}, v14\nv_and_b32 v7, 31, v1\nv_lshl_add_u32 v14, v7, 4, v14\nv_add_u32 v14, s5, v14")
        a("s_waitcnt lgkmcnt(0)")
        def fin(t):
            a(f"v_cvt_pk_bf16_f32 v{O+4*t}, v{O+4*t}, v{O+4*t+1}\nv_cvt_pk_bf16_f32 v{O+4*t+1}, v{O+4*t+2}, v{O+4*t+3}")
            a(f"v_min_u32 v{O+4*t}, -2, v{O+4*t}\nv_min_u32 v{O+4*t+1}, -2, v{O+4*t+1}")
            a(f"ds_write_b64 v13, {p2(O+4*t)} offset:{32*t}")
        for t in range(16):
            a(f"{MF} {q(O+4*t)}, {q(PV+4*t)}, {q(P)}, 0")
            a(f"{MF} {q(O+4*t)}, {q(PV1+4*t)}, {q(P+4)}, {q(O+4*t)}")
            if t == 0:
                L = a.label("Lst3")
                a(f"s_cmp_lg_u32 s3, 0\ns_cbranch_scc1 {L}")
                for st in (8, 4, 2):
                    for i in range(0, st, 2): a(f"v_pk_add_f32 {p2(SR+i)}, {p2(SR+i)}, {p2(SR+st+i)}")
                a(f"v_add_f32 v{Lr}, v{SR}, v{SR+1}")
                s.allred_rows("v_add_f32", Lr, TT)
                a(f"v_mov_b32 v{M+1}, s76\nv_mov_b32 v{Lr+1}, s76\nv_lshlrev_b32 v{TT}, 11, v1")
                a(f"s_lshl_b32 s5, s11, 4\ns_add_u32 s5, s5, {OFF_ST3}")
                s.exec_set(0xffff, 0)
                a(f"buffer_store_dwordx4 {q(M)}, v{TT}, s[44:47], s5 offen sc1")
                s.exec_all()
                a(f"{L}:")
            if t >= 3: fin(t-3)
        fin(13); fin(14); fin(15)
        a("s_waitcnt lgkmcnt(0)")
        s.stamp(4)
        SQ = L1
        for i in range(8): a(f"ds_read_b128 {q(SQ+4*i)}, v14 offset:{2*ROW*i}")
        for i in range(8):
            a(f"s_add_u32 s79, s10, {i*16*H3_C}")
            a(f"s_waitcnt lgkmcnt({7-i})")
            a(f"buffer_store_dwordx4 {q(SQ+4*i)}, v15, s[44:47], s79 offen sc1")
        s.stamp(5)
        WOB = [PV+4*t for t in range(8)]; WOA = [PV+32+4*t for t in range(8)]
        T = QF
        a(f"s_mov_b32 s14, s3\ns_mul_i32 s15, s11, {32*896}")
        s.proj_wload(WOB, 13, 56, 15, 14)
        for t in range(8): s.proj_wload_one(t, WOB, 13, 56, 15)
        for t in range(8): s.proj_wload_one(t, WOA, 13, 60, 15)
        a("s_lshr_b32 s12, s11, 3\ns_and_b32 s13, s11, 7")
        G = L1+32
        a(f"v_lshrrev_b32 v13, 4, v1\nv_lshlrev_b32 v13, 11, v13\nv_and_b32 v14, 15, v1\nv_lshl_add_u32 v13, v14, 4, v13")
        a(f"s_lshl_b32 s5, s12, 14\ns_lshl_b32 s6, s13, 8\ns_add_u32 s5, s5, s6\ns_add_u32 s5, s5, {OFF_H4}\ns_add_u32 s6, s5, 8192")
        def issue_h4():
            a(f"buffer_load_dwordx4 {q(G)}, v13, s[44:47], s5 offen sc1\nbuffer_load_dwordx4 {q(G+4)}, v13, s[44:47], s6 offen sc1")
        s.poll(issue_h4, [("s76", [G+1, G+3, G+5, G+7])], G+8, G+9, sleep=c['sleep'])
        s.stamp(6)
        a(f"v_add_f32 v{G}, v{G}, v{G+4}\nv_add_f32 v{G+1}, v{G+2}, v{G+6}")
        a(f"s_lshl_b32 s15, s11, 6\ns_add_u32 s15, s15, {OFF_FIN+FIN_AB}")
        s.proj_tail(G, WOB, T, 14, 15)
        s.stamp(7)
        ST = L1+48
        a(f"v_and_b32 v13, 31, v1\nv_lshlrev_b32 v13, 4, v13")
        a(f"s_lshl_b32 s5, s12, 9\ns_add_u32 s5, s5, {OFF_STA}")
        s.poll(lambda: a(f"buffer_load_dwordx4 {q(ST)}, v13, s[44:47], s5 offen sc1"), [("s76", [ST+1, ST+3])], ST+4, ST+5, sleep=c['sleep'])
        M, Lr, TT, E0 = ST+4, ST+5, ST+6, ST+7
        a(f"v_mov_b32 v{M}, v{ST}")
        s.allred_inrow("v_max_f32", M); s.allred_rows("v_max_f32", M, TT)
        a(f"v_sub_f32 v{E0}, v{ST}, v{M}\nv_exp_f32 v{E0}, v{E0}\nv_mul_f32 v{Lr}, v{E0}, v{ST+2}")
        s.allred_inrow("v_add_f32", Lr); s.allred_rows("v_add_f32", Lr, TT)
        a(f"v_rcp_f32 v{Lr}, v{Lr}\nv_add_f32 v{E0}, v{E0}, v{E0}\nv_mul_f32 v{E0}, v{E0}, v{Lr}")
        W0 = ST+8
        a(f"v_lshrrev_b32 v13, 4, v1\ns_lshl_b32 s5, s3, 3\nv_add_u32 v13, s5, v13\nv_lshlrev_b32 v13, 2, v13\nv_add_u32 v14, 16, v13")
        a(f"ds_bpermute_b32 v{W0}, v13, v{E0}\nds_bpermute_b32 v{W0+1}, v14, v{E0}")
        OG = ST+12
        a(f"s_mul_i32 s6, s11, {HA_U}\ns_lshl_b32 s5, s3, 11\ns_add_u32 s6, s6, s5\ns_add_u32 s6, s6, {OFF_HA}")
        a(f"v_lshlrev_b32 v13, 3, v0\nv_add_u32 v13, {2*SLOT}, v13")
        a(f"v_lshlrev_b32 v14, 3, v1\nv_add_u32 v14, {2*SLOT}, v14")
        a(f"s_lshl_b32 s15, s11, 6\ns_add_u32 s15, s15, {OFF_FIN}")
        a("s_waitcnt lgkmcnt(0)")
        s.stamp(8)
        def issue_o():
            a(f"buffer_load_dwordx4 {q(OG)}, v6, s[44:47], s6 offen sc1\nbuffer_load_dwordx4 {q(OG+4)}, v6, s[44:47], s6 offen offset:1024 sc1")
        s.poll(issue_o, [("s76", [OG+1, OG+3, OG+5, OG+7])], OG+8, OG+9, sleep=c['fsleep'])
        A0 = OG+8
        a(f"v_mul_f32 v{A0}, v{W0}, v{OG}\nv_mul_f32 v{A0+1}, v{W0}, v{OG+2}")
        a(f"v_fmac_f32 v{A0}, v{W0+1}, v{OG+4}\nv_fmac_f32 v{A0+1}, v{W0+1}, v{OG+6}")
        a(f"ds_write_b64 v13, {p2(A0)}")
        a("s_waitcnt lgkmcnt(0)\ns_barrier")
        s.stamp(9)
        for k in range(4): a(f"ds_read_b64 {p2(OG+2*k)}, v14 offset:{512*k}")
        a("s_waitcnt lgkmcnt(0)")
        a(f"v_pk_add_f32 {p2(OG)}, {p2(OG)}, {p2(OG+2)}\nv_pk_add_f32 {p2(OG+4)}, {p2(OG+4)}, {p2(OG+6)}\nv_pk_add_f32 {p2(OG)}, {p2(OG)}, {p2(OG+4)}")
        s.proj_tail(OG, WOA, T, 14, 15)
        s.stamp(10)
        s.stamp_out()
        a("s_endpgm")
    def ga(s):
        a = s.a; c = s.c; pa = c['pa']
        a("L_A:")
        s.srd(68, 18, 8*8192*512); s.srd(72, 20, 8*8192*512)
        Kb, Vb, T, AD = 16, 144, 224, 8
        NG = 16; NL = 32; NV1 = 20
        def vreg(n): return Vb+4*n if n < 20 else Kb+64+4*(n-20)
        a("s_sub_u32 s11, s2, 256\ns_lshr_b32 s9, s11, 5\ns_and_b32 s10, s11, 31")
        vZ, vE = T+30, T+31
        a(f"v_mov_b32 v{vZ}, 0")
        a(f"ds_write_b32 v{vZ}, v{vZ} offset:{0x900}")
        Lnp = a.label("Lnp1"); Lj = a.label("Lp1j")
        a(f"s_cmp_ge_u32 s11, 128\ns_cbranch_scc1 {Lnp}")
        a(f"s_setprio {c['prioa']}")
        s.srd(52, 16, 896); s.srd(56, 22, 448*8192)
        XA, WA, PVv = Vb, Vb+4, T+16
        s.p1_setup(11, T, PVv)
        s.p1_loads(XA, WA, 52, 56, PVv)
        a(f"buffer_load_dword v{vE}, v{vZ}, s[48:51], 0 offen sc1")
        s.p1_setup2(T, PVv)
        a("s_waitcnt vmcnt(0)")
        s.get_epoch(vE, vZ)
        s.p1_compute(XA, WA, T, PVv, 0x1000, OFF_QA)
        a(f"s_setprio 0\ns_branch {Lj}")
        a(f"{Lnp}:")
        a("s_waitcnt lgkmcnt(0)\ns_barrier")
        a(f"{Lj}:")
        s.stamp(6)
        a("s_lshl_b32 s8, s11, 17\ns_lshl_b32 s5, s3, 15\ns_add_u32 s8, s8, s5")
        s.kv_addr(AD)
        vK, vV = AD, AD+1
        def ld(n, reg, voff, srd, pace):
            g, hf = n//2, n % 2
            a(f"s_add_u32 s79, s8, {(g//2)*4096}")
            if pace: a(f"s_waitcnt vmcnt({pace-1})")
            a(f"buffer_load_dwordx4 {q(reg)}, v{voff}, s[{srd}:{srd+3}], s79 offen offset:{(g%2)*2048+hf*256} {c['nt']}")
        for n in range(NL):
            ld(n, Kb+4*n, vK, 68, c['pa0'] if n < c['na0'] else pa)
            if n == NL-8: a(f"buffer_load_dword v{vE}, v{vZ}, s[48:51], 0 offen sc1")
        v1n = c['v1']
        QF = T; D = T+8; TS = T+16
        a(f"v_bfe_u32 v{AD+4}, v1, 3, 1\nv_lshlrev_b32 v{AD+4}, 9, v{AD+4}")
        a(f"v_lshl_add_u32 v{AD+4}, v{AD+2}, 6, v{AD+4}\nv_lshl_add_u32 v{AD+4}, v{AD+3}, 4, v{AD+4}")
        a("s_waitcnt vmcnt(7)")
        s.get_epoch(vE, vZ)
        def vfirst():
            for n in range(v1n): ld(n, vreg(n), vV, 72, pa)
        Lo = a.label("Lqo"); Lq = a.label("Lqj")
        a(f"s_cmp_lg_u32 s3, 0\ns_cbranch_scc1 {Lo}")
        GQ = Vb+4*v1n
        assert GQ+34 <= Vb+80
        a(f"s_lshl_b32 s6, s9, 12\ns_add_u32 s6, s6, {OFF_QA}")
        a(f"v_lshlrev_b32 v{T+20}, 2, v1")
        s.gather_q(GQ, 6, T+20, 4, vfirst, v1n, sleep=4)
        a(f"v_mov_b32 v{T+21}, 1\nds_write_b32 v{vZ}, v{T+21} offset:{0x900}")
        a(f"s_branch {Lq}")
        a(f"{Lo}:")
        vfirst()
        Ls = a.label("Lqs")
        a(f"s_mov_b32 s78, {c['timeout']*8}")
        a(f"{Ls}:")
        a(f"ds_read_b32 v{T+21}, v{vZ} offset:{0x900}\ns_waitcnt lgkmcnt(0)\nv_readfirstlane_b32 s5, v{T+21}")
        a(f"s_cmp_lg_u32 s5, 0\ns_cbranch_scc1 {Lq}")
        a(f"s_sleep 2\ns_sub_u32 s78, s78, 1\ns_cmp_lg_u32 s78, 0\ns_cbranch_scc1 {Ls}")
        a(f"{Lq}:")
        s.stamp(1)
        a(f"ds_read_b128 {q(QF)}, v{AD+4}\nds_read_b128 {q(QF+4)}, v{AD+4} offset:256")
        a(f"s_waitcnt vmcnt({v1n}) lgkmcnt(0)")
        s.stamp(2)
        nv = v1n
        def more(k=1):
            nonlocal nv
            for _ in range(k):
                if nv < NV1: ld(nv, vreg(nv), vV, 72, pa); nv += 1
        def dreg(i): return D+4*i if i < 2 else Kb+8*(i-2)
        for i in range(NG):
            a(f"{MF} {q(dreg(i))}, {q(Kb+i*8)}, {q(QF)}, 0")
            a(f"{MF} {q(dreg(i))}, {q(Kb+i*8+4)}, {q(QF+4)}, {q(dreg(i))}")
            if i % 8 == 7: more()
        for r in range(4):
            for i in range(NG):
                if r == 0: a(f"v_mov_b32_dpp v{TS+i}, v{dreg(i)} quad_perm:[0,0,0,0] {DPPF}")
                else: a(f"v_add_f32_dpp v{TS+i}, v{dreg(i)+r}, v{TS+i} quad_perm:[{r},{r},{r},{r}] {DPPF}")
        NV1_ = NV1
        NV1 = NL
        more()
        if c['rnd']:
            for i in range(0, NG, 2): a(f"v_cvt_pk_bf16_f32 v{D+(i//2)}, v{TS+i}, v{TS+i+1}")
            for i in range(0, NG, 2): a(f"v_lshlrev_b32 v{TS+i}, 16, v{D+i//2}\nv_and_b32 v{TS+i+1}, 0xffff0000, v{D+i//2}")
        M = QF; Lr = QF+1; TT = QF+2
        a(f"v_max3_f32 v{M}, v{TS}, v{TS+1}, v{TS+2}")
        for i in range(3, NG, 2): a(f"v_max3_f32 v{M}, v{M}, v{TS+i}, v{TS+min(i+1,NG-1)}")
        s.allred_rows("v_max_f32", M, TT)
        a(f"s_mov_b32 s5, {f32(CEXP)}\nv_mul_f32 v{M}, s5, v{M}")
        for i in range(NG): a(f"v_fma_f32 v{TS+i}, v{TS+i}, s5, -v{M}")
        more()
        for i in range(NG): a(f"v_exp_f32 v{TS+i}, v{TS+i}")
        for i in range(0, 8, 2): a(f"v_pk_add_f32 {p2(D+i)}, {p2(TS+i)}, {p2(TS+8+i)}")
        a(f"v_pk_add_f32 {p2(D)}, {p2(D)}, {p2(D+4)}\nv_pk_add_f32 {p2(D+2)}, {p2(D+2)}, {p2(D+6)}\nv_pk_add_f32 {p2(D)}, {p2(D)}, {p2(D+2)}")
        a(f"v_add_f32 v{Lr}, v{D}, v{D+1}")
        s.allred_rows("v_add_f32", Lr, TT)
        a(f"v_bfe_u32 v{AD+6}, v1, 3, 1\nv_lshlrev_b32 v{AD+6}, 5, v{AD+6}\ns_lshl_b32 s5, s3, 3\nv_add_u32 v{AD+7}, s5, v{AD+6}")
        a(f"ds_write_b64 v{AD+7}, {p2(M)} offset:{0x800}")
        more()
        for i in range(NG): a(f"v_cvt_pk_bf16_f32 v{TS+i}, v{TS+i}, v{TS+i}")
        for i in range(NG):
            for r in range(4): a(f"v_and_b32 v{Kb+4*i+r}, v{TS+i}, v{2+r}")
            if i % 8 == 7: more()
        s.stamp(3)
        X = Kb+112
        E = X
        s.epi_addr(E, True)
        a(f"v_bfe_u32 v{E+2}, v0, 4, 4\nv_mul_u32_u24 v{E+2}, {HA_U}, v{E+2}")
        a(f"v_and_b32 v{E}, 15, v0\nv_lshl_add_u32 v{E+2}, v{E}, 4, v{E+2}")
        a(f"s_mul_i32 s12, s9, {16*HA_U}\ns_lshl_b32 s6, s10, 8\ns_add_u32 s12, s12, s6\ns_add_u32 s12, s12, {OFF_HA}")
        a(f"s_lshl_b32 s5, s3, 11\nv_add_u32 v{AD+4}, s5, v6")
        a(f"v_lshrrev_b32 v{AD+5}, 5, v1\nv_lshlrev_b32 v{AD+5}, 5, v{AD+5}")
        AC = D
        def vr(n): return Vb+4*n if n < NV1_ else Kb+64+4*(n-NV1_)
        def pv(i):
            for hf in range(2):
                a(f"{MF} {q(AC+4*hf)}, {q(Kb+4*i)}, {q(vr(2*i+hf))}, {'0' if i == 0 else q(AC+4*hf)}")
        while nv < NL:
            ld(nv, vr(nv), vV, 72, pa); nv += 1
        lead = c['lead']
        a(f"s_waitcnt vmcnt({NL-2*lead})")
        for i in range(lead): pv(i)
        a("s_waitcnt lgkmcnt(0)\ns_barrier")
        Y = TS
        a(f"ds_read_b128 {q(Y)}, v{AD+5} offset:{0x800}\nds_read_b128 {q(Y+4)}, v{AD+5} offset:{0x810}")
        a(f"s_lshl_b32 s5, s3, 3\nv_add_u32 v{AD+7}, s5, v{AD+5}\nds_read_b32 v{Y+8}, v{AD+7} offset:{0x800}")
        a("s_waitcnt lgkmcnt(0)")
        a(f"v_max3_f32 v{Y+12}, v{Y}, v{Y+2}, v{Y+4}\nv_max_f32 v{Y+12}, v{Y+12}, v{Y+6}")
        a(f"v_sub_f32 v{Y+8}, v{Y+8}, v{Y+12}\nv_exp_f32 v{Y+8}, v{Y+8}")
        Ls = a.label("Lst")
        a(f"s_cmp_lg_u32 s3, 0\ns_cbranch_scc1 {Ls}")
        for k in range(4): a(f"v_sub_f32 v{Y+2*k}, v{Y+2*k}, v{Y+12}")
        for k in range(4): a(f"v_exp_f32 v{Y+2*k}, v{Y+2*k}")
        a(f"v_mul_f32 v{Y+14}, v{Y}, v{Y+1}")
        for k in range(1, 4): a(f"v_fmac_f32 v{Y+14}, v{Y+2*k}, v{Y+2*k+1}")
        a(f"v_mov_b32 v{Y+13}, s76\nv_mov_b32 v{Y+15}, s76\nv_lshlrev_b32 v{Y+9}, 4, v{AD+5}")
        a(f"s_lshl_b32 s5, s9, 10\ns_lshl_b32 s6, s10, 4\ns_add_u32 s5, s5, s6\ns_add_u32 s5, s5, {OFF_STA}")
        s.exec_set(1, 1)
        a(f"buffer_store_dwordx4 {q(Y+12)}, v{Y+9}, s[44:47], s5 offen sc1")
        s.exec_all()
        a(f"{Ls}:")
        for i in range(lead, NG):
            a(f"s_waitcnt vmcnt({NL-2*(i+1)})")
            pv(i)
        s.stamp(4)
        for k in range(8): a(f"v_mul_f32 v{AC+k}, v{AC+k}, v{Y+8}")
        a(f"ds_write_b128 v{AD+4}, {q(AC)} offset:{0x1000}\nds_write_b128 v{AD+4}, {q(AC+4)} offset:{0x1000+1024}")
        Z = X+4
        a(f"v_mov_b32 v{Z+9}, s76\nv_mov_b32 v{Z+11}, s76")
        a("s_waitcnt lgkmcnt(0)\ns_barrier")
        for i in range(4): a(f"ds_read_b64 {p2(Z+2*i)}, v{E+3} offset:{0x1000+2048*i}")
        a("s_waitcnt lgkmcnt(0)")
        a(f"v_pk_add_f32 {p2(Z)}, {p2(Z)}, {p2(Z+2)}\nv_pk_add_f32 {p2(Z+4)}, {p2(Z+4)}, {p2(Z+6)}")
        a(f"v_add_f32 v{Z+8}, v{Z}, v{Z+4}\nv_add_f32 v{Z+10}, v{Z+1}, v{Z+5}")
        a(f"buffer_store_dwordx4 {q(Z+8)}, v{E+2}, s[44:47], s12 offen sc1")
        s.stamp(5)
        s.stamp_out()
        a("s_endpgm")
    def build(s):
        a = s.a
        s.prologue()
        s.gy(); s.gx(); s.ga()
        a("L_end:\ns_endpgm")
        body = a.finish()
        hdr = open("concat_heads__gqa_block_cached__compressed_kv_cla__decode.s.ref").read().split("; @launch")[0]
        out = hdr + "; @launch grid=(512,1,1) block=(256,1,1) lds=81920\n"
        out += "; generated by my own generator script (gen2.py)\n"
        out += f'.amdgcn_target "amdgcn-amd-amdhsa--gfx950"\n.text\n.globl {KN}\n.p2align 8\n.type {KN},@function\n{KN}:\n'
        out += body
        out += f""".section .rodata,"a"
.p2align 6
.amdhsa_kernel {KN}
  .amdhsa_next_free_vgpr 256
  .amdhsa_next_free_sgpr 102
  .amdhsa_accum_offset 256
  .amdhsa_group_segment_fixed_size 0
  .amdhsa_kernarg_size 112
  .amdhsa_user_sgpr_count 2
  .amdhsa_user_sgpr_kernarg_segment_ptr 1
  .amdhsa_system_sgpr_workgroup_id_x 1
.end_amdhsa_kernel
"""
        return out
if __name__ == "__main__":
    from build import build
    name = sys.argv[1]
    cfg = {}
    for kv in sys.argv[2:]:
        k, v = kv.split("=")
        cfg[k] = v if k == "nt" else int(v)
    open(name, "w").write(Gen2(**cfg).build())
    print(build(name))
```

```python
import sys, math, struct
from asmlib import Asm
from gen import Gen, q, p2, f32, DPPF, KN, CEXP
OFF_QB, OFF_QA, OFF_QABS, OFF_CLR, OFF_ST3, OFF_STA, OFF_H4, OFF_HA, OFF_FIN, OFF_H3 = \
    0x0, 0x10000, 0x20000, 0x2c000, 0x30000, 0x38000, 0x40000, 0x80000, 0x200000, 0x400000
FIN_CG = 8192+128
FS = 4096+128; FIN_AB = 128*FS
QS = 2048+128
HA_U = 8192+128
H3_C = 32768+256
OFF_STAMP = 0x8000000
OFF_CHK = 0x1A0000
ROW = 2080; SLOT = 16*ROW
import gen as G1
G1.FIN_CG = FIN_CG
MF = "v_mfma_f32_16x16x32_bf16"

class Gen2(Gen):
    def __init__(s, **cfg):
        s.c = dict(stamp=False, nt="nt", sleep=4, timeout=200000, rnd=True, pa=8, pb=8, prio=2, prioa=0, n1=7, pu=8, px=8, pax=3, nax=9, nay=2, p1x=0, ssleep=2, ns=12, tka=9, pd=9, qsleep=6, px0=4, v1=8, fsleep=2, pf=0, pa0=2, na0=4, na1=6, lead=10, h3d=0)
        s.c.update(cfg)
        s.a = Asm()
    def stamp_out(s):
        if not s.c['stamp']: return
        a = s.a
        a("s_mov_b64 exec, -1\nv_mov_b32 v8, 0")
        for k in range(12): a(f"v_writelane_b32 v8, s{84+k}, {k}")
        a("v_lshlrev_b32 v9, 2, v1")
        a("s_lshl_b32 s4, s2, 2\ns_add_u32 s4, s4, s3\ns_lshl_b32 s4, s4, 6")
        a(f"s_add_u32 s4, s4, {OFF_STAMP}")
        a("s_mov_b32 exec_lo, 0xffff\ns_mov_b32 exec_hi, 0")
        a("buffer_store_dword v8, v9, s[44:47], s4 offen")
    def prologue(s):
        a = s.a
        a("s_cmp_ge_u32 s2, 512\ns_cbranch_scc1 L_end")
        a("s_load_dwordx16 s[16:31], s[0:1], 0\ns_load_dwordx8 s[32:39], s[0:1], 64\ns_load_dwordx4 s[40:43], s[0:1], 96")
        a("s_memrealtime s[4:5]")
        a("v_lshrrev_b32 v7, 6, v0\nv_and_b32 v1, 63, v0")
        a("v_readfirstlane_b32 s3, v7\nv_lshlrev_b32 v6, 4, v1")
        a("s_cmp_ge_u32 s2, 256\ns_cbranch_scc1 L_A")
        if s.c['prio']: a(f"s_setprio {s.c['prio']}")
        a("s_cmp_ge_u32 s2, 128\ns_cbranch_scc1 L_X")
    def kwait(s):
        a = s.a
        a("s_waitcnt lgkmcnt(0)")
        a("s_or_b32 s77, s4, 1")
        if s.c['stamp']:
            for k in range(12): a(f"s_mov_b32 s{84+k}, 0")
            a("s_mov_b32 s84, s4")
    def common2(s, t):
        a = s.a
        a(f"v_and_b32 v{t}, 1, v1\nv_lshlrev_b32 v{t}, 4, v{t}\nv_mov_b32 v{t+1}, 0xffff\nv_lshlrev_b32 v{t}, v{t}, v{t+1}")
        a(f"v_bfe_u32 v{t+1}, v1, 1, 2")
        for r in range(4):
            a(f"v_cmp_eq_u32 vcc, {r}, v{t+1}\nv_cndmask_b32 v{2+r}, 0, v{t}, vcc")
    def get_epoch(s, vE, vZ):
        a = s.a
        L = a.label("Lge"); Ld = a.label("Lged")
        a(f"s_mov_b32 s78, {s.c['timeout']}")
        a(f"{L}:")
        a(f"v_readfirstlane_b32 s76, v{vE}")
        a(f"s_cmp_lg_u32 s76, 0\ns_cbranch_scc1 {Ld}")
        a(f"buffer_load_dword v{vE}, v{vZ}, s[48:51], 0 offen sc1\ns_waitcnt vmcnt(0)")
        a(f"s_sub_u32 s78, s78, 1\ns_cmp_lg_u32 s78, 0\ns_cbranch_scc1 {L}")
        a(f"{Ld}:")
    def poll_sent(s, issue, regs, t0, sleep=None, pre_issued=False):
        a = s.a
        L = a.label("Lps"); Ld = a.label("Lpsd")
        a(f"s_mov_b32 s78, {s.c['timeout']}")
        Lw = a.label("Lpsw")
        if pre_issued: a(f"s_branch {Lw}")
        a(f"{L}:")
        issue()
        a(f"{Lw}:")
        a("s_waitcnt vmcnt(0)")
        a(f"v_max3_u32 v{t0}, v{regs[0]}, v{regs[1]}, v{regs[2]}")
        rest = regs[3:]
        for i in range(0, len(rest), 2):
            y = rest[i+1] if i+1 < len(rest) else rest[i]
            a(f"v_max3_u32 v{t0}, v{t0}, v{rest[i]}, v{y}")
        a(f"v_cmp_eq_u32 vcc, -1, v{t0}")
        a(f"s_cbranch_vccz {Ld}")
        sl = s.c['sleep'] if sleep is None else sleep
        if sl: a(f"s_sleep {sl}")
        a(f"s_sub_u32 s78, s78, 1\ns_cmp_lg_u32 s78, 0\ns_cbranch_scc1 {L}")
        a(f"{Ld}:")
    def gather_q(s, T, soff, lds, n, between=None, nb=0, sleep=1):
        a = s.a
        a(f"s_add_u32 s7, s{soff}, 0x8000")
        def issue():
            for k in range(n):
                a(f"buffer_load_dwordx4 {q(T+8*k)}, v6, s[44:47], s{soff} offen offset:{1024*k} sc1")
                a(f"buffer_load_dwordx4 {q(T+8*k+4)}, v6, s[44:47], s7 offen offset:{1024*k} sc1")
        grp = [("s76", [T+4*k+j for k in range(2*n) for j in (1, 3)])]
        if between:
            Lok = a.label("Lgq")
            issue(); between()
            a(f"s_waitcnt vmcnt({nb})")
            s.check_tags(grp, T+8*n, T+8*n+1)
            a(f"s_cbranch_scc1 {Lok}")
            s.poll(issue, grp, T+8*n, T+8*n+1, sleep=sleep)
            a(f"{Lok}:")
        else:
            s.poll(issue, grp, T+8*n, T+8*n+1, sleep=sleep)
        for k in range(n):
            b = T+8*k
            a(f"v_add_f32 v{b}, v{b}, v{b+4}\nv_add_f32 v{b+2}, v{b+2}, v{b+6}\nv_cvt_pk_bf16_f32 v{b}, v{b}, v{b+2}")
            a(f"ds_write_b32 v{lds}, v{b} offset:{256*k}")
        a("s_waitcnt lgkmcnt(0)")
    def epi_addr(s, E, two_heads):
        a = s.a
        a(f"v_bfe_u32 v{E+3}, v0, 6, 1\nv_lshlrev_b32 v{E+3}, 10, v{E+3}")
        if two_heads: a(f"v_bfe_u32 v{E+1}, v0, 7, 1\nv_lshl_add_u32 v{E+3}, v{E+1}, 9, v{E+3}")
        a(f"v_bfe_u32 v{E+1}, v0, 1, 1\nv_lshl_add_u32 v{E+3}, v{E+1}, 8, v{E+3}")
        a(f"v_bfe_u32 v{E+1}, v0, 2, 4\nv_lshl_add_u32 v{E+3}, v{E+1}, 4, v{E+3}")
        a(f"v_and_b32 v{E+1}, 1, v0\nv_lshl_add_u32 v{E+3}, v{E+1}, 3, v{E+3}")
    def p1_setup(s, sI, T, V):
        a = s.a
        vX, vW, vSA, vSB, vLW, vRD, vPB = range(V, V+7)
        a(f"s_and_b32 s100, s{sI}, 7\ns_lshl_b32 s100, s100, 3\ns_bfe_u32 s6, s{sI}, 0x30003\ns_add_u32 s100, s100, s6\ns_lshr_b32 s101, s{sI}, 6")
        a("s_mul_i32 s96, s101, 224\ns_mul_i32 s6, s3, 56\ns_add_u32 s96, s96, s6\ns_lshl_b32 s97, s96, 1")
        a("s_lshl_b32 s96, s96, 13\ns_lshl_b32 s6, s100, 7\ns_add_u32 s96, s96, s6")
        a(f"v_lshrrev_b32 v{T}, 3, v1\nv_mul_u32_u24 v{vX}, 14, v{T}\nv_and_b32 v{vX}, 0x7c, v{vX}")
        a(f"v_mul_u32_u24 v{vW}, {7*8192}, v{T}\nv_and_b32 v{T+1}, 7, v1\nv_lshl_add_u32 v{vW}, v{T+1}, 4, v{vW}")
    def p1_loads(s, X, W, srdX, srdW, V):
        a = s.a
        a(f"buffer_load_dwordx4 {q(X)}, v{V}, s[{srdX}:{srdX+3}], s97 offen")
        for i in range(7):
            a(f"s_add_u32 s79, s96, {i*8192}")
            a(f"buffer_load_dwordx4 {q(W+4*i)}, v{V+1}, s[{srdW}:{srdW+3}], s79 offen {s.c['nt']}")
    def p1_setup2(s, T, V):
        a = s.a
        vX, vW, vSA, vSB, vLW, vRD, vPB = range(V, V+7)
        a(f"s_lshl_b32 s100, s100, 9\ns_lshl_b32 s101, s101, 15\ns_add_u32 s100, s100, s101")
        a(f"v_bfe_u32 v{T}, v1, 3, 1\nv_cmp_eq_u32 vcc, 1, v{T}")
        a(f"v_mov_b32 v{T+8}, 0x01000100\nv_mov_b32 v{T+9}, 0x03020302\nv_mov_b32 v{T+10}, 0x05040504")
        a(f"v_cndmask_b32 v{vSA}, v{T+8}, v{T+9}, vcc\nv_cndmask_b32 v{vSB}, v{T+9}, v{T+10}, vcc")
        a(f"s_lshl_b32 s5, s3, 10\nv_add_u32 v{vLW}, s5, v6")
        a(f"v_and_b32 v{T+3}, 3, v1")
        a(f"v_lshrrev_b32 v{vRD}, 5, v1\nv_lshlrev_b32 v{vRD}, 11, v{vRD}\nv_bfe_u32 v{T}, v1, 1, 1\nv_lshl_add_u32 v{vRD}, v{T}, 8, v{vRD}")
        a(f"v_bfe_u32 v{T}, v1, 2, 3\nv_lshl_add_u32 v{vRD}, v{T}, 4, v{vRD}\nv_and_b32 v{T}, 1, v1\nv_lshl_add_u32 v{vRD}, v{T}, 3, v{vRD}")
    def p1_compute(s, X, W, T, V, lds, off, flag_vZ=None):
        a = s.a
        vX, vW, vSA, vSB, vLW, vRD, vPB = range(V, V+7)
        AB, AC = T, T+12
        for i in range(7):
            ab = AB + (i % 2)*4
            k = i//2
            if i % 2 == 0: a(f"v_perm_b32 v{AB+8}, v{X+k}, v{X+k}, v{vSA}")
            else: a(f"v_perm_b32 v{AB+8}, v{X+k+1}, v{X+k}, v{vSB}")
            for r in range(4): a(f"v_and_b32 v{ab+r}, v{AB+8}, v{2+r}")
            a(f"{MF} {q(AC)}, {q(ab)}, {q(W+4*i)}, {'0' if i == 0 else q(AC)}")
        a(f"ds_write_b128 v{vLW}, {q(AC)} offset:{lds}")
        a("s_waitcnt lgkmcnt(0)\ns_barrier")
        L = a.label("Lred")
        a(f"s_cmp_lg_u32 s3, 3\ns_cbranch_scc1 {L}")
        R = T
        for k in range(4): a(f"ds_read_b64 {p2(R+2*k)}, v{vRD} offset:{lds + (k//2)*1024 + (k%2)*640}")
        a(f"s_add_u32 s5, s100, {off}")
        a(f"v_mov_b32 v{R+9}, s76\nv_mov_b32 v{R+11}, s76")
        a("s_waitcnt lgkmcnt(0)")
        a(f"v_pk_add_f32 {p2(R)}, {p2(R)}, {p2(R+2)}\nv_pk_add_f32 {p2(R+4)}, {p2(R+4)}, {p2(R+6)}\nv_pk_add_f32 {p2(R)}, {p2(R)}, {p2(R+4)}")
        a(f"v_mov_b64 {p2(R+2)}, {p2(R)}")
        a(f"v_permlane32_swap_b32 v{R}, v{R+2}\nv_permlane32_swap_b32 v{R+1}, v{R+3}")
        a(f"v_add_f32 v{R+8}, v{R}, v{R+2}\nv_add_f32 v{R+10}, v{R+1}, v{R+3}")
        s.exec_set(0xffffffff, 0)
        a(f"buffer_store_dwordx4 {q(R+8)}, v6, s[44:47], s5 offen sc1")
        s.exec_all()
        a(f"{L}:")
    def proj_tail(s, A0, W, T, scb, sfin, scale=None):
        a = s.a
        a(f"v_permlane32_swap_b32 v{A0}, v{A0+1}\nv_add_f32 v{A0}, v{A0}, v{A0+1}")
        a(f"v_mov_b32 v{A0+1}, v{A0}\nv_permlane16_swap_b32 v{A0}, v{A0+1}\nv_add_f32 v{A0}, v{A0}, v{A0+1}")
        if scale is not None: a(f"v_mul_f32 v{A0}, v{A0}, v{scale}")
        a(f"v_cvt_pk_bf16_f32 v{A0}, v{A0}, v{A0}")
        a(f"v_mov_b32 v{A0+1}, v{A0}")
        a(f"v_mov_b32_dpp v{A0}, v{A0+1} row_ror:8 row_mask:0xa bank_mask:0xf")
        AC = T+8; S = T+12
        for g in range(8):
            ab = T + (g % 2)*4
            for r in range(4): a(f"v_and_b32_dpp v{ab+r}, v{A0}, v{2+r} row_newbcast:{g} {DPPF}")
            a(f"{MF} {q(AC)}, {q(ab)}, {q(W[g])}, {'0' if g == 0 else q(AC)}")
        a(f"v_cmp_gt_u32 vcc, 32, v1")
        a(f"v_mov_b32 v{S+1}, s76\nv_mov_b32 v{S+3}, s76")
        a("s_mov_b32 exec_lo, s82\ns_mov_b32 exec_hi, s82")
        a(f"v_cndmask_b32 v{S}, v{AC+2}, v{AC}, vcc\nv_cndmask_b32 v{S+2}, v{AC+3}, v{AC+1}, vcc")
        a(f"buffer_store_dwordx4 {q(S)}, v6, s[44:47], s{sfin} offen sc1")
        s.exec_all()
    def gy(s):
        a = s.a; c = s.c; nt = c['nt']; pb = c['pb']
        XB, WB, UK, UV, T = 8, 16, 72, 136, 200
        PVv = T+40
        vLW = PVv+4
        vZ, vU, vQ = T+47, T+50, T+51
        vE = T+48
        s.p1_setup(2, T, PVv)
        a(f"v_mov_b32 v{vZ}, 0\nv_mov_b32 v{vE+1}, 0")
        a("s_lshr_b32 s12, s2, 3\ns_and_b32 s13, s2, 7")
        a(f"s_lshl_b32 s14, s13, 8\ns_mul_i32 s6, s12, {QS}\ns_add_u32 s14, s14, s6\ns_add_u32 s14, s14, {OFF_QABS}")
        for r in range(4): a(f"v_mov_b32 v{T+4+r}, -1")
        s.kwait()
        s.srd(44, 42, 0x10000000); s.srd(48, 40, 256)
        s.srd(52, 26, 896); s.srd(56, 30, 448*8192)
        L = a.label("Le0")
        a(f"s_cmp_lg_u32 s3, 3\ns_cbranch_scc1 {L}")
        a(f"v_mov_b32 v{vE}, s77")
        s.exec_set(1, 0)
        a(f"buffer_atomic_cmpswap {p2(vE)}, v{vZ}, s[48:51], 0 offen sc0 sc1")
        s.exec_set(0xffff, 0)
        a(f"buffer_store_dwordx4 {q(T+4)}, v6, s[44:47], s14 offen sc1")
        s.exec_all()
        a(f"{L}:")
        s.p1_loads(XB, WB, 52, 56, PVv)
        s.srd(68, 32, 1024*8192); s.srd(72, 34, 1024*8192); s.srd(60, 24, 4096*896)
        a(f"v_lshrrev_b32 v{T+2}, 4, v1\nv_lshrrev_b32 v{vQ}, 4, v0\nv_lshlrev_b32 v{vQ}, 4, v{vQ}")
        a(f"v_bfe_u32 v{vU}, v1, 2, 2\nv_lshlrev_b32 v{vU}, 16, v{vU}\nv_lshl_add_u32 v{vU}, v{T+2}, 6, v{vU}")
        a(f"v_and_b32 v{T+3}, 3, v1\nv_lshl_add_u32 v{vU}, v{T+3}, 4, v{vU}")
        a("s_lshl_b32 s15, s13, 20\ns_lshl_b32 s5, s3, 18\ns_add_u32 s15, s15, s5\ns_lshl_b32 s5, s12, 9\ns_add_u32 s15, s15, s5")
        s.common2(T+12)
        s.p1_setup2(T, PVv)
        def ukload(n, pace):
            i, hf = n//2, n % 2
            a(f"s_add_u32 s79, s15, {i*8192}")
            if pace: a(f"s_waitcnt vmcnt({pace-1})")
            a(f"buffer_load_dwordx4 {q(UK+4*n)}, v{vU}, s[68:71], s79 offen offset:{hf*256} {nt}")
        n1 = c['n1']
        for n in range(n1): ukload(n, pb)
        a(f"s_waitcnt vmcnt({n1})")
        s.stamp(1)
        L = a.label("Le1")
        a(f"s_cmp_lg_u32 s3, 3\ns_cbranch_scc1 {L}")
        a(f"v_readfirstlane_b32 s76, v{vE}\ns_cmp_eq_u32 s76, 0\ns_cselect_b32 s76, s77, s76")
        a(f"v_mov_b32 v{vE}, s76\nds_write_b32 v{vZ}, v{vE} offset:{0x2800}")
        a(f"{L}:")
        s.p1_compute(XB, WB, T, PVv, 0, OFF_QB)
        a(f"ds_read_b32 v{vE}, v{vZ} offset:{0x2800}")
        s.stamp(2)
        for n in range(n1, 16): ukload(n, pb)
        a(f"s_waitcnt lgkmcnt(0)\nv_readfirstlane_b32 s76, v{vE}")
        L = a.label("Lqb")
        a(f"s_cmp_ge_u32 s3, 2\ns_cbranch_scc1 {L}")
        a(f"s_lshl_b32 s6, s12, 11\ns_lshl_b32 s5, s3, 10\ns_add_u32 s6, s6, s5\ns_add_u32 s6, s6, {OFF_QB}")
        a(f"v_lshlrev_b32 v{T+20}, 2, v0\nv_add_u32 v{T+20}, 0x2000, v{T+20}")
        s.gather_q(T, 6, T+20, 1)
        a(f"{L}:")
        a(f"v_lshrrev_b32 v{T+21}, 4, v1\nv_lshlrev_b32 v{T+21}, 6, v{T+21}\nv_and_b32 v{T+22}, 3, v1\nv_lshl_add_u32 v{T+21}, v{T+22}, 4, v{T+21}")
        a("s_waitcnt vmcnt(0)\ns_barrier")
        s.stamp(3)
        QF = T; D = WB
        a(f"ds_read_b128 {q(QF)}, v{T+21} offset:{0x2000}\nds_read_b128 {q(QF+4)}, v{T+21} offset:{0x2000+256}")
        a("s_waitcnt lgkmcnt(0)")
        for i in range(8):
            a(f"{MF} {q(D+4*i)}, {q(UK+8*i)}, {q(QF)}, 0")
            a(f"{MF} {q(D+4*i)}, {q(UK+8*i+4)}, {q(QF+4)}, {q(D+4*i)}")
        R = T+8
        for r in range(4):
            for i in range(8):
                if r == 0: a(f"v_mov_b32_dpp v{R+i}, v{D+4*i} quad_perm:[0,0,0,0] {DPPF}")
                else: a(f"v_add_f32_dpp v{R+i}, v{D+4*i+r}, v{R+i} quad_perm:[{r},{r},{r},{r}] {DPPF}")
        for k in range(4): a(f"v_cvt_pk_bf16_f32 v{R+8+k}, v{R+2*k}, v{R+2*k+1}")
        for k in range(4): a(f"v_min_u32 v{R+8+k}, -2, v{R+8+k}")
        s.exec_set(0x00010001, 0x00010001)
        a(f"ds_write_b128 v{vQ}, {q(R+8)} offset:{0x2900}")
        s.exec_all()
        a("s_waitcnt lgkmcnt(0)\ns_barrier")
        L = a.label("Lqp")
        a(f"s_cmp_lg_u32 s3, 3\ns_cbranch_scc1 {L}")
        s.exec_set(0xffff, 0)
        a(f"ds_read_b128 {q(R+8)}, v6 offset:{0x2900}\ns_waitcnt lgkmcnt(0)")
        a(f"buffer_store_dwordx4 {q(R+8)}, v6, s[44:47], s14 offen sc1")
        s.exec_all()
        a(f"{L}:")
        s.stamp(4)
        a(f"v_lshrrev_b32 v{vU}, 4, v1\nv_lshlrev_b32 v{vU}, 13, v{vU}\nv_and_b32 v{T+22}, 15, v1\nv_lshl_add_u32 v{vU}, v{T+22}, 4, v{vU}")
        def uvload(n, pace):
            g, hf = n//2, n % 2
            a(f"s_add_u32 s79, s15, {g*4*8192}")
            if pace: a(f"s_waitcnt vmcnt({pace-1})")
            a(f"buffer_load_dwordx4 {q(UV+4*n)}, v{vU}, s[72:75], s79 offen offset:{hf*256} {nt}")
        for n in range(16): uvload(n, c['pu'])
        WOA = [48+4*t for t in range(6)] + [UK+32, UK+36]
        a(f"s_mov_b32 s14, s3\ns_mul_i32 s9, s2, {32*896}")
        s.proj_wload(WOA, T+20, 60, 9, 14)
        for t in range(8):
            if c['pu']: a(f"s_waitcnt vmcnt({c['pu']-1})")
            s.proj_wload_one(t, WOA, T+20, 60, 9)
        HG = UK; ST = T
        WL = 0x3000
        a(f"s_mul_i32 s6, s2, {H3_C}\ns_lshl_b32 s5, s3, 13\ns_add_u32 s6, s6, s5\ns_add_u32 s6, s6, {OFF_H3}\ns_add_u32 s7, s6, 4096")
        CK, vCK = T+25, T+26
        a("s_lshr_b32 s8, s13, 1\ns_lshl_b32 s8, s8, 7\ns_and_b32 s5, s12, 1\ns_lshl_b32 s5, s5, 6\ns_add_u32 s8, s8, s5\ns_and_b32 s5, s13, 1\ns_lshl_b32 s5, s5, 5\ns_add_u32 s8, s8, s5")
        a("s_bfe_u32 s5, s12, 0x20001\ns_lshl_b32 s5, s5, 3\ns_add_u32 s8, s8, s5\ns_lshr_b32 s5, s12, 3\ns_lshl_b32 s5, s5, 2\ns_add_u32 s8, s8, s5")
        a(f"s_lshl_b32 s5, s3, 14\ns_add_u32 s8, s8, s5\ns_add_u32 s8, s8, {OFF_CHK}")
        a(f"v_lshlrev_b32 v{vCK}, 9, v1\nv_mov_b32 v{CK}, 0")
        L = a.label("Lst")
        a(f"s_cmp_lg_u32 s3, 0\ns_cbranch_scc1 {L}")
        a(f"s_lshl_b32 s5, s12, 11\ns_add_u32 s5, s5, {OFF_ST3}")
        def issue_st():
            for k in range(2): a(f"buffer_load_dwordx4 {q(ST+4*k)}, v6, s[44:47], s5 offen offset:{1024*k} sc1")
        if c['stamp']:
            a("s_waitcnt vmcnt(0)"); s.stamp(5)
        s.poll(issue_st, [("s76", [ST+1, ST+3, ST+5, ST+7])], T+8, T+9, sleep=c['ssleep'])
        a(f"{L}:")
        a("s_barrier")
        s.stamp(6)
        def issue_hg():
            for i in range(8):
                a(f"buffer_load_dwordx4 {q(HG+4*i)}, v6, s[44:47], {'s6' if i < 4 else 's7'} offen offset:{1024*(i%4)} sc1")
            a("s_mov_b32 exec_hi, 0")
            a(f"buffer_load_dword v{CK}, v{vCK}, s[44:47], s8 offen sc1")
            a("s_mov_b32 exec_hi, -1")
        if c['h3d']: a(f"s_sleep {c['h3d']}")
        issue_hg()
        L = a.label("Lwt")
        a(f"s_cmp_lg_u32 s3, 0\ns_cbranch_scc1 {L}")
        M, Lr, TT, E0 = T+8, T+9, T+10, T+12
        a(f"v_max_f32 v{M}, v{ST}, v{ST+4}")
        s.allred_inrow("v_max_f32", M); s.allred_rows("v_max_f32", M, TT)
        a(f"v_sub_f32 v{E0}, v{ST}, v{M}\nv_sub_f32 v{E0+1}, v{ST+4}, v{M}\nv_exp_f32 v{E0}, v{E0}\nv_exp_f32 v{E0+1}, v{E0+1}")
        a(f"v_mul_f32 v{Lr}, v{E0}, v{ST+2}\nv_fmac_f32 v{Lr}, v{E0+1}, v{ST+6}")
        s.allred_inrow("v_add_f32", Lr); s.allred_rows("v_add_f32", Lr, TT)
        a(f"v_rcp_f32 v{Lr}, v{Lr}")
        a(f"v_and_b32 v{TT}, 3, v1\nv_lshlrev_b32 v{TT}, 7, v{TT}\nv_lshrrev_b32 v{TT+1}, 5, v1\nv_lshl_add_u32 v{TT}, v{TT+1}, 5, v{TT}")
        a(f"v_bfe_u32 v{TT+1}, v1, 2, 3\nv_lshl_add_u32 v{TT}, v{TT+1}, 2, v{TT}")
        for k in range(2):
            e = E0+k; hi = E0+2+k; lo = E0+4+k
            a(f"v_mul_f32 v{e}, v{e}, v{Lr}\nv_cvt_pk_bf16_f32 v{hi}, v{e}, v{e}\nv_and_b32 v{lo}, 0xffff0000, v{hi}\nv_sub_f32 v{lo}, v{e}, v{lo}\nv_cvt_pk_bf16_f32 v{lo}, v{lo}, v{lo}")
            a(f"ds_write_b32 v{TT}, v{hi} offset:{WL+64*k}\nds_write_b32 v{TT}, v{lo} offset:{WL+512+64*k}")
        a("s_waitcnt lgkmcnt(0)")
        a(f"{L}:")
        a(f"v_bfe_u32 v{T+20}, v1, 3, 1\nv_lshlrev_b32 v{T+20}, 9, v{T+20}\nv_lshrrev_b32 v{T+21}, 4, v1\nv_lshl_add_u32 v{T+20}, v{T+21}, 7, v{T+20}")
        a(f"s_lshl_b32 s5, s3, 5\nv_add_u32 v{T+20}, s5, v{T+20}")
        a(f"v_and_b32 v{T+22}, 1, v1\nv_lshlrev_b32 v{T+22}, 8, v{T+22}\nv_bfe_u32 v{T+23}, v1, 1, 2\nv_lshl_add_u32 v{T+22}, v{T+23}, 4, v{T+22}")
        a(f"v_lshl_add_u32 v{T+22}, v{T+21}, 2, v{T+22}\ns_lshl_b32 s5, s3, 6\nv_add_u32 v{T+22}, s5, v{T+22}")
        a("s_barrier")
        WW = T; AO = WB
        a(f"ds_read_b128 {q(WW)}, v{T+20} offset:{WL}\nds_read_b128 {q(WW+4)}, v{T+20} offset:{WL+16}")
        a("s_waitcnt lgkmcnt(0)")
        for i in range(8):
            for r in range(4): a(f"v_and_b32 v{AO+4*i+r}, v{WW+i}, v{2+r}")
        DC = T+8
        Lp = a.label("Lck"); Lw = a.label("Lckw"); Ld = a.label("Lckd")
        a(f"s_mov_b32 s78, {c['timeout']}\ns_lshl_b32 s9, s76, 5\ns_branch {Lw}")
        a(f"{Lp}:")
        issue_hg()
        a(f"{Lw}:")
        a("s_waitcnt vmcnt(0)")
        SU = T+24
        a(f"v_sub_u32 v{SU}, v{HG}, v{CK}\nv_add3_u32 v{T+27}, v{HG+1}, v{HG+2}, v{HG+3}")
        for k in range(4, 32, 4):
            a(f"v_add3_u32 v{SU}, v{SU}, v{HG+k}, v{HG+k+1}\nv_add3_u32 v{T+27}, v{T+27}, v{HG+k+2}, v{HG+k+3}")
        a(f"v_add_u32 v{SU}, v{SU}, v{T+27}")
        for i in range(8):
            a(f"{MF} {q(DC)}, {q(AO+4*i)}, {q(HG+4*i)}, {'0' if i == 0 else q(DC)}")
        s.allred_inrow("v_add_u32", SU); s.allred_rows("v_add_u32", SU, T+27)
        a(f"v_readfirstlane_b32 s5, v{SU}\ns_add_u32 s5, s5, s9\ns_cmp_eq_u32 s5, 0\ns_cbranch_scc1 {Ld}")
        a(f"s_sleep 1\ns_sub_u32 s78, s78, 1\ns_cmp_lg_u32 s78, 0\ns_cbranch_scc1 {Lp}")
        a(f"{Ld}:")
        s.stamp(7)
        a(f"ds_write_b128 v{vLW}, {q(DC)}")
        a("s_waitcnt lgkmcnt(0)\ns_barrier")
        Z = T+12
        for k in range(8): a(f"ds_read_b32 v{Z+k}, v{T+22} offset:{512*k}")
        E = T+24
        s.epi_addr(E, False)
        a(f"v_lshlrev_b32 v{E}, 4, v0")
        a(f"s_lshl_b32 s5, s3, 11\nv_add_u32 v{E+2}, s5, v6")
        a(f"s_lshl_b32 s5, s2, 11\ns_add_u32 s5, s5, {OFF_H4}")
        a("s_waitcnt lgkmcnt(0)")
        for st in (4, 2):
            for i in range(0, st, 2): a(f"v_pk_add_f32 {p2(Z+i)}, {p2(Z+i)}, {p2(Z+st+i)}")
        a(f"v_add_f32 v{Z}, v{Z}, v{Z+1}\nv_cvt_pk_bf16_f32 v{Z}, v{Z}, v{Z}")
        DD = T+28
        for g in range(8):
            ab = T + (g % 2)*4
            for r in range(4): a(f"v_and_b32_dpp v{ab+r}, v{Z}, v{2+r} row_newbcast:{g} {DPPF}")
            for hf in range(2):
                a(f"{MF} {q(DD+4*hf)}, {q(ab)}, {q(UV+8*g+4*hf)}, {'0' if g == 0 else q(DD+4*hf)}")
        a(f"ds_write_b128 v{E+2}, {q(DD)} offset:{0x4000}\nds_write_b128 v{E+2}, {q(DD+4)} offset:{0x4000+1024}")
        a("s_waitcnt lgkmcnt(0)\ns_barrier")
        a(f"s_cmp_ge_u32 s3, 2\ns_cbranch_scc1 L_ya5")
        X = T
        for i in range(4): a(f"ds_read_b64 {p2(X+2*i)}, v{E+3} offset:{0x4000+2048*i}")
        a("s_waitcnt lgkmcnt(0)")
        for st in (4, 2):
            for i in range(0, st, 2): a(f"v_pk_add_f32 {p2(X+i)}, {p2(X+i)}, {p2(X+st+i)}")
        a(f"v_mov_b32 v{X+2}, v{X+1}\nv_mov_b32 v{X+1}, s76\nv_mov_b32 v{X+3}, s76")
        a(f"buffer_store_dwordx4 {q(X)}, v{E}, s[44:47], s5 offen sc1")
        s.stamp(8)
        a("L_ya5:")
        OG = UK; ST = UK+8; Z = UK+16
        a(f"v_lshrrev_b32 v{T+22}, 4, v1\nv_lshlrev_b32 v{T+22}, 7, v{T+22}")
        a(f"s_lshr_b32 s8, s12, 1\ns_lshl_b32 s8, s8, 12\ns_and_b32 s6, s12, 1\ns_lshl_b32 s6, s6, 4\ns_add_u32 s8, s8, s6\ns_lshl_b32 s6, s3, 10\ns_add_u32 s8, s8, s6\ns_add_u32 s8, s8, {OFF_STA}")
        a(f"s_mul_i32 s6, s2, {HA_U}\ns_lshl_b32 s5, s3, 11\ns_add_u32 s6, s6, s5\ns_add_u32 s6, s6, {OFF_HA}")
        a(f"v_lshlrev_b32 v{T+20}, 4, v0")
        a(f"s_mul_i32 s15, s2, {FS}\ns_lshl_b32 s5, s3, 10\ns_add_u32 s15, s15, s5\ns_add_u32 s15, s15, {OFF_FIN}")
        def issue_o():
            a(f"buffer_load_dwordx4 {q(OG)}, v6, s[44:47], s6 offen sc1\nbuffer_load_dwordx4 {q(OG+4)}, v6, s[44:47], s6 offen offset:1024 sc1")
            a(f"buffer_load_dwordx4 {q(ST)}, v{T+22}, s[44:47], s8 offen sc1\nbuffer_load_dwordx4 {q(ST+4)}, v{T+22}, s[44:47], s8 offen offset:512 sc1")
        s.poll(issue_o, [("s76", [OG+k for k in range(1, 16, 2)])], Z, Z+1, sleep=c['fsleep'])
        s.stamp(9)
        a(f"v_max_f32 v{Z+2}, v{ST}, v{ST+4}")
        a(f"v_sub_f32 v{ST}, v{ST}, v{Z+2}\nv_sub_f32 v{ST+4}, v{ST+4}, v{Z+2}\nv_exp_f32 v{ST}, v{ST}\nv_exp_f32 v{ST+4}, v{ST+4}")
        a(f"v_mul_f32 v{Z}, v{ST}, v{OG}\nv_mul_f32 v{Z+1}, v{ST}, v{OG+2}\nv_mul_f32 v{Z+3}, v{ST}, v{ST+2}")
        a(f"v_fmac_f32 v{Z}, v{ST+4}, v{OG+4}\nv_fmac_f32 v{Z+1}, v{ST+4}, v{OG+6}\nv_fmac_f32 v{Z+3}, v{ST+4}, v{ST+6}")
        a(f"ds_write_b128 v{T+20}, {q(Z)} offset:{0x6000}")
        a("s_waitcnt lgkmcnt(0)\ns_barrier")
        s.stamp(10)
        for k in range(4): a(f"ds_read_b128 {q(OG+4*k)}, v6 offset:{0x6000+1024*k}")
        a("s_waitcnt lgkmcnt(0)")
        a(f"v_max3_f32 v{Z+2}, v{OG+2}, v{OG+6}, v{OG+10}\nv_max_f32 v{Z+2}, v{Z+2}, v{OG+14}")
        s.allred_rows("v_max_f32", Z+2, Z+4)
        for k in range(4): a(f"v_sub_f32 v{OG+4*k+2}, v{OG+4*k+2}, v{Z+2}")
        for k in range(4): a(f"v_exp_f32 v{OG+4*k+2}, v{OG+4*k+2}")
        for k in range(4):
            op = "v_mul_f32" if k == 0 else "v_fmac_f32"
            a(f"{op} v{Z+3}, v{OG+4*k+2}, v{OG+4*k+3}\n{op} v{Z}, v{OG+4*k+2}, v{OG+4*k}\n{op} v{Z+1}, v{OG+4*k+2}, v{OG+4*k+1}")
        s.allred_rows("v_add_f32", Z+3, Z+4)
        a(f"v_rcp_f32 v{Z+3}, v{Z+3}")
        s.proj_tail(Z, WOA, T+24, 14, 15, scale=Z+3)
        s.stamp(11)
        s.stamp_out()
        a("s_endpgm")
    def gx(s):
        a = s.a; c = s.c; nt = c['nt']; pb = c['pb']
        a("L_X:")
        L1, PV, QF, S = 16, 144, 208, 240
        vTR, vL, vSX, vZ, vE = 8, 9, 10, 11, 12
        a("s_sub_u32 s11, s2, 128")
        a("s_lshl_b32 s8, s11, 17\ns_lshl_b32 s6, s3, 13\ns_add_u32 s8, s8, s6")
        a(f"s_mul_i32 s9, s3, {4*ROW}")
        s.kwait()
        s.srd(52, 28, 8192*2048)
        def dma(i, pace):
            for rr in range(4):
                a(f"s_add_u32 m0, s9, {(i%2)*SLOT + rr*ROW}")
                a(f"s_add_u32 s79, s8, {i*32768 + rr*2048}")
                for hf in range(2):
                    if pace: a(f"s_waitcnt vmcnt({pace-1})")
                    a(f"buffer_load_dwordx4 v6, s[52:55], s79 offen offset:{1024*hf} {nt} lds")
        dma(0, c['px0'])
        s.srd(44, 42, 0x10000000); s.srd(48, 40, 256); s.srd(56, 36, 4096*896)
        s.common2(13)
        a(f"v_lshrrev_b32 v13, 2, v1\nv_mul_u32_u24 v{vTR}, {ROW}, v13\nv_and_b32 v13, 3, v1\nv_lshl_add_u32 v{vTR}, v13, 3, v{vTR}")
        a(f"s_lshl_b32 s5, s3, 9\nv_add_u32 v{vTR}, s5, v{vTR}")
        a(f"v_and_b32 v13, 15, v1\nv_mul_u32_u24 v{vL}, {ROW}, v13\nv_lshrrev_b32 v14, 4, v1\nv_lshl_add_u32 v{vL}, v14, 4, v{vL}\nv_add_u32 v{vL}, s5, v{vL}")
        a(f"v_add_u32 v{vSX}, {2*SLOT}, v6\nv_mov_b32 v{vZ}, 0")
        a(f"v_lshrrev_b32 v15, 5, v1\nv_lshlrev_b32 v15, 3, v15\nv_bfe_u32 v7, v1, 4, 1\nv_add_u32 v15, v15, v7\nv_mul_u32_u24 v15, {H3_C}, v15")
        a(f"v_and_b32 v7, 15, v1\nv_lshl_add_u32 v15, v7, 4, v15")
        a(f"s_mul_i32 s10, s3, {2*H3_C}\ns_lshl_b32 s5, s11, 8\ns_add_u32 s10, s10, s5\ns_add_u32 s10, s10, {OFF_H3}")
        dma(1, c['px'])
        def tr(i, dst):
            for t in range(16): a(f"ds_read_b64_tr_b16 {p2(dst(t))}, v{vTR} offset:{(i%2)*SLOT+32*t}")
        def l1(i):
            for ks in range(8): a(f"ds_read_b128 {q(L1+(i*8+ks)*4)}, v{vL} offset:{(i%2)*SLOT+64*ks}")
        for i in range(4):
            a(f"s_waitcnt vmcnt({[8, 8, 8, 0][i]})\ns_barrier")
            l1(i)
            if i < 2:
                tr(i, lambda t: PV+4*t+2*i)
                a("s_waitcnt lgkmcnt(0)\ns_barrier")
                dma(i+2, c['px'])
            if i == 2:
                L = a.label("Lclr")
                a(f"s_cmp_lg_u32 s3, 0\ns_cbranch_scc1 {L}")
                a(f"v_lshlrev_b32 v13, 9, v1\ns_mov_b32 s5, {OFF_QB}\ns_mov_b32 s6, {OFF_QB+0x8000}")
                def issue_c():
                    a(f"buffer_load_dwordx4 {q(S+8)}, v13, s[44:47], s5 offen sc1")
                    a(f"buffer_load_dwordx4 {q(S+12)}, v13, s[44:47], s6 offen sc1")
                    a(f"buffer_load_dword v{vE}, v{vZ}, s[48:51], 0 offen sc1")
                s.poll(issue_c, [(f"v{vE}", [S+9, S+11, S+13, S+15])], S+2, S+3, sleep=2)
                a(f"ds_write_b32 v{vSX}, v{vE} offset:12288\ns_waitcnt lgkmcnt(0)")
                a(f"{L}:")
        a(f"ds_read_b32 v{vE}, v{vSX} offset:12288")
        s.stamp(1)
        a(f"s_lshl_b32 s6, s3, 9\ns_add_u32 s6, s6, {OFF_QABS}")
        a(f"v_lshrrev_b32 v14, 2, v1\nv_mul_u32_u24 v14, {QS}, v14\nv_and_b32 v7, 3, v1\nv_lshl_add_u32 v14, v7, 4, v14")
        a(f"v_and_b32 v7, 15, v1\nv_lshlrev_b32 v7, 4, v7\nv_lshrrev_b32 v13, 4, v1\nv_lshl_add_u32 v7, v13, 2, v7")
        def issue_q():
            for i in range(8): a(f"buffer_load_dwordx4 {q(QF+4*i)}, v14, s[44:47], s6 offen offset:{64*i} sc1")
        s.poll_sent(issue_q, list(range(QF, QF+32)), 13, sleep=2)
        a("s_waitcnt lgkmcnt(0)")
        a(f"v_readfirstlane_b32 s76, v{vE}")
        s.stamp(2)
        for r in range(12): a(f"ds_bpermute_b32 v{QF+r}, v7, v{QF+r}")
        for ks in range(8):
            out = min(8, 4*(7-ks))
            a(f"s_waitcnt lgkmcnt({out})")
            for ch in range(4):
                a(f"{MF} {q(S+4*ch)}, {q(L1+(ch*8+ks)*4)}, {q(QF+4*ks)}, {'0' if ks == 0 else q(S+4*ch)}")
                r = 12 + 4*ks + ch
                if r < 32: a(f"ds_bpermute_b32 v{QF+r}, v7, v{QF+r}")
        PV1 = L1
        Lx = a.label("Lsx")
        labs = [a.label("Lsxw") for _ in range(4)]
        for w in range(1, 4): a(f"s_cmp_eq_u32 s3, {w}\ns_cbranch_scc1 {labs[w]}")
        for w in range(4):
            a(f"{labs[w]}:")
            for ch in range(4):
                if ch == w: continue
                k = (w - ch - 1) % 4
                a(f"ds_write_b128 v{vSX}, {q(S+4*ch)} offset:{(ch*3+k)*1024}")
            a(f"v_mov_b64 {p2(QF)}, {p2(S+4*w)}\nv_mov_b64 {p2(QF+2)}, {p2(S+4*w+2)}")
            if w < 3: a(f"s_branch {Lx}")
        a(f"{Lx}:")
        a(f"s_mul_i32 s5, s3, 3072\nv_add_u32 v13, s5, v{vSX}")
        a("s_waitcnt lgkmcnt(0)\ns_barrier")
        for k in range(3): a(f"ds_read_b128 {q(QF+4+4*k)}, v13 offset:{1024*k}")
        tr(2, lambda t: PV1+4*t)
        a("s_waitcnt lgkmcnt(15)\ns_waitcnt lgkmcnt(14)")
        a(f"v_pk_add_f32 {p2(QF)}, {p2(QF)}, {p2(QF+4)}\nv_pk_add_f32 {p2(QF+2)}, {p2(QF+2)}, {p2(QF+6)}")
        a(f"v_pk_add_f32 {p2(QF+8)}, {p2(QF+8)}, {p2(QF+12)}\nv_pk_add_f32 {p2(QF+10)}, {p2(QF+10)}, {p2(QF+14)}")
        a(f"v_pk_add_f32 {p2(QF)}, {p2(QF)}, {p2(QF+8)}\nv_pk_add_f32 {p2(QF+2)}, {p2(QF+2)}, {p2(QF+10)}")
        a(f"ds_write_b128 v13, {q(QF)}")
        a("s_waitcnt lgkmcnt(0)\ns_barrier")
        s.stamp(3)
        SR = S
        for ch in range(4): a(f"ds_read_b128 {q(SR+4*ch)}, v{vSX} offset:{3072*ch}")
        a("s_waitcnt lgkmcnt(0)")
        tr(3, lambda t: PV1+4*t+2)
        M, Lr, TT, P = QF+8, QF+10, QF+12, QF
        a(f"v_max3_f32 v{M}, v{SR}, v{SR+1}, v{SR+2}")
        for i in range(3, 16, 2): a(f"v_max3_f32 v{M}, v{M}, v{SR+i}, v{SR+min(i+1,15)}")
        s.allred_rows("v_max_f32", M, TT)
        a(f"s_mov_b32 s5, {f32(CEXP)}\nv_mul_f32 v{M}, s5, v{M}")
        for i in range(16): a(f"v_fma_f32 v{SR+i}, v{SR+i}, s5, -v{M}")
        for i in range(16): a(f"v_exp_f32 v{SR+i}, v{SR+i}")
        for i in range(8): a(f"v_cvt_pk_bf16_f32 v{P+i}, v{SR+2*i}, v{SR+2*i+1}")
        O = L1+64
        a(f"v_and_b32 v13, 15, v1\nv_mul_u32_u24 v13, {ROW}, v13\nv_lshrrev_b32 v14, 4, v1\nv_lshl_add_u32 v13, v14, 3, v13")
        a(f"s_lshl_b32 s5, s3, 9\nv_add_u32 v13, s5, v13")
        a(f"v_lshrrev_b32 v14, 5, v1\nv_mul_u32_u24 v14, {ROW}, v14\nv_and_b32 v7, 31, v1\nv_lshl_add_u32 v14, v7, 4, v14\nv_add_u32 v14, s5, v14")
        a("s_waitcnt lgkmcnt(0)")
        def fin(t):
            a(f"v_cvt_pk_bf16_f32 v{O+4*t}, v{O+4*t}, v{O+4*t+1}\nv_cvt_pk_bf16_f32 v{O+4*t+1}, v{O+4*t+2}, v{O+4*t+3}")
            a(f"ds_write_b64 v13, {p2(O+4*t)} offset:{32*t}")
        for t in range(16):
            a(f"{MF} {q(O+4*t)}, {q(PV+4*t)}, {q(P)}, 0")
            a(f"{MF} {q(O+4*t)}, {q(PV1+4*t)}, {q(P+4)}, {q(O+4*t)}")
            if t == 0:
                L = a.label("Lst3")
                a(f"s_cmp_lg_u32 s3, 0\ns_cbranch_scc1 {L}")
                for st in (8, 4, 2):
                    for i in range(0, st, 2): a(f"v_pk_add_f32 {p2(SR+i)}, {p2(SR+i)}, {p2(SR+st+i)}")
                a(f"v_add_f32 v{Lr}, v{SR}, v{SR+1}")
                s.allred_rows("v_add_f32", Lr, TT)
                a(f"v_mov_b32 v{M+1}, s76\nv_mov_b32 v{Lr+1}, s76\nv_lshlrev_b32 v{TT}, 11, v1")
                a(f"s_lshl_b32 s5, s11, 4\ns_add_u32 s5, s5, {OFF_ST3}")
                s.exec_set(0xffff, 0)
                a(f"buffer_store_dwordx4 {q(M)}, v{TT}, s[44:47], s5 offen sc1")
                s.exec_all()
                a(f"{L}:")
            if t >= 3: fin(t-3)
        fin(13); fin(14); fin(15)
        a("s_waitcnt lgkmcnt(0)")
        s.stamp(4)
        SQ = L1
        for i in range(8): a(f"ds_read_b128 {q(SQ+4*i)}, v14 offset:{2*ROW*i}")
        for i in range(8):
            a(f"s_add_u32 s79, s10, {i*16*H3_C}")
            a(f"s_waitcnt lgkmcnt({7-i})")
            a(f"buffer_store_dwordx4 {q(SQ+4*i)}, v15, s[44:47], s79 offen sc1")
            a(f"v_add3_u32 v{O+i}, v{SQ+4*i}, v{SQ+4*i+1}, v{SQ+4*i+2}\nv_add_u32 v{O+i}, v{O+i}, v{SQ+4*i+3}")
        for m in ("quad_perm:[1,0,3,2]", "quad_perm:[2,3,0,1]", "row_half_mirror"):
            for i in range(8): a(f"v_add_u32_dpp v{O+i}, v{O+i}, v{O+i} {m} {DPPF}")
        for i in (0, 4, 1, 5, 2, 6, 3, 7):
            a(f"v_add_u32_dpp v{O+8+i//4}, v{O+i}, v{O+i} row_mirror row_mask:0xf bank_mask:{1 << (i%4):#x}")
        a(f"v_lshlrev_b32 v13, 1, v1")
        a(f"s_lshl_b32 s5, s11, 9\ns_lshl_b32 s6, s3, 7\ns_add_u32 s5, s5, s6\ns_add_u32 s5, s5, {OFF_CHK}")
        a(f"v_add_u32 v{O+8}, s76, v{O+8}\nv_add_u32 v{O+9}, s76, v{O+9}")
        s.exec_set(0x11111111, 0x11111111)
        a(f"buffer_store_dwordx2 {p2(O+8)}, v13, s[44:47], s5 offen sc1")
        s.exec_all()
        s.stamp(5)
        WOB = [PV+4*t for t in range(8)]; WOA = [PV+32+4*t for t in range(8)]
        T = QF
        a(f"s_mov_b32 s14, s3\ns_mul_i32 s15, s11, {32*896}")
        s.proj_wload(WOB, 13, 56, 15, 14)
        for t in range(8): s.proj_wload_one(t, WOB, 13, 56, 15)
        a("s_lshr_b32 s12, s11, 3\ns_and_b32 s13, s11, 7")
        G = L1+32
        a(f"v_lshrrev_b32 v13, 4, v1\nv_lshlrev_b32 v13, 11, v13\nv_and_b32 v14, 15, v1\nv_lshl_add_u32 v13, v14, 4, v13")
        a(f"s_lshl_b32 s5, s12, 14\ns_lshl_b32 s6, s13, 8\ns_add_u32 s5, s5, s6\ns_add_u32 s5, s5, {OFF_H4}\ns_add_u32 s6, s5, 8192")
        def issue_h4():
            a(f"buffer_load_dwordx4 {q(G)}, v13, s[44:47], s5 offen sc1\nbuffer_load_dwordx4 {q(G+4)}, v13, s[44:47], s6 offen sc1")
        s.poll(issue_h4, [("s76", [G+1, G+3, G+5, G+7])], G+8, G+9, sleep=c['sleep'])
        s.stamp(6)
        a(f"v_add_f32 v{G}, v{G}, v{G+4}\nv_add_f32 v{G+1}, v{G+2}, v{G+6}")
        a(f"s_mul_i32 s15, s11, {FS}\ns_lshl_b32 s5, s3, 10\ns_add_u32 s15, s15, s5\ns_add_u32 s15, s15, {OFF_FIN+FIN_AB}")
        s.proj_tail(G, WOB, T, 14, 15)
        s.stamp(7)
        a("s_cmp_ge_u32 s11, 112\ns_cbranch_scc1 L_xend\ns_cmp_ge_u32 s3, 1\ns_cbranch_scc1 L_xend")
        s.srd(52, 38, 1792)
        F = L1+64
        T = QF+16
        a("s_cmp_ge_u32 s11, 56\ns_cselect_b32 s12, 1, 0\ns_cselect_b32 s5, 56, 0\ns_sub_u32 s13, s11, s5")
        a("s_sub_u32 s5, s13, 48\ns_lshr_b32 s6, s5, 1\ns_lshl_b32 s6, s6, 2\ns_and_b32 s5, s5, 1\ns_add_u32 s6, s6, s5\ns_add_u32 s6, s6, 48")
        a("s_cmp_ge_u32 s13, 48\ns_cselect_b32 s13, s6, s13")
        a(f"s_mul_i32 s6, s12, {FIN_AB}\ns_lshl_b32 s5, s13, 6\ns_add_u32 s6, s6, s5\ns_add_u32 s6, s6, {OFF_FIN}")
        a(f"v_lshrrev_b32 v{T+9}, 2, v1\nv_mul_u32_u24 v{T+9}, {FS}, v{T+9}\nv_and_b32 v{T+10}, 3, v1\nv_lshl_add_u32 v{T+9}, v{T+10}, 4, v{T+9}")
        def issue_f():
            for i in range(8):
                a(f"s_add_u32 s79, s6, {i*16*FS}")
                a(f"buffer_load_dwordx4 {q(F+4*i)}, v{T+9}, s[44:47], s79 offen sc1")
        a("s_mul_i32 s15, s12, 896\ns_lshr_b32 s5, s13, 4\ns_lshl_b32 s5, s5, 8\ns_add_u32 s15, s15, s5")
        a("s_and_b32 s5, s13, 3\ns_lshl_b32 s5, s5, 6\ns_add_u32 s15, s15, s5")
        a("s_bfe_u32 s5, s13, 0x10002\ns_lshl_b32 s5, s5, 3\ns_add_u32 s15, s15, s5")
        a("s_bfe_u32 s5, s13, 0x10003\ns_lshl_b32 s5, s5, 2\ns_add_u32 s15, s15, s5")
        a(f"v_lshlrev_b32 v{T+8}, 2, v1")
        s.poll(issue_f, [("s76", [F+4*i+k for i in range(8) for k in (1, 3)])], T+4, T+5, sleep=c['fsleep'])
        s.stamp(8)
        for st in (16, 8, 4):
            for i in range(0, st, 4):
                a(f"v_add_f32 v{F+i}, v{F+i}, v{F+st+i}\nv_add_f32 v{F+i+2}, v{F+i+2}, v{F+st+i+2}")
        for m in ("row_ror:8", "row_ror:4"):
            for k in (0, 2): a(f"v_add_f32_dpp v{F+k}, v{F+k}, v{F+k} {m} {DPPF}")
        for k in (0, 2): s.allred_rows("v_add_f32", F+k, F+k+1)
        a(f"v_cvt_pk_bf16_f32 v{F}, v{F}, v{F+2}")
        if c.get('thr'):
            a(f"s_memrealtime s[98:99]\ns_waitcnt lgkmcnt(0)\ns_sub_u32 s5, s98, s76\ns_cmp_gt_u32 s5, {c['thr']}\ns_cselect_b32 s5, 0x7fc07fc0, 0\nv_or_b32 v{F}, s5, v{F}")
        if c.get('spin'):
            Lsp = a.label("Lspin")
            a(f"{Lsp}:\ns_memrealtime s[98:99]\ns_waitcnt lgkmcnt(0)\ns_sub_u32 s5, s98, s76\ns_cmp_lt_u32 s5, {c['spin']}\ns_cbranch_scc1 {Lsp}")
        if c.get('enc'):
            a("s_memrealtime s[98:99]\ns_waitcnt lgkmcnt(0)\ns_sub_u32 s5, s98, s76")
            a(f"v_mov_b32 v{F+4}, s5\nv_lshrrev_b32 v{F+4}, v{T+8}, v{F+4}")
            a(f"v_and_b32 v{F+5}, 3, v{F+4}\nv_bfe_u32 v{F+4}, v{F+4}, 2, 2\nv_lshl_or_b32 v{F+5}, v{F+4}, 16, v{F+5}")
            a(f"v_and_b32 v{F}, 0xfffcfffc, v{F}\nv_or_b32 v{F}, v{F}, v{F+5}")
        s.exec_set(0xf, 0)
        a(f"buffer_store_dword v{F}, v6, s[52:55], s15 offen")
        s.exec_all()
        s.stamp(9)
        a("L_xend:")
        s.stamp_out()
        a("s_endpgm")
    def ga(s):
        a = s.a; c = s.c; pa = c['pa']
        a("L_A:")
        NS = c['ns']; NL = 2*NS
        Kb, Vb, T, AD = 16, 112, 208, 8
        assert NS <= 12
        NIT = (4096 - 64*4*NS)//8
        QF, AC, D, TS, MM = T, T+8, T+16, T+24, T+36
        M, Lr, F, FA, TK, TT = MM, MM+1, MM+2, MM+3, MM+4, MM+5
        vZ, vE = T+46, T+47
        a("s_sub_u32 s11, s2, 256\ns_bfe_u32 s9, s11, 0x30004\ns_bfe_u32 s12, s11, 0x10003")
        a("s_lshr_b32 s6, s11, 7\ns_lshl_b32 s6, s6, 3\ns_and_b32 s10, s11, 7\ns_add_u32 s13, s10, s6")
        a("s_lshl_b32 s10, s12, 4\ns_add_u32 s10, s10, s13")
        a("s_lshl_b32 s14, s9, 22\ns_lshl_b32 s6, s12, 21\ns_add_u32 s14, s14, s6")
        a(f"s_lshl_b32 s8, s13, 2\ns_add_u32 s8, s8, s3\ns_mul_i32 s8, s8, {NS*2048}\ns_add_u32 s8, s8, s14")
        a(f"s_add_u32 s14, s14, {64*NS*2048}")
        a(f"s_lshl_b32 s15, s9, 1\ns_add_u32 s15, s15, s12\ns_lshl_b32 s15, s15, 8\ns_add_u32 s15, s15, {OFF_CLR}")
        a(f"v_mov_b32 v{vZ}, 0")
        s.kv_addr(AD)
        s.common2(T)
        s.kwait()
        s.srd(44, 42, 0x10000000); s.srd(48, 40, 256)
        s.srd(68, 18, 8*8192*512); s.srd(72, 20, 8*8192*512)
        Lj = a.label("Lp1j")
        a(f"s_cmp_{'lt' if c['p1x'] else 'ge'}_u32 s11, 128\ns_cbranch_scc1 {Lj}")
        if c['prioa']: a(f"s_setprio {c['prioa']}")
        s.srd(52, 16, 896); s.srd(56, 22, 448*8192)
        XA, WA, PVv = Vb, Vb+4, T+16
        a("s_and_b32 s13, s11, 127")
        Lc = a.label("Lcz")
        a(f"s_cmp_ge_u32 s13, 8\ns_cbranch_scc1 {Lc}\ns_cmp_lg_u32 s3, 3\ns_cbranch_scc1 {Lc}")
        a(f"s_lshl_b32 s6, s13, 9\ns_add_u32 s6, s6, {OFF_CLR}\nv_lshlrev_b32 v{T}, 8, v1")
        s.exec_set(3, 0)
        a(f"buffer_store_dword v{vZ}, v{T}, s[44:47], s6 offen sc1")
        s.exec_all()
        a(f"{Lc}:")
        s.p1_setup(13, T, PVv)
        s.p1_loads(XA, WA, 52, 56, PVv)
        s.p1_setup2(T, PVv)
        a("s_waitcnt vmcnt(3)")
        a(f"buffer_load_dword v{vE}, v{vZ}, s[48:51], 0 offen sc1")
        a("s_waitcnt vmcnt(0)")
        s.get_epoch(vE, vZ)
        a("s_setprio 3")
        s.p1_compute(XA, WA, T, PVv, 0x1000, OFF_QA)
        a(f"s_setprio 0")
        a(f"{Lj}:")
        s.stamp(6)
        vK, vV = AD, AD+1
        def ld(n, reg, voff, srd, pace):
            g, hf = n//2, n % 2
            a(f"s_add_u32 s79, s8, {(g//2)*4096}")
            if pace: a(f"s_waitcnt vmcnt({pace-1})")
            a(f"buffer_load_dwordx4 {q(reg)}, v{voff}, s[{srd}:{srd+3}], s79 offen offset:{(g%2)*2048+hf*256} {c['nt']}")
        Lt = a.label("Ltr"); Lt2 = a.label("Ltr2")
        na0 = max(c['nay'], c['nax'])
        a(f"s_cmp_ge_u32 s11, 128\ns_cbranch_scc1 {Lt}")
        for n in range(na0): ld(n, Kb+4*n, vK, 68, c['pa0'] if n < c['nay'] else pa)
        a(f"s_branch {Lt2}\n{Lt}:")
        for n in range(na0): ld(n, Kb+4*n, vK, 68, c['pax'] if n < c['nax'] else pa)
        a(f"{Lt2}:")
        v1n = c['v1']
        a(f"v_bfe_u32 v{AD+4}, v1, 3, 1\nv_lshlrev_b32 v{AD+4}, 9, v{AD+4}")
        a(f"v_lshl_add_u32 v{AD+4}, v{AD+2}, 6, v{AD+4}\nv_lshl_add_u32 v{AD+4}, v{AD+3}, 4, v{AD+4}")
        assert na0 <= NL-8
        for n in range(na0, NL):
            ld(n, Kb+4*n, vK, 68, pa)
            if n == NL-8: a(f"buffer_load_dword v{vE}, v{vZ}, s[48:51], 0 offen sc1")
        a("s_waitcnt vmcnt(7)")
        s.get_epoch(vE, vZ)
        def vfirst():
            for n in range(v1n): ld(n, Vb+4*n, vV, 72, pa)
        a(f"s_lshl_b32 s6, s9, 12\ns_lshl_b32 s5, s3, 10\ns_add_u32 s6, s6, s5\ns_add_u32 s6, s6, {OFF_QA}")
        a(f"v_lshlrev_b32 v{T+20}, 2, v0")
        s.gather_q(T, 6, T+20, 1, vfirst, v1n, sleep=c['qsleep'])
        a("s_barrier")
        s.stamp(1)
        a(f"ds_read_b128 {q(QF)}, v{AD+4}\nds_read_b128 {q(QF+4)}, v{AD+4} offset:256")
        a(f"s_mov_b32 s13, {f32(CEXP)}")
        a(f"s_waitcnt vmcnt({v1n}) lgkmcnt(0)")
        s.stamp(2)
        nv = v1n
        def ticket():
            a(f"v_mov_b32 v{TK}, 1")
            s.exec_set(1, 0)
            a(f"buffer_atomic_add v{TK}, v{vZ}, s[44:47], s15 offen sc0 sc1")
            s.exec_all()
        tk_at = NL - c['tka']
        def more(k=1):
            nonlocal nv
            for _ in range(k):
                if nv < NL:
                    if nv == max(tk_at, v1n): ticket()
                    ld(nv, Vb+4*nv, vV, 72, pa); nv += 1
        def dreg(i): return D+4*i if i < 2 else Kb+8*(i-2)
        for i in range(NS):
            a(f"{MF} {q(dreg(i))}, {q(Kb+i*8)}, {q(QF)}, 0")
            a(f"{MF} {q(dreg(i))}, {q(Kb+i*8+4)}, {q(QF+4)}, {q(dreg(i))}")
            if i % 6 == 5: more()
        for r in range(4):
            for i in range(NS):
                if r == 0: a(f"v_mov_b32_dpp v{TS+i}, v{dreg(i)} quad_perm:[0,0,0,0] {DPPF}")
                else: a(f"v_add_f32_dpp v{TS+i}, v{dreg(i)+r}, v{TS+i} quad_perm:[{r},{r},{r},{r}] {DPPF}")
        more()
        for i in range(0, NS, 2): a(f"v_cvt_pk_bf16_f32 v{D+(i//2)}, v{TS+i}, v{TS+i+1}")
        for i in range(0, NS, 2): a(f"v_lshlrev_b32 v{TS+i}, 16, v{D+i//2}\nv_and_b32 v{TS+i+1}, 0xffff0000, v{D+i//2}")
        a(f"v_max3_f32 v{M}, v{TS}, v{TS+1}, v{TS+2}")
        for i in range(3, NS, 2): a(f"v_max3_f32 v{M}, v{M}, v{TS+i}, v{TS+min(i+1,NS-1)}")
        s.allred_rows("v_max_f32", M, TT)
        a(f"v_mul_f32 v{M}, s13, v{M}")
        for i in range(NS): a(f"v_fma_f32 v{TS+i}, v{TS+i}, s13, -v{M}")
        more()
        for i in range(NS): a(f"v_exp_f32 v{TS+i}, v{TS+i}")
        a(f"v_add_f32 v{Lr}, v{TS}, v{TS+1}")
        for i in range(2, NS): a(f"v_add_f32 v{Lr}, v{Lr}, v{TS+i}")
        for i in range(NS): a(f"v_cvt_pk_bf16_f32 v{TS+i}, v{TS+i}, v{TS+i}")
        s.stamp(3)
        done = 0
        def pv(i):
            ab = D + (i % 2)*4
            for r in range(4): a(f"v_and_b32 v{ab+r}, v{TS+i}, v{2+r}")
            for hf in range(2):
                a(f"{MF} {q(AC+4*hf)}, {q(ab)}, {q(Vb+8*i+4*hf)}, {'0' if i == 0 else q(AC+4*hf)}")
        def pv_upto(k):
            nonlocal done
            while done < NS and 2*done+2 <= k:
                pv(done); done += 1
        while nv < NL:
            more()
            pv_upto(nv - 1 - (pa-1))
        ntk = NL - max(tk_at, v1n)
        BUF = [Kb, Kb+32]
        Lend = a.label("Lae")
        def take(Lno, younger):
            a(f"s_waitcnt vmcnt({younger})")
            a(f"v_readfirstlane_b32 s5, v{TK}")
            a(f"s_cmp_ge_u32 s5, {NIT}\ns_cbranch_scc1 {Lno}")
            a(f"s_lshl_b32 s5, s5, 12\ns_add_u32 s79, s14, s5")
        def item_loads(B):
            ticket()
            for n in range(8):
                a(f"s_waitcnt vmcnt({c['pd']-1})")
                vo, srd = (vK, 68) if n < 4 else (vV, 72)
                k = n % 4
                a(f"buffer_load_dwordx4 {q(B+4*n)}, v{vo}, s[{srd}:{srd+3}], s79 offen offset:{(k//2)*2048+(k%2)*256} {c['nt']}")
        def item_compute(B, last):
            if last: a("s_waitcnt vmcnt(4)")
            for i in range(2):
                a(f"{MF} {q(D+4*i)}, {q(B+8*i)}, {q(QF)}, 0")
                a(f"{MF} {q(D+4*i)}, {q(B+8*i+4)}, {q(QF+4)}, {q(D+4*i)}")
            for r in range(4):
                for i in range(2):
                    if r == 0: a(f"v_mov_b32_dpp v{TS+i}, v{D+4*i} quad_perm:[0,0,0,0] {DPPF}")
                    else: a(f"v_add_f32_dpp v{TS+i}, v{D+4*i+r}, v{TS+i} quad_perm:[{r},{r},{r},{r}] {DPPF}")
            a(f"v_cvt_pk_bf16_f32 v{TT}, v{TS}, v{TS+1}\nv_lshlrev_b32 v{TS}, 16, v{TT}\nv_and_b32 v{TS+1}, 0xffff0000, v{TT}")
            a(f"v_max_f32 v{TS+2}, v{TS}, v{TS+1}")
            s.allred_rows("v_max_f32", TS+2, TT)
            a(f"v_mul_f32 v{TS+2}, s13, v{TS+2}\nv_max_f32 v{TS+2}, v{TS+2}, v{M}")
            a(f"v_sub_f32 v{F}, v{M}, v{TS+2}\nv_fma_f32 v{TS}, v{TS}, s13, -v{TS+2}\nv_fma_f32 v{TS+1}, v{TS+1}, s13, -v{TS+2}")
            a(f"v_exp_f32 v{F}, v{F}\nv_exp_f32 v{TS}, v{TS}\nv_exp_f32 v{TS+1}, v{TS+1}\nv_mov_b32 v{M}, v{TS+2}")
            a(f"v_fma_f32 v{Lr}, v{Lr}, v{F}, v{TS}")
            a(f"v_mov_b32_dpp v{FA}, v{F} row_newbcast:0 row_mask:0x3 bank_mask:0xf")
            a(f"v_add_f32 v{Lr}, v{Lr}, v{TS+1}")
            a(f"v_cvt_pk_bf16_f32 v{TS}, v{TS}, v{TS}")
            a(f"v_mov_b32_dpp v{FA}, v{F} row_newbcast:8 row_mask:0xc bank_mask:0xf")
            a(f"v_cvt_pk_bf16_f32 v{TS+1}, v{TS+1}, v{TS+1}")
            for k in range(8): a(f"v_mul_f32 v{AC+k}, v{AC+k}, v{FA}")
            for i in range(2):
                for r in range(4): a(f"v_and_b32 v{D+4*i+r}, v{TS+i}, v{2+r}")
            if last: a("s_waitcnt vmcnt(0)")
            for i in range(2):
                for hf in range(2):
                    a(f"{MF} {q(AC+4*hf)}, {q(D+4*i)}, {q(B+16+8*i+4*hf)}, {q(AC+4*hf)}")
        E = Kb+64
        s.epi_addr(E, True)
        a(f"v_bfe_u32 v{E+2}, v0, 4, 4\nv_mul_u32_u24 v{E+2}, {HA_U}, v{E+2}")
        a(f"v_and_b32 v{E}, 15, v0\nv_lshl_add_u32 v{E+2}, v{E}, 4, v{E+2}")
        a(f"s_mul_i32 s12, s9, {16*HA_U}\ns_lshl_b32 s6, s10, 8\ns_add_u32 s12, s12, s6\ns_add_u32 s12, s12, {OFF_HA}")
        a(f"s_lshl_b32 s5, s3, 11\nv_add_u32 v{AD+4}, s5, v6")
        a(f"v_bfe_u32 v{AD+6}, v1, 3, 1\nv_lshlrev_b32 v{AD+6}, 5, v{AD+6}\ns_lshl_b32 s5, s3, 3\nv_add_u32 v{AD+7}, s5, v{AD+6}")
        a(f"v_lshrrev_b32 v{AD+5}, 7, v0\nv_lshlrev_b32 v{AD+5}, 5, v{AD+5}")
        a(f"s_lshl_b32 s10, s10, 7\ns_lshl_b32 s5, s9, 12\ns_add_u32 s10, s10, s5\ns_lshr_b32 s5, s3, 1\ns_lshl_b32 s5, s5, 4\ns_add_u32 s10, s10, s5\ns_add_u32 s10, s10, {OFF_STA}")
        Z = E+4
        a(f"v_mov_b32 v{Z+17}, s76\nv_mov_b32 v{Z+19}, s76\nv_mov_b32 v{Z+21}, s76\nv_mov_b32 v{Z+23}, s76")
        Ln0 = a.label("Ln0"); L0 = a.label("Ld0"); Lf0 = a.label("Lf0"); Lf1 = a.label("Lf1")
        d0 = done
        take(Ln0, ntk)
        item_loads(BUF[0])
        a("s_waitcnt vmcnt(9)")
        for i in range(d0, NS): pv(i)
        a(f"{L0}:")
        take(Lf0, 8)
        item_loads(BUF[1])
        a("s_waitcnt vmcnt(9)")
        item_compute(BUF[0], False)
        take(Lf1, 8)
        item_loads(BUF[0])
        a("s_waitcnt vmcnt(9)")
        item_compute(BUF[1], False)
        a(f"s_branch {L0}")
        a(f"{Ln0}:")
        for i in range(d0, NS):
            a(f"s_waitcnt vmcnt({NL-2*(i+1)})")
            pv(i)
        a(f"s_branch {Lend}")
        a(f"{Lf0}:")
        item_compute(BUF[0], True)
        a(f"s_branch {Lend}")
        a(f"{Lf1}:")
        item_compute(BUF[1], True)
        a(f"{Lend}:")
        s.allred_rows("v_add_f32", Lr, TT)
        a(f"ds_write_b64 v{AD+7}, {p2(M)} offset:{0x800}")
        s.stamp(4)
        a(f"ds_write_b128 v{AD+4}, {q(AC)} offset:{0x1000}\nds_write_b128 v{AD+4}, {q(AC+4)} offset:{0x1000+1024}")
        a("s_waitcnt lgkmcnt(0)\ns_barrier")
        Y = Z+8
        a(f"ds_read_b128 {q(Y)}, v{AD+5} offset:{0x800}\nds_read_b128 {q(Y+4)}, v{AD+5} offset:{0x810}")
        for i in range(4): a(f"ds_read_b64 {p2(Z+2*i)}, v{E+3} offset:{0x1000+2048*i}")
        a("s_waitcnt lgkmcnt(4)")
        a(f"v_max3_f32 v{Z+20}, v{Y}, v{Y+2}, v{Y+4}\nv_max_f32 v{Z+20}, v{Z+20}, v{Y+6}")
        for k in range(4): a(f"v_sub_f32 v{Y+2*k}, v{Y+2*k}, v{Z+20}")
        for k in range(4): a(f"v_exp_f32 v{Y+2*k}, v{Y+2*k}")
        a("s_waitcnt lgkmcnt(0)")
        for k in range(4):
            op = "v_mul_f32" if k == 0 else "v_fmac_f32"
            a(f"{op} v{Z+16}, v{Y+2*k}, v{Z+2*k}\n{op} v{Z+18}, v{Y+2*k}, v{Z+2*k+1}")
        a(f"buffer_store_dwordx4 {q(Z+16)}, v{E+2}, s[44:47], s12 offen sc1")
        Lx = a.label("Lax")
        a(f"s_bitcmp1_b32 s3, 0\ns_cbranch_scc1 {Lx}")
        for k in range(4):
            op = "v_mul_f32" if k == 0 else "v_fmac_f32"
            a(f"{op} v{Z+22}, v{Y+2*k}, v{Y+2*k+1}")
        s.exec_set(1, 0)
        a(f"buffer_store_dwordx4 {q(Z+20)}, v{vZ}, s[44:47], s10 offen sc1")
        a(f"{Lx}:")
        s.stamp(5)
        s.stamp_out()
        a("s_endpgm")
    def build(s):
        a = s.a
        s.prologue()
        s.gy(); s.gx(); s.ga()
        a("L_end:\ns_endpgm")
        body = a.finish()
        hdr = open("concat_heads__gqa_block_cached__compressed_kv_cla__decode.s.ref").read().split("; @launch")[0]
        out = hdr + "; @launch grid=(512,1,1) block=(256,1,1) lds=81920\n"
        out += "; generated by my own generator script (gen2.py)\n"
        out += f'.amdgcn_target "amdgcn-amd-amdhsa--gfx950"\n.text\n.globl {KN}\n.p2align 8\n.type {KN},@function\n{KN}:\n'
        out += body
        out += f""".section .rodata,"a"
.p2align 6
.amdhsa_kernel {KN}
  .amdhsa_next_free_vgpr 256
  .amdhsa_next_free_sgpr 102
  .amdhsa_accum_offset 256
  .amdhsa_group_segment_fixed_size 0
  .amdhsa_kernarg_size 112
  .amdhsa_user_sgpr_count 2
  .amdhsa_user_sgpr_kernarg_segment_ptr 1
  .amdhsa_system_sgpr_workgroup_id_x 1
.end_amdhsa_kernel
"""
        return out
if __name__ == "__main__":
    from build import build
    name = sys.argv[1]
    cfg = {}
    for kv in sys.argv[2:]:
        k, v = kv.split("=")
        cfg[k] = v if k == "nt" else int(v)
    open(name, "w").write(Gen2(**cfg).build())
    print(build(name))
```

```python
import sys, math, struct
from asmlib import Asm
from gen import Gen, q, p2, f32, DPPF, KN, CEXP
OFF_QB, OFF_QA, OFF_QABS, OFF_CLR, OFF_ST3, OFF_STA, OFF_H4, OFF_HA, OFF_FIN, OFF_H3 = \
    0x0, 0x10000, 0x20000, 0x2c000, 0x30000, 0x38000, 0x40000, 0x80000, 0x200000, 0x400000
FIN_CG = 8192+128
FS = 4096+128; FIN_AB = 128*FS
QS = 2048+128
HA_U = 8192+128
H3_C = 32768+256
OFF_STAMP = 0x8000000
OFF_CHK = 0x1A0000
ROW = 2080; SLOT = 16*ROW
import gen as G1
G1.FIN_CG = FIN_CG
MF = "v_mfma_f32_16x16x32_bf16"

class Gen2(Gen):
    def __init__(s, **cfg):
        s.c = dict(stamp=False, nt="nt", sleep=2, timeout=100000, rnd=True, pa=8, pb=8, prio=2, prioa=0, n1=7, pu=8, px=8, pax=3, nax=6, nay=4, p1x=1, qf=0, spq=0, sp=1, sptime=2000, spsleep=2, spn=3, il=0, sat=1, tkn=6, xx=0, pdx=0, c1=0, ssleep=2, ns=10, tka=3, pd=9, qsleep=6, px0=4, v1=8, fsleep=2, pf=0, pa0=1, na0=4, na1=6, lead=10, h3d=0)
        s.c.update(cfg)
        s.a = Asm()
    def stamp_out(s):
        if not s.c['stamp']: return
        a = s.a
        a("s_mov_b64 exec, -1\nv_mov_b32 v8, 0")
        for k in range(12): a(f"v_writelane_b32 v8, s{84+k}, {k}")
        a("v_lshlrev_b32 v9, 2, v1")
        a("s_lshl_b32 s4, s2, 2\ns_add_u32 s4, s4, s3\ns_lshl_b32 s4, s4, 6")
        a(f"s_add_u32 s4, s4, {OFF_STAMP}")
        a("s_mov_b32 exec_lo, 0xffff\ns_mov_b32 exec_hi, 0")
        a("buffer_store_dword v8, v9, s[44:47], s4 offen")
    def prologue(s):
        a = s.a
        a("s_cmp_ge_u32 s2, 512\ns_cbranch_scc1 L_end")
        a("s_load_dwordx16 s[16:31], s[0:1], 0\ns_load_dwordx8 s[32:39], s[0:1], 64\ns_load_dwordx4 s[40:43], s[0:1], 96")
        a("s_memrealtime s[4:5]")
        a("v_lshrrev_b32 v7, 6, v0\nv_and_b32 v1, 63, v0")
        a("v_readfirstlane_b32 s3, v7\nv_lshlrev_b32 v6, 4, v1")
        if s.c['xx']:
            a("s_lshr_b32 s6, s2, 6\ns_cmp_eq_u32 s6, 3\ns_cselect_b32 s7, 192, 0\ns_add_u32 s2, s2, s7\ns_cmp_eq_u32 s6, 6\ns_cselect_b32 s7, 192, 0\ns_sub_u32 s2, s2, s7")
        if s.c['pf']:
            a(f"s_cmp_lt_u32 s2, {512-s.c['pf']}\ns_cbranch_scc1 L_nopf")
            a("s_getpc_b64 s[6:7]\ns_and_b32 s6, s6, 0xffffff00")
            a(f"v_lshlrev_b32 v9, 7, v0\nv_min_u32 v9, L_end-{KN}, v9\nglobal_load_dword v200, v9, s[6:7]")
            a("L_nopf:")
        a("s_cmp_ge_u32 s2, 256\ns_cbranch_scc1 L_A")
        if s.c['prio']: a(f"s_setprio {s.c['prio']}")
        a("s_cmp_ge_u32 s2, 128\ns_cbranch_scc1 L_X")
    def kwait(s):
        a = s.a
        a("s_waitcnt lgkmcnt(0)")
        a("s_or_b32 s77, s4, 1")
        if s.c['stamp']:
            for k in range(12): a(f"s_mov_b32 s{84+k}, 0")
            a("s_mov_b32 s84, s4")
    def common2(s, t):
        a = s.a
        a(f"v_and_b32 v{t}, 1, v1\nv_lshlrev_b32 v{t}, 4, v{t}\nv_mov_b32 v{t+1}, 0xffff\nv_lshlrev_b32 v{t}, v{t}, v{t+1}")
        a(f"v_bfe_u32 v{t+1}, v1, 1, 2")
        for r in range(4):
            a(f"v_cmp_eq_u32 vcc, {r}, v{t+1}\nv_cndmask_b32 v{2+r}, 0, v{t}, vcc")
    def get_epoch(s, vE, vZ):
        a = s.a
        L = a.label("Lge"); Ld = a.label("Lged")
        a(f"s_mov_b32 s78, {s.c['timeout']}")
        a(f"{L}:")
        a(f"v_readfirstlane_b32 s76, v{vE}")
        a(f"s_cmp_lg_u32 s76, 0\ns_cbranch_scc1 {Ld}")
        a(f"buffer_load_dword v{vE}, v{vZ}, s[48:51], 0 offen sc1\ns_waitcnt vmcnt(0)")
        a(f"s_sub_u32 s78, s78, 1\ns_cmp_lg_u32 s78, 0\ns_cbranch_scc1 {L}")
        a(f"{Ld}:")
    def spoll(s, soff, extra, n=1, stride=0):
        if not s.c['sp']: return
        a = s.a
        L = a.label("Lsp"); Ld = a.label("Lspd")
        a(f"s_mov_b32 s78, {s.c['sptime']}")
        for k in range(n): a(f"s_add_u32 s{64+k}, s{soff}, {extra+4+k*stride}")
        a(f"{L}:")
        for k in range(n): a(f"s_load_dword s{68+k}, s[42:43], s{64+k} glc")
        a("s_waitcnt lgkmcnt(0)")
        a(f"s_xor_b32 s83, s68, s76")
        for k in range(1, n): a(f"s_xor_b32 s{68+k}, s{68+k}, s76\ns_or_b32 s83, s83, s{68+k}")
        a(f"s_cmp_eq_u32 s83, 0\ns_cbranch_scc1 {Ld}")
        a(f"s_sleep {s.c['spsleep']}\ns_sub_u32 s78, s78, 1\ns_cmp_lg_u32 s78, 0\ns_cbranch_scc1 {L}")
        a(f"{Ld}:")
    def poll_sent(s, issue, regs, t0, sleep=None, pre_issued=False):
        a = s.a
        L = a.label("Lps"); Ld = a.label("Lpsd")
        a(f"s_mov_b32 s78, {s.c['timeout']}")
        Lw = a.label("Lpsw")
        if pre_issued: a(f"s_branch {Lw}")
        a(f"{L}:")
        issue()
        a(f"{Lw}:")
        a("s_waitcnt vmcnt(0)")
        a(f"v_max3_u32 v{t0}, v{regs[0]}, v{regs[1]}, v{regs[2]}")
        rest = regs[3:]
        for i in range(0, len(rest), 2):
            y = rest[i+1] if i+1 < len(rest) else rest[i]
            a(f"v_max3_u32 v{t0}, v{t0}, v{rest[i]}, v{y}")
        a(f"v_cmp_eq_u32 vcc, -1, v{t0}")
        a(f"s_cbranch_vccz {Ld}")
        sl = s.c['sleep'] if sleep is None else sleep
        if sl: a(f"s_sleep {sl}")
        a(f"s_sub_u32 s78, s78, 1\ns_cmp_lg_u32 s78, 0\ns_cbranch_scc1 {L}")
        a(f"{Ld}:")
    def gather_q(s, T, soff, lds, n, between=None, nb=0, sleep=1):
        a = s.a
        a(f"s_add_u32 s7, s{soff}, 0x8000")
        def issue():
            for k in range(n):
                a(f"buffer_load_dwordx4 {q(T+8*k)}, v6, s[44:47], s{soff} offen offset:{1024*k} sc1")
                a(f"buffer_load_dwordx4 {q(T+8*k+4)}, v6, s[44:47], s7 offen offset:{1024*k} sc1")
        grp = [("s76", [T+4*k+j for k in range(2*n) for j in (1, 3)])]
        if between:
            Lok = a.label("Lgq")
            issue(); between()
            a(f"s_waitcnt vmcnt({nb})")
            s.check_tags(grp, T+8*n, T+8*n+1)
            a(f"s_cbranch_scc1 {Lok}")
            s.poll(issue, grp, T+8*n, T+8*n+1, sleep=sleep)
            a(f"{Lok}:")
        else:
            s.poll(issue, grp, T+8*n, T+8*n+1, sleep=sleep)
        for k in range(n):
            b = T+8*k
            a(f"v_add_f32 v{b}, v{b}, v{b+4}\nv_add_f32 v{b+2}, v{b+2}, v{b+6}\nv_cvt_pk_bf16_f32 v{b}, v{b}, v{b+2}")
            a(f"ds_write_b32 v{lds}, v{b} offset:{256*k}")
        a("s_waitcnt lgkmcnt(0)")
    def epi_addr(s, E, two_heads):
        a = s.a
        a(f"v_bfe_u32 v{E+3}, v0, 6, 1\nv_lshlrev_b32 v{E+3}, 10, v{E+3}")
        if two_heads: a(f"v_bfe_u32 v{E+1}, v0, 7, 1\nv_lshl_add_u32 v{E+3}, v{E+1}, 9, v{E+3}")
        a(f"v_bfe_u32 v{E+1}, v0, 1, 1\nv_lshl_add_u32 v{E+3}, v{E+1}, 8, v{E+3}")
        a(f"v_bfe_u32 v{E+1}, v0, 2, 4\nv_lshl_add_u32 v{E+3}, v{E+1}, 4, v{E+3}")
        a(f"v_and_b32 v{E+1}, 1, v0\nv_lshl_add_u32 v{E+3}, v{E+1}, 3, v{E+3}")
    def p1_setup(s, sI, T, V):
        a = s.a
        vX, vW, vSA, vSB, vLW, vRD, vPB = range(V, V+7)
        a(f"s_and_b32 s100, s{sI}, 7\ns_lshl_b32 s100, s100, 3\ns_bfe_u32 s6, s{sI}, 0x30003\ns_add_u32 s100, s100, s6\ns_lshr_b32 s101, s{sI}, 6")
        a("s_mul_i32 s96, s101, 224\ns_mul_i32 s6, s3, 56\ns_add_u32 s96, s96, s6\ns_lshl_b32 s97, s96, 1")
        a("s_lshl_b32 s96, s96, 13\ns_lshl_b32 s6, s100, 7\ns_add_u32 s96, s96, s6")
        a(f"v_lshrrev_b32 v{T}, 3, v1\nv_mul_u32_u24 v{vX}, 14, v{T}\nv_and_b32 v{vX}, 0x7c, v{vX}")
        a(f"v_mul_u32_u24 v{vW}, {7*8192}, v{T}\nv_and_b32 v{T+1}, 7, v1\nv_lshl_add_u32 v{vW}, v{T+1}, 4, v{vW}")
    def p1_loads(s, X, W, srdX, srdW, V):
        a = s.a
        a(f"buffer_load_dwordx4 {q(X)}, v{V}, s[{srdX}:{srdX+3}], s97 offen")
        for i in range(7):
            a(f"s_add_u32 s79, s96, {i*8192}")
            a(f"buffer_load_dwordx4 {q(W+4*i)}, v{V+1}, s[{srdW}:{srdW+3}], s79 offen {s.c['nt']}")
    def p1_setup2(s, T, V):
        a = s.a
        vX, vW, vSA, vSB, vLW, vRD, vPB = range(V, V+7)
        a(f"s_lshl_b32 s100, s100, 9\ns_lshl_b32 s101, s101, 15\ns_add_u32 s100, s100, s101")
        a(f"v_bfe_u32 v{T}, v1, 3, 1\nv_cmp_eq_u32 vcc, 1, v{T}")
        a(f"v_mov_b32 v{T+8}, 0x01000100\nv_mov_b32 v{T+9}, 0x03020302\nv_mov_b32 v{T+10}, 0x05040504")
        a(f"v_cndmask_b32 v{vSA}, v{T+8}, v{T+9}, vcc\nv_cndmask_b32 v{vSB}, v{T+9}, v{T+10}, vcc")
        a(f"s_lshl_b32 s5, s3, 10\nv_add_u32 v{vLW}, s5, v6")
        a(f"v_and_b32 v{T+3}, 3, v1")
        a(f"v_lshrrev_b32 v{vRD}, 5, v1\nv_lshlrev_b32 v{vRD}, 11, v{vRD}\nv_bfe_u32 v{T}, v1, 1, 1\nv_lshl_add_u32 v{vRD}, v{T}, 8, v{vRD}")
        a(f"v_bfe_u32 v{T}, v1, 2, 3\nv_lshl_add_u32 v{vRD}, v{T}, 4, v{vRD}\nv_and_b32 v{T}, 1, v1\nv_lshl_add_u32 v{vRD}, v{T}, 3, v{vRD}")
    def p1_compute(s, X, W, T, V, lds, off, flag_vZ=None):
        a = s.a
        vX, vW, vSA, vSB, vLW, vRD, vPB = range(V, V+7)
        AB, AC = T, T+12
        for i in range(7):
            ab = AB + (i % 2)*4
            k = i//2
            if i % 2 == 0: a(f"v_perm_b32 v{AB+8}, v{X+k}, v{X+k}, v{vSA}")
            else: a(f"v_perm_b32 v{AB+8}, v{X+k+1}, v{X+k}, v{vSB}")
            for r in range(4): a(f"v_and_b32 v{ab+r}, v{AB+8}, v{2+r}")
            a(f"{MF} {q(AC)}, {q(ab)}, {q(W+4*i)}, {'0' if i == 0 else q(AC)}")
        a(f"ds_write_b128 v{vLW}, {q(AC)} offset:{lds}")
        a("s_waitcnt lgkmcnt(0)\ns_barrier")
        L = a.label("Lred")
        a(f"s_cmp_lg_u32 s3, 3\ns_cbranch_scc1 {L}")
        R = T
        for k in range(4): a(f"ds_read_b64 {p2(R+2*k)}, v{vRD} offset:{lds + (k//2)*1024 + (k%2)*640}")
        a(f"s_add_u32 s5, s100, {off}")
        a(f"v_mov_b32 v{R+9}, s76\nv_mov_b32 v{R+11}, s76")
        a("s_waitcnt lgkmcnt(0)")
        a(f"v_pk_add_f32 {p2(R)}, {p2(R)}, {p2(R+2)}\nv_pk_add_f32 {p2(R+4)}, {p2(R+4)}, {p2(R+6)}\nv_pk_add_f32 {p2(R)}, {p2(R)}, {p2(R+4)}")
        a(f"v_mov_b64 {p2(R+2)}, {p2(R)}")
        a(f"v_permlane32_swap_b32 v{R}, v{R+2}\nv_permlane32_swap_b32 v{R+1}, v{R+3}")
        a(f"v_add_f32 v{R+8}, v{R}, v{R+2}\nv_add_f32 v{R+10}, v{R+1}, v{R+3}")
        s.exec_set(0xffffffff, 0)
        a(f"buffer_store_dwordx4 {q(R+8)}, v6, s[44:47], s5 offen sc1")
        s.exec_all()
        a(f"{L}:")
    def proj_tail(s, A0, W, T, scb, sfin, scale=None):
        a = s.a
        a(f"v_permlane32_swap_b32 v{A0}, v{A0+1}\nv_add_f32 v{A0}, v{A0}, v{A0+1}")
        a(f"v_mov_b32 v{A0+1}, v{A0}\nv_permlane16_swap_b32 v{A0}, v{A0+1}\nv_add_f32 v{A0}, v{A0}, v{A0+1}")
        if scale is not None: a(f"v_mul_f32 v{A0}, v{A0}, v{scale}")
        a(f"v_cvt_pk_bf16_f32 v{A0}, v{A0}, v{A0}")
        a(f"v_mov_b32 v{A0+1}, v{A0}")
        a(f"v_mov_b32_dpp v{A0}, v{A0+1} row_ror:8 row_mask:0xa bank_mask:0xf")
        AC = T+8; S = T+12
        for g in range(8):
            ab = T + (g % 2)*4
            for r in range(4): a(f"v_and_b32_dpp v{ab+r}, v{A0}, v{2+r} row_newbcast:{g} {DPPF}")
            a(f"{MF} {q(AC)}, {q(ab)}, {q(W[g])}, {'0' if g == 0 else q(AC)}")
        a(f"v_cmp_gt_u32 vcc, 32, v1")
        a(f"v_mov_b32 v{S+1}, s76\nv_mov_b32 v{S+3}, s76")
        a("s_mov_b32 exec_lo, s82\ns_mov_b32 exec_hi, s82")
        a(f"v_cndmask_b32 v{S}, v{AC+2}, v{AC}, vcc\nv_cndmask_b32 v{S+2}, v{AC+3}, v{AC+1}, vcc")
        a(f"buffer_store_dwordx4 {q(S)}, v6, s[44:47], s{sfin} offen sc1")
        s.exec_all()
    def gy(s):
        a = s.a; c = s.c; nt = c['nt']; pb = c['pb']
        XB, WB, UK, UV, T = 8, 16, 72, 136, 200
        PVv = T+40
        vLW = PVv+4
        vZ, vU, vQ = T+47, T+50, T+51
        vE = T+48
        s.p1_setup(2, T, PVv)
        a(f"v_mov_b32 v{vZ}, 0\nv_mov_b32 v{vE+1}, 0")
        a("s_lshr_b32 s12, s2, 3\ns_and_b32 s13, s2, 7")
        if c['qf']:
            a(f"s_lshl_b32 s14, s13, 12\ns_lshl_b32 s6, s12, 4\ns_add_u32 s14, s14, s6\ns_add_u32 s14, s14, {OFF_QABS}")
            a(f"v_lshlrev_b32 v{T+2}, 8, v1")
        else:
            a(f"s_lshl_b32 s14, s13, 8\ns_mul_i32 s6, s12, {QS}\ns_add_u32 s14, s14, s6\ns_add_u32 s14, s14, {OFF_QABS}")
        for r in range(4): a(f"v_mov_b32 v{T+4+r}, -1")
        s.kwait()
        s.srd(44, 42, 0x10000000); s.srd(48, 40, 256)
        s.srd(52, 26, 896); s.srd(56, 30, 448*8192)
        L = a.label("Le0")
        a(f"s_cmp_lg_u32 s3, 3\ns_cbranch_scc1 {L}")
        a(f"v_mov_b32 v{vE}, s77")
        s.exec_set(1, 0)
        a(f"buffer_atomic_cmpswap {p2(vE)}, v{vZ}, s[48:51], 0 offen sc0 sc1")
        s.exec_set(0xffff, 0)
        a(f"buffer_store_dwordx4 {q(T+4)}, v{T+2 if c['qf'] else 6}, s[44:47], s14 offen sc1")
        s.exec_all()
        a(f"{L}:")
        s.p1_loads(XB, WB, 52, 56, PVv)
        s.srd(68, 32, 1024*8192); s.srd(72, 34, 1024*8192); s.srd(60, 24, 4096*896)
        a(f"v_lshrrev_b32 v{T+2}, 4, v1\nv_lshrrev_b32 v{vQ}, 4, v0\nv_lshlrev_b32 v{vQ}, {8 if c['qf'] else 4}, v{vQ}")
        a(f"v_bfe_u32 v{vU}, v1, 2, 2\nv_lshlrev_b32 v{vU}, 16, v{vU}\nv_lshl_add_u32 v{vU}, v{T+2}, 6, v{vU}")
        a(f"v_and_b32 v{T+3}, 3, v1\nv_lshl_add_u32 v{vU}, v{T+3}, 4, v{vU}")
        a("s_lshl_b32 s15, s13, 20\ns_lshl_b32 s5, s3, 18\ns_add_u32 s15, s15, s5\ns_lshl_b32 s5, s12, 9\ns_add_u32 s15, s15, s5")
        s.common2(T+12)
        s.p1_setup2(T, PVv)
        def ukload(n, pace):
            i, hf = n//2, n % 2
            a(f"s_add_u32 s79, s15, {i*8192}")
            if pace: a(f"s_waitcnt vmcnt({pace-1})")
            a(f"buffer_load_dwordx4 {q(UK+4*n)}, v{vU}, s[68:71], s79 offen offset:{hf*256} {nt}")
        n1 = c['n1']
        for n in range(n1): ukload(n, pb)
        a(f"s_waitcnt vmcnt({n1})")
        s.stamp(1)
        L = a.label("Le1")
        a(f"s_cmp_lg_u32 s3, 3\ns_cbranch_scc1 {L}")
        a(f"v_readfirstlane_b32 s76, v{vE}\ns_cmp_eq_u32 s76, 0\ns_cselect_b32 s76, s77, s76")
        a(f"v_mov_b32 v{vE}, s76\nds_write_b32 v{vZ}, v{vE} offset:{0x2800}")
        a(f"{L}:")
        s.p1_compute(XB, WB, T, PVv, 0, OFF_QB)
        a(f"ds_read_b32 v{vE}, v{vZ} offset:{0x2800}")
        s.stamp(2)
        for n in range(n1, 16): ukload(n, pb)
        a(f"s_waitcnt lgkmcnt(0)\nv_readfirstlane_b32 s76, v{vE}")
        tsave = c['timeout']
        if c.get('nob'): c['timeout'] = 1
        L = a.label("Lqb")
        a(f"s_cmp_ge_u32 s3, 2\ns_cbranch_scc1 {L}")
        a(f"s_lshl_b32 s6, s12, 11\ns_lshl_b32 s5, s3, 10\ns_add_u32 s6, s6, s5\ns_add_u32 s6, s6, {OFF_QB}")
        a(f"v_lshlrev_b32 v{T+20}, 2, v0\nv_add_u32 v{T+20}, 0x2000, v{T+20}")
        s.gather_q(T, 6, T+20, 1)
        a(f"{L}:")
        a(f"v_lshrrev_b32 v{T+21}, 4, v1\nv_lshlrev_b32 v{T+21}, 6, v{T+21}\nv_and_b32 v{T+22}, 3, v1\nv_lshl_add_u32 v{T+21}, v{T+22}, 4, v{T+21}")
        a("s_waitcnt vmcnt(0)\ns_barrier")
        s.stamp(3)
        QF = T; D = WB
        a(f"ds_read_b128 {q(QF)}, v{T+21} offset:{0x2000}\nds_read_b128 {q(QF+4)}, v{T+21} offset:{0x2000+256}")
        a("s_waitcnt lgkmcnt(0)")
        for i in range(8):
            a(f"{MF} {q(D+4*i)}, {q(UK+8*i)}, {q(QF)}, 0")
            a(f"{MF} {q(D+4*i)}, {q(UK+8*i+4)}, {q(QF+4)}, {q(D+4*i)}")
        R = T+8
        for r in range(4):
            for i in range(8):
                if r == 0: a(f"v_mov_b32_dpp v{R+i}, v{D+4*i} quad_perm:[0,0,0,0] {DPPF}")
                else: a(f"v_add_f32_dpp v{R+i}, v{D+4*i+r}, v{R+i} quad_perm:[{r},{r},{r},{r}] {DPPF}")
        for k in range(4): a(f"v_cvt_pk_bf16_f32 v{R+8+k}, v{R+2*k}, v{R+2*k+1}")
        for k in range(4): a(f"v_min_u32 v{R+8+k}, -2, v{R+8+k}")
        s.exec_set(0x00010001, 0x00010001)
        if c['qf']:
            a(f"buffer_store_dwordx4 {q(R+8)}, v{vQ}, s[44:47], s14 offen sc1")
            s.exec_all()
        else:
            a(f"ds_write_b128 v{vQ}, {q(R+8)} offset:{0x2900}")
            s.exec_all()
            a("s_waitcnt lgkmcnt(0)\ns_barrier")
            L = a.label("Lqp")
            a(f"s_cmp_lg_u32 s3, 3\ns_cbranch_scc1 {L}")
            s.exec_set(0xffff, 0)
            a(f"ds_read_b128 {q(R+8)}, v6 offset:{0x2900}\ns_waitcnt lgkmcnt(0)")
            a(f"buffer_store_dwordx4 {q(R+8)}, v6, s[44:47], s14 offen sc1")
            s.exec_all()
            a(f"{L}:")
        s.stamp(4)
        a(f"v_lshrrev_b32 v{vU}, 4, v1\nv_lshlrev_b32 v{vU}, 13, v{vU}\nv_and_b32 v{T+22}, 15, v1\nv_lshl_add_u32 v{vU}, v{T+22}, 4, v{vU}")
        def uvload(n, pace):
            g, hf = n//2, n % 2
            a(f"s_add_u32 s79, s15, {g*4*8192}")
            if pace: a(f"s_waitcnt vmcnt({pace-1})")
            a(f"buffer_load_dwordx4 {q(UV+4*n)}, v{vU}, s[72:75], s79 offen offset:{hf*256} {nt}")
        for n in range(16): uvload(n, c['pu'])
        WOA = [48+4*t for t in range(6)] + [UK+32, UK+36]
        a(f"s_mov_b32 s14, s3\ns_mul_i32 s9, s2, {32*896}")
        s.proj_wload(WOA, T+20, 60, 9, 14)
        for t in range(8):
            if c['pu']: a(f"s_waitcnt vmcnt({c['pu']-1})")
            s.proj_wload_one(t, WOA, T+20, 60, 9)
        HG = UK; ST = T
        WL = 0x3000
        a(f"s_mul_i32 s6, s2, {H3_C}\ns_lshl_b32 s5, s3, 13\ns_add_u32 s6, s6, s5\ns_add_u32 s6, s6, {OFF_H3}\ns_add_u32 s7, s6, 4096")
        CK, vCK = T+25, T+26
        a("s_lshr_b32 s8, s13, 1\ns_lshl_b32 s8, s8, 7\ns_and_b32 s5, s12, 1\ns_lshl_b32 s5, s5, 6\ns_add_u32 s8, s8, s5\ns_and_b32 s5, s13, 1\ns_lshl_b32 s5, s5, 5\ns_add_u32 s8, s8, s5")
        a("s_bfe_u32 s5, s12, 0x20001\ns_lshl_b32 s5, s5, 3\ns_add_u32 s8, s8, s5\ns_lshr_b32 s5, s12, 3\ns_lshl_b32 s5, s5, 2\ns_add_u32 s8, s8, s5")
        a(f"s_lshl_b32 s5, s3, 14\ns_add_u32 s8, s8, s5\ns_add_u32 s8, s8, {OFF_CHK}")
        a(f"v_lshlrev_b32 v{vCK}, 9, v1\nv_mov_b32 v{CK}, 0")
        L = a.label("Lst")
        a(f"s_cmp_lg_u32 s3, 0\ns_cbranch_scc1 {L}")
        a(f"s_lshl_b32 s5, s12, 11\ns_add_u32 s5, s5, {OFF_ST3}")
        def issue_st():
            for k in range(2): a(f"buffer_load_dwordx4 {q(ST+4*k)}, v6, s[44:47], s5 offen offset:{1024*k} sc1")
        if c['stamp']:
            a("s_waitcnt vmcnt(0)"); s.stamp(5)
        s.spoll(5, 0, c['spn'], 16*37)
        s.poll(issue_st, [("s76", [ST+1, ST+3, ST+5, ST+7])], T+8, T+9, sleep=c['ssleep'])
        a(f"{L}:")
        a("s_barrier")
        s.stamp(6)
        def issue_hg():
            for i in range(1 if c.get('nob') == 2 else 8):
                a(f"buffer_load_dwordx4 {q(HG+4*i)}, v6, s[44:47], {'s6' if i < 4 else 's7'} offen offset:{1024*(i%4)} sc1")
            a("s_mov_b32 exec_hi, 0")
            a(f"buffer_load_dword v{CK}, v{vCK}, s[44:47], s8 offen sc1")
            a("s_mov_b32 exec_hi, -1")
        if c['h3d']: a(f"s_sleep {c['h3d']}")
        issue_hg()
        L = a.label("Lwt")
        a(f"s_cmp_lg_u32 s3, 0\ns_cbranch_scc1 {L}")
        M, Lr, TT, E0 = T+8, T+9, T+10, T+12
        a(f"v_max_f32 v{M}, v{ST}, v{ST+4}")
        s.allred_inrow("v_max_f32", M); s.allred_rows("v_max_f32", M, TT)
        a(f"v_sub_f32 v{E0}, v{ST}, v{M}\nv_sub_f32 v{E0+1}, v{ST+4}, v{M}\nv_exp_f32 v{E0}, v{E0}\nv_exp_f32 v{E0+1}, v{E0+1}")
        a(f"v_mul_f32 v{Lr}, v{E0}, v{ST+2}\nv_fmac_f32 v{Lr}, v{E0+1}, v{ST+6}")
        s.allred_inrow("v_add_f32", Lr); s.allred_rows("v_add_f32", Lr, TT)
        a(f"v_rcp_f32 v{Lr}, v{Lr}")
        a(f"v_and_b32 v{TT}, 3, v1\nv_lshlrev_b32 v{TT}, 7, v{TT}\nv_lshrrev_b32 v{TT+1}, 5, v1\nv_lshl_add_u32 v{TT}, v{TT+1}, 5, v{TT}")
        a(f"v_bfe_u32 v{TT+1}, v1, 2, 3\nv_lshl_add_u32 v{TT}, v{TT+1}, 2, v{TT}")
        for k in range(2):
            e = E0+k; hi = E0+2+k; lo = E0+4+k
            a(f"v_mul_f32 v{e}, v{e}, v{Lr}\nv_cvt_pk_bf16_f32 v{hi}, v{e}, v{e}\nv_and_b32 v{lo}, 0xffff0000, v{hi}\nv_sub_f32 v{lo}, v{e}, v{lo}\nv_cvt_pk_bf16_f32 v{lo}, v{lo}, v{lo}")
            a(f"ds_write_b32 v{TT}, v{hi} offset:{WL+64*k}\nds_write_b32 v{TT}, v{lo} offset:{WL+512+64*k}")
        a("s_waitcnt lgkmcnt(0)")
        a(f"{L}:")
        a(f"v_bfe_u32 v{T+20}, v1, 3, 1\nv_lshlrev_b32 v{T+20}, 9, v{T+20}\nv_lshrrev_b32 v{T+21}, 4, v1\nv_lshl_add_u32 v{T+20}, v{T+21}, 7, v{T+20}")
        a(f"s_lshl_b32 s5, s3, 5\nv_add_u32 v{T+20}, s5, v{T+20}")
        a(f"v_and_b32 v{T+22}, 1, v1\nv_lshlrev_b32 v{T+22}, 8, v{T+22}\nv_bfe_u32 v{T+23}, v1, 1, 2\nv_lshl_add_u32 v{T+22}, v{T+23}, 4, v{T+22}")
        a(f"v_lshl_add_u32 v{T+22}, v{T+21}, 2, v{T+22}\ns_lshl_b32 s5, s3, 6\nv_add_u32 v{T+22}, s5, v{T+22}")
        a("s_barrier")
        WW = T; AO = WB
        a(f"ds_read_b128 {q(WW)}, v{T+20} offset:{WL}\nds_read_b128 {q(WW+4)}, v{T+20} offset:{WL+16}")
        a("s_waitcnt lgkmcnt(0)")
        for i in range(8):
            for r in range(4): a(f"v_and_b32 v{AO+4*i+r}, v{WW+i}, v{2+r}")
        DC = T+8
        Lp = a.label("Lck"); Lw = a.label("Lckw"); Ld = a.label("Lckd")
        a(f"s_mov_b32 s78, {c['timeout']}\ns_lshl_b32 s9, s76, 5\ns_branch {Lw}")
        a(f"{Lp}:")
        issue_hg()
        a(f"{Lw}:")
        a("s_waitcnt vmcnt(0)")
        SU = T+24
        a(f"v_sub_u32 v{SU}, v{HG}, v{CK}\nv_add3_u32 v{T+27}, v{HG+1}, v{HG+2}, v{HG+3}")
        for k in range(4, 32, 4):
            a(f"v_add3_u32 v{SU}, v{SU}, v{HG+k}, v{HG+k+1}\nv_add3_u32 v{T+27}, v{T+27}, v{HG+k+2}, v{HG+k+3}")
        a(f"v_add_u32 v{SU}, v{SU}, v{T+27}")
        for i in range(8):
            a(f"{MF} {q(DC)}, {q(AO+4*i)}, {q(HG+4*i)}, {'0' if i == 0 else q(DC)}")
        s.allred_inrow("v_add_u32", SU); s.allred_rows("v_add_u32", SU, T+27)
        a(f"v_readfirstlane_b32 s5, v{SU}\ns_add_u32 s5, s5, s9\ns_cmp_eq_u32 s5, 0\ns_cbranch_scc1 {Ld}")
        a(f"s_sleep 1\ns_sub_u32 s78, s78, 1\ns_cmp_lg_u32 s78, 0\ns_cbranch_scc1 {Lp}")
        a(f"{Ld}:")
        s.stamp(7)
        a(f"ds_write_b128 v{vLW}, {q(DC)}")
        a("s_waitcnt lgkmcnt(0)\ns_barrier")
        Z = T+12
        for k in range(8): a(f"ds_read_b32 v{Z+k}, v{T+22} offset:{512*k}")
        E = T+24
        s.epi_addr(E, False)
        a(f"v_lshlrev_b32 v{E}, 4, v0")
        a(f"s_lshl_b32 s5, s3, 11\nv_add_u32 v{E+2}, s5, v6")
        a(f"s_lshl_b32 s5, s2, 11\ns_add_u32 s5, s5, {OFF_H4}")
        a("s_waitcnt lgkmcnt(0)")
        for st in (4, 2):
            for i in range(0, st, 2): a(f"v_pk_add_f32 {p2(Z+i)}, {p2(Z+i)}, {p2(Z+st+i)}")
        a(f"v_add_f32 v{Z}, v{Z}, v{Z+1}\nv_cvt_pk_bf16_f32 v{Z}, v{Z}, v{Z}")
        DD = T+28
        for g in range(8):
            ab = T + (g % 2)*4
            for r in range(4): a(f"v_and_b32_dpp v{ab+r}, v{Z}, v{2+r} row_newbcast:{g} {DPPF}")
            for hf in range(2):
                a(f"{MF} {q(DD+4*hf)}, {q(ab)}, {q(UV+8*g+4*hf)}, {'0' if g == 0 else q(DD+4*hf)}")
        a(f"ds_write_b128 v{E+2}, {q(DD)} offset:{0x4000}\nds_write_b128 v{E+2}, {q(DD+4)} offset:{0x4000+1024}")
        a("s_waitcnt lgkmcnt(0)\ns_barrier")
        a(f"s_cmp_ge_u32 s3, 2\ns_cbranch_scc1 L_ya5")
        X = T
        for i in range(4): a(f"ds_read_b64 {p2(X+2*i)}, v{E+3} offset:{0x4000+2048*i}")
        a("s_waitcnt lgkmcnt(0)")
        for st in (4, 2):
            for i in range(0, st, 2): a(f"v_pk_add_f32 {p2(X+i)}, {p2(X+i)}, {p2(X+st+i)}")
        a(f"v_mov_b32 v{X+2}, v{X+1}\nv_mov_b32 v{X+1}, s76\nv_mov_b32 v{X+3}, s76")
        a(f"buffer_store_dwordx4 {q(X)}, v{E}, s[44:47], s5 offen sc1")
        s.stamp(8)
        c['timeout'] = tsave
        a("L_ya5:")
        OG = UK; ST = UK+8; Z = UK+16
        a(f"v_lshrrev_b32 v{T+22}, 4, v1\nv_lshlrev_b32 v{T+22}, 7, v{T+22}")
        a(f"s_lshr_b32 s8, s12, 1\ns_lshl_b32 s8, s8, 12\ns_and_b32 s6, s12, 1\ns_lshl_b32 s6, s6, 4\ns_add_u32 s8, s8, s6\ns_lshl_b32 s6, s3, 10\ns_add_u32 s8, s8, s6\ns_add_u32 s8, s8, {OFF_STA}")
        a(f"s_mul_i32 s6, s2, {HA_U}\ns_lshl_b32 s5, s3, 11\ns_add_u32 s6, s6, s5\ns_add_u32 s6, s6, {OFF_HA}")
        a(f"v_lshlrev_b32 v{T+20}, 4, v0")
        a(f"s_mul_i32 s15, s2, {FS}\ns_lshl_b32 s5, s3, 10\ns_add_u32 s15, s15, s5\ns_add_u32 s15, s15, {OFF_FIN}")
        def issue_o():
            a(f"buffer_load_dwordx4 {q(OG)}, v6, s[44:47], s6 offen sc1\nbuffer_load_dwordx4 {q(OG+4)}, v6, s[44:47], s6 offen offset:1024 sc1")
            a(f"buffer_load_dwordx4 {q(ST)}, v{T+22}, s[44:47], s8 offen sc1\nbuffer_load_dwordx4 {q(ST+4)}, v{T+22}, s[44:47], s8 offen offset:512 sc1")
        s.spoll(6, 0, c['spn'], 256*2)
        s.poll(issue_o, [("s76", [OG+k for k in range(1, 16, 2)])], Z, Z+1, sleep=c['fsleep'])
        s.stamp(9)
        a(f"v_max_f32 v{Z+2}, v{ST}, v{ST+4}")
        a(f"v_sub_f32 v{ST}, v{ST}, v{Z+2}\nv_sub_f32 v{ST+4}, v{ST+4}, v{Z+2}\nv_exp_f32 v{ST}, v{ST}\nv_exp_f32 v{ST+4}, v{ST+4}")
        a(f"v_mul_f32 v{Z}, v{ST}, v{OG}\nv_mul_f32 v{Z+1}, v{ST}, v{OG+2}\nv_mul_f32 v{Z+3}, v{ST}, v{ST+2}")
        a(f"v_fmac_f32 v{Z}, v{ST+4}, v{OG+4}\nv_fmac_f32 v{Z+1}, v{ST+4}, v{OG+6}\nv_fmac_f32 v{Z+3}, v{ST+4}, v{ST+6}")
        a(f"ds_write_b128 v{T+20}, {q(Z)} offset:{0x6000}")
        a("s_waitcnt lgkmcnt(0)\ns_barrier")
        s.stamp(10)
        for k in range(4): a(f"ds_read_b128 {q(OG+4*k)}, v6 offset:{0x6000+1024*k}")
        a("s_waitcnt lgkmcnt(0)")
        a(f"v_max3_f32 v{Z+2}, v{OG+2}, v{OG+6}, v{OG+10}\nv_max_f32 v{Z+2}, v{Z+2}, v{OG+14}")
        s.allred_rows("v_max_f32", Z+2, Z+4)
        for k in range(4): a(f"v_sub_f32 v{OG+4*k+2}, v{OG+4*k+2}, v{Z+2}")
        for k in range(4): a(f"v_exp_f32 v{OG+4*k+2}, v{OG+4*k+2}")
        for k in range(4):
            op = "v_mul_f32" if k == 0 else "v_fmac_f32"
            a(f"{op} v{Z+3}, v{OG+4*k+2}, v{OG+4*k+3}\n{op} v{Z}, v{OG+4*k+2}, v{OG+4*k}\n{op} v{Z+1}, v{OG+4*k+2}, v{OG+4*k+1}")
        s.allred_rows("v_add_f32", Z+3, Z+4)
        a(f"v_rcp_f32 v{Z+3}, v{Z+3}")
        s.proj_tail(Z, WOA, T+24, 14, 15, scale=Z+3)
        s.stamp(11)
        s.stamp_out()
        a("s_endpgm")
    def gx(s):
        a = s.a; c = s.c; nt = c['nt']; pb = c['pb']
        a("L_X:")
        L1, PV, QF, S = 16, 144, 208, 240
        vTR, vL, vSX, vZ, vE = 8, 9, 10, 11, 12
        a("s_sub_u32 s11, s2, 128")
        a("s_lshl_b32 s8, s11, 17\ns_lshl_b32 s6, s3, 13\ns_add_u32 s8, s8, s6")
        a(f"s_mul_i32 s9, s3, {4*ROW}")
        s.kwait()
        s.srd(52, 28, 8192*2048)
        def dma(i, pace):
            for rr in range(4):
                a(f"s_add_u32 m0, s9, {(i%2)*SLOT + rr*ROW}")
                a(f"s_add_u32 s79, s8, {i*32768 + rr*2048}")
                for hf in range(2):
                    if pace: a(f"s_waitcnt vmcnt({pace-1})")
                    a(f"buffer_load_dwordx4 v6, s[52:55], s79 offen offset:{1024*hf} {nt} lds")
        dma(0, c['px0'])
        s.srd(44, 42, 0x10000000); s.srd(48, 40, 256); s.srd(56, 36, 4096*896)
        s.common2(13)
        a(f"v_lshrrev_b32 v13, 2, v1\nv_mul_u32_u24 v{vTR}, {ROW}, v13\nv_and_b32 v13, 3, v1\nv_lshl_add_u32 v{vTR}, v13, 3, v{vTR}")
        a(f"s_lshl_b32 s5, s3, 9\nv_add_u32 v{vTR}, s5, v{vTR}")
        a(f"v_and_b32 v13, 15, v1\nv_mul_u32_u24 v{vL}, {ROW}, v13\nv_lshrrev_b32 v14, 4, v1\nv_lshl_add_u32 v{vL}, v14, 4, v{vL}\nv_add_u32 v{vL}, s5, v{vL}")
        a(f"v_add_u32 v{vSX}, {2*SLOT}, v6\nv_mov_b32 v{vZ}, 0")
        a(f"v_lshrrev_b32 v15, 5, v1\nv_lshlrev_b32 v15, 3, v15\nv_bfe_u32 v7, v1, 4, 1\nv_add_u32 v15, v15, v7\nv_mul_u32_u24 v15, {H3_C}, v15")
        a(f"v_and_b32 v7, 15, v1\nv_lshl_add_u32 v15, v7, 4, v15")
        a(f"s_mul_i32 s10, s3, {2*H3_C}\ns_lshl_b32 s5, s11, 8\ns_add_u32 s10, s10, s5\ns_add_u32 s10, s10, {OFF_H3}")
        dma(1, c['px'])
        def tr(i, dst):
            for t in range(16): a(f"ds_read_b64_tr_b16 {p2(dst(t))}, v{vTR} offset:{(i%2)*SLOT+32*t}")
        def l1(i):
            for ks in range(8): a(f"ds_read_b128 {q(L1+(i*8+ks)*4)}, v{vL} offset:{(i%2)*SLOT+64*ks}")
        for i in range(4):
            if i == 3 and c['qf']:
                a(f"s_lshl_b32 s6, s3, 13\ns_add_u32 s6, s6, {OFF_QABS}\ns_add_u32 s7, s6, 4096")
                if c['spq']:
                    L = a.label("Lsq"); Ld = a.label("Lsqd")
                    a(f"s_mov_b32 s78, {c['sptime']}\ns_waitcnt lgkmcnt(0)")
                    a(f"{L}:")
                    a("s_load_dwordx16 s[56+8:56+23], s[42:43], s6 glc".replace("56+8", "64").replace("56+23", "79") if False else "s_load_dwordx8 s[64:71], s[42:43], s6 glc")
                    a("s_add_u32 s5, s7, 224\ns_load_dwordx8 s[88:95], s[42:43], s5 glc" if not c['stamp'] else "s_add_u32 s5, s7, 224\ns_load_dwordx4 s[72:75], s[42:43], s5 glc")
                    a("s_waitcnt lgkmcnt(0)")
                    a("s_max_u32 s83, s64, s68")
                    a("s_max_u32 s83, s83, s88\ns_max_u32 s83, s83, s92" if not c['stamp'] else "s_max_u32 s83, s83, s72")
                    a(f"s_cmp_lg_u32 s83, -1\ns_cbranch_scc1 {Ld}")
                    a(f"s_sleep {c['spsleep']}\ns_sub_u32 s78, s78, 1\ns_cmp_lg_u32 s78, 0\ns_cbranch_scc1 {L}")
                    a(f"{Ld}:")
            a(f"s_waitcnt vmcnt({[8, 8, 8, 0][i]})\ns_barrier")
            if c.get('bw') and i in (0, 2): s.stamp(10 + i//2)
            l1(i)
            if i < 2:
                tr(i, lambda t: PV+4*t+2*i)
                a("s_waitcnt lgkmcnt(0)\ns_barrier")
                dma(i+2, c['px'])
            if i == 2:
                L = a.label("Lclr")
                a(f"s_cmp_lg_u32 s3, 0\ns_cbranch_scc1 {L}")
                a(f"v_lshlrev_b32 v13, 9, v1\ns_mov_b32 s5, {OFF_QB}\ns_mov_b32 s6, {OFF_QB+0x8000}")
                def issue_c():
                    a(f"buffer_load_dwordx4 {q(S+8)}, v13, s[44:47], s5 offen sc1")
                    a(f"buffer_load_dwordx4 {q(S+12)}, v13, s[44:47], s6 offen sc1")
                    a(f"buffer_load_dword v{vE}, v{vZ}, s[48:51], 0 offen sc1")
                s.poll(issue_c, [(f"v{vE}", [S+9, S+11, S+13, S+15])], S+2, S+3, sleep=2)
                a(f"ds_write_b32 v{vSX}, v{vE} offset:12288\ns_waitcnt lgkmcnt(0)")
                a(f"{L}:")
        tsave = c['timeout']
        if c.get('nob'): c['timeout'] = 1
        a(f"ds_read_b32 v{vE}, v{vSX} offset:12288")
        s.stamp(1)
        if c['qf']:
            def issue_q():
                for i in range(8):
                    a(f"buffer_load_dwordx4 {q(QF+4*i)}, v6, s[44:47], {'s6' if i < 4 else 's7'} offen offset:{1024*(i%4)} sc1")
            s.poll_sent(issue_q, list(range(QF, QF+32)), 13, sleep=2)
            a("s_waitcnt lgkmcnt(0)")
            a(f"v_readfirstlane_b32 s76, v{vE}")
            s.stamp(2)
            for ks in range(8):
                for ch in range(4):
                    a(f"{MF} {q(S+4*ch)}, {q(L1+(ch*8+ks)*4)}, {q(QF+4*ks)}, {'0' if ks == 0 else q(S+4*ch)}")
        else:
            a(f"s_lshl_b32 s6, s3, 9\ns_add_u32 s6, s6, {OFF_QABS}")
            a(f"v_lshrrev_b32 v14, 2, v1\nv_mul_u32_u24 v14, {QS}, v14\nv_and_b32 v7, 3, v1\nv_lshl_add_u32 v14, v7, 4, v14")
            a(f"v_and_b32 v7, 15, v1\nv_lshlrev_b32 v7, 4, v7\nv_lshrrev_b32 v13, 4, v1\nv_lshl_add_u32 v7, v13, 2, v7")
            def issue_q():
                for i in range(1 if c.get('nob') == 2 else 8): a(f"buffer_load_dwordx4 {q(QF+4*i)}, v14, s[44:47], s6 offen offset:{64*i} sc1")
            s.poll_sent(issue_q, list(range(QF, QF+32)), 13, sleep=2)
            a("s_waitcnt lgkmcnt(0)")
            a(f"v_readfirstlane_b32 s76, v{vE}")
            s.stamp(2)
            for r in range(12): a(f"ds_bpermute_b32 v{QF+r}, v7, v{QF+r}")
            for ks in range(8):
                out = min(8, 4*(7-ks))
                a(f"s_waitcnt lgkmcnt({out})")
                for ch in range(4):
                    a(f"{MF} {q(S+4*ch)}, {q(L1+(ch*8+ks)*4)}, {q(QF+4*ks)}, {'0' if ks == 0 else q(S+4*ch)}")
                    r = 12 + 4*ks + ch
                    if r < 32: a(f"ds_bpermute_b32 v{QF+r}, v7, v{QF+r}")
        PV1 = L1
        Lx = a.label("Lsx")
        labs = [a.label("Lsxw") for _ in range(4)]
        for w in range(1, 4): a(f"s_cmp_eq_u32 s3, {w}\ns_cbranch_scc1 {labs[w]}")
        for w in range(4):
            a(f"{labs[w]}:")
            for ch in range(4):
                if ch == w: continue
                k = (w - ch - 1) % 4
                a(f"ds_write_b128 v{vSX}, {q(S+4*ch)} offset:{(ch*3+k)*1024}")
            a(f"v_mov_b64 {p2(QF)}, {p2(S+4*w)}\nv_mov_b64 {p2(QF+2)}, {p2(S+4*w+2)}")
            if w < 3: a(f"s_branch {Lx}")
        a(f"{Lx}:")
        a(f"s_mul_i32 s5, s3, 3072\nv_add_u32 v13, s5, v{vSX}")
        a("s_waitcnt lgkmcnt(0)\ns_barrier")
        for k in range(3): a(f"ds_read_b128 {q(QF+4+4*k)}, v13 offset:{1024*k}")
        tr(2, lambda t: PV1+4*t)
        a("s_waitcnt lgkmcnt(15)\ns_waitcnt lgkmcnt(14)")
        a(f"v_pk_add_f32 {p2(QF)}, {p2(QF)}, {p2(QF+4)}\nv_pk_add_f32 {p2(QF+2)}, {p2(QF+2)}, {p2(QF+6)}")
        a(f"v_pk_add_f32 {p2(QF+8)}, {p2(QF+8)}, {p2(QF+12)}\nv_pk_add_f32 {p2(QF+10)}, {p2(QF+10)}, {p2(QF+14)}")
        a(f"v_pk_add_f32 {p2(QF)}, {p2(QF)}, {p2(QF+8)}\nv_pk_add_f32 {p2(QF+2)}, {p2(QF+2)}, {p2(QF+10)}")
        a(f"ds_write_b128 v13, {q(QF)}")
        a("s_waitcnt lgkmcnt(0)\ns_barrier")
        s.stamp(3)
        SR = S
        for ch in range(4): a(f"ds_read_b128 {q(SR+4*ch)}, v{vSX} offset:{3072*ch}")
        a("s_waitcnt lgkmcnt(0)")
        tr(3, lambda t: PV1+4*t+2)
        M, Lr, TT, P = QF+8, QF+10, QF+12, QF
        a(f"v_max3_f32 v{M}, v{SR}, v{SR+1}, v{SR+2}")
        for i in range(3, 16, 2): a(f"v_max3_f32 v{M}, v{M}, v{SR+i}, v{SR+min(i+1,15)}")
        s.allred_rows("v_max_f32", M, TT)
        a(f"s_mov_b32 s5, {f32(CEXP)}\nv_mul_f32 v{M}, s5, v{M}")
        for i in range(16): a(f"v_fma_f32 v{SR+i}, v{SR+i}, s5, -v{M}")
        for i in range(16): a(f"v_exp_f32 v{SR+i}, v{SR+i}")
        for i in range(8): a(f"v_cvt_pk_bf16_f32 v{P+i}, v{SR+2*i}, v{SR+2*i+1}")
        O = L1+64
        a(f"v_and_b32 v13, 15, v1\nv_mul_u32_u24 v13, {ROW}, v13\nv_lshrrev_b32 v14, 4, v1\nv_lshl_add_u32 v13, v14, 3, v13")
        a(f"s_lshl_b32 s5, s3, 9\nv_add_u32 v13, s5, v13")
        a(f"v_lshrrev_b32 v14, 5, v1\nv_mul_u32_u24 v14, {ROW}, v14\nv_and_b32 v7, 31, v1\nv_lshl_add_u32 v14, v7, 4, v14\nv_add_u32 v14, s5, v14")
        a("s_waitcnt lgkmcnt(0)")
        def fin(t):
            a(f"v_cvt_pk_bf16_f32 v{O+4*t}, v{O+4*t}, v{O+4*t+1}\nv_cvt_pk_bf16_f32 v{O+4*t+1}, v{O+4*t+2}, v{O+4*t+3}")
            a(f"ds_write_b64 v13, {p2(O+4*t)} offset:{32*t}")
        for t in range(16):
            a(f"{MF} {q(O+4*t)}, {q(PV+4*t)}, {q(P)}, 0")
            a(f"{MF} {q(O+4*t)}, {q(PV1+4*t)}, {q(P+4)}, {q(O+4*t)}")
            if t == 0:
                L = a.label("Lst3")
                a(f"s_cmp_lg_u32 s3, 0\ns_cbranch_scc1 {L}")
                for st in (8, 4, 2):
                    for i in range(0, st, 2): a(f"v_pk_add_f32 {p2(SR+i)}, {p2(SR+i)}, {p2(SR+st+i)}")
                a(f"v_add_f32 v{Lr}, v{SR}, v{SR+1}")
                s.allred_rows("v_add_f32", Lr, TT)
                a(f"v_mov_b32 v{M+1}, s76\nv_mov_b32 v{Lr+1}, s76\nv_lshlrev_b32 v{TT}, 11, v1")
                a(f"s_lshl_b32 s5, s11, 4\ns_add_u32 s5, s5, {OFF_ST3}")
                s.exec_set(0xffff, 0)
                a(f"buffer_store_dwordx4 {q(M)}, v{TT}, s[44:47], s5 offen sc1")
                s.exec_all()
                a(f"{L}:")
            if t >= 3: fin(t-3)
        fin(13); fin(14); fin(15)
        a("s_waitcnt lgkmcnt(0)")
        s.stamp(4)
        SQ = L1
        for i in range(8): a(f"ds_read_b128 {q(SQ+4*i)}, v14 offset:{2*ROW*i}")
        for i in range(8):
            a(f"s_add_u32 s79, s10, {i*16*H3_C}")
            a(f"s_waitcnt lgkmcnt({7-i})")
            if c.get('nob') != 2: a(f"buffer_store_dwordx4 {q(SQ+4*i)}, v15, s[44:47], s79 offen sc1")
            a(f"v_add3_u32 v{O+i}, v{SQ+4*i}, v{SQ+4*i+1}, v{SQ+4*i+2}\nv_add_u32 v{O+i}, v{O+i}, v{SQ+4*i+3}")
        for m in ("quad_perm:[1,0,3,2]", "quad_perm:[2,3,0,1]", "row_half_mirror"):
            for i in range(8): a(f"v_add_u32_dpp v{O+i}, v{O+i}, v{O+i} {m} {DPPF}")
        for i in (0, 4, 1, 5, 2, 6, 3, 7):
            a(f"v_add_u32_dpp v{O+8+i//4}, v{O+i}, v{O+i} row_mirror row_mask:0xf bank_mask:{1 << (i%4):#x}")
        a(f"v_lshlrev_b32 v13, 1, v1")
        a(f"s_lshl_b32 s5, s11, 9\ns_lshl_b32 s6, s3, 7\ns_add_u32 s5, s5, s6\ns_add_u32 s5, s5, {OFF_CHK}")
        a(f"v_add_u32 v{O+8}, s76, v{O+8}\nv_add_u32 v{O+9}, s76, v{O+9}")
        s.exec_set(0x11111111, 0x11111111)
        a(f"buffer_store_dwordx2 {p2(O+8)}, v13, s[44:47], s5 offen sc1")
        s.exec_all()
        s.stamp(5)
        WOB = [PV+4*t for t in range(8)]; WOA = [PV+32+4*t for t in range(8)]
        T = QF
        a(f"s_mov_b32 s14, s3\ns_mul_i32 s15, s11, {32*896}")
        s.proj_wload(WOB, 13, 56, 15, 14)
        for t in range(8): s.proj_wload_one(t, WOB, 13, 56, 15)
        a("s_lshr_b32 s12, s11, 3\ns_and_b32 s13, s11, 7")
        G = L1+32
        a(f"v_lshrrev_b32 v13, 4, v1\nv_lshlrev_b32 v13, 11, v13\nv_and_b32 v14, 15, v1\nv_lshl_add_u32 v13, v14, 4, v13")
        a(f"s_lshl_b32 s5, s12, 14\ns_lshl_b32 s6, s13, 8\ns_add_u32 s5, s5, s6\ns_add_u32 s5, s5, {OFF_H4}\ns_add_u32 s6, s5, 8192")
        def issue_h4():
            a(f"buffer_load_dwordx4 {q(G)}, v13, s[44:47], s5 offen sc1\nbuffer_load_dwordx4 {q(G+4)}, v13, s[44:47], s6 offen sc1")
        s.spoll(5, 0, c['spn'], 2048*2)
        s.poll(issue_h4, [("s76", [G+1, G+3, G+5, G+7])], G+8, G+9, sleep=c['sleep'])
        s.stamp(6)
        a(f"v_add_f32 v{G}, v{G}, v{G+4}\nv_add_f32 v{G+1}, v{G+2}, v{G+6}")
        a(f"s_mul_i32 s15, s11, {FS}\ns_lshl_b32 s5, s3, 10\ns_add_u32 s15, s15, s5\ns_add_u32 s15, s15, {OFF_FIN+FIN_AB}")
        s.proj_tail(G, WOB, T, 14, 15)
        s.stamp(7)
        a("s_cmp_ge_u32 s11, 112\ns_cbranch_scc1 L_xend\ns_cmp_ge_u32 s3, 1\ns_cbranch_scc1 L_xend")
        s.srd(52, 38, 1792)
        c['timeout'] = tsave
        F = L1+64
        T = QF+16
        a("s_cmp_ge_u32 s11, 56\ns_cselect_b32 s12, 1, 0\ns_cselect_b32 s5, 56, 0\ns_sub_u32 s13, s11, s5")
        a("s_sub_u32 s5, s13, 48\ns_lshr_b32 s6, s5, 1\ns_lshl_b32 s6, s6, 2\ns_and_b32 s5, s5, 1\ns_add_u32 s6, s6, s5\ns_add_u32 s6, s6, 48")
        a("s_cmp_ge_u32 s13, 48\ns_cselect_b32 s13, s6, s13")
        a(f"s_mul_i32 s6, s12, {FIN_AB}\ns_lshl_b32 s5, s13, 6\ns_add_u32 s6, s6, s5\ns_add_u32 s6, s6, {OFF_FIN}")
        a(f"v_lshrrev_b32 v{T+9}, 2, v1\nv_mul_u32_u24 v{T+9}, {FS}, v{T+9}\nv_and_b32 v{T+10}, 3, v1\nv_lshl_add_u32 v{T+9}, v{T+10}, 4, v{T+9}")
        def issue_f():
            for i in range(8):
                a(f"s_add_u32 s79, s6, {i*16*FS}")
                a(f"buffer_load_dwordx4 {q(F+4*i)}, v{T+9}, s[44:47], s79 offen sc1")
        a("s_mul_i32 s15, s12, 896\ns_lshr_b32 s5, s13, 4\ns_lshl_b32 s5, s5, 8\ns_add_u32 s15, s15, s5")
        a("s_and_b32 s5, s13, 3\ns_lshl_b32 s5, s5, 6\ns_add_u32 s15, s15, s5")
        a("s_bfe_u32 s5, s13, 0x10002\ns_lshl_b32 s5, s5, 3\ns_add_u32 s15, s15, s5")
        a("s_bfe_u32 s5, s13, 0x10003\ns_lshl_b32 s5, s5, 2\ns_add_u32 s15, s15, s5")
        a(f"v_lshlrev_b32 v{T+8}, 2, v1")
        s.spoll(6, 0, c['spn'], FS*37)
        s.poll(issue_f, [("s76", [F+4*i+k for i in range(8) for k in (1, 3)])], T+4, T+5, sleep=c['fsleep'])
        s.stamp(8)
        for st in (16, 8, 4):
            for i in range(0, st, 4):
                a(f"v_add_f32 v{F+i}, v{F+i}, v{F+st+i}\nv_add_f32 v{F+i+2}, v{F+i+2}, v{F+st+i+2}")
        for m in ("row_ror:8", "row_ror:4"):
            for k in (0, 2): a(f"v_add_f32_dpp v{F+k}, v{F+k}, v{F+k} {m} {DPPF}")
        for k in (0, 2): s.allred_rows("v_add_f32", F+k, F+k+1)
        a(f"v_cvt_pk_bf16_f32 v{F}, v{F}, v{F+2}")
        if c.get('thr'):
            a(f"s_memrealtime s[98:99]\ns_waitcnt lgkmcnt(0)\ns_sub_u32 s5, s98, s76\ns_cmp_gt_u32 s5, {c['thr']}\ns_cselect_b32 s5, 0x7fc07fc0, 0\nv_or_b32 v{F}, s5, v{F}")
        if c.get('spin'):
            Lsp = a.label("Lspin")
            a(f"{Lsp}:\ns_memrealtime s[98:99]\ns_waitcnt lgkmcnt(0)\ns_sub_u32 s5, s98, s76\ns_cmp_lt_u32 s5, {c['spin']}\ns_cbranch_scc1 {Lsp}")
        if c.get('enc'):
            a("s_memrealtime s[98:99]\ns_waitcnt lgkmcnt(0)\ns_sub_u32 s5, s98, s76")
            a(f"v_mov_b32 v{F+4}, s5\nv_lshrrev_b32 v{F+4}, v{T+8}, v{F+4}")
            a(f"v_and_b32 v{F+5}, 3, v{F+4}\nv_bfe_u32 v{F+4}, v{F+4}, 2, 2\nv_lshl_or_b32 v{F+5}, v{F+4}, 16, v{F+5}")
            a(f"v_and_b32 v{F}, 0xfffcfffc, v{F}\nv_or_b32 v{F}, v{F}, v{F+5}")
        s.exec_set(0xf, 0)
        a(f"buffer_store_dword v{F}, v6, s[52:55], s15 offen")
        s.exec_all()
        s.stamp(9)
        a("L_xend:")
        s.stamp_out()
        a("s_endpgm")
    def ga(s):
        a = s.a; c = s.c; pa = c['pa']
        a("L_A:")
        NS = c['ns']; NL = 2*NS
        Kb, Vb, T, AD = 16, 112, 208, 8
        assert NS <= 12
        NIT = (4096 - 64*4*NS)//8 * (2 if c['c1'] else 1)
        QF, AC, D, TS, MM = T, T+8, T+16, T+24, T+36
        M, Lr, F, FA, TK, TT = MM, MM+1, MM+2, MM+3, MM+4, MM+5
        vZ, vE = T+46, T+47
        a("s_sub_u32 s11, s2, 256\ns_bfe_u32 s9, s11, 0x30004\ns_bfe_u32 s12, s11, 0x10003")
        a("s_lshr_b32 s6, s11, 7\ns_lshl_b32 s6, s6, 3\ns_and_b32 s10, s11, 7\ns_add_u32 s13, s10, s6")
        a("s_lshl_b32 s10, s12, 4\ns_add_u32 s10, s10, s13")
        if c['c1']:
            a("s_lshl_b32 s14, s9, 22")
            a(f"s_lshl_b32 s8, s10, 2\ns_add_u32 s8, s8, s3\ns_mul_i32 s8, s8, {NS*2048}\ns_add_u32 s8, s8, s14")
            a(f"s_add_u32 s14, s14, {128*NS*2048}")
            a(f"s_lshl_b32 s15, s9, 9\ns_add_u32 s15, s15, {OFF_CLR}")
        else:
            a("s_lshl_b32 s14, s9, 22\ns_lshl_b32 s6, s12, 21\ns_add_u32 s14, s14, s6")
            a(f"s_lshl_b32 s8, s13, 2\ns_add_u32 s8, s8, s3\ns_mul_i32 s8, s8, {32768 if c['il'] else NS*2048}\ns_add_u32 s8, s8, s14")
            a(f"s_add_u32 s14, s14, {NS*2048 if c['il'] else 64*NS*2048}")
            a(f"s_lshl_b32 s15, s9, 1\ns_add_u32 s15, s15, s12\ns_lshl_b32 s15, s15, 8\ns_add_u32 s15, s15, {OFF_CLR}")
        a(f"v_mov_b32 v{vZ}, 0")
        s.kv_addr(AD)
        s.common2(T)
        s.kwait()
        s.srd(44, 42, 0x10000000); s.srd(48, 40, 256)
        s.srd(68, 18, 8*8192*512); s.srd(72, 20, 8*8192*512)
        Lj = a.label("Lp1j")
        a(f"s_cmp_{'lt' if c['p1x'] else 'ge'}_u32 s11, 128\ns_cbranch_scc1 {Lj}")
        if c['prioa']: a(f"s_setprio {c['prioa']}")
        s.srd(52, 16, 896); s.srd(56, 22, 448*8192)
        XA, WA, PVv = Vb, Vb+4, T+16
        a("s_and_b32 s13, s11, 127")
        Lc = a.label("Lcz")
        a(f"s_cmp_ge_u32 s13, 8\ns_cbranch_scc1 {Lc}\ns_cmp_lg_u32 s3, 3\ns_cbranch_scc1 {Lc}")
        a(f"s_lshl_b32 s6, s13, 9\ns_add_u32 s6, s6, {OFF_CLR}\nv_lshlrev_b32 v{T}, 8, v1")
        s.exec_set(3, 0)
        a(f"buffer_store_dword v{vZ}, v{T}, s[44:47], s6 offen sc1")
        s.exec_all()
        a(f"{Lc}:")
        s.p1_setup(13, T, PVv)
        s.p1_loads(XA, WA, 52, 56, PVv)
        s.p1_setup2(T, PVv)
        a("s_waitcnt vmcnt(3)")
        a(f"buffer_load_dword v{vE}, v{vZ}, s[48:51], 0 offen sc1")
        a("s_waitcnt vmcnt(0)")
        s.get_epoch(vE, vZ)
        a("s_setprio 3")
        s.p1_compute(XA, WA, T, PVv, 0x1000, OFF_QA)
        a(f"s_setprio 0")
        a(f"{Lj}:")
        s.stamp(6)
        vK, vV = AD, AD+1
        def ld(n, reg, voff, srd, pace):
            g, hf = n//2, n % 2
            gi = n + (NL if srd == 72 else 0)
            px_ = c['pax'] if gi < c['nax'] else pace
            py_ = c['pa0'] if gi < c['nay'] else pace
            if px_ != py_:
                lo, cond = (px_, 'lt') if px_ < py_ else (py_, 'ge')
                Lk = a.label("Lpc")
                a(f"s_cmp_{cond}_u32 s11, 128\ns_cbranch_scc1 {Lk}\ns_waitcnt vmcnt({lo-1})\n{Lk}:")
            a(f"s_add_u32 s79, s8, {(g//2)*4096}")
            a(f"s_waitcnt vmcnt({max(px_, py_)-1})")
            a(f"buffer_load_dwordx4 {q(reg)}, v{voff}, s[{srd}:{srd+3}], s79 offen offset:{(g%2)*2048+hf*256} {c['nt']}")
            if c.get('bw'):
                m = {5: 7, 13: 8, 2*NL-1: 9}
                if gi in m: s.stamp(m[gi])
        na0 = 0
        v1n = c['v1']
        a(f"v_bfe_u32 v{AD+4}, v1, 3, 1\nv_lshlrev_b32 v{AD+4}, 9, v{AD+4}")
        a(f"v_lshl_add_u32 v{AD+4}, v{AD+2}, 6, v{AD+4}\nv_lshl_add_u32 v{AD+4}, v{AD+3}, 4, v{AD+4}")
        assert na0 <= NL-8
        for n in range(na0, NL):
            ld(n, Kb+4*n, vK, 68, pa)
            if n == NL-8: a(f"buffer_load_dword v{vE}, v{vZ}, s[48:51], 0 offen sc1")
        a("s_waitcnt vmcnt(7)")
        s.get_epoch(vE, vZ)
        def vfirst():
            for n in range(v1n): ld(n, Vb+4*n, vV, 72, pa)
        a(f"s_lshl_b32 s6, s9, 12\ns_lshl_b32 s5, s3, 10\ns_add_u32 s6, s6, s5\ns_add_u32 s6, s6, {OFF_QA}")
        a(f"v_lshlrev_b32 v{T+20}, 2, v0")
        s.gather_q(T, 6, T+20, 1, vfirst, v1n, sleep=c['qsleep'])
        a("s_barrier")
        s.stamp(1)
        a(f"ds_read_b128 {q(QF)}, v{AD+4}\nds_read_b128 {q(QF+4)}, v{AD+4} offset:256")
        a(f"s_mov_b32 s13, {f32(CEXP)}")
        a(f"s_waitcnt vmcnt({v1n}) lgkmcnt(0)")
        s.stamp(2)
        nv = v1n
        SA = c['sat']
        def ticket():
            if SA:
                a("s_mov_b32 s83, 1\ns_atomic_add s83, s[42:43], s15 glc")
                return
            a(f"v_mov_b32 v{TK}, 1")
            s.exec_set(1, 0)
            a(f"buffer_atomic_add v{TK}, v{vZ}, s[44:47], s15 offen sc0 sc1")
            s.exec_all()
        tk_at = NL - c['tka']
        def more(k=1):
            nonlocal nv
            for _ in range(k):
                if nv < NL:
                    if nv == max(tk_at, v1n): ticket()
                    ld(nv, Vb+4*nv, vV, 72, pa); nv += 1
        def dreg(i): return D+4*i if i < 2 else Kb+8*(i-2)
        for i in range(NS):
            a(f"{MF} {q(dreg(i))}, {q(Kb+i*8)}, {q(QF)}, 0")
            a(f"{MF} {q(dreg(i))}, {q(Kb+i*8+4)}, {q(QF+4)}, {q(dreg(i))}")
            if i % 6 == 5: more()
        for r in range(4):
            for i in range(NS):
                if r == 0: a(f"v_mov_b32_dpp v{TS+i}, v{dreg(i)} quad_perm:[0,0,0,0] {DPPF}")
                else: a(f"v_add_f32_dpp v{TS+i}, v{dreg(i)+r}, v{TS+i} quad_perm:[{r},{r},{r},{r}] {DPPF}")
        more()
        for i in range(0, NS, 2): a(f"v_cvt_pk_bf16_f32 v{D+(i//2)}, v{TS+i}, v{TS+i+1}")
        for i in range(0, NS, 2): a(f"v_lshlrev_b32 v{TS+i}, 16, v{D+i//2}\nv_and_b32 v{TS+i+1}, 0xffff0000, v{D+i//2}")
        a(f"v_max3_f32 v{M}, v{TS}, v{TS+1}, v{TS+2}")
        for i in range(3, NS, 2): a(f"v_max3_f32 v{M}, v{M}, v{TS+i}, v{TS+min(i+1,NS-1)}")
        s.allred_rows("v_max_f32", M, TT)
        a(f"v_mul_f32 v{M}, s13, v{M}")
        for i in range(NS): a(f"v_fma_f32 v{TS+i}, v{TS+i}, s13, -v{M}")
        more()
        for i in range(NS): a(f"v_exp_f32 v{TS+i}, v{TS+i}")
        a(f"v_add_f32 v{Lr}, v{TS}, v{TS+1}")
        for i in range(2, NS): a(f"v_add_f32 v{Lr}, v{Lr}, v{TS+i}")
        for i in range(NS): a(f"v_cvt_pk_bf16_f32 v{TS+i}, v{TS+i}, v{TS+i}")
        s.stamp(3)
        done = 0
        def pv(i):
            ab = D + (i % 2)*4
            for r in range(4): a(f"v_and_b32 v{ab+r}, v{TS+i}, v{2+r}")
            for hf in range(2):
                a(f"{MF} {q(AC+4*hf)}, {q(ab)}, {q(Vb+8*i+4*hf)}, {'0' if i == 0 else q(AC+4*hf)}")
        def pv_upto(k):
            nonlocal done
            while done < NS and 2*done+2 <= k:
                pv(done); done += 1
        while nv < NL:
            more()
            pv_upto(nv - 1 - (pa-1))
        ntk = NL - max(tk_at, v1n)
        BUF = [Kb, Kb+32]
        Lend = a.label("Lae")
        def take(Lno, younger):
            if SA: a("s_waitcnt lgkmcnt(0)\ns_mov_b32 s5, s83")
            else:
                a(f"s_waitcnt vmcnt({younger})")
                a(f"v_readfirstlane_b32 s5, v{TK}")
            a(f"s_cmp_ge_u32 s5, {NIT}\ns_cbranch_scc1 {Lno}")
            if c['il']: a(f"s_and_b32 s6, s5, 63\ns_lshl_b32 s6, s6, 15\ns_lshr_b32 s5, s5, 6\ns_lshl_b32 s5, s5, 12\ns_add_u32 s79, s14, s5\ns_add_u32 s79, s79, s6")
            else: a(f"s_lshl_b32 s5, s5, 12\ns_add_u32 s79, s14, s5")
        def item_loads(B):
            if c.get('bw'): a("s_add_u32 s94, s94, 1")
            for n in range(8):
                if n == (c['tkn'] if SA else 0): ticket()
                if c['pdx'] and c['pdx'] < c['pd']:
                    Lk = a.label("Lpd")
                    a(f"s_cmp_lt_u32 s11, 128\ns_cbranch_scc1 {Lk}\ns_waitcnt vmcnt({c['pdx']-1})\n{Lk}:")
                a(f"s_waitcnt vmcnt({c['pd']-1})")
                vo, srd = (vK, 68) if n < 4 else (vV, 72)
                k = n % 4
                a(f"buffer_load_dwordx4 {q(B+4*n)}, v{vo}, s[{srd}:{srd+3}], s79 offen offset:{(k//2)*2048+(k%2)*256} {c['nt']}")
        def item_compute(B, last):
            if last: a("s_waitcnt vmcnt(4)")
            for i in range(2):
                a(f"{MF} {q(D+4*i)}, {q(B+8*i)}, {q(QF)}, 0")
                a(f"{MF} {q(D+4*i)}, {q(B+8*i+4)}, {q(QF+4)}, {q(D+4*i)}")
            for r in range(4):
                for i in range(2):
                    if r == 0: a(f"v_mov_b32_dpp v{TS+i}, v{D+4*i} quad_perm:[0,0,0,0] {DPPF}")
                    else: a(f"v_add_f32_dpp v{TS+i}, v{D+4*i+r}, v{TS+i} quad_perm:[{r},{r},{r},{r}] {DPPF}")
            a(f"v_cvt_pk_bf16_f32 v{TT}, v{TS}, v{TS+1}\nv_lshlrev_b32 v{TS}, 16, v{TT}\nv_and_b32 v{TS+1}, 0xffff0000, v{TT}")
            a(f"v_max_f32 v{TS+2}, v{TS}, v{TS+1}")
            s.allred_rows("v_max_f32", TS+2, TT)
            a(f"v_mul_f32 v{TS+2}, s13, v{TS+2}\nv_max_f32 v{TS+2}, v{TS+2}, v{M}")
            a(f"v_sub_f32 v{F}, v{M}, v{TS+2}\nv_fma_f32 v{TS}, v{TS}, s13, -v{TS+2}\nv_fma_f32 v{TS+1}, v{TS+1}, s13, -v{TS+2}")
            a(f"v_exp_f32 v{F}, v{F}\nv_exp_f32 v{TS}, v{TS}\nv_exp_f32 v{TS+1}, v{TS+1}\nv_mov_b32 v{M}, v{TS+2}")
            a(f"v_fma_f32 v{Lr}, v{Lr}, v{F}, v{TS}")
            a(f"v_mov_b32_dpp v{FA}, v{F} row_newbcast:0 row_mask:0x3 bank_mask:0xf")
            a(f"v_add_f32 v{Lr}, v{Lr}, v{TS+1}")
            a(f"v_cvt_pk_bf16_f32 v{TS}, v{TS}, v{TS}")
            a(f"v_mov_b32_dpp v{FA}, v{F} row_newbcast:8 row_mask:0xc bank_mask:0xf")
            a(f"v_cvt_pk_bf16_f32 v{TS+1}, v{TS+1}, v{TS+1}")
            for k in range(8): a(f"v_mul_f32 v{AC+k}, v{AC+k}, v{FA}")
            for i in range(2):
                for r in range(4): a(f"v_and_b32 v{D+4*i+r}, v{TS+i}, v{2+r}")
            if last: a("s_waitcnt vmcnt(0)")
            for i in range(2):
                for hf in range(2):
                    a(f"{MF} {q(AC+4*hf)}, {q(D+4*i)}, {q(B+16+8*i+4*hf)}, {q(AC+4*hf)}")
        E = Kb+64
        s.epi_addr(E, True)
        a(f"v_bfe_u32 v{E+2}, v0, 4, 4\nv_mul_u32_u24 v{E+2}, {HA_U}, v{E+2}")
        a(f"v_and_b32 v{E}, 15, v0\nv_lshl_add_u32 v{E+2}, v{E}, 4, v{E+2}")
        a(f"s_mul_i32 s12, s9, {16*HA_U}\ns_lshl_b32 s6, s10, 8\ns_add_u32 s12, s12, s6\ns_add_u32 s12, s12, {OFF_HA}")
        a(f"s_lshl_b32 s5, s3, 11\nv_add_u32 v{AD+4}, s5, v6")
        a(f"v_bfe_u32 v{AD+6}, v1, 3, 1\nv_lshlrev_b32 v{AD+6}, 5, v{AD+6}\ns_lshl_b32 s5, s3, 3\nv_add_u32 v{AD+7}, s5, v{AD+6}")
        a(f"v_lshrrev_b32 v{AD+5}, 7, v0\nv_lshlrev_b32 v{AD+5}, 5, v{AD+5}")
        a(f"s_lshl_b32 s10, s10, 7\ns_lshl_b32 s5, s9, 12\ns_add_u32 s10, s10, s5\ns_lshr_b32 s5, s3, 1\ns_lshl_b32 s5, s5, 4\ns_add_u32 s10, s10, s5\ns_add_u32 s10, s10, {OFF_STA}")
        Z = E+4
        a(f"v_mov_b32 v{Z+17}, s76\nv_mov_b32 v{Z+19}, s76\nv_mov_b32 v{Z+21}, s76\nv_mov_b32 v{Z+23}, s76")
        Ln0 = a.label("Ln0"); L0 = a.label("Ld0"); Lf0 = a.label("Lf0"); Lf1 = a.label("Lf1")
        d0 = done
        take(Ln0, ntk)
        item_loads(BUF[0])
        a(f"s_waitcnt vmcnt({8 if SA else 9})")
        for i in range(d0, NS): pv(i)
        a(f"{L0}:")
        take(Lf0, 8)
        item_loads(BUF[1])
        a(f"s_waitcnt vmcnt({8 if SA else 9})")
        item_compute(BUF[0], False)
        take(Lf1, 8)
        item_loads(BUF[0])
        a(f"s_waitcnt vmcnt({8 if SA else 9})")
        item_compute(BUF[1], False)
        a(f"s_branch {L0}")
        a(f"{Ln0}:")
        for i in range(d0, NS):
            a(f"s_waitcnt vmcnt({NL-2*(i+1)})")
            pv(i)
        a(f"s_branch {Lend}")
        a(f"{Lf0}:")
        item_compute(BUF[0], True)
        a(f"s_branch {Lend}")
        a(f"{Lf1}:")
        item_compute(BUF[1], True)
        a(f"{Lend}:")
        s.allred_rows("v_add_f32", Lr, TT)
        a(f"ds_write_b64 v{AD+7}, {p2(M)} offset:{0x800}")
        s.stamp(4)
        a(f"ds_write_b128 v{AD+4}, {q(AC)} offset:{0x1000}\nds_write_b128 v{AD+4}, {q(AC+4)} offset:{0x1000+1024}")
        a("s_waitcnt lgkmcnt(0)\ns_barrier")
        Y = Z+8
        a(f"ds_read_b128 {q(Y)}, v{AD+5} offset:{0x800}\nds_read_b128 {q(Y+4)}, v{AD+5} offset:{0x810}")
        for i in range(4): a(f"ds_read_b64 {p2(Z+2*i)}, v{E+3} offset:{0x1000+2048*i}")
        a("s_waitcnt lgkmcnt(4)")
        a(f"v_max3_f32 v{Z+20}, v{Y}, v{Y+2}, v{Y+4}\nv_max_f32 v{Z+20}, v{Z+20}, v{Y+6}")
        for k in range(4): a(f"v_sub_f32 v{Y+2*k}, v{Y+2*k}, v{Z+20}")
        for k in range(4): a(f"v_exp_f32 v{Y+2*k}, v{Y+2*k}")
        a("s_waitcnt lgkmcnt(0)")
        for k in range(4):
            op = "v_mul_f32" if k == 0 else "v_fmac_f32"
            a(f"{op} v{Z+16}, v{Y+2*k}, v{Z+2*k}\n{op} v{Z+18}, v{Y+2*k}, v{Z+2*k+1}")
        a(f"buffer_store_dwordx4 {q(Z+16)}, v{E+2}, s[44:47], s12 offen sc1")
        Lx = a.label("Lax")
        a(f"s_bitcmp1_b32 s3, 0\ns_cbranch_scc1 {Lx}")
        for k in range(4):
            op = "v_mul_f32" if k == 0 else "v_fmac_f32"
            a(f"{op} v{Z+22}, v{Y+2*k}, v{Y+2*k+1}")
        s.exec_set(1, 0)
        a(f"buffer_store_dwordx4 {q(Z+20)}, v{vZ}, s[44:47], s10 offen sc1")
        a(f"{Lx}:")
        s.stamp(5)
        s.stamp_out()
        a("s_endpgm")
    def build(s):
        a = s.a
        s.prologue()
        s.gy(); s.gx(); s.ga()
        a("L_end:\ns_endpgm")
        body = a.finish()
        import re
        if s.c.get('ldsys'): body = re.sub(r"(buffer_load_dword\S* .* offen(?: offset:\d+)?) sc1", r"\1 sc0 sc1", body)
        if s.c.get('stsys'): body = re.sub(r"(buffer_store_dword\S* .* offen(?: offset:\d+)?) sc1", r"\1 sc0 sc1", body)
        if s.c.get('stnt'): body = re.sub(r"(buffer_store_dword\S* .* offen(?: offset:\d+)?) sc1", r"\1 sc1 nt", body)
        if s.c.get('ldnt'): body = re.sub(r"(buffer_load_dword\S* .* offen(?: offset:\d+)?) sc1", r"\1 sc1 nt", body)
        hdr = open("concat_heads__gqa_block_cached__compressed_kv_cla__decode.s.ref").read().split("; @launch")[0]
        out = hdr + "; @launch grid=(512,1,1) block=(256,1,1) lds=81920\n"
        out += "; generated by my own generator script (gen2.py)\n"
        out += f'.amdgcn_target "amdgcn-amd-amdhsa--gfx950"\n.text\n.globl {KN}\n.p2align 8\n.type {KN},@function\n{KN}:\n'
        out += body
        out += f""".section .rodata,"a"
.p2align 6
.amdhsa_kernel {KN}
  .amdhsa_next_free_vgpr 256
  .amdhsa_next_free_sgpr 102
  .amdhsa_accum_offset 256
  .amdhsa_group_segment_fixed_size 0
  .amdhsa_kernarg_size 112
  .amdhsa_user_sgpr_count 2
  .amdhsa_user_sgpr_kernarg_segment_ptr 1
  .amdhsa_system_sgpr_workgroup_id_x 1
.end_amdhsa_kernel
"""
        return out
if __name__ == "__main__":
    from build import build
    name = sys.argv[1]
    cfg = {}
    for kv in sys.argv[2:]:
        k, v = kv.split("=")
        cfg[k] = v if k == "nt" else int(v)
    open(name, "w").write(Gen2(**cfg).build())
    print(build(name))
```

```python
import sys, math, struct
from asmlib import Asm
from gen import Gen, q, p2, f32, DPPF, KN, CEXP
OFF_QB, OFF_QA, OFF_QABS, OFF_CLR, OFF_ST3, OFF_STA, OFF_H4, OFF_HA, OFF_FIN, OFF_H3 = \
    0x0, 0x10000, 0x20000, 0x2c000, 0x30000, 0x38000, 0x40000, 0x80000, 0x200000, 0x400000
FIN_CG = 8192+128
FS = 4096+128; FIN_AB = 128*FS
QS = 2048+128
HA_U = 8192+128
H3_C = 32768+256
OFF_STAMP = 0x8000000
OFF_CHK = 0x1A0000
ROW = 2080; SLOT = 16*ROW
import gen as G1
G1.FIN_CG = FIN_CG
MF = "v_mfma_f32_16x16x32_bf16"

class Gen2(Gen):
    def __init__(s, **cfg):
        s.c = dict(stamp=False, nt="nt", sleep=2, timeout=100000, rnd=True, pa=6, pb=7, prio=2, prioa=0, n1=6, pu=4, px=8, pax=4, nax=28, nay=3, p1x=1, pdy=0, ylo=0, yhi=192, aprio=3, ystop=0, pw=0, ton=3, tok=3, tfn=3, tfk=3, spk=3, dwo=1, qf=0, spq=0, sp=1, sptime=2000, spsleep=2, spn=3, il=0, sat=1, tkn=6, xx=0, pdx=0, c1=0, ssleep=2, ns=10, tka=3, pd=10, qsleep=6, px0=4, v1=6, fsleep=2, pf=0, pa0=1, na0=4, na1=6, lead=10, h3d=0)
        s.c.update(cfg)
        s.a = Asm()
    def stamp_out(s):
        if not s.c['stamp']: return
        a = s.a
        a("s_mov_b64 exec, -1\nv_mov_b32 v8, 0")
        for k in range(12): a(f"v_writelane_b32 v8, s{84+k}, {k}")
        a("v_lshlrev_b32 v9, 2, v1")
        a("s_lshl_b32 s4, s2, 2\ns_add_u32 s4, s4, s3\ns_lshl_b32 s4, s4, 6")
        a(f"s_add_u32 s4, s4, {OFF_STAMP}")
        a("s_mov_b32 exec_lo, 0xffff\ns_mov_b32 exec_hi, 0")
        a("buffer_store_dword v8, v9, s[44:47], s4 offen")
    def prologue(s):
        a = s.a
        a("s_cmp_ge_u32 s2, 512\ns_cbranch_scc1 L_end")
        a("s_load_dwordx16 s[16:31], s[0:1], 0\ns_load_dwordx8 s[32:39], s[0:1], 64\ns_load_dwordx4 s[40:43], s[0:1], 96")
        a("s_memrealtime s[4:5]")
        a("v_lshrrev_b32 v7, 6, v0\nv_and_b32 v1, 63, v0")
        a("v_readfirstlane_b32 s3, v7\nv_lshlrev_b32 v6, 4, v1")
        if s.c['xx']:
            a("s_lshr_b32 s6, s2, 6\ns_cmp_eq_u32 s6, 3\ns_cselect_b32 s7, 192, 0\ns_add_u32 s2, s2, s7\ns_cmp_eq_u32 s6, 6\ns_cselect_b32 s7, 192, 0\ns_sub_u32 s2, s2, s7")
        if s.c['pf']:
            a(f"s_cmp_lt_u32 s2, {512-s.c['pf']}\ns_cbranch_scc1 L_nopf")
            a("s_getpc_b64 s[6:7]\ns_and_b32 s6, s6, 0xffffff00")
            a(f"v_lshlrev_b32 v9, 7, v0\nv_min_u32 v9, L_end-{KN}, v9\nglobal_load_dword v200, v9, s[6:7]")
            a("L_nopf:")
        a("s_cmp_ge_u32 s2, 256\ns_cbranch_scc1 L_A")
        if s.c['prio']: a(f"s_setprio {s.c['prio']}")
        a("s_cmp_ge_u32 s2, 128\ns_cbranch_scc1 L_X")
    def kwait(s):
        a = s.a
        a("s_waitcnt lgkmcnt(0)")
        a("s_or_b32 s77, s4, 1")
        if s.c['stamp']:
            for k in range(12): a(f"s_mov_b32 s{84+k}, 0")
            a("s_mov_b32 s84, s4")
    def common2(s, t):
        a = s.a
        a(f"v_and_b32 v{t}, 1, v1\nv_lshlrev_b32 v{t}, 4, v{t}\nv_mov_b32 v{t+1}, 0xffff\nv_lshlrev_b32 v{t}, v{t}, v{t+1}")
        a(f"v_bfe_u32 v{t+1}, v1, 1, 2")
        for r in range(4):
            a(f"v_cmp_eq_u32 vcc, {r}, v{t+1}\nv_cndmask_b32 v{2+r}, 0, v{t}, vcc")
    def get_epoch(s, vE, vZ):
        a = s.a
        L = a.label("Lge"); Ld = a.label("Lged")
        a(f"s_mov_b32 s78, {s.c['timeout']}")
        a(f"{L}:")
        a(f"v_readfirstlane_b32 s76, v{vE}")
        a(f"s_cmp_lg_u32 s76, 0\ns_cbranch_scc1 {Ld}")
        a(f"buffer_load_dword v{vE}, v{vZ}, s[48:51], 0 offen sc1\ns_waitcnt vmcnt(0)")
        a(f"s_sub_u32 s78, s78, 1\ns_cmp_lg_u32 s78, 0\ns_cbranch_scc1 {L}")
        a(f"{Ld}:")
    def spoll(s, soff, extra, n=1, stride=0, need=None):
        if not s.c['sp']: return
        a = s.a
        L = a.label("Lsp"); Ld = a.label("Lspd")
        a(f"s_mov_b32 s78, {s.c['sptime']}")
        for k in range(n): a(f"s_add_u32 s{64+k}, s{soff}, {extra+4+k*stride}")
        a(f"{L}:")
        for k in range(n): a(f"s_load_dword s{68+k}, s[42:43], s{64+k} glc")
        a("s_waitcnt lgkmcnt(0)")
        a("s_mov_b32 s83, 0")
        for k in range(n): a(f"s_cmp_eq_u32 s{68+k}, s76\ns_addc_u32 s83, s83, 0")
        a(f"s_cmp_ge_u32 s83, {need or n}\ns_cbranch_scc1 {Ld}")
        a(f"s_sleep {s.c['spsleep']}\ns_sub_u32 s78, s78, 1\ns_cmp_lg_u32 s78, 0\ns_cbranch_scc1 {L}")
        a(f"{Ld}:")
    def poll_sent(s, issue, regs, t0, sleep=None, pre_issued=False):
        a = s.a
        L = a.label("Lps"); Ld = a.label("Lpsd")
        a(f"s_mov_b32 s78, {s.c['timeout']}")
        Lw = a.label("Lpsw")
        if pre_issued: a(f"s_branch {Lw}")
        a(f"{L}:")
        issue()
        a(f"{Lw}:")
        a("s_waitcnt vmcnt(0)")
        a(f"v_max3_u32 v{t0}, v{regs[0]}, v{regs[1]}, v{regs[2]}")
        rest = regs[3:]
        for i in range(0, len(rest), 2):
            y = rest[i+1] if i+1 < len(rest) else rest[i]
            a(f"v_max3_u32 v{t0}, v{t0}, v{rest[i]}, v{y}")
        a(f"v_cmp_eq_u32 vcc, -1, v{t0}")
        a(f"s_cbranch_vccz {Ld}")
        sl = s.c['sleep'] if sleep is None else sleep
        if sl: a(f"s_sleep {sl}")
        a(f"s_sub_u32 s78, s78, 1\ns_cmp_lg_u32 s78, 0\ns_cbranch_scc1 {L}")
        a(f"{Ld}:")
    def gather_q(s, T, soff, lds, n, between=None, nb=0, sleep=1):
        a = s.a
        a(f"s_add_u32 s7, s{soff}, 0x8000")
        def issue():
            for k in range(n):
                a(f"buffer_load_dwordx4 {q(T+8*k)}, v6, s[44:47], s{soff} offen offset:{1024*k} sc1")
                a(f"buffer_load_dwordx4 {q(T+8*k+4)}, v6, s[44:47], s7 offen offset:{1024*k} sc1")
        grp = [("s76", [T+4*k+j for k in range(2*n) for j in (1, 3)])]
        if between:
            Lok = a.label("Lgq")
            issue(); between()
            a(f"s_waitcnt vmcnt({nb})")
            s.check_tags(grp, T+8*n, T+8*n+1)
            a(f"s_cbranch_scc1 {Lok}")
            s.poll(issue, grp, T+8*n, T+8*n+1, sleep=sleep)
            a(f"{Lok}:")
        else:
            s.poll(issue, grp, T+8*n, T+8*n+1, sleep=sleep)
        for k in range(n):
            b = T+8*k
            a(f"v_add_f32 v{b}, v{b}, v{b+4}\nv_add_f32 v{b+2}, v{b+2}, v{b+6}\nv_cvt_pk_bf16_f32 v{b}, v{b}, v{b+2}")
            a(f"ds_write_b32 v{lds}, v{b} offset:{256*k}")
        a("s_waitcnt lgkmcnt(0)")
    def epi_addr(s, E, two_heads):
        a = s.a
        a(f"v_bfe_u32 v{E+3}, v0, 6, 1\nv_lshlrev_b32 v{E+3}, 10, v{E+3}")
        if two_heads: a(f"v_bfe_u32 v{E+1}, v0, 7, 1\nv_lshl_add_u32 v{E+3}, v{E+1}, 9, v{E+3}")
        a(f"v_bfe_u32 v{E+1}, v0, 1, 1\nv_lshl_add_u32 v{E+3}, v{E+1}, 8, v{E+3}")
        a(f"v_bfe_u32 v{E+1}, v0, 2, 4\nv_lshl_add_u32 v{E+3}, v{E+1}, 4, v{E+3}")
        a(f"v_and_b32 v{E+1}, 1, v0\nv_lshl_add_u32 v{E+3}, v{E+1}, 3, v{E+3}")
    def p1_setup(s, sI, T, V):
        a = s.a
        vX, vW, vSA, vSB, vLW, vRD, vPB = range(V, V+7)
        a(f"s_and_b32 s100, s{sI}, 7\ns_lshl_b32 s100, s100, 3\ns_bfe_u32 s6, s{sI}, 0x30003\ns_add_u32 s100, s100, s6\ns_lshr_b32 s101, s{sI}, 6")
        a("s_mul_i32 s96, s101, 224\ns_mul_i32 s6, s3, 56\ns_add_u32 s96, s96, s6\ns_lshl_b32 s97, s96, 1")
        a("s_lshl_b32 s96, s96, 13\ns_lshl_b32 s6, s100, 7\ns_add_u32 s96, s96, s6")
        a(f"v_lshrrev_b32 v{T}, 3, v1\nv_mul_u32_u24 v{vX}, 14, v{T}\nv_and_b32 v{vX}, 0x7c, v{vX}")
        a(f"v_mul_u32_u24 v{vW}, {7*8192}, v{T}\nv_and_b32 v{T+1}, 7, v1\nv_lshl_add_u32 v{vW}, v{T+1}, 4, v{vW}")
    def p1_loads(s, X, W, srdX, srdW, V):
        a = s.a
        a(f"buffer_load_dwordx4 {q(X)}, v{V}, s[{srdX}:{srdX+3}], s97 offen")
        for i in range(7):
            a(f"s_add_u32 s79, s96, {i*8192}")
            a(f"buffer_load_dwordx4 {q(W+4*i)}, v{V+1}, s[{srdW}:{srdW+3}], s79 offen {s.c['nt']}")
    def p1_setup2(s, T, V):
        a = s.a
        vX, vW, vSA, vSB, vLW, vRD, vPB = range(V, V+7)
        a(f"s_lshl_b32 s100, s100, 9\ns_lshl_b32 s101, s101, 15\ns_add_u32 s100, s100, s101")
        a(f"v_bfe_u32 v{T}, v1, 3, 1\nv_cmp_eq_u32 vcc, 1, v{T}")
        a(f"v_mov_b32 v{T+8}, 0x01000100\nv_mov_b32 v{T+9}, 0x03020302\nv_mov_b32 v{T+10}, 0x05040504")
        a(f"v_cndmask_b32 v{vSA}, v{T+8}, v{T+9}, vcc\nv_cndmask_b32 v{vSB}, v{T+9}, v{T+10}, vcc")
        a(f"s_lshl_b32 s5, s3, 10\nv_add_u32 v{vLW}, s5, v6")
        a(f"v_and_b32 v{T+3}, 3, v1")
        a(f"v_lshrrev_b32 v{vRD}, 5, v1\nv_lshlrev_b32 v{vRD}, 11, v{vRD}\nv_bfe_u32 v{T}, v1, 1, 1\nv_lshl_add_u32 v{vRD}, v{T}, 8, v{vRD}")
        a(f"v_bfe_u32 v{T}, v1, 2, 3\nv_lshl_add_u32 v{vRD}, v{T}, 4, v{vRD}\nv_and_b32 v{T}, 1, v1\nv_lshl_add_u32 v{vRD}, v{T}, 3, v{vRD}")
    def p1_compute(s, X, W, T, V, lds, off, flag_vZ=None):
        a = s.a
        vX, vW, vSA, vSB, vLW, vRD, vPB = range(V, V+7)
        AB, AC = T, T+12
        for i in range(7):
            ab = AB + (i % 2)*4
            k = i//2
            if i % 2 == 0: a(f"v_perm_b32 v{AB+8}, v{X+k}, v{X+k}, v{vSA}")
            else: a(f"v_perm_b32 v{AB+8}, v{X+k+1}, v{X+k}, v{vSB}")
            for r in range(4): a(f"v_and_b32 v{ab+r}, v{AB+8}, v{2+r}")
            a(f"{MF} {q(AC)}, {q(ab)}, {q(W+4*i)}, {'0' if i == 0 else q(AC)}")
        a(f"ds_write_b128 v{vLW}, {q(AC)} offset:{lds}")
        a("s_waitcnt lgkmcnt(0)\ns_barrier")
        L = a.label("Lred")
        a(f"s_cmp_lg_u32 s3, 3\ns_cbranch_scc1 {L}")
        R = T
        for k in range(4): a(f"ds_read_b64 {p2(R+2*k)}, v{vRD} offset:{lds + (k//2)*1024 + (k%2)*640}")
        a(f"s_add_u32 s5, s100, {off}")
        a(f"v_mov_b32 v{R+9}, s76\nv_mov_b32 v{R+11}, s76")
        a("s_waitcnt lgkmcnt(0)")
        a(f"v_pk_add_f32 {p2(R)}, {p2(R)}, {p2(R+2)}\nv_pk_add_f32 {p2(R+4)}, {p2(R+4)}, {p2(R+6)}\nv_pk_add_f32 {p2(R)}, {p2(R)}, {p2(R+4)}")
        a(f"v_mov_b64 {p2(R+2)}, {p2(R)}")
        a(f"v_permlane32_swap_b32 v{R}, v{R+2}\nv_permlane32_swap_b32 v{R+1}, v{R+3}")
        a(f"v_add_f32 v{R+8}, v{R}, v{R+2}\nv_add_f32 v{R+10}, v{R+1}, v{R+3}")
        s.exec_set(0xffffffff, 0)
        a(f"buffer_store_dwordx4 {q(R+8)}, v6, s[44:47], s5 offen sc1")
        if flag_vZ is not None:
            a(f"s_lshl_b32 s5, s2, 2\ns_add_u32 s5, s5, {OFF_CLR+0x1000}")
            s.exec_set(1, 0)
            a(f"buffer_store_dword v{R+9}, v{flag_vZ}, s[44:47], s5 offen sc1")
        s.exec_all()
        a(f"{L}:")
    def proj_tail(s, A0, W, T, scb, sfin, scale=None):
        a = s.a
        a(f"v_permlane32_swap_b32 v{A0}, v{A0+1}\nv_add_f32 v{A0}, v{A0}, v{A0+1}")
        a(f"v_mov_b32 v{A0+1}, v{A0}\nv_permlane16_swap_b32 v{A0}, v{A0+1}\nv_add_f32 v{A0}, v{A0}, v{A0+1}")
        if scale is not None: a(f"v_mul_f32 v{A0}, v{A0}, v{scale}")
        a(f"v_cvt_pk_bf16_f32 v{A0}, v{A0}, v{A0}")
        a(f"v_mov_b32 v{A0+1}, v{A0}")
        a(f"v_mov_b32_dpp v{A0}, v{A0+1} row_ror:8 row_mask:0xa bank_mask:0xf")
        AC = T+8; S = T+12
        for g in range(8):
            ab = T + (g % 2)*4
            for r in range(4): a(f"v_and_b32_dpp v{ab+r}, v{A0}, v{2+r} row_newbcast:{g} {DPPF}")
            a(f"{MF} {q(AC)}, {q(ab)}, {q(W[g])}, {'0' if g == 0 else q(AC)}")
        a(f"v_cmp_gt_u32 vcc, 32, v1")
        a(f"v_mov_b32 v{S+1}, s76\nv_mov_b32 v{S+3}, s76")
        a("s_mov_b32 exec_lo, s82\ns_mov_b32 exec_hi, s82")
        a(f"v_cndmask_b32 v{S}, v{AC+2}, v{AC}, vcc\nv_cndmask_b32 v{S+2}, v{AC+3}, v{AC+1}, vcc")
        a(f"buffer_store_dwordx4 {q(S)}, v6, s[44:47], s{sfin} offen sc1")
        s.exec_all()
    def a5(s, sU, R, T, WOA):
        a = s.a; c = s.c
        OG = R; ST = R+8; Z = R+16
        a(f"s_lshr_b32 s12, s{sU}, 3")
        a(f"v_lshrrev_b32 v{T+22}, 4, v1\nv_lshlrev_b32 v{T+22}, 7, v{T+22}")
        a(f"s_lshr_b32 s8, s12, 1\ns_lshl_b32 s8, s8, 12\ns_and_b32 s6, s12, 1\ns_lshl_b32 s6, s6, 4\ns_add_u32 s8, s8, s6\ns_lshl_b32 s6, s3, 10\ns_add_u32 s8, s8, s6\ns_add_u32 s8, s8, {OFF_STA}")
        a(f"s_mul_i32 s6, s{sU}, {HA_U}\ns_lshl_b32 s5, s3, 11\ns_add_u32 s6, s6, s5\ns_add_u32 s6, s6, {OFF_HA}")
        a(f"v_lshlrev_b32 v{T+20}, 4, v0")
        a(f"s_mul_i32 s15, s{sU}, {FS}\ns_lshl_b32 s5, s3, 10\ns_add_u32 s15, s15, s5\ns_add_u32 s15, s15, {OFF_FIN}")
        def issue_o():
            a(f"buffer_load_dwordx4 {q(OG)}, v6, s[44:47], s6 offen sc1\nbuffer_load_dwordx4 {q(OG+4)}, v6, s[44:47], s6 offen offset:1024 sc1")
            a(f"buffer_load_dwordx4 {q(ST)}, v{T+22}, s[44:47], s8 offen sc1\nbuffer_load_dwordx4 {q(ST+4)}, v{T+22}, s[44:47], s8 offen offset:512 sc1")
        s.spoll(6, 0, c['ton'], 256*2, c['tok'])
        s.poll(issue_o, [("s76", [OG+k for k in range(1, 16, 2)])], Z, Z+1, sleep=c['fsleep'])
        s.stamp(7)
        a(f"v_max_f32 v{Z+2}, v{ST}, v{ST+4}")
        a(f"v_sub_f32 v{ST}, v{ST}, v{Z+2}\nv_sub_f32 v{ST+4}, v{ST+4}, v{Z+2}\nv_exp_f32 v{ST}, v{ST}\nv_exp_f32 v{ST+4}, v{ST+4}")
        a(f"v_mul_f32 v{Z}, v{ST}, v{OG}\nv_mul_f32 v{Z+1}, v{ST}, v{OG+2}\nv_mul_f32 v{Z+3}, v{ST}, v{ST+2}")
        a(f"v_fmac_f32 v{Z}, v{ST+4}, v{OG+4}\nv_fmac_f32 v{Z+1}, v{ST+4}, v{OG+6}\nv_fmac_f32 v{Z+3}, v{ST+4}, v{ST+6}")
        a(f"ds_write_b128 v{T+20}, {q(Z)} offset:{0x6000}")
        a("s_waitcnt lgkmcnt(0)\ns_barrier")
        s.stamp(8)
        for k in range(4): a(f"ds_read_b128 {q(OG+4*k)}, v6 offset:{0x6000+1024*k}")
        a("s_waitcnt lgkmcnt(0)")
        a(f"v_max3_f32 v{Z+2}, v{OG+2}, v{OG+6}, v{OG+10}\nv_max_f32 v{Z+2}, v{Z+2}, v{OG+14}")
        s.allred_rows("v_max_f32", Z+2, Z+4)
        for k in range(4): a(f"v_sub_f32 v{OG+4*k+2}, v{OG+4*k+2}, v{Z+2}")
        for k in range(4): a(f"v_exp_f32 v{OG+4*k+2}, v{OG+4*k+2}")
        for k in range(4):
            op = "v_mul_f32" if k == 0 else "v_fmac_f32"
            a(f"{op} v{Z+3}, v{OG+4*k+2}, v{OG+4*k+3}\n{op} v{Z}, v{OG+4*k+2}, v{OG+4*k}\n{op} v{Z+1}, v{OG+4*k+2}, v{OG+4*k+1}")
        s.allred_rows("v_add_f32", Z+3, Z+4)
        a(f"v_rcp_f32 v{Z+3}, v{Z+3}")
        s.proj_tail(Z, WOA, T+24, 3, 15, scale=Z+3)
        s.stamp(9)
    def final(s, sJ, ab, F, T, stp):
        a = s.a; c = s.c
        s.srd(52, 38, 1792)
        a(f"s_mov_b32 s12, {ab}\ns_mov_b32 s13, s{sJ}")
        a("s_sub_u32 s5, s13, 48\ns_lshr_b32 s6, s5, 1\ns_lshl_b32 s6, s6, 2\ns_and_b32 s5, s5, 1\ns_add_u32 s6, s6, s5\ns_add_u32 s6, s6, 48")
        a("s_cmp_ge_u32 s13, 48\ns_cselect_b32 s13, s6, s13")
        a(f"s_mul_i32 s6, s12, {FIN_AB}\ns_lshl_b32 s5, s13, 6\ns_add_u32 s6, s6, s5\ns_add_u32 s6, s6, {OFF_FIN}")
        a(f"v_lshrrev_b32 v{T+9}, 2, v1\nv_mul_u32_u24 v{T+9}, {FS}, v{T+9}\nv_and_b32 v{T+10}, 3, v1\nv_lshl_add_u32 v{T+9}, v{T+10}, 4, v{T+9}")
        def issue_f():
            for i in range(8):
                a(f"s_add_u32 s79, s6, {i*16*FS}")
                a(f"buffer_load_dwordx4 {q(F+4*i)}, v{T+9}, s[44:47], s79 offen sc1")
        a("s_mul_i32 s15, s12, 896\ns_lshr_b32 s5, s13, 4\ns_lshl_b32 s5, s5, 8\ns_add_u32 s15, s15, s5")
        a("s_and_b32 s5, s13, 3\ns_lshl_b32 s5, s5, 6\ns_add_u32 s15, s15, s5")
        a("s_bfe_u32 s5, s13, 0x10002\ns_lshl_b32 s5, s5, 3\ns_add_u32 s15, s15, s5")
        a("s_bfe_u32 s5, s13, 0x10003\ns_lshl_b32 s5, s5, 2\ns_add_u32 s15, s15, s5")
        a(f"v_lshlrev_b32 v{T+8}, 2, v1")
        s.spoll(6, 0, c['tfn'], FS*37, c['tfk'])
        s.poll(issue_f, [("s76", [F+4*i+k for i in range(8) for k in (1, 3)])], T+4, T+5, sleep=c['fsleep'])
        s.stamp(stp)
        for st in (16, 8, 4):
            for i in range(0, st, 4):
                a(f"v_add_f32 v{F+i}, v{F+i}, v{F+st+i}\nv_add_f32 v{F+i+2}, v{F+i+2}, v{F+st+i+2}")
        for m in ("row_ror:8", "row_ror:4"):
            for k in (0, 2): a(f"v_add_f32_dpp v{F+k}, v{F+k}, v{F+k} {m} {DPPF}")
        for k in (0, 2): s.allred_rows("v_add_f32", F+k, F+k+1)
        a(f"v_cvt_pk_bf16_f32 v{F}, v{F}, v{F+2}")
        if c.get('thr'):
            a(f"s_memrealtime s[98:99]\ns_waitcnt lgkmcnt(0)\ns_sub_u32 s5, s98, s76\ns_cmp_gt_u32 s5, {c['thr']}\ns_cselect_b32 s5, 0x7fc07fc0, 0\nv_or_b32 v{F}, s5, v{F}")
        if c.get('spin'):
            Lsp = a.label("Lspin")
            a(f"{Lsp}:\ns_memrealtime s[98:99]\ns_waitcnt lgkmcnt(0)\ns_sub_u32 s5, s98, s76\ns_cmp_lt_u32 s5, {c['spin']}\ns_cbranch_scc1 {Lsp}")
        if c.get('enc'):
            a("s_memrealtime s[98:99]\ns_waitcnt lgkmcnt(0)\ns_sub_u32 s5, s98, s76")
            a(f"v_mov_b32 v{F+4}, s5\nv_lshrrev_b32 v{F+4}, v{T+8}, v{F+4}")
            a(f"v_and_b32 v{F+5}, 3, v{F+4}\nv_bfe_u32 v{F+4}, v{F+4}, 2, 2\nv_lshl_or_b32 v{F+5}, v{F+4}, 16, v{F+5}")
            a(f"v_and_b32 v{F}, 0xfffcfffc, v{F}\nv_or_b32 v{F}, v{F}, v{F+5}")
        s.exec_set(0xf, 0)
        a(f"buffer_store_dword v{F}, v6, s[52:55], s15 offen")
        s.exec_all()
        s.stamp(stp+1)
    def gy(s):
        a = s.a; c = s.c; nt = c['nt']; pb = c['pb']
        XB, WB, UK, UV, T = 8, 16, 72, 136, 200
        PVv = T+40
        vLW = PVv+4
        vZ, vU, vQ = T+47, T+50, T+51
        vE = T+48
        s.p1_setup(2, T, PVv)
        a(f"v_mov_b32 v{vZ}, 0\nv_mov_b32 v{vE+1}, 0")
        a("s_lshr_b32 s12, s2, 3\ns_and_b32 s13, s2, 7")
        if c['qf']:
            a(f"s_lshl_b32 s14, s13, 12\ns_lshl_b32 s6, s12, 4\ns_add_u32 s14, s14, s6\ns_add_u32 s14, s14, {OFF_QABS}")
            a(f"v_lshlrev_b32 v{T+2}, 8, v1")
        else:
            a(f"s_lshl_b32 s14, s13, 8\ns_mul_i32 s6, s12, {QS}\ns_add_u32 s14, s14, s6\ns_add_u32 s14, s14, {OFF_QABS}")
        for r in range(4): a(f"v_mov_b32 v{T+4+r}, -1")
        s.kwait()
        s.srd(44, 42, 0x10000000); s.srd(48, 40, 256)
        s.srd(52, 26, 896); s.srd(56, 30, 448*8192)
        L = a.label("Le0")
        a(f"s_cmp_lg_u32 s3, 3\ns_cbranch_scc1 {L}")
        a(f"v_mov_b32 v{vE}, s77")
        s.exec_set(1, 0)
        a(f"buffer_atomic_cmpswap {p2(vE)}, v{vZ}, s[48:51], 0 offen sc0 sc1")
        s.exec_set(0xffff, 0)
        a(f"buffer_store_dwordx4 {q(T+4)}, v{T+2 if c['qf'] else 6}, s[44:47], s14 offen sc1")
        s.exec_all()
        a(f"{L}:")
        s.p1_loads(XB, WB, 52, 56, PVv)
        s.srd(68, 32, 1024*8192); s.srd(72, 34, 1024*8192)
        a(f"v_lshrrev_b32 v{T+2}, 4, v1\nv_lshrrev_b32 v{vQ}, 4, v0\nv_lshlrev_b32 v{vQ}, {8 if c['qf'] else 4}, v{vQ}")
        a(f"v_bfe_u32 v{vU}, v1, 2, 2\nv_lshlrev_b32 v{vU}, 16, v{vU}\nv_lshl_add_u32 v{vU}, v{T+2}, 6, v{vU}")
        a(f"v_and_b32 v{T+3}, 3, v1\nv_lshl_add_u32 v{vU}, v{T+3}, 4, v{vU}")
        a("s_lshl_b32 s15, s13, 20\ns_lshl_b32 s5, s3, 18\ns_add_u32 s15, s15, s5\ns_lshl_b32 s5, s12, 9\ns_add_u32 s15, s15, s5")
        s.common2(T+12)
        s.p1_setup2(T, PVv)
        def ukload(n, pace):
            i, hf = n//2, n % 2
            a(f"s_add_u32 s79, s15, {i*8192}")
            if pace: a(f"s_waitcnt vmcnt({pace-1})")
            a(f"buffer_load_dwordx4 {q(UK+4*n)}, v{vU}, s[68:71], s79 offen offset:{hf*256} {nt}")
        n1 = c['n1']
        for n in range(n1): ukload(n, pb)
        a(f"s_waitcnt vmcnt({n1})")
        s.stamp(1)
        L = a.label("Le1")
        a(f"s_cmp_lg_u32 s3, 3\ns_cbranch_scc1 {L}")
        a(f"v_readfirstlane_b32 s76, v{vE}\ns_cmp_eq_u32 s76, 0\ns_cselect_b32 s76, s77, s76")
        a(f"v_mov_b32 v{vE}, s76\nds_write_b32 v{vZ}, v{vE} offset:{0x2800}")
        a(f"{L}:")
        s.p1_compute(XB, WB, T, PVv, 0, OFF_QB, vZ)
        a(f"ds_read_b32 v{vE}, v{vZ} offset:{0x2800}")
        s.stamp(2)
        for n in range(n1, 16): ukload(n, pb)
        a(f"s_waitcnt lgkmcnt(0)\nv_readfirstlane_b32 s76, v{vE}")
        tsave = c['timeout']
        if c.get('nob'): c['timeout'] = 1
        L = a.label("Lqb")
        a(f"s_cmp_ge_u32 s3, 2\ns_cbranch_scc1 {L}")
        a(f"s_lshl_b32 s6, s12, 11\ns_lshl_b32 s5, s3, 10\ns_add_u32 s6, s6, s5\ns_add_u32 s6, s6, {OFF_QB}")
        a(f"v_lshlrev_b32 v{T+20}, 2, v0\nv_add_u32 v{T+20}, 0x2000, v{T+20}")
        s.gather_q(T, 6, T+20, 1)
        a(f"{L}:")
        a(f"v_lshrrev_b32 v{T+21}, 4, v1\nv_lshlrev_b32 v{T+21}, 6, v{T+21}\nv_and_b32 v{T+22}, 3, v1\nv_lshl_add_u32 v{T+21}, v{T+22}, 4, v{T+21}")
        a("s_waitcnt vmcnt(0)\ns_barrier")
        s.stamp(3)
        QF = T; D = WB
        a(f"ds_read_b128 {q(QF)}, v{T+21} offset:{0x2000}\nds_read_b128 {q(QF+4)}, v{T+21} offset:{0x2000+256}")
        a("s_waitcnt lgkmcnt(0)")
        for i in range(8):
            a(f"{MF} {q(D+4*i)}, {q(UK+8*i)}, {q(QF)}, 0")
            a(f"{MF} {q(D+4*i)}, {q(UK+8*i+4)}, {q(QF+4)}, {q(D+4*i)}")
        R = T+8
        for r in range(4):
            for i in range(8):
                if r == 0: a(f"v_mov_b32_dpp v{R+i}, v{D+4*i} quad_perm:[0,0,0,0] {DPPF}")
                else: a(f"v_add_f32_dpp v{R+i}, v{D+4*i+r}, v{R+i} quad_perm:[{r},{r},{r},{r}] {DPPF}")
        for k in range(4): a(f"v_cvt_pk_bf16_f32 v{R+8+k}, v{R+2*k}, v{R+2*k+1}")
        for k in range(4): a(f"v_min_u32 v{R+8+k}, -2, v{R+8+k}")
        s.exec_set(0x00010001, 0x00010001)
        if c['qf']:
            a(f"buffer_store_dwordx4 {q(R+8)}, v{vQ}, s[44:47], s14 offen sc1")
            s.exec_all()
        else:
            a(f"ds_write_b128 v{vQ}, {q(R+8)} offset:{0x2900}")
            s.exec_all()
            a("s_waitcnt lgkmcnt(0)\ns_barrier")
            L = a.label("Lqp")
            a(f"s_cmp_lg_u32 s3, 3\ns_cbranch_scc1 {L}")
            s.exec_set(0xffff, 0)
            a(f"ds_read_b128 {q(R+8)}, v6 offset:{0x2900}\ns_waitcnt lgkmcnt(0)")
            a(f"buffer_store_dwordx4 {q(R+8)}, v6, s[44:47], s14 offen sc1")
            s.exec_all()
            a(f"{L}:")
        s.stamp(4)
        a(f"v_lshrrev_b32 v{vU}, 4, v1\nv_lshlrev_b32 v{vU}, 13, v{vU}\nv_and_b32 v{T+22}, 15, v1\nv_lshl_add_u32 v{vU}, v{T+22}, 4, v{vU}")
        def uvload(n, pace):
            g, hf = n//2, n % 2
            a(f"s_add_u32 s79, s15, {g*4*8192}")
            if pace: a(f"s_waitcnt vmcnt({pace-1})")
            a(f"buffer_load_dwordx4 {q(UV+4*n)}, v{vU}, s[72:75], s79 offen offset:{hf*256} {nt}")
        for n in range(16): uvload(n, c['pu'])
        HG = UK; ST = T
        WL = 0x3000
        a(f"s_mul_i32 s6, s2, {H3_C}\ns_lshl_b32 s5, s3, 13\ns_add_u32 s6, s6, s5\ns_add_u32 s6, s6, {OFF_H3}\ns_add_u32 s7, s6, 4096")
        vSH = T+26
        a(f"v_and_b32 v{vSH}, 15, v1\nv_lshlrev_b32 v{vSH}, 1, v{vSH}\ns_mov_b32 s10, 0xff\ns_sub_u32 s9, 0, s76")
        L = a.label("Lst")
        a(f"s_cmp_lg_u32 s3, 0\ns_cbranch_scc1 {L}")
        a(f"s_lshl_b32 s5, s12, 11\ns_add_u32 s5, s5, {OFF_ST3}")
        def issue_st():
            for k in range(2): a(f"buffer_load_dwordx4 {q(ST+4*k)}, v6, s[44:47], s5 offen offset:{1024*k} sc1")
        if c['stamp']:
            a("s_waitcnt vmcnt(0)"); s.stamp(5)
        s.spoll(5, 0, c['spn'], 16*37, c['spk'])
        s.poll(issue_st, [("s76", [ST+1, ST+3, ST+5, ST+7])], T+8, T+9, sleep=c['ssleep'])
        a(f"{L}:")
        a("s_barrier")
        s.stamp(6)
        def issue_hg(cond=False):
            for i in range(8):
                Lk = a.label("Lhg")
                if cond: a(f"s_bitcmp0_b32 s10, {i}\ns_cbranch_scc1 {Lk}")
                a(f"buffer_load_dwordx4 {q(HG+4*i)}, v6, s[44:47], {'s6' if i < 4 else 's7'} offen offset:{1024*(i%4)} sc1")
                if cond: a(f"{Lk}:")
        if c['h3d']: a(f"s_sleep {c['h3d']}")
        issue_hg()
        L = a.label("Lwt")
        a(f"s_cmp_lg_u32 s3, 0\ns_cbranch_scc1 {L}")
        M, Lr, TT, E0 = T+8, T+9, T+10, T+12
        a(f"v_max_f32 v{M}, v{ST}, v{ST+4}")
        s.allred_inrow("v_max_f32", M); s.allred_rows("v_max_f32", M, TT)
        a(f"v_sub_f32 v{E0}, v{ST}, v{M}\nv_sub_f32 v{E0+1}, v{ST+4}, v{M}\nv_exp_f32 v{E0}, v{E0}\nv_exp_f32 v{E0+1}, v{E0+1}")
        a(f"v_mul_f32 v{Lr}, v{E0}, v{ST+2}\nv_fmac_f32 v{Lr}, v{E0+1}, v{ST+6}")
        s.allred_inrow("v_add_f32", Lr); s.allred_rows("v_add_f32", Lr, TT)
        a(f"v_rcp_f32 v{Lr}, v{Lr}")
        a(f"v_and_b32 v{TT}, 3, v1\nv_lshlrev_b32 v{TT}, 7, v{TT}\nv_lshrrev_b32 v{TT+1}, 5, v1\nv_lshl_add_u32 v{TT}, v{TT+1}, 5, v{TT}")
        a(f"v_bfe_u32 v{TT+1}, v1, 2, 3\nv_lshl_add_u32 v{TT}, v{TT+1}, 2, v{TT}")
        for k in range(2):
            e = E0+k; hi = E0+2+k; lo = E0+4+k
            a(f"v_mul_f32 v{e}, v{e}, v{Lr}\nv_cvt_pk_bf16_f32 v{hi}, v{e}, v{e}\nv_and_b32 v{lo}, 0xffff0000, v{hi}\nv_sub_f32 v{lo}, v{e}, v{lo}\nv_cvt_pk_bf16_f32 v{lo}, v{lo}, v{lo}")
            a(f"ds_write_b32 v{TT}, v{hi} offset:{WL+64*k}\nds_write_b32 v{TT}, v{lo} offset:{WL+512+64*k}")
        a("s_waitcnt lgkmcnt(0)")
        a(f"{L}:")
        a(f"v_bfe_u32 v{T+20}, v1, 3, 1\nv_lshlrev_b32 v{T+20}, 9, v{T+20}\nv_lshrrev_b32 v{T+21}, 4, v1\nv_lshl_add_u32 v{T+20}, v{T+21}, 7, v{T+20}")
        a(f"s_lshl_b32 s5, s3, 5\nv_add_u32 v{T+20}, s5, v{T+20}")
        a(f"v_and_b32 v{T+22}, 1, v1\nv_lshlrev_b32 v{T+22}, 8, v{T+22}\nv_bfe_u32 v{T+23}, v1, 1, 2\nv_lshl_add_u32 v{T+22}, v{T+23}, 4, v{T+22}")
        a(f"v_lshl_add_u32 v{T+22}, v{T+21}, 2, v{T+22}\ns_lshl_b32 s5, s3, 6\nv_add_u32 v{T+22}, s5, v{T+22}")
        a("s_barrier")
        WW = T; AO = WB
        a(f"ds_read_b128 {q(WW)}, v{T+20} offset:{WL}\nds_read_b128 {q(WW+4)}, v{T+20} offset:{WL+16}")
        a("s_waitcnt lgkmcnt(0)")
        for i in range(8):
            for r in range(4): a(f"v_and_b32 v{AO+4*i+r}, v{WW+i}, v{2+r}")
        DC = T+8
        Lp = a.label("Lck"); Lw = a.label("Lckw"); Ld = a.label("Lckd")
        a(f"s_mov_b32 s78, {c['timeout']}\ns_branch {Lw}")
        a(f"{Lp}:")
        issue_hg(True)
        a(f"{Lw}:")
        a("s_waitcnt vmcnt(0)")
        SU, BT = 48, 56
        for i in range(8):
            a(f"{MF} {q(DC)}, {q(AO+4*i)}, {q(HG+4*i)}, {'0' if i == 0 else q(DC)}")
            h_ = HG+4*i
            a(f"v_and_b32 v{BT+i}, 3, v{h_}\nv_add3_u32 v{SU+i}, v{h_}, v{h_+1}, v{h_+2}")
            a(f"v_lshl_add_u32 v{BT+i}, v{BT+i}, v{vSH}, v{BT+i}\nv_add_u32 v{SU+i}, v{SU+i}, v{h_+3}")
            a(f"v_sub_u32 v{SU+i}, v{SU+i}, v{BT+i}")
        for m in ("quad_perm:[1,0,3,2]", "quad_perm:[2,3,0,1]", "row_half_mirror", "row_mirror"):
            for i in range(8): a(f"v_add_u32_dpp v{SU+i}, v{SU+i}, v{SU+i} {m} {DPPF}")
        for i in range(8): a(f"v_cmp_ne_u32 s[{64+2*(i%4)}:{65+2*(i%4)}], s9, v{SU+i}" ) if i < 4 else None
        a("s_mov_b32 s10, 0")
        for half in range(2):
            if half:
                for i in range(4, 8): a(f"v_cmp_ne_u32 s[{64+2*(i%4)}:{65+2*(i%4)}], s9, v{SU+i}")
            for i in range(4*half, 4*half+4):
                a(f"s_cmp_lg_u64 s[{64+2*(i%4)}:{65+2*(i%4)}], 0\ns_cselect_b32 s5, {1 << i}, 0\ns_or_b32 s10, s10, s5")
        a(f"s_cmp_eq_u32 s10, 0\ns_cbranch_scc1 {Ld}")
        a(f"s_sleep 1\ns_sub_u32 s78, s78, 1\ns_cmp_lg_u32 s78, 0\ns_cbranch_scc1 {Lp}")
        a(f"{Ld}:")
        s.stamp(7)
        a(f"ds_write_b128 v{vLW}, {q(DC)}")
        a("s_waitcnt lgkmcnt(0)\ns_barrier")
        Z = T+12
        for k in range(8): a(f"ds_read_b32 v{Z+k}, v{T+22} offset:{512*k}")
        E = T+24
        s.epi_addr(E, False)
        a(f"v_lshlrev_b32 v{E}, 4, v0")
        a(f"s_lshl_b32 s5, s3, 11\nv_add_u32 v{E+2}, s5, v6")
        a(f"s_lshl_b32 s5, s2, 11\ns_add_u32 s5, s5, {OFF_H4}")
        a("s_waitcnt lgkmcnt(0)")
        for st in (4, 2):
            for i in range(0, st, 2): a(f"v_pk_add_f32 {p2(Z+i)}, {p2(Z+i)}, {p2(Z+st+i)}")
        a(f"v_add_f32 v{Z}, v{Z}, v{Z+1}\nv_cvt_pk_bf16_f32 v{Z}, v{Z}, v{Z}")
        DD = T+28
        for g in range(8):
            ab = T + (g % 2)*4
            for r in range(4): a(f"v_and_b32_dpp v{ab+r}, v{Z}, v{2+r} row_newbcast:{g} {DPPF}")
            for hf in range(2):
                a(f"{MF} {q(DD+4*hf)}, {q(ab)}, {q(UV+8*g+4*hf)}, {'0' if g == 0 else q(DD+4*hf)}")
        a(f"ds_write_b128 v{E+2}, {q(DD)} offset:{0x4000}\nds_write_b128 v{E+2}, {q(DD+4)} offset:{0x4000+1024}")
        a("s_waitcnt lgkmcnt(0)\ns_barrier")
        a(f"s_cmp_ge_u32 s3, 2\ns_cbranch_scc1 L_ya5")
        X = T
        for i in range(4): a(f"ds_read_b64 {p2(X+2*i)}, v{E+3} offset:{0x4000+2048*i}")
        a("s_waitcnt lgkmcnt(0)")
        for st in (4, 2):
            for i in range(0, st, 2): a(f"v_pk_add_f32 {p2(X+i)}, {p2(X+i)}, {p2(X+st+i)}")
        a(f"v_mov_b32 v{X+2}, v{X+1}\nv_mov_b32 v{X+1}, s76\nv_mov_b32 v{X+3}, s76")
        a(f"buffer_store_dwordx4 {q(X)}, v{E}, s[44:47], s5 offen sc1")
        s.stamp(8)
        c['timeout'] = tsave
        a("L_ya5:")
        s.stamp_out()
        a("s_endpgm")
    def gx(s):
        a = s.a; c = s.c; nt = c['nt']; pb = c['pb']
        a("L_X:")
        L1, PV, QF, S = 16, 144, 208, 240
        vTR, vL, vSX, vZ, vE = 8, 9, 10, 11, 12
        a("s_sub_u32 s11, s2, 128")
        a("s_lshl_b32 s8, s11, 17\ns_lshl_b32 s6, s3, 13\ns_add_u32 s8, s8, s6")
        a(f"s_mul_i32 s9, s3, {4*ROW}")
        s.kwait()
        s.srd(52, 28, 8192*2048)
        def dma(i, pace):
            for rr in range(4):
                a(f"s_add_u32 m0, s9, {(i%2)*SLOT + rr*ROW}")
                a(f"s_add_u32 s79, s8, {i*32768 + rr*2048}")
                for hf in range(2):
                    if pace: a(f"s_waitcnt vmcnt({pace-1})")
                    a(f"buffer_load_dwordx4 v6, s[52:55], s79 offen offset:{1024*hf} {nt} lds")
        dma(0, c['px0'])
        s.srd(44, 42, 0x10000000); s.srd(48, 40, 256); s.srd(56, 36, 4096*896)
        s.common2(13)
        a(f"v_lshrrev_b32 v13, 2, v1\nv_mul_u32_u24 v{vTR}, {ROW}, v13\nv_and_b32 v13, 3, v1\nv_lshl_add_u32 v{vTR}, v13, 3, v{vTR}")
        a(f"s_lshl_b32 s5, s3, 9\nv_add_u32 v{vTR}, s5, v{vTR}")
        a(f"v_and_b32 v13, 15, v1\nv_mul_u32_u24 v{vL}, {ROW}, v13\nv_lshrrev_b32 v14, 4, v1\nv_lshl_add_u32 v{vL}, v14, 4, v{vL}\nv_add_u32 v{vL}, s5, v{vL}")
        a(f"v_add_u32 v{vSX}, {2*SLOT}, v6\nv_mov_b32 v{vZ}, 0")
        a(f"v_lshrrev_b32 v15, 5, v1\nv_lshlrev_b32 v15, 3, v15\nv_bfe_u32 v7, v1, 4, 1\nv_add_u32 v15, v15, v7\nv_mul_u32_u24 v15, {H3_C}, v15")
        a(f"v_and_b32 v7, 15, v1\nv_lshl_add_u32 v15, v7, 4, v15")
        a(f"s_mul_i32 s10, s3, {2*H3_C}\ns_lshl_b32 s5, s11, 8\ns_add_u32 s10, s10, s5\ns_add_u32 s10, s10, {OFF_H3}")
        dma(1, c['px'])
        def tr(i, dst):
            for t in range(16): a(f"ds_read_b64_tr_b16 {p2(dst(t))}, v{vTR} offset:{(i%2)*SLOT+32*t}")
        def l1(i):
            for ks in range(8): a(f"ds_read_b128 {q(L1+(i*8+ks)*4)}, v{vL} offset:{(i%2)*SLOT+64*ks}")
        for i in range(4):
            if i == 3 and c['qf']:
                a(f"s_lshl_b32 s6, s3, 13\ns_add_u32 s6, s6, {OFF_QABS}\ns_add_u32 s7, s6, 4096")
                if c['spq']:
                    L = a.label("Lsq"); Ld = a.label("Lsqd")
                    a(f"s_mov_b32 s78, {c['sptime']}\ns_waitcnt lgkmcnt(0)")
                    a(f"{L}:")
                    a("s_load_dwordx16 s[56+8:56+23], s[42:43], s6 glc".replace("56+8", "64").replace("56+23", "79") if False else "s_load_dwordx8 s[64:71], s[42:43], s6 glc")
                    a("s_add_u32 s5, s7, 224\ns_load_dwordx8 s[88:95], s[42:43], s5 glc" if not c['stamp'] else "s_add_u32 s5, s7, 224\ns_load_dwordx4 s[72:75], s[42:43], s5 glc")
                    a("s_waitcnt lgkmcnt(0)")
                    a("s_max_u32 s83, s64, s68")
                    a("s_max_u32 s83, s83, s88\ns_max_u32 s83, s83, s92" if not c['stamp'] else "s_max_u32 s83, s83, s72")
                    a(f"s_cmp_lg_u32 s83, -1\ns_cbranch_scc1 {Ld}")
                    a(f"s_sleep {c['spsleep']}\ns_sub_u32 s78, s78, 1\ns_cmp_lg_u32 s78, 0\ns_cbranch_scc1 {L}")
                    a(f"{Ld}:")
            a(f"s_waitcnt vmcnt({[8, 8, 8, 0][i]})\ns_barrier")
            if c.get('bw') and i in (0, 2): s.stamp(10 + i//2)
            l1(i)
            if i < 2:
                tr(i, lambda t: PV+4*t+2*i)
                a("s_waitcnt lgkmcnt(0)\ns_barrier")
                dma(i+2, c['px'])
            if i == 2:
                L = a.label("Lclr")
                a(f"s_cmp_lg_u32 s3, 0\ns_cbranch_scc1 {L}")
                a(f"v_lshlrev_b32 v13, 3, v1\ns_mov_b32 s5, {OFF_CLR+0x1000}")
                def issue_c():
                    a(f"buffer_load_dwordx2 {p2(S)}, v13, s[44:47], s5 offen sc1")
                    a(f"buffer_load_dword v{vE}, v{vZ}, s[48:51], 0 offen sc1")
                s.poll(issue_c, [(f"v{vE}", [S, S+1])], S+2, S+3, sleep=4)
                a(f"ds_write_b32 v{vSX}, v{vE} offset:12288\ns_waitcnt lgkmcnt(0)")
                a(f"{L}:")
        tsave = c['timeout']
        if c.get('nob'): c['timeout'] = 1
        a(f"ds_read_b32 v{vE}, v{vSX} offset:12288")
        s.stamp(1)
        if c['qf']:
            def issue_q():
                for i in range(8):
                    a(f"buffer_load_dwordx4 {q(QF+4*i)}, v6, s[44:47], {'s6' if i < 4 else 's7'} offen offset:{1024*(i%4)} sc1")
            s.poll_sent(issue_q, list(range(QF, QF+32)), 13, sleep=2)
            a("s_waitcnt lgkmcnt(0)")
            a(f"v_readfirstlane_b32 s76, v{vE}")
            s.stamp(2)
            for ks in range(8):
                for ch in range(4):
                    a(f"{MF} {q(S+4*ch)}, {q(L1+(ch*8+ks)*4)}, {q(QF+4*ks)}, {'0' if ks == 0 else q(S+4*ch)}")
        else:
            a(f"s_lshl_b32 s6, s3, 9\ns_add_u32 s6, s6, {OFF_QABS}\ns_add_u32 s7, s6, {8*QS}")
            a(f"v_lshrrev_b32 v14, 3, v1\nv_mul_u32_u24 v14, {QS}, v14\nv_and_b32 v7, 7, v1\nv_lshl_add_u32 v14, v7, 4, v14")
            a(f"v_lshlrev_b32 v7, 5, v7\nv_bfe_u32 v13, v1, 3, 1\nv_lshl_add_u32 v7, v13, 4, v7\nv_lshrrev_b32 v13, 4, v1\nv_lshl_add_u32 v7, v13, 2, v7")
            def issue_q():
                for i in range(8): a(f"buffer_load_dwordx4 {q(QF+4*i)}, v14, s[44:47], {'s7' if i % 2 else 's6'} offen offset:{128*(i//2)} sc1")
            s.poll_sent(issue_q, list(range(QF, QF+32)), 13, sleep=2)
            a("s_waitcnt lgkmcnt(0)")
            a(f"v_readfirstlane_b32 s76, v{vE}")
            s.stamp(2)
            def mix(kp):
                A_, B_ = QF+8*kp, QF+8*kp+4
                a(f"v_mov_b64 {p2(S)}, {p2(A_)}\nv_mov_b64 {p2(S+2)}, {p2(A_+2)}")
                for r in range(4): a(f"v_mov_b32_dpp v{A_+r}, v{B_+r} row_shr:4 row_mask:0xf bank_mask:0xa")
                for r in range(4): a(f"v_mov_b32_dpp v{B_+r}, v{S+r} row_shl:4 row_mask:0xf bank_mask:0x5")
                for r in range(8): a(f"ds_bpermute_b32 v{A_+r}, v7, v{A_+r}")
            for kp in range(4): mix(kp)
            for ks in range(8):
                a(f"s_waitcnt lgkmcnt({min(15, 4*(7-ks))})")
                for ch in range(4):
                    a(f"{MF} {q(S+4*ch)}, {q(L1+(ch*8+ks)*4)}, {q(QF+4*ks)}, {'0' if ks == 0 else q(S+4*ch)}")
        PV1 = L1
        Lx = a.label("Lsx")
        labs = [a.label("Lsxw") for _ in range(4)]
        for w in range(1, 4): a(f"s_cmp_eq_u32 s3, {w}\ns_cbranch_scc1 {labs[w]}")
        for w in range(4):
            a(f"{labs[w]}:")
            for ch in range(4):
                if ch == w: continue
                k = (w - ch - 1) % 4
                a(f"ds_write_b128 v{vSX}, {q(S+4*ch)} offset:{(ch*3+k)*1024}")
            a(f"v_mov_b64 {p2(QF)}, {p2(S+4*w)}\nv_mov_b64 {p2(QF+2)}, {p2(S+4*w+2)}")
            if w < 3: a(f"s_branch {Lx}")
        a(f"{Lx}:")
        a(f"s_mul_i32 s5, s3, 3072\nv_add_u32 v13, s5, v{vSX}")
        a("s_waitcnt lgkmcnt(0)\ns_barrier")
        for k in range(3): a(f"ds_read_b128 {q(QF+4+4*k)}, v13 offset:{1024*k}")
        tr(2, lambda t: PV1+4*t)
        a("s_waitcnt lgkmcnt(15)\ns_waitcnt lgkmcnt(14)")
        a(f"v_pk_add_f32 {p2(QF)}, {p2(QF)}, {p2(QF+4)}\nv_pk_add_f32 {p2(QF+2)}, {p2(QF+2)}, {p2(QF+6)}")
        a(f"v_pk_add_f32 {p2(QF+8)}, {p2(QF+8)}, {p2(QF+12)}\nv_pk_add_f32 {p2(QF+10)}, {p2(QF+10)}, {p2(QF+14)}")
        a(f"v_pk_add_f32 {p2(QF)}, {p2(QF)}, {p2(QF+8)}\nv_pk_add_f32 {p2(QF+2)}, {p2(QF+2)}, {p2(QF+10)}")
        a(f"ds_write_b128 v13, {q(QF)}")
        a("s_waitcnt lgkmcnt(0)\ns_barrier")
        s.stamp(3)
        SR = S
        for ch in range(4): a(f"ds_read_b128 {q(SR+4*ch)}, v{vSX} offset:{3072*ch}")
        a("s_waitcnt lgkmcnt(0)")
        tr(3, lambda t: PV1+4*t+2)
        M, Lr, TT, P = QF+8, QF+10, QF+12, QF
        a(f"v_max3_f32 v{M}, v{SR}, v{SR+1}, v{SR+2}")
        for i in range(3, 16, 2): a(f"v_max3_f32 v{M}, v{M}, v{SR+i}, v{SR+min(i+1,15)}")
        s.allred_rows("v_max_f32", M, TT)
        a(f"s_mov_b32 s5, {f32(CEXP)}\nv_mul_f32 v{M}, s5, v{M}")
        for i in range(16): a(f"v_fma_f32 v{SR+i}, v{SR+i}, s5, -v{M}")
        for i in range(16): a(f"v_exp_f32 v{SR+i}, v{SR+i}")
        for i in range(8): a(f"v_cvt_pk_bf16_f32 v{P+i}, v{SR+2*i}, v{SR+2*i+1}")
        O = L1+64
        a(f"v_and_b32 v13, 15, v1\nv_mul_u32_u24 v13, {ROW}, v13\nv_lshrrev_b32 v14, 4, v1\nv_lshl_add_u32 v13, v14, 3, v13")
        a(f"s_lshl_b32 s5, s3, 9\nv_add_u32 v13, s5, v13")
        a(f"v_lshrrev_b32 v14, 5, v1\nv_mul_u32_u24 v14, {ROW}, v14\nv_and_b32 v7, 31, v1\nv_lshl_add_u32 v14, v7, 4, v14\nv_add_u32 v14, s5, v14")
        a("s_waitcnt lgkmcnt(0)")
        def fin(t):
            a(f"v_cvt_pk_bf16_f32 v{O+4*t}, v{O+4*t}, v{O+4*t+1}\nv_cvt_pk_bf16_f32 v{O+4*t+1}, v{O+4*t+2}, v{O+4*t+3}")
            a(f"ds_write_b64 v13, {p2(O+4*t)} offset:{32*t}")
        for t in range(16):
            a(f"{MF} {q(O+4*t)}, {q(PV+4*t)}, {q(P)}, 0")
            a(f"{MF} {q(O+4*t)}, {q(PV1+4*t)}, {q(P+4)}, {q(O+4*t)}")
            if t == 0:
                L = a.label("Lst3")
                a(f"s_cmp_lg_u32 s3, 0\ns_cbranch_scc1 {L}")
                for st in (8, 4, 2):
                    for i in range(0, st, 2): a(f"v_pk_add_f32 {p2(SR+i)}, {p2(SR+i)}, {p2(SR+st+i)}")
                a(f"v_add_f32 v{Lr}, v{SR}, v{SR+1}")
                s.allred_rows("v_add_f32", Lr, TT)
                a(f"v_mov_b32 v{M+1}, s76\nv_mov_b32 v{Lr+1}, s76\nv_lshlrev_b32 v{TT}, 11, v1")
                a(f"s_lshl_b32 s5, s11, 4\ns_add_u32 s5, s5, {OFF_ST3}")
                s.exec_set(0xffff, 0)
                a(f"buffer_store_dwordx4 {q(M)}, v{TT}, s[44:47], s5 offen sc1")
                s.exec_all()
                a(f"{L}:")
            if t >= 3: fin(t-3)
        fin(13); fin(14); fin(15)
        a("s_waitcnt lgkmcnt(0)")
        s.stamp(4)
        SQ = L1
        for i in range(8): a(f"ds_read_b128 {q(SQ+4*i)}, v14 offset:{2*ROW*i}")
        a(f"v_and_b32 v13, 15, v1\nv_lshlrev_b32 v13, 1, v13")
        for i in range(8):
            a(f"s_waitcnt lgkmcnt({7-i})")
            a(f"v_and_b32 v{SQ+4*i}, -4, v{SQ+4*i}\nv_add3_u32 v{O+i}, v{SQ+4*i+1}, v{SQ+4*i+2}, v{SQ+4*i+3}\nv_add_u32 v{O+i}, v{O+i}, v{SQ+4*i}")
        for m in ("quad_perm:[1,0,3,2]", "quad_perm:[2,3,0,1]", "row_half_mirror", "row_mirror"):
            for i in range(8): a(f"v_add_u32_dpp v{O+i}, v{O+i}, v{O+i} {m} {DPPF}")
        for i in range(8):
            a(f"v_add_u32 v{O+i}, s76, v{O+i}\nv_bfe_u32 v{O+i}, v{O+i}, v13, 2\nv_or_b32 v{SQ+4*i}, v{SQ+4*i}, v{O+i}")
            a(f"s_add_u32 s79, s10, {i*16*H3_C}")
            a(f"buffer_store_dwordx4 {q(SQ+4*i)}, v15, s[44:47], s79 offen sc1")
        s.stamp(5)
        WOB = [PV+4*t for t in range(8)]; WOA = [PV+32+4*t for t in range(8)]
        T = QF
        a(f"s_mov_b32 s14, s3\ns_mul_i32 s15, s11, {32*896}")
        s.proj_wload(WOB, 13, 56, 15, 14)
        for t in range(8): s.proj_wload_one(t, WOB, 13, 56, 15)
        a("s_lshr_b32 s12, s11, 3\ns_and_b32 s13, s11, 7")
        G = L1+32
        a(f"v_lshrrev_b32 v13, 4, v1\nv_lshlrev_b32 v13, 11, v13\nv_and_b32 v14, 15, v1\nv_lshl_add_u32 v13, v14, 4, v13")
        a(f"s_lshl_b32 s5, s12, 14\ns_lshl_b32 s6, s13, 8\ns_add_u32 s5, s5, s6\ns_add_u32 s5, s5, {OFF_H4}\ns_add_u32 s6, s5, 8192")
        def issue_h4():
            a(f"buffer_load_dwordx4 {q(G)}, v13, s[44:47], s5 offen sc1\nbuffer_load_dwordx4 {q(G+4)}, v13, s[44:47], s6 offen sc1")
        s.spoll(5, 0, c['spn'], 2048*2, c['spk'])
        s.poll(issue_h4, [("s76", [G+1, G+3, G+5, G+7])], G+8, G+9, sleep=c['sleep'])
        s.stamp(6)
        a(f"v_add_f32 v{G}, v{G}, v{G+4}\nv_add_f32 v{G+1}, v{G+2}, v{G+6}")
        a(f"s_mul_i32 s15, s11, {FS}\ns_lshl_b32 s5, s3, 10\ns_add_u32 s15, s15, s5\ns_add_u32 s15, s15, {OFF_FIN+FIN_AB}")
        s.proj_tail(G, WOB, T, 14, 15)
        s.stamp(7)
        c['timeout'] = tsave
        a("s_cmp_ge_u32 s11, 56\ns_cbranch_scc1 L_xend\ns_cmp_ge_u32 s3, 1\ns_cbranch_scc1 L_xend")
        s.final(11, 1, L1+64, QF+16, 8)
        a("L_xend:")
        s.stamp_out()
        a("s_endpgm")
    def ga(s):
        a = s.a; c = s.c; pa = c['pa']
        a("L_A:")
        NS = c['ns']; NL = 2*NS
        Kb, Vb, T, AD = 16, 112, 208, 8
        assert NS <= 12
        NIT = (4096 - 64*4*NS)//8 * (2 if c['c1'] else 1)
        QF, AC, D, TS, MM = T, T+8, T+16, T+24, T+36
        M, Lr, F, FA, TK, TT = MM, MM+1, MM+2, MM+3, MM+4, MM+5
        vZ, vE = T+46, T+47
        a("s_sub_u32 s11, s2, 256\ns_bfe_u32 s9, s11, 0x30004\ns_bfe_u32 s12, s11, 0x10003")
        a("s_lshr_b32 s6, s11, 7\ns_lshl_b32 s6, s6, 3\ns_and_b32 s10, s11, 7\ns_add_u32 s13, s10, s6")
        a("s_lshl_b32 s10, s12, 4\ns_add_u32 s10, s10, s13")
        if c['c1']:
            a("s_lshl_b32 s14, s9, 22")
            a(f"s_lshl_b32 s8, s10, 2\ns_add_u32 s8, s8, s3\ns_mul_i32 s8, s8, {NS*2048}\ns_add_u32 s8, s8, s14")
            a(f"s_add_u32 s14, s14, {128*NS*2048}")
            a(f"s_lshl_b32 s15, s9, 9\ns_add_u32 s15, s15, {OFF_CLR}")
        else:
            a("s_lshl_b32 s14, s9, 22\ns_lshl_b32 s6, s12, 21\ns_add_u32 s14, s14, s6")
            a(f"s_lshl_b32 s8, s13, 2\ns_add_u32 s8, s8, s3\ns_mul_i32 s8, s8, {32768 if c['il'] else NS*2048}\ns_add_u32 s8, s8, s14")
            a(f"s_add_u32 s14, s14, {NS*2048 if c['il'] else 64*NS*2048}")
            a(f"s_lshl_b32 s15, s9, 1\ns_add_u32 s15, s15, s12\ns_lshl_b32 s15, s15, 8\ns_add_u32 s15, s15, {OFF_CLR}")
        a(f"v_mov_b32 v{vZ}, 0")
        s.kv_addr(AD)
        s.common2(T)
        s.kwait()
        s.srd(44, 42, 0x10000000); s.srd(48, 40, 256)
        s.srd(68, 18, 8*8192*512); s.srd(72, 20, 8*8192*512)
        Lj = a.label("Lp1j")
        a(f"s_cmp_{'lt' if c['p1x'] else 'ge'}_u32 s11, 128\ns_cbranch_scc1 {Lj}")
        if c['prioa']: a(f"s_setprio {c['prioa']}")
        s.srd(52, 16, 896); s.srd(56, 22, 448*8192)
        XA, WA, PVv = Vb, Vb+4, T+16
        a("s_and_b32 s13, s11, 127")
        Lc = a.label("Lcz")
        a(f"s_cmp_ge_u32 s13, 8\ns_cbranch_scc1 {Lc}\ns_cmp_lg_u32 s3, 3\ns_cbranch_scc1 {Lc}")
        a(f"s_lshl_b32 s6, s13, 9\ns_add_u32 s6, s6, {OFF_CLR}\nv_lshlrev_b32 v{T}, 8, v1")
        s.exec_set(3, 0)
        a(f"buffer_store_dword v{vZ}, v{T}, s[44:47], s6 offen sc1")
        s.exec_all()
        a(f"{Lc}:")
        s.p1_setup(13, T, PVv)
        s.p1_loads(XA, WA, 52, 56, PVv)
        s.p1_setup2(T, PVv)
        a("s_waitcnt vmcnt(3)")
        a(f"buffer_load_dword v{vE}, v{vZ}, s[48:51], 0 offen sc1")
        a("s_waitcnt vmcnt(0)")
        s.get_epoch(vE, vZ)
        a("s_setprio 3")
        s.p1_compute(XA, WA, T, PVv, 0x1000, OFF_QA)
        a(f"s_setprio 0")
        a(f"{Lj}:")
        s.stamp(6)
        vK, vV = AD, AD+1
        def ld(n, reg, voff, srd, pace):
            g, hf = n//2, n % 2
            gi = n + (NL if srd == 72 else 0)
            px_ = c['pax'] if gi < c['nax'] else pace
            py_ = c['pa0'] if gi < c['nay'] else pace
            if px_ != py_:
                lo, cond = (px_, 'lt') if px_ < py_ else (py_, 'ge')
                Lk = a.label("Lpc")
                a(f"s_cmp_{cond}_u32 s11, 128\ns_cbranch_scc1 {Lk}\ns_waitcnt vmcnt({lo-1})\n{Lk}:")
            a(f"s_add_u32 s79, s8, {(g//2)*4096}")
            a(f"s_waitcnt vmcnt({max(px_, py_)-1})")
            a(f"buffer_load_dwordx4 {q(reg)}, v{voff}, s[{srd}:{srd+3}], s79 offen offset:{(g%2)*2048+hf*256} {c['nt']}")
            if c.get('bw'):
                m = {5: 7, 13: 8, 2*NL-1: 9}
                if gi in m: s.stamp(m[gi])
        na0 = 0
        v1n = c['v1']
        a(f"v_bfe_u32 v{AD+4}, v1, 3, 1\nv_lshlrev_b32 v{AD+4}, 9, v{AD+4}")
        a(f"v_lshl_add_u32 v{AD+4}, v{AD+2}, 6, v{AD+4}\nv_lshl_add_u32 v{AD+4}, v{AD+3}, 4, v{AD+4}")
        assert na0 <= NL-8
        for n in range(na0, NL):
            ld(n, Kb+4*n, vK, 68, pa)
            if n == NL-8: a(f"buffer_load_dword v{vE}, v{vZ}, s[48:51], 0 offen sc1")
        a("s_waitcnt vmcnt(7)")
        s.get_epoch(vE, vZ)
        def vfirst():
            for n in range(v1n): ld(n, Vb+4*n, vV, 72, pa)
        a(f"s_lshl_b32 s6, s9, 12\ns_lshl_b32 s5, s3, 10\ns_add_u32 s6, s6, s5\ns_add_u32 s6, s6, {OFF_QA}")
        a(f"v_lshlrev_b32 v{T+20}, 2, v0")
        s.gather_q(T, 6, T+20, 1, vfirst, v1n, sleep=c['qsleep'])
        a("s_barrier")
        s.stamp(1)
        a(f"ds_read_b128 {q(QF)}, v{AD+4}\nds_read_b128 {q(QF+4)}, v{AD+4} offset:256")
        a(f"s_mov_b32 s13, {f32(CEXP)}")
        a(f"s_waitcnt vmcnt({v1n}) lgkmcnt(0)")
        s.stamp(2)
        nv = v1n
        SA = c['sat']
        if c['ystop']:
            a(f"s_cmp_lt_u32 s11, 128\ns_cselect_b32 s82, {NIT-c['ystop']}, -1\ns_mov_b32 s83, 0")
        def ticket():
            if SA:
                if c['ystop']:
                    Lk = a.label("Lys")
                    a(f"s_cmp_ge_u32 s83, s82\ns_mov_b32 s83, -1\ns_cbranch_scc1 {Lk}")
                    a(f"s_mov_b32 s83, 1\ns_atomic_add s83, s[42:43], s15 glc\n{Lk}:")
                else:
                    a("s_mov_b32 s83, 1\ns_atomic_add s83, s[42:43], s15 glc")
                return
            a(f"v_mov_b32 v{TK}, 1")
            s.exec_set(1, 0)
            a(f"buffer_atomic_add v{TK}, v{vZ}, s[44:47], s15 offen sc0 sc1")
            s.exec_all()
        tk_at = NL - c['tka']
        def more(k=1):
            nonlocal nv
            for _ in range(k):
                if nv < NL:
                    if nv == max(tk_at, v1n): ticket()
                    ld(nv, Vb+4*nv, vV, 72, pa); nv += 1
        def dreg(i): return D+4*i if i < 2 else Kb+8*(i-2)
        for i in range(NS):
            a(f"{MF} {q(dreg(i))}, {q(Kb+i*8)}, {q(QF)}, 0")
            a(f"{MF} {q(dreg(i))}, {q(Kb+i*8+4)}, {q(QF+4)}, {q(dreg(i))}")
            if i % 6 == 5: more()
        for r in range(4):
            for i in range(NS):
                if r == 0: a(f"v_mov_b32_dpp v{TS+i}, v{dreg(i)} quad_perm:[0,0,0,0] {DPPF}")
                else: a(f"v_add_f32_dpp v{TS+i}, v{dreg(i)+r}, v{TS+i} quad_perm:[{r},{r},{r},{r}] {DPPF}")
        more()
        for i in range(0, NS, 2): a(f"v_cvt_pk_bf16_f32 v{D+(i//2)}, v{TS+i}, v{TS+i+1}")
        for i in range(0, NS, 2): a(f"v_lshlrev_b32 v{TS+i}, 16, v{D+i//2}\nv_and_b32 v{TS+i+1}, 0xffff0000, v{D+i//2}")
        a(f"v_max3_f32 v{M}, v{TS}, v{TS+1}, v{TS+2}")
        for i in range(3, NS, 2): a(f"v_max3_f32 v{M}, v{M}, v{TS+i}, v{TS+min(i+1,NS-1)}")
        s.allred_rows("v_max_f32", M, TT)
        a(f"v_mul_f32 v{M}, s13, v{M}")
        for i in range(NS): a(f"v_fma_f32 v{TS+i}, v{TS+i}, s13, -v{M}")
        more()
        for i in range(NS): a(f"v_exp_f32 v{TS+i}, v{TS+i}")
        a(f"v_add_f32 v{Lr}, v{TS}, v{TS+1}")
        for i in range(2, NS): a(f"v_add_f32 v{Lr}, v{Lr}, v{TS+i}")
        for i in range(NS): a(f"v_cvt_pk_bf16_f32 v{TS+i}, v{TS+i}, v{TS+i}")
        s.stamp(3)
        done = 0
        def pv(i):
            ab = D + (i % 2)*4
            for r in range(4): a(f"v_and_b32 v{ab+r}, v{TS+i}, v{2+r}")
            for hf in range(2):
                a(f"{MF} {q(AC+4*hf)}, {q(ab)}, {q(Vb+8*i+4*hf)}, {'0' if i == 0 else q(AC+4*hf)}")
        def pv_upto(k):
            nonlocal done
            while done < NS and 2*done+2 <= k:
                pv(done); done += 1
        while nv < NL:
            more()
            pv_upto(nv - 1 - (pa-1))
        ntk = NL - max(tk_at, v1n)
        BUF = [Kb, Kb+32]
        Lend = a.label("Lae")
        def take(Lno, younger):
            if SA: a("s_waitcnt lgkmcnt(0)\ns_mov_b32 s5, s83")
            else:
                a(f"s_waitcnt vmcnt({younger})")
                a(f"v_readfirstlane_b32 s5, v{TK}")
            a(f"s_cmp_ge_u32 s5, {NIT}\ns_cbranch_scc1 {Lno}")
            if c['pdy']:
                a(f"s_sub_u32 s7, s5, {c['ylo']}\ns_cmp_lt_u32 s7, {c['yhi']-c['ylo']}\ns_cselect_b32 s7, 1, 0\ns_cmp_lt_u32 s11, 128\ns_cselect_b32 s7, s7, 0")
            if c['il']: a(f"s_and_b32 s6, s5, 63\ns_lshl_b32 s6, s6, 15\ns_lshr_b32 s5, s5, 6\ns_lshl_b32 s5, s5, 12\ns_add_u32 s79, s14, s5\ns_add_u32 s79, s79, s6")
            else: a(f"s_lshl_b32 s5, s5, 12\ns_add_u32 s79, s14, s5")
        def item_loads(B):
            if c.get('bw'): a("s_add_u32 s94, s94, 1")
            for n in range(8):
                if n == (c['tkn'] if SA else 0): ticket()
                if c['pdy']:
                    Lk = a.label("Lpy")
                    a(f"s_cmp_eq_u32 s7, 0\ns_cbranch_scc1 {Lk}\ns_waitcnt vmcnt({c['pdy']-1})\n{Lk}:")
                if c['pdx'] and c['pdx'] < c['pd']:
                    Lk = a.label("Lpd")
                    a(f"s_cmp_lt_u32 s11, 128\ns_cbranch_scc1 {Lk}\ns_waitcnt vmcnt({c['pdx']-1})\n{Lk}:")
                a(f"s_waitcnt vmcnt({c['pd']-1})")
                vo, srd = (vK, 68) if n < 4 else (vV, 72)
                k = n % 4
                a(f"buffer_load_dwordx4 {q(B+4*n)}, v{vo}, s[{srd}:{srd+3}], s79 offen offset:{(k//2)*2048+(k%2)*256} {c['nt']}")
        def item_compute(B, last):
            if last:
                woa()
                a("s_waitcnt vmcnt(12)")
            for i in range(2):
                a(f"{MF} {q(D+4*i)}, {q(B+8*i)}, {q(QF)}, 0")
                a(f"{MF} {q(D+4*i)}, {q(B+8*i+4)}, {q(QF+4)}, {q(D+4*i)}")
            for r in range(4):
                for i in range(2):
                    if r == 0: a(f"v_mov_b32_dpp v{TS+i}, v{D+4*i} quad_perm:[0,0,0,0] {DPPF}")
                    else: a(f"v_add_f32_dpp v{TS+i}, v{D+4*i+r}, v{TS+i} quad_perm:[{r},{r},{r},{r}] {DPPF}")
            a(f"v_cvt_pk_bf16_f32 v{TT}, v{TS}, v{TS+1}\nv_lshlrev_b32 v{TS}, 16, v{TT}\nv_and_b32 v{TS+1}, 0xffff0000, v{TT}")
            a(f"v_max_f32 v{TS+2}, v{TS}, v{TS+1}")
            s.allred_rows("v_max_f32", TS+2, TT)
            a(f"v_mul_f32 v{TS+2}, s13, v{TS+2}\nv_max_f32 v{TS+2}, v{TS+2}, v{M}")
            a(f"v_sub_f32 v{F}, v{M}, v{TS+2}\nv_fma_f32 v{TS}, v{TS}, s13, -v{TS+2}\nv_fma_f32 v{TS+1}, v{TS+1}, s13, -v{TS+2}")
            a(f"v_exp_f32 v{F}, v{F}\nv_exp_f32 v{TS}, v{TS}\nv_exp_f32 v{TS+1}, v{TS+1}\nv_mov_b32 v{M}, v{TS+2}")
            a(f"v_fma_f32 v{Lr}, v{Lr}, v{F}, v{TS}")
            a(f"v_mov_b32_dpp v{FA}, v{F} row_newbcast:0 row_mask:0x3 bank_mask:0xf")
            a(f"v_add_f32 v{Lr}, v{Lr}, v{TS+1}")
            a(f"v_cvt_pk_bf16_f32 v{TS}, v{TS}, v{TS}")
            a(f"v_mov_b32_dpp v{FA}, v{F} row_newbcast:8 row_mask:0xc bank_mask:0xf")
            a(f"v_cvt_pk_bf16_f32 v{TS+1}, v{TS+1}, v{TS+1}")
            for k in range(8): a(f"v_mul_f32 v{AC+k}, v{AC+k}, v{FA}")
            for i in range(2):
                for r in range(4): a(f"v_and_b32 v{D+4*i+r}, v{TS+i}, v{2+r}")
            if last: a("s_waitcnt vmcnt(8)")
            for i in range(2):
                for hf in range(2):
                    a(f"{MF} {q(AC+4*hf)}, {q(D+4*i)}, {q(B+16+8*i+4*hf)}, {q(AC+4*hf)}")
        E = Kb+64
        s.epi_addr(E, True)
        a(f"v_bfe_u32 v{E+2}, v0, 4, 4\nv_mul_u32_u24 v{E+2}, {HA_U}, v{E+2}")
        a(f"v_and_b32 v{E}, 15, v0\nv_lshl_add_u32 v{E+2}, v{E}, 4, v{E+2}")
        a(f"s_mul_i32 s12, s9, {16*HA_U}\ns_lshl_b32 s6, s10, 8\ns_add_u32 s12, s12, s6\ns_add_u32 s12, s12, {OFF_HA}")
        a(f"s_lshl_b32 s5, s3, 11\nv_add_u32 v{AD+4}, s5, v6")
        a(f"v_bfe_u32 v{AD+6}, v1, 3, 1\nv_lshlrev_b32 v{AD+6}, 5, v{AD+6}\ns_lshl_b32 s5, s3, 3\nv_add_u32 v{AD+7}, s5, v{AD+6}")
        a(f"v_lshrrev_b32 v{AD+5}, 7, v0\nv_lshlrev_b32 v{AD+5}, 5, v{AD+5}")
        a(f"s_lshl_b32 s10, s10, 7\ns_lshl_b32 s5, s9, 12\ns_add_u32 s10, s10, s5\ns_lshr_b32 s5, s3, 1\ns_lshl_b32 s5, s5, 4\ns_add_u32 s10, s10, s5\ns_add_u32 s10, s10, {OFF_STA}")
        Z = E+4
        a(f"v_mov_b32 v{Z+17}, s76\nv_mov_b32 v{Z+19}, s76\nv_mov_b32 v{Z+21}, s76\nv_mov_b32 v{Z+23}, s76")
        WOA = [Vb+4*t for t in range(8)]
        assert done >= 4
        s.srd(60, 24, 4096*896)
        vWO = Z+24
        a(f"s_and_b32 s97, s11, 127\ns_mul_i32 s96, s97, {32*896}")
        s.proj_wload(WOA, vWO, 60, 96, 3)
        a(f"s_cmp_lt_u32 s11, 128\ns_cselect_b32 s5, 0x4000000, 0\nv_add_u32 v{vWO}, s5, v{vWO}")
        def woa():
            for t in range(8): s.proj_wload_one(t, WOA, vWO, 60, 96)
        Ln0 = a.label("Ln0"); L0 = a.label("Ld0"); Lf0 = a.label("Lf0"); Lf1 = a.label("Lf1")
        d0 = done
        if c['aprio']: a(f"s_setprio {c['aprio']}")
        take(Ln0, ntk)
        item_loads(BUF[0])
        if c['tkn'] > 8: a(f"s_waitcnt vmcnt({c['tkn']})"); ticket()
        a(f"s_waitcnt vmcnt({8 if SA else 9})")
        if c['tkn'] == 8: ticket()
        for i in range(d0, NS): pv(i)
        a(f"{L0}:")
        take(Lf0, 8)
        item_loads(BUF[1])
        if c['tkn'] > 8: a(f"s_waitcnt vmcnt({c['tkn']})"); ticket()
        a(f"s_waitcnt vmcnt({8 if SA else 9})")
        if c['tkn'] == 8: ticket()
        item_compute(BUF[0], False)
        take(Lf1, 8)
        item_loads(BUF[0])
        if c['tkn'] > 8: a(f"s_waitcnt vmcnt({c['tkn']})"); ticket()
        a(f"s_waitcnt vmcnt({8 if SA else 9})")
        if c['tkn'] == 8: ticket()
        item_compute(BUF[1], False)
        a(f"s_branch {L0}")
        a(f"{Ln0}:")
        woa()
        for i in range(d0, NS):
            a(f"s_waitcnt vmcnt({NL-2*(i+1)+8})")
            pv(i)
        a(f"s_branch {Lend}")
        a(f"{Lf0}:")
        item_compute(BUF[0], True)
        a(f"s_branch {Lend}")
        a(f"{Lf1}:")
        item_compute(BUF[1], True)
        a(f"{Lend}:")
        s.allred_rows("v_add_f32", Lr, TT)
        a(f"ds_write_b64 v{AD+7}, {p2(M)} offset:{0x800}")
        s.stamp(4)
        a(f"ds_write_b128 v{AD+4}, {q(AC)} offset:{0x1000}\nds_write_b128 v{AD+4}, {q(AC+4)} offset:{0x1000+1024}")
        a("s_waitcnt lgkmcnt(0)\ns_barrier")
        Y = Z+8
        a(f"ds_read_b128 {q(Y)}, v{AD+5} offset:{0x800}\nds_read_b128 {q(Y+4)}, v{AD+5} offset:{0x810}")
        for i in range(4): a(f"ds_read_b64 {p2(Z+2*i)}, v{E+3} offset:{0x1000+2048*i}")
        a("s_waitcnt lgkmcnt(4)")
        a(f"v_max3_f32 v{Z+20}, v{Y}, v{Y+2}, v{Y+4}\nv_max_f32 v{Z+20}, v{Z+20}, v{Y+6}")
        for k in range(4): a(f"v_sub_f32 v{Y+2*k}, v{Y+2*k}, v{Z+20}")
        for k in range(4): a(f"v_exp_f32 v{Y+2*k}, v{Y+2*k}")
        a("s_waitcnt lgkmcnt(0)")
        for k in range(4):
            op = "v_mul_f32" if k == 0 else "v_fmac_f32"
            a(f"{op} v{Z+16}, v{Y+2*k}, v{Z+2*k}\n{op} v{Z+18}, v{Y+2*k}, v{Z+2*k+1}")
        a(f"buffer_store_dwordx4 {q(Z+16)}, v{E+2}, s[44:47], s12 offen sc1")
        Lx = a.label("Lax")
        a(f"s_bitcmp1_b32 s3, 0\ns_cbranch_scc1 {Lx}")
        for k in range(4):
            op = "v_mul_f32" if k == 0 else "v_fmac_f32"
            a(f"{op} v{Z+22}, v{Y+2*k}, v{Y+2*k+1}")
        s.exec_set(1, 0)
        a(f"buffer_store_dwordx4 {q(Z+20)}, v{vZ}, s[44:47], s10 offen sc1")
        s.exec_all()
        a(f"{Lx}:")
        s.stamp(5)
        a("s_cmp_lt_u32 s11, 128\ns_cbranch_scc1 L_afin")
        s.a5(97, Kb, T, WOA)
        a("s_branch L_aend")
        a("L_afin:")
        a("s_cmp_ge_u32 s11, 56\ns_cbranch_scc1 L_aend\ns_cmp_ge_u32 s3, 1\ns_cbranch_scc1 L_aend")
        s.final(11, 0, Kb, T, 10)
        a("L_aend:")
        s.stamp_out()
        a("s_endpgm")
    def build(s):
        a = s.a
        s.prologue()
        s.gy(); s.gx(); s.ga()
        a("L_end:\ns_endpgm")
        body = a.finish()
        import re
        if s.c.get('ldsys'): body = re.sub(r"(buffer_load_dword\S* .* offen(?: offset:\d+)?) sc1", r"\1 sc0 sc1", body)
        if s.c.get('stsys'): body = re.sub(r"(buffer_store_dword\S* .* offen(?: offset:\d+)?) sc1", r"\1 sc0 sc1", body)
        if s.c.get('stnt'): body = re.sub(r"(buffer_store_dword\S* .* offen(?: offset:\d+)?) sc1", r"\1 sc1 nt", body)
        if s.c.get('ldnt'): body = re.sub(r"(buffer_load_dword\S* .* offen(?: offset:\d+)?) sc1", r"\1 sc1 nt", body)
        hdr = open("concat_heads__gqa_block_cached__compressed_kv_cla__decode.s.ref").read().split("; @launch")[0]
        out = hdr + "; @launch grid=(512,1,1) block=(256,1,1) lds=81920\n"
        out += "; generated by my own generator script (gen2.py)\n"
        out += f'.amdgcn_target "amdgcn-amd-amdhsa--gfx950"\n.text\n.globl {KN}\n.p2align 8\n.type {KN},@function\n{KN}:\n'
        out += body
        out += f""".section .rodata,"a"
.p2align 6
.amdhsa_kernel {KN}
  .amdhsa_next_free_vgpr 256
  .amdhsa_next_free_sgpr 102
  .amdhsa_accum_offset 256
  .amdhsa_group_segment_fixed_size 0
  .amdhsa_kernarg_size 112
  .amdhsa_user_sgpr_count 2
  .amdhsa_user_sgpr_kernarg_segment_ptr 1
  .amdhsa_system_sgpr_workgroup_id_x 1
.end_amdhsa_kernel
"""
        return out
if __name__ == "__main__":
    from build import build
    name = sys.argv[1]
    cfg = {}
    for kv in sys.argv[2:]:
        k, v = kv.split("=")
        cfg[k] = v if k == "nt" else int(v)
    open(name, "w").write(Gen2(**cfg).build())
    print(build(name))
```

```python
import sys, math, struct
from asmlib import Asm
from gen import Gen, q, p2, f32, DPPF, KN, CEXP
OFF_QB, OFF_QA, OFF_QABS, OFF_CLR, OFF_ST3, OFF_STA, OFF_H4, OFF_HA, OFF_FIN, OFF_H3 = \
    0x0, 0x10000, 0x20000, 0x2c000, 0x30000, 0x38000, 0x40000, 0x80000, 0x200000, 0x400000
FIN_CG = 8192+128
FS = 4096+128; FIN_AB = 128*FS
QS = 2048+128
HA_U = 8192+128
H3_C = 32768+256
OFF_STAMP = 0x8000000
OFF_CHK = 0x1A0000
ROW = 2080; SLOT = 16*ROW
import gen as G1
G1.FIN_CG = FIN_CG
MF = "v_mfma_f32_16x16x32_bf16"

class Gen2(Gen):
    def __init__(s, **cfg):
        s.c = dict(stamp=False, nt="nt", sleep=2, timeout=100000, rnd=True, pa=8, pb=8, prio=2, prioa=0, n1=7, pu=8, px=8, pax=3, nax=6, nay=4, p1x=1, a5y=1, dwb=1, pdy=0, ylo=0, yhi=192, aprio=0, ystop=0, pw=0, ton=3, tok=3, tfn=3, tfk=3, spk=3, dwo=1, qf=0, spq=0, sp=1, sptime=2000, spsleep=2, spn=3, il=0, sat=1, tkn=6, xx=0, pdx=0, c1=0, ssleep=2, ns=10, tka=3, pd=9, qsleep=6, px0=4, v1=8, fsleep=2, pf=0, pa0=1, na0=4, na1=6, lead=10, h3d=0)
        s.c.update(cfg)
        s.a = Asm()
    def stamp_out(s):
        if not s.c['stamp']: return
        a = s.a
        a("s_mov_b64 exec, -1\nv_mov_b32 v8, 0")
        for k in range(12): a(f"v_writelane_b32 v8, s{84+k}, {k}")
        a("v_lshlrev_b32 v9, 2, v1")
        a("s_lshl_b32 s4, s2, 2\ns_add_u32 s4, s4, s3\ns_lshl_b32 s4, s4, 6")
        a(f"s_add_u32 s4, s4, {OFF_STAMP}")
        a("s_mov_b32 exec_lo, 0xffff\ns_mov_b32 exec_hi, 0")
        a("buffer_store_dword v8, v9, s[44:47], s4 offen")
    def prologue(s):
        a = s.a
        a("s_cmp_ge_u32 s2, 512\ns_cbranch_scc1 L_end")
        a("s_load_dwordx16 s[16:31], s[0:1], 0\ns_load_dwordx8 s[32:39], s[0:1], 64\ns_load_dwordx4 s[40:43], s[0:1], 96")
        a("s_memrealtime s[4:5]")
        a("v_lshrrev_b32 v7, 6, v0\nv_and_b32 v1, 63, v0")
        a("v_readfirstlane_b32 s3, v7\nv_lshlrev_b32 v6, 4, v1")
        if s.c['xx']:
            a("s_lshr_b32 s6, s2, 6\ns_cmp_eq_u32 s6, 3\ns_cselect_b32 s7, 192, 0\ns_add_u32 s2, s2, s7\ns_cmp_eq_u32 s6, 6\ns_cselect_b32 s7, 192, 0\ns_sub_u32 s2, s2, s7")
        if s.c['pf']:
            a(f"s_cmp_lt_u32 s2, {512-s.c['pf']}\ns_cbranch_scc1 L_nopf")
            a("s_getpc_b64 s[6:7]\ns_and_b32 s6, s6, 0xffffff00")
            a(f"v_lshlrev_b32 v9, 7, v0\nv_min_u32 v9, L_end-{KN}, v9\nglobal_load_dword v200, v9, s[6:7]")
            a("L_nopf:")
        a("s_cmp_ge_u32 s2, 256\ns_cbranch_scc1 L_A")
        if s.c['prio']: a(f"s_setprio {s.c['prio']}")
        a("s_cmp_ge_u32 s2, 128\ns_cbranch_scc1 L_X")
    def kwait(s):
        a = s.a
        a("s_waitcnt lgkmcnt(0)")
        a("s_or_b32 s77, s4, 1")
        if s.c['stamp']:
            for k in range(12): a(f"s_mov_b32 s{84+k}, 0")
            a("s_mov_b32 s84, s4")
    def common2(s, t):
        a = s.a
        a(f"v_and_b32 v{t}, 1, v1\nv_lshlrev_b32 v{t}, 4, v{t}\nv_mov_b32 v{t+1}, 0xffff\nv_lshlrev_b32 v{t}, v{t}, v{t+1}")
        a(f"v_bfe_u32 v{t+1}, v1, 1, 2")
        for r in range(4):
            a(f"v_cmp_eq_u32 vcc, {r}, v{t+1}\nv_cndmask_b32 v{2+r}, 0, v{t}, vcc")
    def get_epoch(s, vE, vZ):
        a = s.a
        L = a.label("Lge"); Ld = a.label("Lged")
        a(f"s_mov_b32 s78, {s.c['timeout']}")
        a(f"{L}:")
        a(f"v_readfirstlane_b32 s76, v{vE}")
        a(f"s_cmp_lg_u32 s76, 0\ns_cbranch_scc1 {Ld}")
        a(f"buffer_load_dword v{vE}, v{vZ}, s[48:51], 0 offen sc1\ns_waitcnt vmcnt(0)")
        a(f"s_sub_u32 s78, s78, 1\ns_cmp_lg_u32 s78, 0\ns_cbranch_scc1 {L}")
        a(f"{Ld}:")
    def check_tags(s, groups, t0, t1):
        if len(groups) == 1 and groups[0][0][0] == 's':
            a = s.a; exp, tags = groups[0]
            assert len(tags) % 2 == 0
            acc = []
            for k in range(0, len(tags), 2):
                d = (t0, t1)[(k//2) % 2]
                if k < 4: a(f"v_bitop3_b32 v{d}, v{tags[k]}, v{tags[k+1]}, {exp} bitop3:0x7e")
                else:
                    a(f"v_bitop3_b32 v{tags[k]}, v{tags[k]}, v{tags[k+1]}, {exp} bitop3:0x7e"); acc.append(tags[k])
            if len(tags) > 2: acc = [t1] + acc
            for k in range(0, len(acc), 2):
                y = acc[k+1] if k+1 < len(acc) else acc[k]
                a(f"v_or3_b32 v{t0}, v{t0}, v{acc[k]}, v{y}")
            a(f"v_cmp_ne_u32 vcc, 0, v{t0}\ns_cmp_eq_u64 vcc, 0")
        else:
            Gen.check_tags(s, groups, t0, t1)
    def spoll(s, soff, extra, n=1, stride=0, need=None):
        if not n: return
        if not s.c['sp']: return
        a = s.a
        L = a.label("Lsp"); Ld = a.label("Lspd")
        a(f"s_mov_b32 s78, {s.c['sptime']}")
        for k in range(n): a(f"s_add_u32 s{64+k}, s{soff}, {extra+4+k*stride}")
        a(f"{L}:")
        for k in range(n): a(f"s_load_dword s{68+k}, s[42:43], s{64+k} glc")
        a("s_waitcnt lgkmcnt(0)")
        a("s_mov_b32 s83, 0")
        for k in range(n): a(f"s_cmp_eq_u32 s{68+k}, s76\ns_addc_u32 s83, s83, 0")
        a(f"s_cmp_ge_u32 s83, {need or n}\ns_cbranch_scc1 {Ld}")
        a(f"s_sleep {s.c['spsleep']}\ns_sub_u32 s78, s78, 1\ns_cmp_lg_u32 s78, 0\ns_cbranch_scc1 {L}")
        a(f"{Ld}:")
    def poll_sent(s, issue, regs, t0, sleep=None, pre_issued=False):
        a = s.a
        L = a.label("Lps"); Ld = a.label("Lpsd")
        a(f"s_mov_b32 s78, {s.c['timeout']}")
        Lw = a.label("Lpsw")
        if pre_issued: a(f"s_branch {Lw}")
        a(f"{L}:")
        issue()
        a(f"{Lw}:")
        a("s_waitcnt vmcnt(0)")
        a(f"v_max3_u32 v{t0}, v{regs[0]}, v{regs[1]}, v{regs[2]}")
        rest = regs[3:]
        for i in range(0, len(rest), 2):
            y = rest[i+1] if i+1 < len(rest) else rest[i]
            a(f"v_max3_u32 v{t0}, v{t0}, v{rest[i]}, v{y}")
        a(f"v_cmp_eq_u32 vcc, -1, v{t0}")
        a(f"s_cbranch_vccz {Ld}")
        sl = s.c['sleep'] if sleep is None else sleep
        if sl: a(f"s_sleep {sl}")
        a(f"s_sub_u32 s78, s78, 1\ns_cmp_lg_u32 s78, 0\ns_cbranch_scc1 {L}")
        a(f"{Ld}:")
    def gather_q(s, T, soff, lds, n, between=None, nb=0, sleep=1):
        a = s.a
        a(f"s_add_u32 s7, s{soff}, 0x8000")
        def issue():
            for k in range(n):
                a(f"buffer_load_dwordx4 {q(T+8*k)}, v6, s[44:47], s{soff} offen offset:{1024*k} sc1")
                a(f"buffer_load_dwordx4 {q(T+8*k+4)}, v6, s[44:47], s7 offen offset:{1024*k} sc1")
        grp = [("s76", [T+4*k+j for k in range(2*n) for j in (1, 3)])]
        if between:
            Lok = a.label("Lgq")
            issue(); between()
            a(f"s_waitcnt vmcnt({nb})")
            s.check_tags(grp, T+8*n, T+8*n+1)
            a(f"s_cbranch_scc1 {Lok}")
            s.poll(issue, grp, T+8*n, T+8*n+1, sleep=sleep)
            a(f"{Lok}:")
        else:
            s.poll(issue, grp, T+8*n, T+8*n+1, sleep=sleep)
        for k in range(n):
            b = T+8*k
            a(f"v_add_f32 v{b}, v{b}, v{b+4}\nv_add_f32 v{b+2}, v{b+2}, v{b+6}\nv_cvt_pk_bf16_f32 v{b}, v{b}, v{b+2}")
            a(f"ds_write_b32 v{lds}, v{b} offset:{256*k}")
        a("s_waitcnt lgkmcnt(0)")
    def epi_addr(s, E, two_heads):
        a = s.a
        a(f"v_bfe_u32 v{E+3}, v0, 6, 1\nv_lshlrev_b32 v{E+3}, 10, v{E+3}")
        if two_heads: a(f"v_bfe_u32 v{E+1}, v0, 7, 1\nv_lshl_add_u32 v{E+3}, v{E+1}, 9, v{E+3}")
        a(f"v_bfe_u32 v{E+1}, v0, 1, 1\nv_lshl_add_u32 v{E+3}, v{E+1}, 8, v{E+3}")
        a(f"v_bfe_u32 v{E+1}, v0, 2, 4\nv_lshl_add_u32 v{E+3}, v{E+1}, 4, v{E+3}")
        a(f"v_and_b32 v{E+1}, 1, v0\nv_lshl_add_u32 v{E+3}, v{E+1}, 3, v{E+3}")
    def p1_setup(s, sI, T, V):
        a = s.a
        vX, vW, vSA, vSB, vLW, vRD, vPB = range(V, V+7)
        a(f"s_and_b32 s100, s{sI}, 7\ns_lshl_b32 s100, s100, 3\ns_bfe_u32 s6, s{sI}, 0x30003\ns_add_u32 s100, s100, s6\ns_lshr_b32 s101, s{sI}, 6")
        a("s_mul_i32 s96, s101, 224\ns_mul_i32 s6, s3, 56\ns_add_u32 s96, s96, s6\ns_lshl_b32 s97, s96, 1")
        a("s_lshl_b32 s96, s96, 13\ns_lshl_b32 s6, s100, 7\ns_add_u32 s96, s96, s6")
        a(f"v_lshrrev_b32 v{T}, 3, v1\nv_mul_u32_u24 v{vX}, 14, v{T}\nv_and_b32 v{vX}, 0x7c, v{vX}")
        a(f"v_mul_u32_u24 v{vW}, {7*8192}, v{T}\nv_and_b32 v{T+1}, 7, v1\nv_lshl_add_u32 v{vW}, v{T+1}, 4, v{vW}")
    def p1_loads(s, X, W, srdX, srdW, V):
        a = s.a
        a(f"buffer_load_dwordx4 {q(X)}, v{V}, s[{srdX}:{srdX+3}], s97 offen")
        for i in range(7):
            a(f"s_add_u32 s79, s96, {i*8192}")
            a(f"buffer_load_dwordx4 {q(W+4*i)}, v{V+1}, s[{srdW}:{srdW+3}], s79 offen {s.c['nt']}")
    def p1_setup2(s, T, V):
        a = s.a
        vX, vW, vSA, vSB, vLW, vRD, vPB = range(V, V+7)
        a(f"s_lshl_b32 s100, s100, 9\ns_lshl_b32 s101, s101, 15\ns_add_u32 s100, s100, s101")
        a(f"v_bfe_u32 v{T}, v1, 3, 1\nv_cmp_eq_u32 vcc, 1, v{T}")
        a(f"v_mov_b32 v{T+8}, 0x01000100\nv_mov_b32 v{T+9}, 0x03020302\nv_mov_b32 v{T+10}, 0x05040504")
        a(f"v_cndmask_b32 v{vSA}, v{T+8}, v{T+9}, vcc\nv_cndmask_b32 v{vSB}, v{T+9}, v{T+10}, vcc")
        a(f"s_lshl_b32 s5, s3, 10\nv_add_u32 v{vLW}, s5, v6")
        a(f"v_and_b32 v{T+3}, 3, v1")
        a(f"v_lshrrev_b32 v{vRD}, 5, v1\nv_lshlrev_b32 v{vRD}, 11, v{vRD}\nv_bfe_u32 v{T}, v1, 1, 1\nv_lshl_add_u32 v{vRD}, v{T}, 8, v{vRD}")
        a(f"v_bfe_u32 v{T}, v1, 2, 3\nv_lshl_add_u32 v{vRD}, v{T}, 4, v{vRD}\nv_and_b32 v{T}, 1, v1\nv_lshl_add_u32 v{vRD}, v{T}, 3, v{vRD}")
    def p1_compute(s, X, W, T, V, lds, off, flag_vZ=None):
        a = s.a
        vX, vW, vSA, vSB, vLW, vRD, vPB = range(V, V+7)
        AB, AC = T, T+12
        for i in range(7):
            ab = AB + (i % 2)*4
            k = i//2
            if i % 2 == 0: a(f"v_perm_b32 v{AB+8}, v{X+k}, v{X+k}, v{vSA}")
            else: a(f"v_perm_b32 v{AB+8}, v{X+k+1}, v{X+k}, v{vSB}")
            for r in range(4): a(f"v_and_b32 v{ab+r}, v{AB+8}, v{2+r}")
            a(f"{MF} {q(AC)}, {q(ab)}, {q(W+4*i)}, {'0' if i == 0 else q(AC)}")
        a(f"ds_write_b128 v{vLW}, {q(AC)} offset:{lds}")
        a("s_waitcnt lgkmcnt(0)\ns_barrier")
        L = a.label("Lred")
        a(f"s_cmp_lg_u32 s3, 3\ns_cbranch_scc1 {L}")
        R = T
        for k in range(4): a(f"ds_read_b64 {p2(R+2*k)}, v{vRD} offset:{lds + (k//2)*1024 + (k%2)*640}")
        a(f"s_add_u32 s5, s100, {off}")
        a(f"v_mov_b32 v{R+9}, s76\nv_mov_b32 v{R+11}, s76")
        a("s_waitcnt lgkmcnt(0)")
        a(f"v_pk_add_f32 {p2(R)}, {p2(R)}, {p2(R+2)}\nv_pk_add_f32 {p2(R+4)}, {p2(R+4)}, {p2(R+6)}\nv_pk_add_f32 {p2(R)}, {p2(R)}, {p2(R+4)}")
        a(f"v_mov_b64 {p2(R+2)}, {p2(R)}")
        a(f"v_permlane32_swap_b32 v{R}, v{R+2}\nv_permlane32_swap_b32 v{R+1}, v{R+3}")
        a(f"v_add_f32 v{R+8}, v{R}, v{R+2}\nv_add_f32 v{R+10}, v{R+1}, v{R+3}")
        s.exec_set(0xffffffff, 0)
        a(f"buffer_store_dwordx4 {q(R+8)}, v6, s[44:47], s5 offen sc1")
        if flag_vZ is not None:
            a(f"s_lshl_b32 s5, s2, 2\ns_add_u32 s5, s5, {OFF_CLR+0x1000}")
            s.exec_set(1, 0)
            a(f"buffer_store_dword v{R+9}, v{flag_vZ}, s[44:47], s5 offen sc1")
        s.exec_all()
        a(f"{L}:")
    def proj_tail(s, A0, W, T, scb, sfin, scale=None):
        a = s.a
        a(f"v_permlane32_swap_b32 v{A0}, v{A0+1}\nv_add_f32 v{A0}, v{A0}, v{A0+1}")
        a(f"v_mov_b32 v{A0+1}, v{A0}\nv_permlane16_swap_b32 v{A0}, v{A0+1}\nv_add_f32 v{A0}, v{A0}, v{A0+1}")
        if scale is not None: a(f"v_mul_f32 v{A0}, v{A0}, v{scale}")
        a(f"v_cvt_pk_bf16_f32 v{A0}, v{A0}, v{A0}")
        a(f"v_mov_b32 v{A0+1}, v{A0}")
        a(f"v_mov_b32_dpp v{A0}, v{A0+1} row_ror:8 row_mask:0xa bank_mask:0xf")
        AC = T+8; S = T+12
        for g in range(8):
            ab = T + (g % 2)*4
            for r in range(4): a(f"v_and_b32_dpp v{ab+r}, v{A0}, v{2+r} row_newbcast:{g} {DPPF}")
            a(f"{MF} {q(AC)}, {q(ab)}, {q(W[g])}, {'0' if g == 0 else q(AC)}")
        a(f"v_cmp_gt_u32 vcc, 32, v1")
        a(f"v_mov_b32 v{S+1}, s76\nv_mov_b32 v{S+3}, s76")
        a("s_mov_b32 exec_lo, s82\ns_mov_b32 exec_hi, s82")
        a(f"v_cndmask_b32 v{S}, v{AC+2}, v{AC}, vcc\nv_cndmask_b32 v{S+2}, v{AC+3}, v{AC+1}, vcc")
        a(f"buffer_store_dwordx4 {q(S)}, v6, s[44:47], s{sfin} offen sc1")
        s.exec_all()
    def a5(s, sU, R, T, WOA):
        a = s.a; c = s.c
        OG = R; ST = R+8; Z = R+16
        a(f"s_lshr_b32 s12, s{sU}, 3")
        a(f"v_lshrrev_b32 v{T+22}, 4, v1\nv_lshlrev_b32 v{T+22}, 7, v{T+22}")
        a(f"s_lshr_b32 s8, s12, 1\ns_lshl_b32 s8, s8, 12\ns_and_b32 s6, s12, 1\ns_lshl_b32 s6, s6, 4\ns_add_u32 s8, s8, s6\ns_lshl_b32 s6, s3, 10\ns_add_u32 s8, s8, s6\ns_add_u32 s8, s8, {OFF_STA}")
        a(f"s_mul_i32 s6, s{sU}, {HA_U}\ns_lshl_b32 s5, s3, 11\ns_add_u32 s6, s6, s5\ns_add_u32 s6, s6, {OFF_HA}")
        a(f"v_lshlrev_b32 v{T+20}, 4, v0")
        a(f"s_mul_i32 s15, s{sU}, {FS}\ns_lshl_b32 s5, s3, 10\ns_add_u32 s15, s15, s5\ns_add_u32 s15, s15, {OFF_FIN}")
        def issue_o():
            a(f"buffer_load_dwordx4 {q(OG)}, v6, s[44:47], s6 offen sc1\nbuffer_load_dwordx4 {q(OG+4)}, v6, s[44:47], s6 offen offset:1024 sc1")
            a(f"buffer_load_dwordx4 {q(ST)}, v{T+22}, s[44:47], s8 offen sc1\nbuffer_load_dwordx4 {q(ST+4)}, v{T+22}, s[44:47], s8 offen offset:512 sc1")
        s.spoll(6, 0, c['ton'], 256*2, c['tok'])
        s.poll(issue_o, [("s76", [OG+k for k in range(1, 16, 2)])], Z, Z+1, sleep=c['fsleep'])
        s.stamp(7)
        a(f"v_max_f32 v{Z+2}, v{ST}, v{ST+4}")
        a(f"v_sub_f32 v{ST}, v{ST}, v{Z+2}\nv_sub_f32 v{ST+4}, v{ST+4}, v{Z+2}\nv_exp_f32 v{ST}, v{ST}\nv_exp_f32 v{ST+4}, v{ST+4}")
        a(f"v_mul_f32 v{Z}, v{ST}, v{OG}\nv_mul_f32 v{Z+1}, v{ST}, v{OG+2}\nv_mul_f32 v{Z+3}, v{ST}, v{ST+2}")
        a(f"v_fmac_f32 v{Z}, v{ST+4}, v{OG+4}\nv_fmac_f32 v{Z+1}, v{ST+4}, v{OG+6}\nv_fmac_f32 v{Z+3}, v{ST+4}, v{ST+6}")
        a(f"ds_write_b128 v{T+20}, {q(Z)} offset:{0x6000}")
        a("s_waitcnt lgkmcnt(0)\ns_barrier")
        s.stamp(8)
        for k in range(4): a(f"ds_read_b128 {q(OG+4*k)}, v6 offset:{0x6000+1024*k}")
        a("s_waitcnt lgkmcnt(0)")
        a(f"v_max3_f32 v{Z+2}, v{OG+2}, v{OG+6}, v{OG+10}\nv_max_f32 v{Z+2}, v{Z+2}, v{OG+14}")
        s.allred_rows("v_max_f32", Z+2, Z+4)
        for k in range(4): a(f"v_sub_f32 v{OG+4*k+2}, v{OG+4*k+2}, v{Z+2}")
        for k in range(4): a(f"v_exp_f32 v{OG+4*k+2}, v{OG+4*k+2}")
        for k in range(4):
            op = "v_mul_f32" if k == 0 else "v_fmac_f32"
            a(f"{op} v{Z+3}, v{OG+4*k+2}, v{OG+4*k+3}\n{op} v{Z}, v{OG+4*k+2}, v{OG+4*k}\n{op} v{Z+1}, v{OG+4*k+2}, v{OG+4*k+1}")
        s.allred_rows("v_add_f32", Z+3, Z+4)
        a(f"v_rcp_f32 v{Z+3}, v{Z+3}")
        s.proj_tail(Z, WOA, T+24, 3, 15, scale=Z+3)
        s.stamp(9)
    def final(s, sJ, ab, F, T, stp):
        a = s.a; c = s.c
        s.srd(52, 38, 1792)
        a(f"s_mov_b32 s12, {ab}\ns_mov_b32 s13, s{sJ}")
        a("s_sub_u32 s5, s13, 48\ns_lshr_b32 s6, s5, 1\ns_lshl_b32 s6, s6, 2\ns_and_b32 s5, s5, 1\ns_add_u32 s6, s6, s5\ns_add_u32 s6, s6, 48")
        a("s_cmp_ge_u32 s13, 48\ns_cselect_b32 s13, s6, s13")
        a(f"s_mul_i32 s6, s12, {FIN_AB}\ns_lshl_b32 s5, s13, 6\ns_add_u32 s6, s6, s5\ns_add_u32 s6, s6, {OFF_FIN}")
        a(f"v_lshrrev_b32 v{T+9}, 2, v1\nv_mul_u32_u24 v{T+9}, {FS}, v{T+9}\nv_and_b32 v{T+10}, 3, v1\nv_lshl_add_u32 v{T+9}, v{T+10}, 4, v{T+9}")
        def issue_f():
            for i in range(8):
                a(f"s_add_u32 s79, s6, {i*16*FS}")
                a(f"buffer_load_dwordx4 {q(F+4*i)}, v{T+9}, s[44:47], s79 offen sc1")
        a("s_mul_i32 s15, s12, 896\ns_lshr_b32 s5, s13, 4\ns_lshl_b32 s5, s5, 8\ns_add_u32 s15, s15, s5")
        a("s_and_b32 s5, s13, 3\ns_lshl_b32 s5, s5, 6\ns_add_u32 s15, s15, s5")
        a("s_bfe_u32 s5, s13, 0x10002\ns_lshl_b32 s5, s5, 3\ns_add_u32 s15, s15, s5")
        a("s_bfe_u32 s5, s13, 0x10003\ns_lshl_b32 s5, s5, 2\ns_add_u32 s15, s15, s5")
        a(f"v_lshlrev_b32 v{T+8}, 2, v1")
        s.spoll(6, 0, c['tfn'], FS*37, c['tfk'])
        s.poll(issue_f, [("s76", [F+4*i+k for i in range(8) for k in (1, 3)])], T+4, T+5, sleep=c['fsleep'])
        s.stamp(stp)
        for st in (16, 8, 4):
            for i in range(0, st, 4):
                a(f"v_add_f32 v{F+i}, v{F+i}, v{F+st+i}\nv_add_f32 v{F+i+2}, v{F+i+2}, v{F+st+i+2}")
        for m in ("row_ror:8", "row_ror:4"):
            for k in (0, 2): a(f"v_add_f32_dpp v{F+k}, v{F+k}, v{F+k} {m} {DPPF}")
        for k in (0, 2): s.allred_rows("v_add_f32", F+k, F+k+1)
        a(f"v_cvt_pk_bf16_f32 v{F}, v{F}, v{F+2}")
        if c.get('thr'):
            a(f"s_memrealtime s[98:99]\ns_waitcnt lgkmcnt(0)\ns_sub_u32 s5, s98, s76\ns_cmp_gt_u32 s5, {c['thr']}\ns_cselect_b32 s5, 0x7fc07fc0, 0\nv_or_b32 v{F}, s5, v{F}")
        if c.get('spin'):
            Lsp = a.label("Lspin")
            a(f"{Lsp}:\ns_memrealtime s[98:99]\ns_waitcnt lgkmcnt(0)\ns_sub_u32 s5, s98, s76\ns_cmp_lt_u32 s5, {c['spin']}\ns_cbranch_scc1 {Lsp}")
        if c.get('enc'):
            a("s_memrealtime s[98:99]\ns_waitcnt lgkmcnt(0)\ns_sub_u32 s5, s98, s76")
            a(f"v_mov_b32 v{F+4}, s5\nv_lshrrev_b32 v{F+4}, v{T+8}, v{F+4}")
            a(f"v_and_b32 v{F+5}, 3, v{F+4}\nv_bfe_u32 v{F+4}, v{F+4}, 2, 2\nv_lshl_or_b32 v{F+5}, v{F+4}, 16, v{F+5}")
            a(f"v_and_b32 v{F}, 0xfffcfffc, v{F}\nv_or_b32 v{F}, v{F}, v{F+5}")
        s.exec_set(0xf, 0)
        a(f"buffer_store_dword v{F}, v6, s[52:55], s15 offen")
        s.exec_all()
        s.stamp(stp+1)
    def gy(s):
        a = s.a; c = s.c; nt = c['nt']; pb = c['pb']
        XB, WB, UK, UV, T = 8, 16, 72, 136, 200
        PVv = T+40
        vLW = PVv+4
        vZ, vU, vQ = T+47, T+50, T+51
        vE = T+48
        s.p1_setup(2, T, PVv)
        a(f"v_mov_b32 v{vZ}, 0\nv_mov_b32 v{vE+1}, 0")
        a("s_lshr_b32 s12, s2, 3\ns_and_b32 s13, s2, 7")
        if c['qf']:
            a(f"s_lshl_b32 s14, s13, 12\ns_lshl_b32 s6, s12, 4\ns_add_u32 s14, s14, s6\ns_add_u32 s14, s14, {OFF_QABS}")
            a(f"v_lshlrev_b32 v{T+2}, 8, v1")
        else:
            a(f"s_lshl_b32 s14, s13, 8\ns_mul_i32 s6, s12, {QS}\ns_add_u32 s14, s14, s6\ns_add_u32 s14, s14, {OFF_QABS}")
        for r in range(4): a(f"v_mov_b32 v{T+4+r}, -1")
        s.kwait()
        s.srd(44, 42, 0x10000000); s.srd(48, 40, 256)
        s.srd(52, 26, 896); s.srd(56, 30, 448*8192)
        L = a.label("Le0")
        a(f"s_cmp_lg_u32 s3, 3\ns_cbranch_scc1 {L}")
        a(f"v_mov_b32 v{vE}, s77")
        s.exec_set(1, 0)
        a(f"buffer_atomic_cmpswap {p2(vE)}, v{vZ}, s[48:51], 0 offen sc0 sc1")
        s.exec_set(0xffff, 0)
        a(f"buffer_store_dwordx4 {q(T+4)}, v{T+2 if c['qf'] else 6}, s[44:47], s14 offen sc1")
        s.exec_all()
        a(f"{L}:")
        if c.get('fi'): s.stamp(9)
        s.p1_loads(XB, WB, 52, 56, PVv)
        if c.get('fi'): s.stamp(10)
        s.srd(68, 32, 1024*8192); s.srd(72, 34, 1024*8192)
        a(f"v_lshrrev_b32 v{T+2}, 4, v1\nv_lshrrev_b32 v{vQ}, 4, v0\nv_lshlrev_b32 v{vQ}, {8 if c['qf'] else 4}, v{vQ}")
        a(f"v_bfe_u32 v{vU}, v1, 2, 2\nv_lshlrev_b32 v{vU}, 16, v{vU}\nv_lshl_add_u32 v{vU}, v{T+2}, 6, v{vU}")
        a(f"v_and_b32 v{T+3}, 3, v1\nv_lshl_add_u32 v{vU}, v{T+3}, 4, v{vU}")
        a("s_lshl_b32 s15, s13, 20\ns_lshl_b32 s5, s3, 18\ns_add_u32 s15, s15, s5\ns_lshl_b32 s5, s12, 9\ns_add_u32 s15, s15, s5")
        s.common2(T+12)
        s.p1_setup2(T, PVv)
        def ukload(n, pace):
            i, hf = n//2, n % 2
            a(f"s_add_u32 s79, s15, {i*8192}")
            if pace: a(f"s_waitcnt vmcnt({pace-1})")
            a(f"buffer_load_dwordx4 {q(UK+4*n)}, v{vU}, s[68:71], s79 offen offset:{hf*256} {nt}")
        n1 = c['n1']
        for n in range(n1): ukload(n, pb)
        a(f"s_waitcnt vmcnt({n1})")
        s.stamp(1)
        L = a.label("Le1")
        a(f"s_cmp_lg_u32 s3, 3\ns_cbranch_scc1 {L}")
        a(f"v_readfirstlane_b32 s76, v{vE}\ns_cmp_eq_u32 s76, 0\ns_cselect_b32 s76, s77, s76")
        a(f"v_mov_b32 v{vE}, s76\nds_write_b32 v{vZ}, v{vE} offset:{0x2800}")
        a(f"{L}:")
        s.p1_compute(XB, WB, T, PVv, 0, OFF_QB, vZ)
        a(f"ds_read_b32 v{vE}, v{vZ} offset:{0x2800}")
        s.stamp(2)
        for n in range(n1, 16): ukload(n, pb)
        a(f"s_waitcnt lgkmcnt(0)\nv_readfirstlane_b32 s76, v{vE}")
        tsave = c['timeout']
        if c.get('nob'): c['timeout'] = 1
        L = a.label("Lqb")
        a(f"s_cmp_ge_u32 s3, 2\ns_cbranch_scc1 {L}")
        a(f"s_lshl_b32 s6, s12, 11\ns_lshl_b32 s5, s3, 10\ns_add_u32 s6, s6, s5\ns_add_u32 s6, s6, {OFF_QB}")
        a(f"v_lshlrev_b32 v{T+20}, 2, v0\nv_add_u32 v{T+20}, 0x2000, v{T+20}")
        s.gather_q(T, 6, T+20, 1)
        a(f"{L}:")
        a(f"v_lshrrev_b32 v{T+21}, 4, v1\nv_lshlrev_b32 v{T+21}, 6, v{T+21}\nv_and_b32 v{T+22}, 3, v1\nv_lshl_add_u32 v{T+21}, v{T+22}, 4, v{T+21}")
        a("s_waitcnt vmcnt(0)\ns_barrier")
        s.stamp(3)
        QF = T; D = WB
        a(f"ds_read_b128 {q(QF)}, v{T+21} offset:{0x2000}\nds_read_b128 {q(QF+4)}, v{T+21} offset:{0x2000+256}")
        a("s_waitcnt lgkmcnt(0)")
        for i in range(8):
            a(f"{MF} {q(D+4*i)}, {q(UK+8*i)}, {q(QF)}, 0")
            a(f"{MF} {q(D+4*i)}, {q(UK+8*i+4)}, {q(QF+4)}, {q(D+4*i)}")
        R = T+8
        for r in range(4):
            for i in range(8):
                if r == 0: a(f"v_mov_b32_dpp v{R+i}, v{D+4*i} quad_perm:[0,0,0,0] {DPPF}")
                else: a(f"v_add_f32_dpp v{R+i}, v{D+4*i+r}, v{R+i} quad_perm:[{r},{r},{r},{r}] {DPPF}")
        for k in range(4): a(f"v_cvt_pk_bf16_f32 v{R+8+k}, v{R+2*k}, v{R+2*k+1}")
        for k in range(4): a(f"v_min_u32 v{R+8+k}, -2, v{R+8+k}")
        s.exec_set(0x00010001, 0x00010001)
        if c['qf']:
            a(f"buffer_store_dwordx4 {q(R+8)}, v{vQ}, s[44:47], s14 offen sc1")
            s.exec_all()
        else:
            a(f"ds_write_b128 v{vQ}, {q(R+8)} offset:{0x2900}")
            s.exec_all()
            a("s_waitcnt lgkmcnt(0)\ns_barrier")
            L = a.label("Lqp")
            a(f"s_cmp_lg_u32 s3, 3\ns_cbranch_scc1 {L}")
            s.exec_set(0xffff, 0)
            a(f"ds_read_b128 {q(R+8)}, v6 offset:{0x2900}\ns_waitcnt lgkmcnt(0)")
            a(f"buffer_store_dwordx4 {q(R+8)}, v6, s[44:47], s14 offen sc1")
            s.exec_all()
            a(f"{L}:")
        s.stamp(4)
        a(f"v_lshrrev_b32 v{vU}, 4, v1\nv_lshlrev_b32 v{vU}, 13, v{vU}\nv_and_b32 v{T+22}, 15, v1\nv_lshl_add_u32 v{vU}, v{T+22}, 4, v{vU}")
        def uvload(n, pace):
            g, hf = n//2, n % 2
            a(f"s_add_u32 s79, s15, {g*4*8192}")
            if pace: a(f"s_waitcnt vmcnt({pace-1})")
            a(f"buffer_load_dwordx4 {q(UV+4*n)}, v{vU}, s[72:75], s79 offen offset:{hf*256} {nt}")
        for n in range(16): uvload(n, c['pu'])
        HG = UK; ST = T
        WL = 0x3000
        a(f"s_mul_i32 s6, s2, {H3_C}\ns_lshl_b32 s5, s3, 13\ns_add_u32 s6, s6, s5\ns_add_u32 s6, s6, {OFF_H3}\ns_add_u32 s7, s6, 4096")
        vSH = T+26
        a(f"v_and_b32 v{vSH}, 15, v1\nv_lshlrev_b32 v{vSH}, 1, v{vSH}\ns_mov_b32 s10, 0xff\ns_sub_u32 s9, 0, s76")
        L = a.label("Lst")
        a(f"s_cmp_lg_u32 s3, 0\ns_cbranch_scc1 {L}")
        a(f"s_lshl_b32 s5, s12, 11\ns_add_u32 s5, s5, {OFF_ST3}")
        def issue_st():
            for k in range(2): a(f"buffer_load_dwordx4 {q(ST+4*k)}, v6, s[44:47], s5 offen offset:{1024*k} sc1")
        if c['stamp']:
            a("s_waitcnt vmcnt(0)"); s.stamp(5)
        s.spoll(5, 0, c['spn'], 16*37, c['spk'])
        s.poll(issue_st, [("s76", [ST+1, ST+3, ST+5, ST+7])], T+8, T+9, sleep=c['ssleep'])
        a(f"{L}:")
        a("s_barrier")
        s.stamp(6)
        def issue_hg(cond=False):
            for i in range(c.get('nbk', 8)):
                Lk = a.label("Lhg")
                if cond: a(f"s_bitcmp0_b32 s10, {i}\ns_cbranch_scc1 {Lk}")
                a(f"buffer_load_dwordx4 {q(HG+4*i)}, v6, s[44:47], {'s6' if i < 4 else 's7'} offen offset:{1024*(i%4)} sc1")
                if cond: a(f"{Lk}:")
        if c['h3d']: a(f"s_sleep {c['h3d']}")
        issue_hg()
        L = a.label("Lwt")
        a(f"s_cmp_lg_u32 s3, 0\ns_cbranch_scc1 {L}")
        M, Lr, TT, E0 = T+8, T+9, T+10, T+12
        a(f"v_max_f32 v{M}, v{ST}, v{ST+4}")
        s.allred_inrow("v_max_f32", M); s.allred_rows("v_max_f32", M, TT)
        a(f"v_sub_f32 v{E0}, v{ST}, v{M}\nv_sub_f32 v{E0+1}, v{ST+4}, v{M}\nv_exp_f32 v{E0}, v{E0}\nv_exp_f32 v{E0+1}, v{E0+1}")
        a(f"v_mul_f32 v{Lr}, v{E0}, v{ST+2}\nv_fmac_f32 v{Lr}, v{E0+1}, v{ST+6}")
        s.allred_inrow("v_add_f32", Lr); s.allred_rows("v_add_f32", Lr, TT)
        a(f"v_rcp_f32 v{Lr}, v{Lr}")
        a(f"v_and_b32 v{TT}, 3, v1\nv_lshlrev_b32 v{TT}, 7, v{TT}\nv_lshrrev_b32 v{TT+1}, 5, v1\nv_lshl_add_u32 v{TT}, v{TT+1}, 5, v{TT}")
        a(f"v_bfe_u32 v{TT+1}, v1, 2, 3\nv_lshl_add_u32 v{TT}, v{TT+1}, 2, v{TT}")
        for k in range(2):
            e = E0+k; hi = E0+2+k; lo = E0+4+k
            a(f"v_mul_f32 v{e}, v{e}, v{Lr}\nv_cvt_pk_bf16_f32 v{hi}, v{e}, v{e}\nv_and_b32 v{lo}, 0xffff0000, v{hi}\nv_sub_f32 v{lo}, v{e}, v{lo}\nv_cvt_pk_bf16_f32 v{lo}, v{lo}, v{lo}")
            a(f"ds_write_b32 v{TT}, v{hi} offset:{WL+64*k}\nds_write_b32 v{TT}, v{lo} offset:{WL+512+64*k}")
        a("s_waitcnt lgkmcnt(0)")
        a(f"{L}:")
        a(f"v_bfe_u32 v{T+20}, v1, 3, 1\nv_lshlrev_b32 v{T+20}, 9, v{T+20}\nv_lshrrev_b32 v{T+21}, 4, v1\nv_lshl_add_u32 v{T+20}, v{T+21}, 7, v{T+20}")
        a(f"s_lshl_b32 s5, s3, 5\nv_add_u32 v{T+20}, s5, v{T+20}")
        a(f"v_and_b32 v{T+22}, 1, v1\nv_lshlrev_b32 v{T+22}, 8, v{T+22}\nv_bfe_u32 v{T+23}, v1, 1, 2\nv_lshl_add_u32 v{T+22}, v{T+23}, 4, v{T+22}")
        a(f"v_lshl_add_u32 v{T+22}, v{T+21}, 2, v{T+22}\ns_lshl_b32 s5, s3, 6\nv_add_u32 v{T+22}, s5, v{T+22}")
        a("s_barrier")
        WW = T; AO = WB
        a(f"ds_read_b128 {q(WW)}, v{T+20} offset:{WL}\nds_read_b128 {q(WW+4)}, v{T+20} offset:{WL+16}")
        a("s_waitcnt lgkmcnt(0)")
        for i in range(8):
            for r in range(4): a(f"v_and_b32 v{AO+4*i+r}, v{WW+i}, v{2+r}")
        DC = T+8
        Lp = a.label("Lck"); Lw = a.label("Lckw"); Ld = a.label("Lckd")
        a(f"s_mov_b32 s78, {c['timeout']}\ns_branch {Lw}")
        a(f"{Lp}:")
        issue_hg(True)
        a(f"{Lw}:")
        a("s_waitcnt vmcnt(0)")
        SU, BT = 48, 56
        for i in range(8):
            h_ = HG+4*i
            a(f"v_and_b32 v{BT+i}, 3, v{h_}\nv_add3_u32 v{SU+i}, v{h_}, v{h_+1}, v{h_+2}\nv_and_or_b32 v{h_}, v{h_}, -4, 2")
            a(f"v_lshl_add_u32 v{BT+i}, v{BT+i}, v{vSH}, v{BT+i}\nv_add_u32 v{SU+i}, v{SU+i}, v{h_+3}")
            a(f"{MF} {q(DC)}, {q(AO+4*i)}, {q(HG+4*i)}, {'0' if i == 0 else q(DC)}")
            a(f"v_sub_u32 v{SU+i}, v{SU+i}, v{BT+i}")
        for m in ("quad_perm:[1,0,3,2]", "quad_perm:[2,3,0,1]", "row_half_mirror", "row_mirror"):
            for i in range(8): a(f"v_add_u32_dpp v{SU+i}, v{SU+i}, v{SU+i} {m} {DPPF}")
        for i in range(8): a(f"v_cmp_ne_u32 s[{64+2*(i%4)}:{65+2*(i%4)}], s9, v{SU+i}" ) if i < 4 else None
        a("s_mov_b32 s11, 0")
        for half in range(2):
            if half:
                for i in range(4, 8): a(f"v_cmp_ne_u32 s[{64+2*(i%4)}:{65+2*(i%4)}], s9, v{SU+i}")
            for i in range(4*half, 4*half+4):
                a(f"s_cmp_lg_u64 s[{64+2*(i%4)}:{65+2*(i%4)}], 0\ns_cselect_b32 s5, {1 << i}, 0\ns_or_b32 s11, s11, s5")
        a(f"s_and_b32 s10, s10, s11\ns_cbranch_scc0 {Ld}")
        a(f"s_sleep 1\ns_sub_u32 s78, s78, 1\ns_cmp_lg_u32 s78, 0\ns_cbranch_scc1 {Lp}")
        a(f"{Ld}:")
        s.stamp(7)
        a(f"ds_write_b128 v{vLW}, {q(DC)}")
        a("s_waitcnt lgkmcnt(0)\ns_barrier")
        Z = T+12
        for k in range(8): a(f"ds_read_b32 v{Z+k}, v{T+22} offset:{512*k}")
        E = T+24
        s.epi_addr(E, False)
        a(f"v_lshlrev_b32 v{E}, 4, v0")
        a(f"s_lshl_b32 s5, s3, 11\nv_add_u32 v{E+2}, s5, v6")
        a(f"s_lshl_b32 s5, s2, 11\ns_add_u32 s5, s5, {OFF_H4}")
        a("s_waitcnt lgkmcnt(0)")
        for st in (4, 2):
            for i in range(0, st, 2): a(f"v_pk_add_f32 {p2(Z+i)}, {p2(Z+i)}, {p2(Z+st+i)}")
        a(f"v_add_f32 v{Z}, v{Z}, v{Z+1}\nv_cvt_pk_bf16_f32 v{Z}, v{Z}, v{Z}")
        DD = T+28
        for g in range(8):
            ab = T + (g % 2)*4
            for r in range(4): a(f"v_and_b32_dpp v{ab+r}, v{Z}, v{2+r} row_newbcast:{g} {DPPF}")
            for hf in range(2):
                a(f"{MF} {q(DD+4*hf)}, {q(ab)}, {q(UV+8*g+4*hf)}, {'0' if g == 0 else q(DD+4*hf)}")
        a(f"ds_write_b128 v{E+2}, {q(DD)} offset:{0x4000}\nds_write_b128 v{E+2}, {q(DD+4)} offset:{0x4000+1024}")
        a("s_waitcnt lgkmcnt(0)\ns_barrier")
        a(f"s_cmp_ge_u32 s3, 2\ns_cbranch_scc1 L_ya5")
        X = T
        for i in range(4): a(f"ds_read_b64 {p2(X+2*i)}, v{E+3} offset:{0x4000+2048*i}")
        a("s_waitcnt lgkmcnt(0)")
        for st in (4, 2):
            for i in range(0, st, 2): a(f"v_pk_add_f32 {p2(X+i)}, {p2(X+i)}, {p2(X+st+i)}")
        a(f"v_mov_b32 v{X+2}, v{X+1}\nv_mov_b32 v{X+1}, s76\nv_mov_b32 v{X+3}, s76")
        a(f"buffer_store_dwordx4 {q(X)}, v{E}, s[44:47], s5 offen sc1")
        s.stamp(8)
        c['timeout'] = tsave
        a("L_ya5:")
        s.stamp_out()
        a("s_endpgm")
    def gx(s):
        a = s.a; c = s.c; nt = c['nt']; pb = c['pb']
        a("L_X:")
        L1, PV, QF, S = 16, 144, 208, 240
        vTR, vL, vSX, vZ, vE = 8, 9, 10, 11, 12
        a("s_sub_u32 s11, s2, 128")
        a("s_lshl_b32 s8, s11, 17\ns_lshl_b32 s6, s3, 13\ns_add_u32 s8, s8, s6")
        a(f"s_mul_i32 s9, s3, {4*ROW}")
        s.kwait()
        s.srd(52, 28, 8192*2048)
        def dma(i, pace):
            for rr in range(4):
                a(f"s_add_u32 m0, s9, {(i%2)*SLOT + rr*ROW}")
                a(f"s_add_u32 s79, s8, {i*32768 + rr*2048}")
                for hf in range(2):
                    if pace: a(f"s_waitcnt vmcnt({pace-1})")
                    a(f"buffer_load_dwordx4 v6, s[52:55], s79 offen offset:{1024*hf} {nt} lds")
        if c.get('fi'): s.stamp(10)
        dma(0, c['px0'])
        if c.get('fi'): s.stamp(11)
        s.srd(44, 42, 0x10000000); s.srd(48, 40, 256); s.srd(56, 36, 4096*896)
        s.common2(13)
        a(f"v_lshrrev_b32 v13, 2, v1\nv_mul_u32_u24 v{vTR}, {ROW}, v13\nv_and_b32 v13, 3, v1\nv_lshl_add_u32 v{vTR}, v13, 3, v{vTR}")
        a(f"s_lshl_b32 s5, s3, 9\nv_add_u32 v{vTR}, s5, v{vTR}")
        a(f"v_and_b32 v13, 15, v1\nv_mul_u32_u24 v{vL}, {ROW}, v13\nv_lshrrev_b32 v14, 4, v1\nv_lshl_add_u32 v{vL}, v14, 4, v{vL}\nv_add_u32 v{vL}, s5, v{vL}")
        a(f"v_add_u32 v{vSX}, {2*SLOT}, v6\nv_mov_b32 v{vZ}, 0")
        a(f"v_lshrrev_b32 v15, 5, v1\nv_lshlrev_b32 v15, 3, v15\nv_bfe_u32 v7, v1, 4, 1\nv_add_u32 v15, v15, v7\nv_mul_u32_u24 v15, {H3_C}, v15")
        a(f"v_and_b32 v7, 15, v1\nv_lshl_add_u32 v15, v7, 4, v15")
        a(f"s_mul_i32 s10, s3, {2*H3_C}\ns_lshl_b32 s5, s11, 8\ns_add_u32 s10, s10, s5\ns_add_u32 s10, s10, {OFF_H3}")
        dma(1, c['px'])
        def tr(i, dst):
            for t in range(16): a(f"ds_read_b64_tr_b16 {p2(dst(t))}, v{vTR} offset:{(i%2)*SLOT+32*t}")
        def l1(i):
            for ks in range(8): a(f"ds_read_b128 {q(L1+(i*8+ks)*4)}, v{vL} offset:{(i%2)*SLOT+64*ks}")
        for i in range(4):
            if i == 3 and c['qf']:
                a(f"s_lshl_b32 s6, s3, 13\ns_add_u32 s6, s6, {OFF_QABS}\ns_add_u32 s7, s6, 4096")
                if c['spq']:
                    L = a.label("Lsq"); Ld = a.label("Lsqd")
                    a(f"s_mov_b32 s78, {c['sptime']}\ns_waitcnt lgkmcnt(0)")
                    a(f"{L}:")
                    a("s_load_dwordx16 s[56+8:56+23], s[42:43], s6 glc".replace("56+8", "64").replace("56+23", "79") if False else "s_load_dwordx8 s[64:71], s[42:43], s6 glc")
                    a("s_add_u32 s5, s7, 224\ns_load_dwordx8 s[88:95], s[42:43], s5 glc" if not c['stamp'] else "s_add_u32 s5, s7, 224\ns_load_dwordx4 s[72:75], s[42:43], s5 glc")
                    a("s_waitcnt lgkmcnt(0)")
                    a("s_max_u32 s83, s64, s68")
                    a("s_max_u32 s83, s83, s88\ns_max_u32 s83, s83, s92" if not c['stamp'] else "s_max_u32 s83, s83, s72")
                    a(f"s_cmp_lg_u32 s83, -1\ns_cbranch_scc1 {Ld}")
                    a(f"s_sleep {c['spsleep']}\ns_sub_u32 s78, s78, 1\ns_cmp_lg_u32 s78, 0\ns_cbranch_scc1 {L}")
                    a(f"{Ld}:")
            a(f"s_waitcnt vmcnt({[8, 8, 8, 0][i]})\ns_barrier")
            if c.get('bw') and i in (0, 2): s.stamp(10 + i//2)
            l1(i)
            if i < 2:
                tr(i, lambda t: PV+4*t+2*i)
                a("s_waitcnt lgkmcnt(0)\ns_barrier")
                dma(i+2, c['px'])
            if i == 2:
                L = a.label("Lclr")
                a(f"s_cmp_lg_u32 s3, 0\ns_cbranch_scc1 {L}")
                a(f"v_lshlrev_b32 v13, 3, v1\ns_mov_b32 s5, {OFF_CLR+0x1000}")
                def issue_c():
                    a(f"buffer_load_dwordx2 {p2(S)}, v13, s[44:47], s5 offen sc1")
                    a(f"buffer_load_dword v{vE}, v{vZ}, s[48:51], 0 offen sc1")
                s.poll(issue_c, [(f"v{vE}", [S, S+1])], S+2, S+3, sleep=4)
                a(f"ds_write_b32 v{vSX}, v{vE} offset:12288\ns_waitcnt lgkmcnt(0)")
                a(f"{L}:")
        tsave = c['timeout']
        if c.get('nob'): c['timeout'] = 1
        a(f"ds_read_b32 v{vE}, v{vSX} offset:12288")
        s.stamp(1)
        if c['qf']:
            def issue_q():
                for i in range(8):
                    a(f"buffer_load_dwordx4 {q(QF+4*i)}, v6, s[44:47], {'s6' if i < 4 else 's7'} offen offset:{1024*(i%4)} sc1")
            s.poll_sent(issue_q, list(range(QF, QF+32)), 13, sleep=2)
            a("s_waitcnt lgkmcnt(0)")
            a(f"v_readfirstlane_b32 s76, v{vE}")
            s.stamp(2)
            for ks in range(8):
                for ch in range(4):
                    a(f"{MF} {q(S+4*ch)}, {q(L1+(ch*8+ks)*4)}, {q(QF+4*ks)}, {'0' if ks == 0 else q(S+4*ch)}")
        else:
            a(f"s_lshl_b32 s6, s3, 9\ns_add_u32 s6, s6, {OFF_QABS}\ns_add_u32 s7, s6, {8*QS}")
            a(f"v_lshrrev_b32 v14, 3, v1\nv_mul_u32_u24 v14, {QS}, v14\nv_and_b32 v7, 7, v1\nv_lshl_add_u32 v14, v7, 4, v14")
            a(f"v_lshlrev_b32 v7, 5, v7\nv_bfe_u32 v13, v1, 3, 1\nv_lshl_add_u32 v7, v13, 4, v7\nv_lshrrev_b32 v13, 4, v1\nv_lshl_add_u32 v7, v13, 2, v7")
            def issue_q():
                for i in range(c.get('nbk', 8)): a(f"buffer_load_dwordx4 {q(QF+4*i)}, v14, s[44:47], {'s7' if i % 2 else 's6'} offen offset:{128*(i//2)} sc1")
            s.poll_sent(issue_q, list(range(QF, QF+32)), 13, sleep=2)
            a("s_waitcnt lgkmcnt(0)")
            a(f"v_readfirstlane_b32 s76, v{vE}")
            s.stamp(2)
            def mix(kp):
                A_, B_ = QF+8*kp, QF+8*kp+4
                a(f"v_mov_b64 {p2(S)}, {p2(A_)}\nv_mov_b64 {p2(S+2)}, {p2(A_+2)}")
                for r in range(4): a(f"v_mov_b32_dpp v{A_+r}, v{B_+r} row_shr:4 row_mask:0xf bank_mask:0xa")
                for r in range(4): a(f"v_mov_b32_dpp v{B_+r}, v{S+r} row_shl:4 row_mask:0xf bank_mask:0x5")
                for r in range(8): a(f"ds_bpermute_b32 v{A_+r}, v7, v{A_+r}")
            for kp in range(4): mix(kp)
            for ks in range(8):
                a(f"s_waitcnt lgkmcnt({min(15, 4*(7-ks))})")
                for ch in range(4):
                    a(f"{MF} {q(S+4*ch)}, {q(L1+(ch*8+ks)*4)}, {q(QF+4*ks)}, {'0' if ks == 0 else q(S+4*ch)}")
        PV1 = L1
        Lx = a.label("Lsx")
        labs = [a.label("Lsxw") for _ in range(4)]
        for w in range(1, 4): a(f"s_cmp_eq_u32 s3, {w}\ns_cbranch_scc1 {labs[w]}")
        for w in range(4):
            a(f"{labs[w]}:")
            for ch in range(4):
                if ch == w: continue
                k = (w - ch - 1) % 4
                a(f"ds_write_b128 v{vSX}, {q(S+4*ch)} offset:{(ch*3+k)*1024}")
            a(f"v_mov_b64 {p2(QF)}, {p2(S+4*w)}\nv_mov_b64 {p2(QF+2)}, {p2(S+4*w+2)}")
            if w < 3: a(f"s_branch {Lx}")
        a(f"{Lx}:")
        a(f"s_mul_i32 s5, s3, 3072\nv_add_u32 v13, s5, v{vSX}")
        a("s_waitcnt lgkmcnt(0)\ns_barrier")
        for k in range(3): a(f"ds_read_b128 {q(QF+4+4*k)}, v13 offset:{1024*k}")
        tr(2, lambda t: PV1+4*t)
        a("s_waitcnt lgkmcnt(15)\ns_waitcnt lgkmcnt(14)")
        a(f"v_pk_add_f32 {p2(QF)}, {p2(QF)}, {p2(QF+4)}\nv_pk_add_f32 {p2(QF+2)}, {p2(QF+2)}, {p2(QF+6)}")
        a(f"v_pk_add_f32 {p2(QF+8)}, {p2(QF+8)}, {p2(QF+12)}\nv_pk_add_f32 {p2(QF+10)}, {p2(QF+10)}, {p2(QF+14)}")
        a(f"v_pk_add_f32 {p2(QF)}, {p2(QF)}, {p2(QF+8)}\nv_pk_add_f32 {p2(QF+2)}, {p2(QF+2)}, {p2(QF+10)}")
        a(f"ds_write_b128 v13, {q(QF)}")
        a("s_waitcnt lgkmcnt(0)\ns_barrier")
        s.stamp(3)
        SR = S
        for ch in range(4): a(f"ds_read_b128 {q(SR+4*ch)}, v{vSX} offset:{3072*ch}")
        a("s_waitcnt lgkmcnt(0)")
        tr(3, lambda t: PV1+4*t+2)
        M, Lr, TT, P = QF+8, QF+10, QF+12, QF
        a(f"v_max3_f32 v{M}, v{SR}, v{SR+1}, v{SR+2}")
        for i in range(3, 16, 2): a(f"v_max3_f32 v{M}, v{M}, v{SR+i}, v{SR+min(i+1,15)}")
        s.allred_rows("v_max_f32", M, TT)
        a(f"s_mov_b32 s5, {f32(CEXP)}\nv_mul_f32 v{M}, s5, v{M}")
        for i in range(16): a(f"v_fma_f32 v{SR+i}, v{SR+i}, s5, -v{M}")
        for i in range(16): a(f"v_exp_f32 v{SR+i}, v{SR+i}")
        for i in range(8): a(f"v_cvt_pk_bf16_f32 v{P+i}, v{SR+2*i}, v{SR+2*i+1}")
        O = L1+64
        a(f"v_and_b32 v13, 15, v1\nv_mul_u32_u24 v13, {ROW}, v13\nv_lshrrev_b32 v14, 4, v1\nv_lshl_add_u32 v13, v14, 3, v13")
        a(f"s_lshl_b32 s5, s3, 9\nv_add_u32 v13, s5, v13")
        a(f"v_lshrrev_b32 v14, 5, v1\nv_mul_u32_u24 v14, {ROW}, v14\nv_and_b32 v7, 31, v1\nv_lshl_add_u32 v14, v7, 4, v14\nv_add_u32 v14, s5, v14")
        a("s_waitcnt lgkmcnt(0)")
        def fin(t):
            a(f"v_cvt_pk_bf16_f32 v{O+4*t}, v{O+4*t}, v{O+4*t+1}\nv_cvt_pk_bf16_f32 v{O+4*t+1}, v{O+4*t+2}, v{O+4*t+3}")
            a(f"ds_write_b64 v13, {p2(O+4*t)} offset:{32*t}")
        for t in range(16):
            a(f"{MF} {q(O+4*t)}, {q(PV+4*t)}, {q(P)}, 0")
            a(f"{MF} {q(O+4*t)}, {q(PV1+4*t)}, {q(P+4)}, {q(O+4*t)}")
            if t == 0:
                L = a.label("Lst3")
                a(f"s_cmp_lg_u32 s3, 0\ns_cbranch_scc1 {L}")
                for st in (8, 4, 2):
                    for i in range(0, st, 2): a(f"v_pk_add_f32 {p2(SR+i)}, {p2(SR+i)}, {p2(SR+st+i)}")
                a(f"v_add_f32 v{Lr}, v{SR}, v{SR+1}")
                s.allred_rows("v_add_f32", Lr, TT)
                a(f"v_mov_b32 v{M+1}, s76\nv_mov_b32 v{Lr+1}, s76\nv_lshlrev_b32 v{TT}, 11, v1")
                a(f"s_lshl_b32 s5, s11, 4\ns_add_u32 s5, s5, {OFF_ST3}")
                s.exec_set(0xffff, 0)
                a(f"buffer_store_dwordx4 {q(M)}, v{TT}, s[44:47], s5 offen sc1")
                s.exec_all()
                a(f"{L}:")
            if t >= 3: fin(t-3)
        fin(13); fin(14); fin(15)
        a("s_waitcnt lgkmcnt(0)")
        s.stamp(4)
        SQ = L1
        for i in range(8): a(f"ds_read_b128 {q(SQ+4*i)}, v14 offset:{2*ROW*i}")
        a(f"v_and_b32 v13, 15, v1\nv_lshlrev_b32 v13, 1, v13")
        for i in range(8):
            a(f"s_waitcnt lgkmcnt({7-i})")
            a(f"v_and_b32 v{SQ+4*i}, -4, v{SQ+4*i}\nv_add3_u32 v{O+i}, v{SQ+4*i+1}, v{SQ+4*i+2}, v{SQ+4*i+3}\nv_add_u32 v{O+i}, v{O+i}, v{SQ+4*i}")
        for m in ("quad_perm:[1,0,3,2]", "quad_perm:[2,3,0,1]", "row_half_mirror", "row_mirror"):
            for i in range(8): a(f"v_add_u32_dpp v{O+i}, v{O+i}, v{O+i} {m} {DPPF}")
        for i in range(8):
            a(f"v_add_u32 v{O+i}, s76, v{O+i}\nv_bfe_u32 v{O+i}, v{O+i}, v13, 2\nv_or_b32 v{SQ+4*i}, v{SQ+4*i}, v{O+i}")
            a(f"s_add_u32 s79, s10, {i*16*H3_C}")
            if i < c.get('nbk', 8): a(f"buffer_store_dwordx4 {q(SQ+4*i)}, v15, s[44:47], s79 offen sc1")
        s.stamp(5)
        WOB = [PV+4*t for t in range(8)]; WOA = [PV+32+4*t for t in range(8)]
        T = QF
        a(f"s_mov_b32 s14, s3\ns_mul_i32 s15, s11, {32*896}")
        s.proj_wload(WOB, 13, 56, 15, 14)
        def wob():
            for t in range(8): s.proj_wload_one(t, WOB, 13, 56, 15)
        if not c['dwb']: wob()
        a("s_lshr_b32 s12, s11, 3\ns_and_b32 s13, s11, 7")
        G = L1+32
        a(f"v_lshrrev_b32 v7, 4, v1\nv_lshlrev_b32 v7, 11, v7\nv_and_b32 v14, 15, v1\nv_lshl_add_u32 v7, v14, 4, v7")
        a(f"s_lshl_b32 s5, s12, 14\ns_lshl_b32 s6, s13, 8\ns_add_u32 s5, s5, s6\ns_add_u32 s5, s5, {OFF_H4}\ns_add_u32 s6, s5, 8192")
        def issue_h4():
            a(f"buffer_load_dwordx4 {q(G)}, v7, s[44:47], s5 offen sc1\nbuffer_load_dwordx4 {q(G+4)}, v7, s[44:47], s6 offen sc1")
        if c['dwb']:
            s.spoll(5, 0, 4, 2048*2, 1)
            wob()
            if c['dwb'] == 1: s.spoll(5, 0, c['spn'], 2048*2, c['spk'])
        else: s.spoll(5, 0, c['spn'], 2048*2, c['spk'])
        s.poll(issue_h4, [("s76", [G+1, G+3, G+5, G+7])], G+8, G+9, sleep=c['sleep'])
        s.stamp(6)
        a(f"v_add_f32 v{G}, v{G}, v{G+4}\nv_add_f32 v{G+1}, v{G+2}, v{G+6}")
        a(f"s_mul_i32 s15, s11, {FS}\ns_lshl_b32 s5, s3, 10\ns_add_u32 s15, s15, s5\ns_add_u32 s15, s15, {OFF_FIN+FIN_AB}")
        s.proj_tail(G, WOB, T, 14, 15)
        s.stamp(7)
        c['timeout'] = tsave
        a("s_cmp_ge_u32 s11, 56\ns_cbranch_scc1 L_xend\ns_cmp_ge_u32 s3, 1\ns_cbranch_scc1 L_xend")
        s.final(11, 1, L1+64, QF+16, 8)
        a("L_xend:")
        s.stamp_out()
        a("s_endpgm")
    def ga(s):
        a = s.a; c = s.c; pa = c['pa']
        a("L_A:")
        NS = c['ns']; NL = 2*NS
        Kb, Vb, T, AD = 16, 112, 208, 8
        assert NS <= 12
        NIT = (4096 - 64*4*NS)//8 * (2 if c['c1'] else 1)
        QF, AC, D, TS, MM = T, T+8, T+16, T+24, T+36
        M, Lr, F, FA, TK, TT = MM, MM+1, MM+2, MM+3, MM+4, MM+5
        vZ, vE = T+46, T+47
        a("s_sub_u32 s11, s2, 256\ns_bfe_u32 s9, s11, 0x30004\ns_bfe_u32 s12, s11, 0x10003")
        a("s_lshr_b32 s6, s11, 7\ns_lshl_b32 s6, s6, 3\ns_and_b32 s10, s11, 7\ns_add_u32 s13, s10, s6")
        a("s_lshl_b32 s10, s12, 4\ns_add_u32 s10, s10, s13")
        if c['c1']:
            a("s_lshl_b32 s14, s9, 22")
            a(f"s_lshl_b32 s8, s10, 2\ns_add_u32 s8, s8, s3\ns_mul_i32 s8, s8, {NS*2048}\ns_add_u32 s8, s8, s14")
            a(f"s_add_u32 s14, s14, {128*NS*2048}")
            a(f"s_lshl_b32 s15, s9, 9\ns_add_u32 s15, s15, {OFF_CLR}")
        else:
            a("s_lshl_b32 s14, s9, 22\ns_lshl_b32 s6, s12, 21\ns_add_u32 s14, s14, s6")
            a(f"s_lshl_b32 s8, s13, 2\ns_add_u32 s8, s8, s3\ns_mul_i32 s8, s8, {32768 if c['il'] else NS*2048}\ns_add_u32 s8, s8, s14")
            a(f"s_add_u32 s14, s14, {NS*2048 if c['il'] else 64*NS*2048}")
            a(f"s_lshl_b32 s15, s9, 1\ns_add_u32 s15, s15, s12\ns_lshl_b32 s15, s15, 8\ns_add_u32 s15, s15, {OFF_CLR}")
        a(f"v_mov_b32 v{vZ}, 0")
        s.kv_addr(AD)
        s.common2(T)
        s.kwait()
        s.srd(44, 42, 0x10000000); s.srd(48, 40, 256)
        s.srd(68, 18, 8*8192*512); s.srd(72, 20, 8*8192*512)
        Lj = a.label("Lp1j")
        a(f"s_cmp_{'lt' if c['p1x'] else 'ge'}_u32 s11, 128\ns_cbranch_scc1 {Lj}")
        if c['prioa']: a(f"s_setprio {c['prioa']}")
        s.srd(52, 16, 896); s.srd(56, 22, 448*8192)
        XA, WA, PVv = Vb, Vb+4, T+16
        a("s_and_b32 s13, s11, 127")
        Lc = a.label("Lcz")
        a(f"s_cmp_ge_u32 s13, 8\ns_cbranch_scc1 {Lc}\ns_cmp_lg_u32 s3, 3\ns_cbranch_scc1 {Lc}")
        a(f"s_lshl_b32 s6, s13, 9\ns_add_u32 s6, s6, {OFF_CLR}\nv_lshlrev_b32 v{T}, 8, v1")
        s.exec_set(3, 0)
        a(f"buffer_store_dword v{vZ}, v{T}, s[44:47], s6 offen sc1")
        s.exec_all()
        a(f"{Lc}:")
        s.p1_setup(13, T, PVv)
        if c.get('fi'): s.stamp(10)
        s.p1_loads(XA, WA, 52, 56, PVv)
        if c.get('fi'): s.stamp(11)
        s.p1_setup2(T, PVv)
        a("s_waitcnt vmcnt(3)")
        a(f"buffer_load_dword v{vE}, v{vZ}, s[48:51], 0 offen sc1")
        a("s_waitcnt vmcnt(0)")
        s.get_epoch(vE, vZ)
        a("s_setprio 3")
        s.p1_compute(XA, WA, T, PVv, 0x1000, OFF_QA)
        a(f"s_setprio 0")
        a(f"{Lj}:")
        s.stamp(6)
        vK, vV = AD, AD+1
        def ld(n, reg, voff, srd, pace):
            g, hf = n//2, n % 2
            gi = n + (NL if srd == 72 else 0)
            px_ = c['pax'] if gi < c['nax'] else pace
            py_ = c['pa0'] if gi < c['nay'] else pace
            if px_ != py_:
                lo, cond = (px_, 'lt') if px_ < py_ else (py_, 'ge')
                Lk = a.label("Lpc")
                a(f"s_cmp_{cond}_u32 s11, 128\ns_cbranch_scc1 {Lk}\ns_waitcnt vmcnt({lo-1})\n{Lk}:")
            a(f"s_add_u32 s79, s8, {(g//2)*4096}")
            a(f"s_waitcnt vmcnt({max(px_, py_)-1})")
            a(f"buffer_load_dwordx4 {q(reg)}, v{voff}, s[{srd}:{srd+3}], s79 offen offset:{(g%2)*2048+hf*256} {c['nt']}")
            if c.get('bw'):
                m = {5: 7, 13: 8, 2*NL-1: 9}
                if gi in m: s.stamp(m[gi])
        na0 = 0
        v1n = c['v1']
        a(f"v_bfe_u32 v{AD+4}, v1, 3, 1\nv_lshlrev_b32 v{AD+4}, 9, v{AD+4}")
        a(f"v_lshl_add_u32 v{AD+4}, v{AD+2}, 6, v{AD+4}\nv_lshl_add_u32 v{AD+4}, v{AD+3}, 4, v{AD+4}")
        assert na0 <= NL-8
        for n in range(na0, NL):
            ld(n, Kb+4*n, vK, 68, pa)
            if n == NL-8: a(f"buffer_load_dword v{vE}, v{vZ}, s[48:51], 0 offen sc1")
        a("s_waitcnt vmcnt(7)")
        s.get_epoch(vE, vZ)
        def vfirst():
            for n in range(v1n): ld(n, Vb+4*n, vV, 72, pa)
        a(f"s_lshl_b32 s6, s9, 12\ns_lshl_b32 s5, s3, 10\ns_add_u32 s6, s6, s5\ns_add_u32 s6, s6, {OFF_QA}")
        a(f"v_lshlrev_b32 v{T+20}, 2, v0")
        s.gather_q(T, 6, T+20, 1, vfirst, v1n, sleep=c['qsleep'])
        a("s_barrier")
        s.stamp(1)
        a(f"ds_read_b128 {q(QF)}, v{AD+4}\nds_read_b128 {q(QF+4)}, v{AD+4} offset:256")
        a(f"s_mov_b32 s13, {f32(CEXP)}")
        a(f"s_waitcnt vmcnt({v1n}) lgkmcnt(0)")
        s.stamp(2)
        nv = v1n
        SA = c['sat']
        if c['ystop']:
            a(f"s_cmp_lt_u32 s11, 128\ns_cselect_b32 s82, {NIT-c['ystop']}, -1\ns_mov_b32 s83, 0")
        def ticket():
            if SA:
                if c['ystop']:
                    Lk = a.label("Lys")
                    a(f"s_cmp_ge_u32 s83, s82\ns_mov_b32 s83, -1\ns_cbranch_scc1 {Lk}")
                    a(f"s_mov_b32 s83, 1\ns_atomic_add s83, s[42:43], s15 glc\n{Lk}:")
                else:
                    a("s_mov_b32 s83, 1\ns_atomic_add s83, s[42:43], s15 glc")
                return
            a(f"v_mov_b32 v{TK}, 1")
            s.exec_set(1, 0)
            a(f"buffer_atomic_add v{TK}, v{vZ}, s[44:47], s15 offen sc0 sc1")
            s.exec_all()
        tk_at = NL - c['tka']
        def more(k=1):
            nonlocal nv
            for _ in range(k):
                if nv < NL:
                    if nv == max(tk_at, v1n): ticket()
                    ld(nv, Vb+4*nv, vV, 72, pa); nv += 1
        def dreg(i): return D+4*i if i < 2 else Kb+8*(i-2)
        for i in range(NS):
            a(f"{MF} {q(dreg(i))}, {q(Kb+i*8)}, {q(QF)}, 0")
            a(f"{MF} {q(dreg(i))}, {q(Kb+i*8+4)}, {q(QF+4)}, {q(dreg(i))}")
            if i % 6 == 5: more()
        for r in range(4):
            for i in range(NS):
                if r == 0: a(f"v_mov_b32_dpp v{TS+i}, v{dreg(i)} quad_perm:[0,0,0,0] {DPPF}")
                else: a(f"v_add_f32_dpp v{TS+i}, v{dreg(i)+r}, v{TS+i} quad_perm:[{r},{r},{r},{r}] {DPPF}")
        more()
        for i in range(0, NS, 2): a(f"v_cvt_pk_bf16_f32 v{D+(i//2)}, v{TS+i}, v{TS+i+1}")
        for i in range(0, NS, 2): a(f"v_lshlrev_b32 v{TS+i}, 16, v{D+i//2}\nv_and_b32 v{TS+i+1}, 0xffff0000, v{D+i//2}")
        a(f"v_max3_f32 v{M}, v{TS}, v{TS+1}, v{TS+2}")
        for i in range(3, NS, 2): a(f"v_max3_f32 v{M}, v{M}, v{TS+i}, v{TS+min(i+1,NS-1)}")
        s.allred_rows("v_max_f32", M, TT)
        a(f"v_mul_f32 v{M}, s13, v{M}")
        for i in range(NS): a(f"v_fma_f32 v{TS+i}, v{TS+i}, s13, -v{M}")
        more()
        for i in range(NS): a(f"v_exp_f32 v{TS+i}, v{TS+i}")
        a(f"v_add_f32 v{Lr}, v{TS}, v{TS+1}")
        for i in range(2, NS): a(f"v_add_f32 v{Lr}, v{Lr}, v{TS+i}")
        for i in range(NS): a(f"v_cvt_pk_bf16_f32 v{TS+i}, v{TS+i}, v{TS+i}")
        s.stamp(3)
        done = 0
        def pv(i):
            ab = D + (i % 2)*4
            for r in range(4): a(f"v_and_b32 v{ab+r}, v{TS+i}, v{2+r}")
            for hf in range(2):
                a(f"{MF} {q(AC+4*hf)}, {q(ab)}, {q(Vb+8*i+4*hf)}, {'0' if i == 0 else q(AC+4*hf)}")
        def pv_upto(k):
            nonlocal done
            while done < NS and 2*done+2 <= k:
                pv(done); done += 1
        while nv < NL:
            more()
            pv_upto(nv - 1 - (pa-1))
        ntk = NL - max(tk_at, v1n)
        BUF = [Kb, Kb+32]
        Lend = a.label("Lae")
        def take(Lno, younger):
            if SA: a("s_waitcnt lgkmcnt(0)\ns_mov_b32 s5, s83")
            else:
                a(f"s_waitcnt vmcnt({younger})")
                a(f"v_readfirstlane_b32 s5, v{TK}")
            a(f"s_cmp_ge_u32 s5, {NIT}\ns_cbranch_scc1 {Lno}")
            if c['pdy']:
                a(f"s_sub_u32 s7, s5, {c['ylo']}\ns_cmp_lt_u32 s7, {c['yhi']-c['ylo']}\ns_cselect_b32 s7, 1, 0\ns_cmp_lt_u32 s11, 128\ns_cselect_b32 s7, s7, 0")
            if c['il']: a(f"s_and_b32 s6, s5, 63\ns_lshl_b32 s6, s6, 15\ns_lshr_b32 s5, s5, 6\ns_lshl_b32 s5, s5, 12\ns_add_u32 s79, s14, s5\ns_add_u32 s79, s79, s6")
            else: a(f"s_lshl_b32 s5, s5, 12\ns_add_u32 s79, s14, s5")
        def item_loads(B):
            if c.get('bw'): a("s_add_u32 s94, s94, 1")
            for n in range(8):
                if n == (c['tkn'] if SA else 0): ticket()
                if c['pdy']:
                    Lk = a.label("Lpy")
                    a(f"s_cmp_eq_u32 s7, 0\ns_cbranch_scc1 {Lk}\ns_waitcnt vmcnt({c['pdy']-1})\n{Lk}:")
                if c['pdx'] and c['pdx'] < c['pd']:
                    Lk = a.label("Lpd")
                    a(f"s_cmp_lt_u32 s11, 128\ns_cbranch_scc1 {Lk}\ns_waitcnt vmcnt({c['pdx']-1})\n{Lk}:")
                a(f"s_waitcnt vmcnt({c['pd']-1})")
                vo, srd = (vK, 68) if n < 4 else (vV, 72)
                k = n % 4
                a(f"buffer_load_dwordx4 {q(B+4*n)}, v{vo}, s[{srd}:{srd+3}], s79 offen offset:{(k//2)*2048+(k%2)*256} {c['nt']}")
        def item_compute(B, last):
            if last:
                woa()
                a("s_waitcnt vmcnt(12)")
            for i in range(2):
                a(f"{MF} {q(D+4*i)}, {q(B+8*i)}, {q(QF)}, 0")
                a(f"{MF} {q(D+4*i)}, {q(B+8*i+4)}, {q(QF+4)}, {q(D+4*i)}")
            for r in range(4):
                for i in range(2):
                    if r == 0: a(f"v_mov_b32_dpp v{TS+i}, v{D+4*i} quad_perm:[0,0,0,0] {DPPF}")
                    else: a(f"v_add_f32_dpp v{TS+i}, v{D+4*i+r}, v{TS+i} quad_perm:[{r},{r},{r},{r}] {DPPF}")
            a(f"v_cvt_pk_bf16_f32 v{TT}, v{TS}, v{TS+1}\nv_lshlrev_b32 v{TS}, 16, v{TT}\nv_and_b32 v{TS+1}, 0xffff0000, v{TT}")
            a(f"v_max_f32 v{TS+2}, v{TS}, v{TS+1}")
            s.allred_rows("v_max_f32", TS+2, TT)
            a(f"v_mul_f32 v{TS+2}, s13, v{TS+2}\nv_max_f32 v{TS+2}, v{TS+2}, v{M}")
            a(f"v_sub_f32 v{F}, v{M}, v{TS+2}\nv_fma_f32 v{TS}, v{TS}, s13, -v{TS+2}\nv_fma_f32 v{TS+1}, v{TS+1}, s13, -v{TS+2}")
            a(f"v_exp_f32 v{F}, v{F}\nv_exp_f32 v{TS}, v{TS}\nv_exp_f32 v{TS+1}, v{TS+1}\nv_mov_b32 v{M}, v{TS+2}")
            a(f"v_fma_f32 v{Lr}, v{Lr}, v{F}, v{TS}")
            a(f"v_mov_b32_dpp v{FA}, v{F} row_newbcast:0 row_mask:0x3 bank_mask:0xf")
            a(f"v_add_f32 v{Lr}, v{Lr}, v{TS+1}")
            a(f"v_cvt_pk_bf16_f32 v{TS}, v{TS}, v{TS}")
            a(f"v_mov_b32_dpp v{FA}, v{F} row_newbcast:8 row_mask:0xc bank_mask:0xf")
            a(f"v_cvt_pk_bf16_f32 v{TS+1}, v{TS+1}, v{TS+1}")
            for k in range(8): a(f"v_mul_f32 v{AC+k}, v{AC+k}, v{FA}")
            for i in range(2):
                for r in range(4): a(f"v_and_b32 v{D+4*i+r}, v{TS+i}, v{2+r}")
            if last: a("s_waitcnt vmcnt(8)")
            for i in range(2):
                for hf in range(2):
                    a(f"{MF} {q(AC+4*hf)}, {q(D+4*i)}, {q(B+16+8*i+4*hf)}, {q(AC+4*hf)}")
        E = Kb+64
        s.epi_addr(E, True)
        a(f"v_bfe_u32 v{E+2}, v0, 4, 4\nv_mul_u32_u24 v{E+2}, {HA_U}, v{E+2}")
        a(f"v_and_b32 v{E}, 15, v0\nv_lshl_add_u32 v{E+2}, v{E}, 4, v{E+2}")
        a(f"s_mul_i32 s12, s9, {16*HA_U}\ns_lshl_b32 s6, s10, 8\ns_add_u32 s12, s12, s6\ns_add_u32 s12, s12, {OFF_HA}")
        a(f"s_lshl_b32 s5, s3, 11\nv_add_u32 v{AD+4}, s5, v6")
        a(f"v_bfe_u32 v{AD+6}, v1, 3, 1\nv_lshlrev_b32 v{AD+6}, 5, v{AD+6}\ns_lshl_b32 s5, s3, 3\nv_add_u32 v{AD+7}, s5, v{AD+6}")
        a(f"v_lshrrev_b32 v{AD+5}, 7, v0\nv_lshlrev_b32 v{AD+5}, 5, v{AD+5}")
        a(f"s_lshl_b32 s10, s10, 7\ns_lshl_b32 s5, s9, 12\ns_add_u32 s10, s10, s5\ns_lshr_b32 s5, s3, 1\ns_lshl_b32 s5, s5, 4\ns_add_u32 s10, s10, s5\ns_add_u32 s10, s10, {OFF_STA}")
        Z = E+4
        a(f"v_mov_b32 v{Z+17}, s76\nv_mov_b32 v{Z+19}, s76\nv_mov_b32 v{Z+21}, s76\nv_mov_b32 v{Z+23}, s76")
        WOA = [Vb+4*t for t in range(8)]
        assert done >= 4
        s.srd(60, 24, 4096*896)
        vWO = Z+24
        a(f"s_and_b32 s97, s11, 127\ns_mul_i32 s96, s97, {32*896}")
        s.proj_wload(WOA, vWO, 60, 96, 3)
        a(f"s_cmp_{'ge' if c['a5y'] else 'lt'}_u32 s11, 128\ns_cselect_b32 s5, 0x4000000, 0\nv_add_u32 v{vWO}, s5, v{vWO}")
        def woa():
            for t in range(8): s.proj_wload_one(t, WOA, vWO, 60, 96)
        Ln0 = a.label("Ln0"); L0 = a.label("Ld0"); Lf0 = a.label("Lf0"); Lf1 = a.label("Lf1")
        d0 = done
        if c['aprio']: a(f"s_setprio {c['aprio']}")
        take(Ln0, ntk)
        item_loads(BUF[0])
        if c['tkn'] > 8: a(f"s_waitcnt vmcnt({c['tkn']})"); ticket()
        a(f"s_waitcnt vmcnt({8 if SA else 9})")
        if c['tkn'] == 8: ticket()
        for i in range(d0, NS): pv(i)
        a(f"{L0}:")
        take(Lf0, 8)
        item_loads(BUF[1])
        if c['tkn'] > 8: a(f"s_waitcnt vmcnt({c['tkn']})"); ticket()
        a(f"s_waitcnt vmcnt({8 if SA else 9})")
        if c['tkn'] == 8: ticket()
        item_compute(BUF[0], False)
        take(Lf1, 8)
        item_loads(BUF[0])
        if c['tkn'] > 8: a(f"s_waitcnt vmcnt({c['tkn']})"); ticket()
        a(f"s_waitcnt vmcnt({8 if SA else 9})")
        if c['tkn'] == 8: ticket()
        item_compute(BUF[1], False)
        a(f"s_branch {L0}")
        a(f"{Ln0}:")
        woa()
        for i in range(d0, NS):
            a(f"s_waitcnt vmcnt({NL-2*(i+1)+8})")
            pv(i)
        a(f"s_branch {Lend}")
        a(f"{Lf0}:")
        item_compute(BUF[0], True)
        a(f"s_branch {Lend}")
        a(f"{Lf1}:")
        item_compute(BUF[1], True)
        a(f"{Lend}:")
        s.allred_rows("v_add_f32", Lr, TT)
        a(f"ds_write_b64 v{AD+7}, {p2(M)} offset:{0x800}")
        s.stamp(4)
        a(f"ds_write_b128 v{AD+4}, {q(AC)} offset:{0x1000}\nds_write_b128 v{AD+4}, {q(AC+4)} offset:{0x1000+1024}")
        a("s_waitcnt lgkmcnt(0)\ns_barrier")
        Y = Z+8
        a(f"ds_read_b128 {q(Y)}, v{AD+5} offset:{0x800}\nds_read_b128 {q(Y+4)}, v{AD+5} offset:{0x810}")
        for i in range(4): a(f"ds_read_b64 {p2(Z+2*i)}, v{E+3} offset:{0x1000+2048*i}")
        a("s_waitcnt lgkmcnt(4)")
        a(f"v_max3_f32 v{Z+20}, v{Y}, v{Y+2}, v{Y+4}\nv_max_f32 v{Z+20}, v{Z+20}, v{Y+6}")
        for k in range(4): a(f"v_sub_f32 v{Y+2*k}, v{Y+2*k}, v{Z+20}")
        for k in range(4): a(f"v_exp_f32 v{Y+2*k}, v{Y+2*k}")
        a("s_waitcnt lgkmcnt(0)")
        for k in range(4):
            op = "v_mul_f32" if k == 0 else "v_fmac_f32"
            a(f"{op} v{Z+16}, v{Y+2*k}, v{Z+2*k}\n{op} v{Z+18}, v{Y+2*k}, v{Z+2*k+1}")
        a(f"buffer_store_dwordx4 {q(Z+16)}, v{E+2}, s[44:47], s12 offen sc1")
        Lx = a.label("Lax")
        a(f"s_bitcmp1_b32 s3, 0\ns_cbranch_scc1 {Lx}")
        for k in range(4):
            op = "v_mul_f32" if k == 0 else "v_fmac_f32"
            a(f"{op} v{Z+22}, v{Y+2*k}, v{Y+2*k+1}")
        s.exec_set(1, 0)
        a(f"buffer_store_dwordx4 {q(Z+20)}, v{vZ}, s[44:47], s10 offen sc1")
        s.exec_all()
        a(f"{Lx}:")
        s.stamp(5)
        a(f"s_cmp_{'ge' if c['a5y'] else 'lt'}_u32 s11, 128\ns_cbranch_scc1 L_afin")
        s.a5(97, Kb, T, WOA)
        a("s_branch L_aend")
        a("L_afin:")
        a("s_sub_u32 s97, 127, s97")
        a("s_cmp_ge_u32 s97, 56\ns_cbranch_scc1 L_aend\ns_cmp_ge_u32 s3, 1\ns_cbranch_scc1 L_aend")
        s.final(97, 0, Kb, T, 10)
        a("L_aend:")
        s.stamp_out()
        a("s_endpgm")
    def build(s):
        a = s.a
        s.prologue()
        s.gy(); s.gx(); s.ga()
        a("L_end:\ns_endpgm")
        body = a.finish()
        import re
        if s.c.get('ldsys'): body = re.sub(r"(buffer_load_dword\S* .* offen(?: offset:\d+)?) sc1", r"\1 sc0 sc1", body)
        if s.c.get('stsys'): body = re.sub(r"(buffer_store_dword\S* .* offen(?: offset:\d+)?) sc1", r"\1 sc0 sc1", body)
        if s.c.get('stnt'): body = re.sub(r"(buffer_store_dword\S* .* offen(?: offset:\d+)?) sc1", r"\1 sc1 nt", body)
        if s.c.get('ldnt'): body = re.sub(r"(buffer_load_dword\S* .* offen(?: offset:\d+)?) sc1", r"\1 sc1 nt", body)
        hdr = open("concat_heads__gqa_block_cached__compressed_kv_cla__decode.s.ref").read().split("; @launch")[0]
        out = hdr + "; @launch grid=(512,1,1) block=(256,1,1) lds=81920\n"
        out += "; generated by my own generator script (gen2.py)\n"
        out += f'.amdgcn_target "amdgcn-amd-amdhsa--gfx950"\n.text\n.globl {KN}\n.p2align 8\n.type {KN},@function\n{KN}:\n'
        out += body
        out += f""".section .rodata,"a"
.p2align 6
.amdhsa_kernel {KN}
  .amdhsa_next_free_vgpr 256
  .amdhsa_next_free_sgpr 102
  .amdhsa_accum_offset 256
  .amdhsa_group_segment_fixed_size 0
  .amdhsa_kernarg_size 112
  .amdhsa_user_sgpr_count 2
  .amdhsa_user_sgpr_kernarg_segment_ptr 1
  .amdhsa_system_sgpr_workgroup_id_x 1
.end_amdhsa_kernel
"""
        return out
if __name__ == "__main__":
    from build import build
    name = sys.argv[1]
    cfg = {}
    for kv in sys.argv[2:]:
        k, v = kv.split("=")
        cfg[k] = v if k == "nt" else int(v)
    open(name, "w").write(Gen2(**cfg).build())
    print(build(name))
```

```python
import sys, math, struct
from asmlib import Asm
from gen import Gen, q, p2, f32, DPPF, KN, CEXP
OFF_QB, OFF_QA, OFF_QABS, OFF_CLR, OFF_ST3, OFF_STA, OFF_H4, OFF_HA, OFF_FIN, OFF_H3 = \
    0x0, 0x10000, 0x20000, 0x2c000, 0x30000, 0x38000, 0x40000, 0x80000, 0x200000, 0x400000
FIN_CG = 8192+128
FS = 4096+128; FIN_AB = 128*FS
QS = 2048+128
HA_U = 8192+128
H3_C = 32768+256
OFF_STAMP = 0x8000000
OFF_CHK = 0x1A0000
ROW = 2080; SLOT = 16*ROW
import gen as G1
G1.FIN_CG = FIN_CG
MF = "v_mfma_f32_16x16x32_bf16"

class Gen2(Gen):
    def __init__(s, **cfg):
        s.c = dict(stamp=False, nt="nt", sleep=2, timeout=100000, rnd=True, pa=8, pb=8, prio=2, prioa=0, n1=7, pu=8, px=8, pax=4, nax=16, nay=4, p1x=1, a5y=1, dwb=1, pdy=0, ylo=0, yhi=192, aprio=0, ystop=0, pw=0, ton=3, tok=3, tfn=3, tfk=3, spk=3, dwo=1, qf=0, spq=0, sp=1, sptime=2000, spsleep=2, spn=3, il=0, sat=1, tkn=6, xx=0, pdx=0, c1=0, ssleep=2, ns=10, tka=3, pd=9, qsleep=6, px0=4, v1=8, fsleep=2, pf=0, pa0=1, na0=4, na1=6, lead=10, h3d=0)
        s.c.update(cfg)
        s.a = Asm()
    def stamp_out(s):
        if not s.c['stamp']: return
        a = s.a
        a("s_mov_b64 exec, -1\nv_mov_b32 v8, 0")
        for k in range(12): a(f"v_writelane_b32 v8, s{84+k}, {k}")
        a("v_lshlrev_b32 v9, 2, v1")
        a("s_lshl_b32 s4, s2, 2\ns_add_u32 s4, s4, s3\ns_lshl_b32 s4, s4, 6")
        a(f"s_add_u32 s4, s4, {OFF_STAMP}")
        a("s_mov_b32 exec_lo, 0xffff\ns_mov_b32 exec_hi, 0")
        a("buffer_store_dword v8, v9, s[44:47], s4 offen")
    def prologue(s):
        a = s.a
        a("s_cmp_ge_u32 s2, 512\ns_cbranch_scc1 L_end")
        a("s_load_dwordx16 s[16:31], s[0:1], 0\ns_load_dwordx8 s[32:39], s[0:1], 64\ns_load_dwordx4 s[40:43], s[0:1], 96")
        a("s_memrealtime s[4:5]")
        a("v_lshrrev_b32 v7, 6, v0\nv_and_b32 v1, 63, v0")
        a("v_readfirstlane_b32 s3, v7\nv_lshlrev_b32 v6, 4, v1")
        if s.c['xx']:
            a("s_lshr_b32 s6, s2, 6\ns_cmp_eq_u32 s6, 3\ns_cselect_b32 s7, 192, 0\ns_add_u32 s2, s2, s7\ns_cmp_eq_u32 s6, 6\ns_cselect_b32 s7, 192, 0\ns_sub_u32 s2, s2, s7")
        if s.c['pf']:
            a(f"s_cmp_lt_u32 s2, {512-s.c['pf']}\ns_cbranch_scc1 L_nopf")
            a("s_getpc_b64 s[6:7]\ns_and_b32 s6, s6, 0xffffff00")
            a(f"v_lshlrev_b32 v9, 7, v0\nv_min_u32 v9, L_end-{KN}, v9\nglobal_load_dword v200, v9, s[6:7]")
            a("L_nopf:")
        a("s_cmp_ge_u32 s2, 256\ns_cbranch_scc1 L_A")
        if s.c['prio']: a(f"s_setprio {s.c['prio']}")
        a("s_cmp_ge_u32 s2, 128\ns_cbranch_scc1 L_X")
    def kwait(s):
        a = s.a
        a("s_waitcnt lgkmcnt(0)")
        a("s_or_b32 s77, s4, 1")
        if s.c['stamp']:
            for k in range(12): a(f"s_mov_b32 s{84+k}, 0")
            a("s_mov_b32 s84, s4")
    def common2(s, t):
        a = s.a
        a(f"v_and_b32 v{t}, 1, v1\nv_lshlrev_b32 v{t}, 4, v{t}\nv_mov_b32 v{t+1}, 0xffff\nv_lshlrev_b32 v{t}, v{t}, v{t+1}")
        a(f"v_bfe_u32 v{t+1}, v1, 1, 2")
        for r in range(4):
            a(f"v_cmp_eq_u32 vcc, {r}, v{t+1}\nv_cndmask_b32 v{2+r}, 0, v{t}, vcc")
    def get_epoch(s, vE, vZ):
        a = s.a
        L = a.label("Lge"); Ld = a.label("Lged")
        a(f"s_mov_b32 s78, {s.c['timeout']}")
        a(f"{L}:")
        a(f"v_readfirstlane_b32 s76, v{vE}")
        a(f"s_cmp_lg_u32 s76, 0\ns_cbranch_scc1 {Ld}")
        a(f"buffer_load_dword v{vE}, v{vZ}, s[48:51], 0 offen sc1\ns_waitcnt vmcnt(0)")
        a(f"s_sub_u32 s78, s78, 1\ns_cmp_lg_u32 s78, 0\ns_cbranch_scc1 {L}")
        a(f"{Ld}:")
    def check_tags(s, groups, t0, t1):
        if len(groups) == 1 and groups[0][0][0] == 's':
            a = s.a; exp, tags = groups[0]
            assert len(tags) % 2 == 0
            acc = []
            for k in range(0, len(tags), 2):
                d = (t0, t1)[(k//2) % 2]
                if k < 4: a(f"v_bitop3_b32 v{d}, v{tags[k]}, v{tags[k+1]}, {exp} bitop3:0x7e")
                else:
                    a(f"v_bitop3_b32 v{tags[k]}, v{tags[k]}, v{tags[k+1]}, {exp} bitop3:0x7e"); acc.append(tags[k])
            if len(tags) > 2: acc = [t1] + acc
            for k in range(0, len(acc), 2):
                y = acc[k+1] if k+1 < len(acc) else acc[k]
                a(f"v_or3_b32 v{t0}, v{t0}, v{acc[k]}, v{y}")
            a(f"v_cmp_ne_u32 vcc, 0, v{t0}\ns_cmp_eq_u64 vcc, 0")
        else:
            Gen.check_tags(s, groups, t0, t1)
    def spoll(s, soff, extra, n=1, stride=0, need=None):
        if not n: return
        if not s.c['sp']: return
        a = s.a
        L = a.label("Lsp"); Ld = a.label("Lspd")
        a(f"s_mov_b32 s78, {s.c['sptime']}")
        for k in range(n): a(f"s_add_u32 s{64+k}, s{soff}, {extra+4+k*stride}")
        a(f"{L}:")
        for k in range(n): a(f"s_load_dword s{68+k}, s[42:43], s{64+k} glc")
        a("s_waitcnt lgkmcnt(0)")
        a("s_mov_b32 s83, 0")
        for k in range(n): a(f"s_cmp_eq_u32 s{68+k}, s76\ns_addc_u32 s83, s83, 0")
        a(f"s_cmp_ge_u32 s83, {need or n}\ns_cbranch_scc1 {Ld}")
        a(f"s_sleep {s.c['spsleep']}\ns_sub_u32 s78, s78, 1\ns_cmp_lg_u32 s78, 0\ns_cbranch_scc1 {L}")
        a(f"{Ld}:")
    def poll_sent(s, issue, regs, t0, sleep=None, pre_issued=False):
        a = s.a
        L = a.label("Lps"); Ld = a.label("Lpsd")
        a(f"s_mov_b32 s78, {s.c['timeout']}")
        Lw = a.label("Lpsw")
        if pre_issued: a(f"s_branch {Lw}")
        a(f"{L}:")
        issue()
        a(f"{Lw}:")
        a("s_waitcnt vmcnt(0)")
        a(f"v_max3_u32 v{t0}, v{regs[0]}, v{regs[1]}, v{regs[2]}")
        rest = regs[3:]
        for i in range(0, len(rest), 2):
            y = rest[i+1] if i+1 < len(rest) else rest[i]
            a(f"v_max3_u32 v{t0}, v{t0}, v{rest[i]}, v{y}")
        a(f"v_cmp_eq_u32 vcc, -1, v{t0}")
        a(f"s_cbranch_vccz {Ld}")
        sl = s.c['sleep'] if sleep is None else sleep
        if sl: a(f"s_sleep {sl}")
        a(f"s_sub_u32 s78, s78, 1\ns_cmp_lg_u32 s78, 0\ns_cbranch_scc1 {L}")
        a(f"{Ld}:")
    def gather_q(s, T, soff, lds, n, between=None, nb=0, sleep=1):
        a = s.a
        a(f"s_add_u32 s7, s{soff}, 0x8000")
        def issue():
            for k in range(n):
                a(f"buffer_load_dwordx4 {q(T+8*k)}, v6, s[44:47], s{soff} offen offset:{1024*k} sc1")
                a(f"buffer_load_dwordx4 {q(T+8*k+4)}, v6, s[44:47], s7 offen offset:{1024*k} sc1")
        grp = [("s76", [T+4*k+j for k in range(2*n) for j in (1, 3)])]
        if between:
            Lok = a.label("Lgq")
            issue(); between()
            a(f"s_waitcnt vmcnt({nb})")
            s.check_tags(grp, T+8*n, T+8*n+1)
            a(f"s_cbranch_scc1 {Lok}")
            s.poll(issue, grp, T+8*n, T+8*n+1, sleep=sleep)
            a(f"{Lok}:")
        else:
            s.poll(issue, grp, T+8*n, T+8*n+1, sleep=sleep)
        for k in range(n):
            b = T+8*k
            a(f"v_add_f32 v{b}, v{b}, v{b+4}\nv_add_f32 v{b+2}, v{b+2}, v{b+6}\nv_cvt_pk_bf16_f32 v{b}, v{b}, v{b+2}")
            a(f"ds_write_b32 v{lds}, v{b} offset:{256*k}")
        a("s_waitcnt lgkmcnt(0)")
    def epi_addr(s, E, two_heads):
        a = s.a
        a(f"v_bfe_u32 v{E+3}, v0, 6, 1\nv_lshlrev_b32 v{E+3}, 10, v{E+3}")
        if two_heads: a(f"v_bfe_u32 v{E+1}, v0, 7, 1\nv_lshl_add_u32 v{E+3}, v{E+1}, 9, v{E+3}")
        a(f"v_bfe_u32 v{E+1}, v0, 1, 1\nv_lshl_add_u32 v{E+3}, v{E+1}, 8, v{E+3}")
        a(f"v_bfe_u32 v{E+1}, v0, 2, 4\nv_lshl_add_u32 v{E+3}, v{E+1}, 4, v{E+3}")
        a(f"v_and_b32 v{E+1}, 1, v0\nv_lshl_add_u32 v{E+3}, v{E+1}, 3, v{E+3}")
    def p1_setup(s, sI, T, V):
        a = s.a
        vX, vW, vSA, vSB, vLW, vRD, vPB = range(V, V+7)
        a(f"s_and_b32 s100, s{sI}, 7\ns_lshl_b32 s100, s100, 3\ns_bfe_u32 s6, s{sI}, 0x30003\ns_add_u32 s100, s100, s6\ns_lshr_b32 s101, s{sI}, 6")
        a("s_mul_i32 s96, s101, 224\ns_mul_i32 s6, s3, 56\ns_add_u32 s96, s96, s6\ns_lshl_b32 s97, s96, 1")
        a("s_lshl_b32 s96, s96, 13\ns_lshl_b32 s6, s100, 7\ns_add_u32 s96, s96, s6")
        a(f"v_lshrrev_b32 v{T}, 3, v1\nv_mul_u32_u24 v{vX}, 14, v{T}\nv_and_b32 v{vX}, 0x7c, v{vX}")
        a(f"v_mul_u32_u24 v{vW}, {7*8192}, v{T}\nv_and_b32 v{T+1}, 7, v1\nv_lshl_add_u32 v{vW}, v{T+1}, 4, v{vW}")
    def p1_loads(s, X, W, srdX, srdW, V):
        a = s.a
        a(f"buffer_load_dwordx4 {q(X)}, v{V}, s[{srdX}:{srdX+3}], s97 offen")
        for i in range(7):
            a(f"s_add_u32 s79, s96, {i*8192}")
            a(f"buffer_load_dwordx4 {q(W+4*i)}, v{V+1}, s[{srdW}:{srdW+3}], s79 offen {s.c['nt']}")
    def p1_setup2(s, T, V):
        a = s.a
        vX, vW, vSA, vSB, vLW, vRD, vPB = range(V, V+7)
        a(f"s_lshl_b32 s100, s100, 9\ns_lshl_b32 s101, s101, 15\ns_add_u32 s100, s100, s101")
        a(f"v_bfe_u32 v{T}, v1, 3, 1\nv_cmp_eq_u32 vcc, 1, v{T}")
        a(f"v_mov_b32 v{T+8}, 0x01000100\nv_mov_b32 v{T+9}, 0x03020302\nv_mov_b32 v{T+10}, 0x05040504")
        a(f"v_cndmask_b32 v{vSA}, v{T+8}, v{T+9}, vcc\nv_cndmask_b32 v{vSB}, v{T+9}, v{T+10}, vcc")
        a(f"s_lshl_b32 s5, s3, 10\nv_add_u32 v{vLW}, s5, v6")
        a(f"v_and_b32 v{T+3}, 3, v1")
        a(f"v_lshrrev_b32 v{vRD}, 5, v1\nv_lshlrev_b32 v{vRD}, 11, v{vRD}\nv_bfe_u32 v{T}, v1, 1, 1\nv_lshl_add_u32 v{vRD}, v{T}, 8, v{vRD}")
        a(f"v_bfe_u32 v{T}, v1, 2, 3\nv_lshl_add_u32 v{vRD}, v{T}, 4, v{vRD}\nv_and_b32 v{T}, 1, v1\nv_lshl_add_u32 v{vRD}, v{T}, 3, v{vRD}")
    def p1_compute(s, X, W, T, V, lds, off, flag_vZ=None):
        a = s.a
        vX, vW, vSA, vSB, vLW, vRD, vPB = range(V, V+7)
        AB, AC = T, T+12
        for i in range(7):
            ab = AB + (i % 2)*4
            k = i//2
            if i % 2 == 0: a(f"v_perm_b32 v{AB+8}, v{X+k}, v{X+k}, v{vSA}")
            else: a(f"v_perm_b32 v{AB+8}, v{X+k+1}, v{X+k}, v{vSB}")
            for r in range(4): a(f"v_and_b32 v{ab+r}, v{AB+8}, v{2+r}")
            a(f"{MF} {q(AC)}, {q(ab)}, {q(W+4*i)}, {'0' if i == 0 else q(AC)}")
        a(f"ds_write_b128 v{vLW}, {q(AC)} offset:{lds}")
        a("s_waitcnt lgkmcnt(0)\ns_barrier")
        L = a.label("Lred")
        a(f"s_cmp_lg_u32 s3, 3\ns_cbranch_scc1 {L}")
        R = T
        for k in range(4): a(f"ds_read_b64 {p2(R+2*k)}, v{vRD} offset:{lds + (k//2)*1024 + (k%2)*640}")
        a(f"s_add_u32 s5, s100, {off}")
        a(f"v_mov_b32 v{R+9}, s76\nv_mov_b32 v{R+11}, s76")
        a("s_waitcnt lgkmcnt(0)")
        a(f"v_pk_add_f32 {p2(R)}, {p2(R)}, {p2(R+2)}\nv_pk_add_f32 {p2(R+4)}, {p2(R+4)}, {p2(R+6)}\nv_pk_add_f32 {p2(R)}, {p2(R)}, {p2(R+4)}")
        a(f"v_mov_b64 {p2(R+2)}, {p2(R)}")
        a(f"v_permlane32_swap_b32 v{R}, v{R+2}\nv_permlane32_swap_b32 v{R+1}, v{R+3}")
        a(f"v_add_f32 v{R+8}, v{R}, v{R+2}\nv_add_f32 v{R+10}, v{R+1}, v{R+3}")
        s.exec_set(0xffffffff, 0)
        a(f"buffer_store_dwordx4 {q(R+8)}, v6, s[44:47], s5 offen sc1")
        if flag_vZ is not None:
            a(f"s_lshl_b32 s5, s2, 2\ns_add_u32 s5, s5, {OFF_CLR+0x1000}")
            s.exec_set(1, 0)
            a(f"buffer_store_dword v{R+9}, v{flag_vZ}, s[44:47], s5 offen sc1")
        s.exec_all()
        a(f"{L}:")
    def proj_tail(s, A0, W, T, scb, sfin, scale=None):
        a = s.a
        a(f"v_permlane32_swap_b32 v{A0}, v{A0+1}\nv_add_f32 v{A0}, v{A0}, v{A0+1}")
        a(f"v_mov_b32 v{A0+1}, v{A0}\nv_permlane16_swap_b32 v{A0}, v{A0+1}\nv_add_f32 v{A0}, v{A0}, v{A0+1}")
        if scale is not None: a(f"v_mul_f32 v{A0}, v{A0}, v{scale}")
        a(f"v_cvt_pk_bf16_f32 v{A0}, v{A0}, v{A0}")
        a(f"v_mov_b32 v{A0+1}, v{A0}")
        a(f"v_mov_b32_dpp v{A0}, v{A0+1} row_ror:8 row_mask:0xa bank_mask:0xf")
        AC = T+8; S = T+12
        for g in range(8):
            ab = T + (g % 2)*4
            for r in range(4): a(f"v_and_b32_dpp v{ab+r}, v{A0}, v{2+r} row_newbcast:{g} {DPPF}")
            a(f"{MF} {q(AC)}, {q(ab)}, {q(W[g])}, {'0' if g == 0 else q(AC)}")
        a(f"v_cmp_gt_u32 vcc, 32, v1")
        a(f"v_mov_b32 v{S+1}, s76\nv_mov_b32 v{S+3}, s76")
        a("s_mov_b32 exec_lo, s82\ns_mov_b32 exec_hi, s82")
        a(f"v_cndmask_b32 v{S}, v{AC+2}, v{AC}, vcc\nv_cndmask_b32 v{S+2}, v{AC+3}, v{AC+1}, vcc")
        a(f"buffer_store_dwordx4 {q(S)}, v6, s[44:47], s{sfin} offen sc1")
        s.exec_all()
    def a5(s, sU, R, T, WOA):
        a = s.a; c = s.c
        OG = R; ST = R+8; Z = R+16
        a(f"s_lshr_b32 s12, s{sU}, 3")
        a(f"v_lshrrev_b32 v{T+22}, 4, v1\nv_lshlrev_b32 v{T+22}, 7, v{T+22}")
        a(f"s_lshr_b32 s8, s12, 1\ns_lshl_b32 s8, s8, 12\ns_and_b32 s6, s12, 1\ns_lshl_b32 s6, s6, 4\ns_add_u32 s8, s8, s6\ns_lshl_b32 s6, s3, 10\ns_add_u32 s8, s8, s6\ns_add_u32 s8, s8, {OFF_STA}")
        a(f"s_mul_i32 s6, s{sU}, {HA_U}\ns_lshl_b32 s5, s3, 11\ns_add_u32 s6, s6, s5\ns_add_u32 s6, s6, {OFF_HA}")
        a(f"v_lshlrev_b32 v{T+20}, 4, v0")
        a(f"s_mul_i32 s15, s{sU}, {FS}\ns_lshl_b32 s5, s3, 10\ns_add_u32 s15, s15, s5\ns_add_u32 s15, s15, {OFF_FIN}")
        def issue_o():
            a(f"buffer_load_dwordx4 {q(OG)}, v6, s[44:47], s6 offen sc1\nbuffer_load_dwordx4 {q(OG+4)}, v6, s[44:47], s6 offen offset:1024 sc1")
            a(f"buffer_load_dwordx4 {q(ST)}, v{T+22}, s[44:47], s8 offen sc1\nbuffer_load_dwordx4 {q(ST+4)}, v{T+22}, s[44:47], s8 offen offset:512 sc1")
        s.spoll(6, 0, c['ton'], 256*2, c['tok'])
        s.poll(issue_o, [("s76", [OG+k for k in range(1, 16, 2)])], Z, Z+1, sleep=c['fsleep'])
        s.stamp(7)
        a(f"v_max_f32 v{Z+2}, v{ST}, v{ST+4}")
        a(f"v_sub_f32 v{ST}, v{ST}, v{Z+2}\nv_sub_f32 v{ST+4}, v{ST+4}, v{Z+2}\nv_exp_f32 v{ST}, v{ST}\nv_exp_f32 v{ST+4}, v{ST+4}")
        a(f"v_mul_f32 v{Z}, v{ST}, v{OG}\nv_mul_f32 v{Z+1}, v{ST}, v{OG+2}\nv_mul_f32 v{Z+3}, v{ST}, v{ST+2}")
        a(f"v_fmac_f32 v{Z}, v{ST+4}, v{OG+4}\nv_fmac_f32 v{Z+1}, v{ST+4}, v{OG+6}\nv_fmac_f32 v{Z+3}, v{ST+4}, v{ST+6}")
        a(f"ds_write_b128 v{T+20}, {q(Z)} offset:{0x6000}")
        a("s_waitcnt lgkmcnt(0)\ns_barrier")
        s.stamp(8)
        for k in range(4): a(f"ds_read_b128 {q(OG+4*k)}, v6 offset:{0x6000+1024*k}")
        a("s_waitcnt lgkmcnt(0)")
        a(f"v_max3_f32 v{Z+2}, v{OG+2}, v{OG+6}, v{OG+10}\nv_max_f32 v{Z+2}, v{Z+2}, v{OG+14}")
        s.allred_rows("v_max_f32", Z+2, Z+4)
        for k in range(4): a(f"v_sub_f32 v{OG+4*k+2}, v{OG+4*k+2}, v{Z+2}")
        for k in range(4): a(f"v_exp_f32 v{OG+4*k+2}, v{OG+4*k+2}")
        for k in range(4):
            op = "v_mul_f32" if k == 0 else "v_fmac_f32"
            a(f"{op} v{Z+3}, v{OG+4*k+2}, v{OG+4*k+3}\n{op} v{Z}, v{OG+4*k+2}, v{OG+4*k}\n{op} v{Z+1}, v{OG+4*k+2}, v{OG+4*k+1}")
        s.allred_rows("v_add_f32", Z+3, Z+4)
        a(f"v_rcp_f32 v{Z+3}, v{Z+3}")
        s.proj_tail(Z, WOA, T+24, 3, 15, scale=Z+3)
        s.stamp(9)
    def final(s, sJ, ab, F, T, stp):
        a = s.a; c = s.c
        s.srd(52, 38, 1792)
        a(f"s_mov_b32 s12, {ab}\ns_mov_b32 s13, s{sJ}")
        a("s_sub_u32 s5, s13, 48\ns_lshr_b32 s6, s5, 1\ns_lshl_b32 s6, s6, 2\ns_and_b32 s5, s5, 1\ns_add_u32 s6, s6, s5\ns_add_u32 s6, s6, 48")
        a("s_cmp_ge_u32 s13, 48\ns_cselect_b32 s13, s6, s13")
        a(f"s_mul_i32 s6, s12, {FIN_AB}\ns_lshl_b32 s5, s13, 6\ns_add_u32 s6, s6, s5\ns_add_u32 s6, s6, {OFF_FIN}")
        a(f"v_lshrrev_b32 v{T+9}, 2, v1\nv_mul_u32_u24 v{T+9}, {FS}, v{T+9}\nv_and_b32 v{T+10}, 3, v1\nv_lshl_add_u32 v{T+9}, v{T+10}, 4, v{T+9}")
        def issue_f():
            for i in range(8):
                a(f"s_add_u32 s79, s6, {i*16*FS}")
                a(f"buffer_load_dwordx4 {q(F+4*i)}, v{T+9}, s[44:47], s79 offen sc1")
        a("s_mul_i32 s15, s12, 896\ns_lshr_b32 s5, s13, 4\ns_lshl_b32 s5, s5, 8\ns_add_u32 s15, s15, s5")
        a("s_and_b32 s5, s13, 3\ns_lshl_b32 s5, s5, 6\ns_add_u32 s15, s15, s5")
        a("s_bfe_u32 s5, s13, 0x10002\ns_lshl_b32 s5, s5, 3\ns_add_u32 s15, s15, s5")
        a("s_bfe_u32 s5, s13, 0x10003\ns_lshl_b32 s5, s5, 2\ns_add_u32 s15, s15, s5")
        a(f"v_lshlrev_b32 v{T+8}, 2, v1")
        s.spoll(6, 0, c['tfn'], FS*37, c['tfk'])
        s.poll(issue_f, [("s76", [F+4*i+k for i in range(8) for k in (1, 3)])], T+4, T+5, sleep=c['fsleep'])
        s.stamp(stp)
        dl = c.get('dlb' if ab else 'dla')
        if dl:
            Lsp = a.label("Ldl")
            a(f"s_memrealtime s[98:99]\ns_waitcnt lgkmcnt(0)\ns_mov_b32 s83, s98\n{Lsp}:\ns_memrealtime s[98:99]\ns_waitcnt lgkmcnt(0)\ns_sub_u32 s5, s98, s83\ns_cmp_lt_u32 s5, {dl}\ns_cbranch_scc1 {Lsp}")
        for st in (16, 8, 4):
            for i in range(0, st, 4):
                a(f"v_add_f32 v{F+i}, v{F+i}, v{F+st+i}\nv_add_f32 v{F+i+2}, v{F+i+2}, v{F+st+i+2}")
        for m in ("row_ror:8", "row_ror:4"):
            for k in (0, 2): a(f"v_add_f32_dpp v{F+k}, v{F+k}, v{F+k} {m} {DPPF}")
        for k in (0, 2): s.allred_rows("v_add_f32", F+k, F+k+1)
        a(f"v_cvt_pk_bf16_f32 v{F}, v{F}, v{F+2}")
        if c.get('thr'):
            a(f"s_memrealtime s[98:99]\ns_waitcnt lgkmcnt(0)\ns_sub_u32 s5, s98, s76\ns_cmp_gt_u32 s5, {c['thr']}\ns_cselect_b32 s5, 0x7fc07fc0, 0\nv_or_b32 v{F}, s5, v{F}")
        if c.get('spin'):
            Lsp = a.label("Lspin")
            a(f"{Lsp}:\ns_memrealtime s[98:99]\ns_waitcnt lgkmcnt(0)\ns_sub_u32 s5, s98, s76\ns_cmp_lt_u32 s5, {c['spin']}\ns_cbranch_scc1 {Lsp}")
        if c.get('enc'):
            a("s_memrealtime s[98:99]\ns_waitcnt lgkmcnt(0)\ns_sub_u32 s5, s98, s76")
            a(f"v_mov_b32 v{F+4}, s5\nv_lshrrev_b32 v{F+4}, v{T+8}, v{F+4}")
            a(f"v_and_b32 v{F+5}, 3, v{F+4}\nv_bfe_u32 v{F+4}, v{F+4}, 2, 2\nv_lshl_or_b32 v{F+5}, v{F+4}, 16, v{F+5}")
            a(f"v_and_b32 v{F}, 0xfffcfffc, v{F}\nv_or_b32 v{F}, v{F}, v{F+5}")
        s.exec_set(0xf, 0)
        a(f"buffer_store_dword v{F}, v6, s[52:55], s15 offen")
        s.exec_all()
        s.stamp(stp+1)
    def gy(s):
        a = s.a; c = s.c; nt = c['nt']; pb = c['pb']
        XB, WB, UK, UV, T = 8, 16, 72, 136, 200
        PVv = T+40
        vLW = PVv+4
        vZ, vU, vQ = T+47, T+50, T+51
        vE = T+48
        s.p1_setup(2, T, PVv)
        a(f"v_mov_b32 v{vZ}, 0\nv_mov_b32 v{vE+1}, 0")
        a("s_lshr_b32 s12, s2, 3\ns_and_b32 s13, s2, 7")
        if c['qf']:
            a(f"s_lshl_b32 s14, s13, 12\ns_lshl_b32 s6, s12, 4\ns_add_u32 s14, s14, s6\ns_add_u32 s14, s14, {OFF_QABS}")
            a(f"v_lshlrev_b32 v{T+2}, 8, v1")
        else:
            a(f"s_lshl_b32 s14, s13, 8\ns_mul_i32 s6, s12, {QS}\ns_add_u32 s14, s14, s6\ns_add_u32 s14, s14, {OFF_QABS}")
        for r in range(4): a(f"v_mov_b32 v{T+4+r}, -1")
        s.kwait()
        s.srd(44, 42, 0x10000000); s.srd(48, 40, 256)
        s.srd(52, 26, 896); s.srd(56, 30, 448*8192)
        L = a.label("Le0")
        a(f"s_cmp_lg_u32 s3, 3\ns_cbranch_scc1 {L}")
        a(f"v_mov_b32 v{vE}, s77")
        s.exec_set(1, 0)
        a(f"buffer_atomic_cmpswap {p2(vE)}, v{vZ}, s[48:51], 0 offen sc0 sc1")
        s.exec_set(0xffff, 0)
        a(f"buffer_store_dwordx4 {q(T+4)}, v{T+2 if c['qf'] else 6}, s[44:47], s14 offen sc1")
        s.exec_all()
        a(f"{L}:")
        if c.get('fi'): s.stamp(9)
        s.p1_loads(XB, WB, 52, 56, PVv)
        if c.get('fi'): s.stamp(10)
        s.srd(68, 32, 1024*8192); s.srd(72, 34, 1024*8192)
        a(f"v_lshrrev_b32 v{T+2}, 4, v1\nv_lshrrev_b32 v{vQ}, 4, v0\nv_lshlrev_b32 v{vQ}, {8 if c['qf'] else 4}, v{vQ}")
        a(f"v_bfe_u32 v{vU}, v1, 2, 2\nv_lshlrev_b32 v{vU}, 16, v{vU}\nv_lshl_add_u32 v{vU}, v{T+2}, 6, v{vU}")
        a(f"v_and_b32 v{T+3}, 3, v1\nv_lshl_add_u32 v{vU}, v{T+3}, 4, v{vU}")
        a("s_lshl_b32 s15, s13, 20\ns_lshl_b32 s5, s3, 18\ns_add_u32 s15, s15, s5\ns_lshl_b32 s5, s12, 9\ns_add_u32 s15, s15, s5")
        s.common2(T+12)
        s.p1_setup2(T, PVv)
        def ukload(n, pace):
            i, hf = n//2, n % 2
            a(f"s_add_u32 s79, s15, {i*8192}")
            if pace: a(f"s_waitcnt vmcnt({pace-1})")
            a(f"buffer_load_dwordx4 {q(UK+4*n)}, v{vU}, s[68:71], s79 offen offset:{hf*256} {nt}")
        n1 = c['n1']
        for n in range(n1): ukload(n, pb)
        a(f"s_waitcnt vmcnt({n1})")
        s.stamp(1)
        L = a.label("Le1")
        a(f"s_cmp_lg_u32 s3, 3\ns_cbranch_scc1 {L}")
        a(f"v_readfirstlane_b32 s76, v{vE}\ns_cmp_eq_u32 s76, 0\ns_cselect_b32 s76, s77, s76")
        a(f"v_mov_b32 v{vE}, s76\nds_write_b32 v{vZ}, v{vE} offset:{0x2800}")
        a(f"{L}:")
        s.p1_compute(XB, WB, T, PVv, 0, OFF_QB, vZ)
        a(f"ds_read_b32 v{vE}, v{vZ} offset:{0x2800}")
        s.stamp(2)
        for n in range(n1, 16): ukload(n, pb)
        a(f"s_waitcnt lgkmcnt(0)\nv_readfirstlane_b32 s76, v{vE}")
        tsave = c['timeout']
        if c.get('nob'): c['timeout'] = 1
        L = a.label("Lqb")
        a(f"s_cmp_ge_u32 s3, 2\ns_cbranch_scc1 {L}")
        a(f"s_lshl_b32 s6, s12, 11\ns_lshl_b32 s5, s3, 10\ns_add_u32 s6, s6, s5\ns_add_u32 s6, s6, {OFF_QB}")
        a(f"v_lshlrev_b32 v{T+20}, 2, v0\nv_add_u32 v{T+20}, 0x2000, v{T+20}")
        s.gather_q(T, 6, T+20, 1)
        a(f"{L}:")
        a(f"v_lshrrev_b32 v{T+21}, 4, v1\nv_lshlrev_b32 v{T+21}, 6, v{T+21}\nv_and_b32 v{T+22}, 3, v1\nv_lshl_add_u32 v{T+21}, v{T+22}, 4, v{T+21}")
        a("s_waitcnt vmcnt(0)\ns_barrier")
        s.stamp(3)
        QF = T; D = WB
        a(f"ds_read_b128 {q(QF)}, v{T+21} offset:{0x2000}\nds_read_b128 {q(QF+4)}, v{T+21} offset:{0x2000+256}")
        a("s_waitcnt lgkmcnt(0)")
        for i in range(8):
            a(f"{MF} {q(D+4*i)}, {q(UK+8*i)}, {q(QF)}, 0")
            a(f"{MF} {q(D+4*i)}, {q(UK+8*i+4)}, {q(QF+4)}, {q(D+4*i)}")
        R = T+8
        for r in range(4):
            for i in range(8):
                if r == 0: a(f"v_mov_b32_dpp v{R+i}, v{D+4*i} quad_perm:[0,0,0,0] {DPPF}")
                else: a(f"v_add_f32_dpp v{R+i}, v{D+4*i+r}, v{R+i} quad_perm:[{r},{r},{r},{r}] {DPPF}")
        for k in range(4): a(f"v_cvt_pk_bf16_f32 v{R+8+k}, v{R+2*k}, v{R+2*k+1}")
        for k in range(4): a(f"v_min_u32 v{R+8+k}, -2, v{R+8+k}")
        s.exec_set(0x00010001, 0x00010001)
        if c['qf']:
            a(f"buffer_store_dwordx4 {q(R+8)}, v{vQ}, s[44:47], s14 offen sc1")
            s.exec_all()
        else:
            a(f"ds_write_b128 v{vQ}, {q(R+8)} offset:{0x2900}")
            s.exec_all()
            a("s_waitcnt lgkmcnt(0)\ns_barrier")
            L = a.label("Lqp")
            a(f"s_cmp_lg_u32 s3, 3\ns_cbranch_scc1 {L}")
            s.exec_set(0xffff, 0)
            a(f"ds_read_b128 {q(R+8)}, v6 offset:{0x2900}\ns_waitcnt lgkmcnt(0)")
            a(f"buffer_store_dwordx4 {q(R+8)}, v6, s[44:47], s14 offen sc1")
            s.exec_all()
            a(f"{L}:")
        s.stamp(4)
        a(f"v_lshrrev_b32 v{vU}, 4, v1\nv_lshlrev_b32 v{vU}, 13, v{vU}\nv_and_b32 v{T+22}, 15, v1\nv_lshl_add_u32 v{vU}, v{T+22}, 4, v{vU}")
        def uvload(n, pace):
            g, hf = n//2, n % 2
            a(f"s_add_u32 s79, s15, {g*4*8192}")
            if pace: a(f"s_waitcnt vmcnt({pace-1})")
            a(f"buffer_load_dwordx4 {q(UV+4*n)}, v{vU}, s[72:75], s79 offen offset:{hf*256} {nt}")
        for n in range(16): uvload(n, c['pu'])
        HG = UK; ST = T
        WL = 0x3000
        a(f"s_mul_i32 s6, s2, {H3_C}\ns_lshl_b32 s5, s3, 13\ns_add_u32 s6, s6, s5\ns_add_u32 s6, s6, {OFF_H3}\ns_add_u32 s7, s6, 4096")
        vSH = T+26
        a(f"v_and_b32 v{vSH}, 15, v1\nv_lshlrev_b32 v{vSH}, 1, v{vSH}\ns_mov_b32 s10, 0xff\ns_sub_u32 s9, 0, s76")
        L = a.label("Lst")
        a(f"s_cmp_lg_u32 s3, 0\ns_cbranch_scc1 {L}")
        a(f"s_lshl_b32 s5, s12, 11\ns_add_u32 s5, s5, {OFF_ST3}")
        def issue_st():
            for k in range(2): a(f"buffer_load_dwordx4 {q(ST+4*k)}, v6, s[44:47], s5 offen offset:{1024*k} sc1")
        if c['stamp']:
            a("s_waitcnt vmcnt(0)"); s.stamp(5)
        s.spoll(5, 0, c['spn'], 16*37, c['spk'])
        s.poll(issue_st, [("s76", [ST+1, ST+3, ST+5, ST+7])], T+8, T+9, sleep=c['ssleep'])
        a(f"{L}:")
        a("s_barrier")
        s.stamp(6)
        def issue_hg(cond=False):
            for i in range(c.get('nbk', 8)):
                Lk = a.label("Lhg")
                if cond: a(f"s_bitcmp0_b32 s10, {i}\ns_cbranch_scc1 {Lk}")
                a(f"buffer_load_dwordx4 {q(HG+4*i)}, v6, s[44:47], {'s6' if i < 4 else 's7'} offen offset:{1024*(i%4)} sc1")
                if cond: a(f"{Lk}:")
        if c['h3d']: a(f"s_sleep {c['h3d']}")
        issue_hg()
        L = a.label("Lwt")
        a(f"s_cmp_lg_u32 s3, 0\ns_cbranch_scc1 {L}")
        M, Lr, TT, E0 = T+8, T+9, T+10, T+12
        a(f"v_max_f32 v{M}, v{ST}, v{ST+4}")
        s.allred_inrow("v_max_f32", M); s.allred_rows("v_max_f32", M, TT)
        a(f"v_sub_f32 v{E0}, v{ST}, v{M}\nv_sub_f32 v{E0+1}, v{ST+4}, v{M}\nv_exp_f32 v{E0}, v{E0}\nv_exp_f32 v{E0+1}, v{E0+1}")
        a(f"v_mul_f32 v{Lr}, v{E0}, v{ST+2}\nv_fmac_f32 v{Lr}, v{E0+1}, v{ST+6}")
        s.allred_inrow("v_add_f32", Lr); s.allred_rows("v_add_f32", Lr, TT)
        a(f"v_rcp_f32 v{Lr}, v{Lr}")
        a(f"v_and_b32 v{TT}, 3, v1\nv_lshlrev_b32 v{TT}, 7, v{TT}\nv_lshrrev_b32 v{TT+1}, 5, v1\nv_lshl_add_u32 v{TT}, v{TT+1}, 5, v{TT}")
        a(f"v_bfe_u32 v{TT+1}, v1, 2, 3\nv_lshl_add_u32 v{TT}, v{TT+1}, 2, v{TT}")
        for k in range(2):
            e = E0+k; hi = E0+2+k; lo = E0+4+k
            a(f"v_mul_f32 v{e}, v{e}, v{Lr}\nv_cvt_pk_bf16_f32 v{hi}, v{e}, v{e}\nv_and_b32 v{lo}, 0xffff0000, v{hi}\nv_sub_f32 v{lo}, v{e}, v{lo}\nv_cvt_pk_bf16_f32 v{lo}, v{lo}, v{lo}")
            a(f"ds_write_b32 v{TT}, v{hi} offset:{WL+64*k}\nds_write_b32 v{TT}, v{lo} offset:{WL+512+64*k}")
        a("s_waitcnt lgkmcnt(0)")
        a(f"{L}:")
        a(f"v_bfe_u32 v{T+20}, v1, 3, 1\nv_lshlrev_b32 v{T+20}, 9, v{T+20}\nv_lshrrev_b32 v{T+21}, 4, v1\nv_lshl_add_u32 v{T+20}, v{T+21}, 7, v{T+20}")
        a(f"s_lshl_b32 s5, s3, 5\nv_add_u32 v{T+20}, s5, v{T+20}")
        a(f"v_and_b32 v{T+22}, 1, v1\nv_lshlrev_b32 v{T+22}, 8, v{T+22}\nv_bfe_u32 v{T+23}, v1, 1, 2\nv_lshl_add_u32 v{T+22}, v{T+23}, 4, v{T+22}")
        a(f"v_lshl_add_u32 v{T+22}, v{T+21}, 2, v{T+22}\ns_lshl_b32 s5, s3, 6\nv_add_u32 v{T+22}, s5, v{T+22}")
        a("s_barrier")
        WW = T; AO = WB
        a(f"ds_read_b128 {q(WW)}, v{T+20} offset:{WL}\nds_read_b128 {q(WW+4)}, v{T+20} offset:{WL+16}")
        a("s_waitcnt lgkmcnt(0)")
        for i in range(8):
            for r in range(4): a(f"v_and_b32 v{AO+4*i+r}, v{WW+i}, v{2+r}")
        DC = T+8
        Lp = a.label("Lck"); Lw = a.label("Lckw"); Ld = a.label("Lckd")
        a(f"s_mov_b32 s78, {c['timeout']}\ns_branch {Lw}")
        a(f"{Lp}:")
        issue_hg(True)
        a(f"{Lw}:")
        a("s_waitcnt vmcnt(0)")
        SU, BT = 48, 56
        for i in range(8):
            h_ = HG+4*i
            a(f"v_and_b32 v{BT+i}, 3, v{h_}\nv_add3_u32 v{SU+i}, v{h_}, v{h_+1}, v{h_+2}\nv_and_or_b32 v{h_}, v{h_}, -4, 2")
            a(f"v_lshl_add_u32 v{BT+i}, v{BT+i}, v{vSH}, v{BT+i}\nv_add_u32 v{SU+i}, v{SU+i}, v{h_+3}")
            a(f"{MF} {q(DC)}, {q(AO+4*i)}, {q(HG+4*i)}, {'0' if i == 0 else q(DC)}")
            a(f"v_sub_u32 v{SU+i}, v{SU+i}, v{BT+i}")
        for m in ("quad_perm:[1,0,3,2]", "quad_perm:[2,3,0,1]", "row_half_mirror", "row_mirror"):
            for i in range(8): a(f"v_add_u32_dpp v{SU+i}, v{SU+i}, v{SU+i} {m} {DPPF}")
        for i in range(8): a(f"v_cmp_ne_u32 s[{64+2*(i%4)}:{65+2*(i%4)}], s9, v{SU+i}" ) if i < 4 else None
        a("s_mov_b32 s11, 0")
        for half in range(2):
            if half:
                for i in range(4, 8): a(f"v_cmp_ne_u32 s[{64+2*(i%4)}:{65+2*(i%4)}], s9, v{SU+i}")
            for i in range(4*half, 4*half+4):
                a(f"s_cmp_lg_u64 s[{64+2*(i%4)}:{65+2*(i%4)}], 0\ns_cselect_b32 s5, {1 << i}, 0\ns_or_b32 s11, s11, s5")
        a(f"s_and_b32 s10, s10, s11\ns_cbranch_scc0 {Ld}")
        a(f"s_sleep 1\ns_sub_u32 s78, s78, 1\ns_cmp_lg_u32 s78, 0\ns_cbranch_scc1 {Lp}")
        a(f"{Ld}:")
        s.stamp(7)
        a(f"ds_write_b128 v{vLW}, {q(DC)}")
        a("s_waitcnt lgkmcnt(0)\ns_barrier")
        Z = T+12
        for k in range(8): a(f"ds_read_b32 v{Z+k}, v{T+22} offset:{512*k}")
        E = T+24
        s.epi_addr(E, False)
        a(f"v_lshlrev_b32 v{E}, 4, v0")
        a(f"s_lshl_b32 s5, s3, 11\nv_add_u32 v{E+2}, s5, v6")
        a(f"s_lshl_b32 s5, s2, 11\ns_add_u32 s5, s5, {OFF_H4}")
        a("s_waitcnt lgkmcnt(0)")
        for st in (4, 2):
            for i in range(0, st, 2): a(f"v_pk_add_f32 {p2(Z+i)}, {p2(Z+i)}, {p2(Z+st+i)}")
        a(f"v_add_f32 v{Z}, v{Z}, v{Z+1}\nv_cvt_pk_bf16_f32 v{Z}, v{Z}, v{Z}")
        DD = T+28
        for g in range(8):
            ab = T + (g % 2)*4
            for r in range(4): a(f"v_and_b32_dpp v{ab+r}, v{Z}, v{2+r} row_newbcast:{g} {DPPF}")
            for hf in range(2):
                a(f"{MF} {q(DD+4*hf)}, {q(ab)}, {q(UV+8*g+4*hf)}, {'0' if g == 0 else q(DD+4*hf)}")
        a(f"ds_write_b128 v{E+2}, {q(DD)} offset:{0x4000}\nds_write_b128 v{E+2}, {q(DD+4)} offset:{0x4000+1024}")
        a("s_waitcnt lgkmcnt(0)\ns_barrier")
        a(f"s_cmp_ge_u32 s3, 2\ns_cbranch_scc1 L_ya5")
        X = T
        for i in range(4): a(f"ds_read_b64 {p2(X+2*i)}, v{E+3} offset:{0x4000+2048*i}")
        a("s_waitcnt lgkmcnt(0)")
        for st in (4, 2):
            for i in range(0, st, 2): a(f"v_pk_add_f32 {p2(X+i)}, {p2(X+i)}, {p2(X+st+i)}")
        a(f"v_mov_b32 v{X+2}, v{X+1}\nv_mov_b32 v{X+1}, s76\nv_mov_b32 v{X+3}, s76")
        a(f"buffer_store_dwordx4 {q(X)}, v{E}, s[44:47], s5 offen sc1")
        s.stamp(8)
        c['timeout'] = tsave
        a("L_ya5:")
        s.stamp_out()
        a("s_endpgm")
    def gx(s):
        a = s.a; c = s.c; nt = c['nt']; pb = c['pb']
        a("L_X:")
        L1, PV, QF, S = 16, 144, 208, 240
        vTR, vL, vSX, vZ, vE = 8, 9, 10, 11, 12
        a("s_sub_u32 s11, s2, 128")
        a("s_lshl_b32 s8, s11, 17\ns_lshl_b32 s6, s3, 13\ns_add_u32 s8, s8, s6")
        a(f"s_mul_i32 s9, s3, {4*ROW}")
        s.kwait()
        s.srd(52, 28, 8192*2048)
        def dma(i, pace):
            for rr in range(4):
                a(f"s_add_u32 m0, s9, {(i%2)*SLOT + rr*ROW}")
                a(f"s_add_u32 s79, s8, {i*32768 + rr*2048}")
                for hf in range(2):
                    if pace: a(f"s_waitcnt vmcnt({pace-1})")
                    a(f"buffer_load_dwordx4 v6, s[52:55], s79 offen offset:{1024*hf} {nt} lds")
        if c.get('fi'): s.stamp(10)
        dma(0, c['px0'])
        if c.get('fi'): s.stamp(11)
        s.srd(44, 42, 0x10000000); s.srd(48, 40, 256); s.srd(56, 36, 4096*896)
        s.common2(13)
        a(f"v_lshrrev_b32 v13, 2, v1\nv_mul_u32_u24 v{vTR}, {ROW}, v13\nv_and_b32 v13, 3, v1\nv_lshl_add_u32 v{vTR}, v13, 3, v{vTR}")
        a(f"s_lshl_b32 s5, s3, 9\nv_add_u32 v{vTR}, s5, v{vTR}")
        a(f"v_and_b32 v13, 15, v1\nv_mul_u32_u24 v{vL}, {ROW}, v13\nv_lshrrev_b32 v14, 4, v1\nv_lshl_add_u32 v{vL}, v14, 4, v{vL}\nv_add_u32 v{vL}, s5, v{vL}")
        a(f"v_add_u32 v{vSX}, {2*SLOT}, v6\nv_mov_b32 v{vZ}, 0")
        a(f"v_lshrrev_b32 v15, 5, v1\nv_lshlrev_b32 v15, 3, v15\nv_bfe_u32 v7, v1, 4, 1\nv_add_u32 v15, v15, v7\nv_mul_u32_u24 v15, {H3_C}, v15")
        a(f"v_and_b32 v7, 15, v1\nv_lshl_add_u32 v15, v7, 4, v15")
        a(f"s_mul_i32 s10, s3, {2*H3_C}\ns_lshl_b32 s5, s11, 8\ns_add_u32 s10, s10, s5\ns_add_u32 s10, s10, {OFF_H3}")
        dma(1, c['px'])
        def tr(i, dst):
            for t in range(16): a(f"ds_read_b64_tr_b16 {p2(dst(t))}, v{vTR} offset:{(i%2)*SLOT+32*t}")
        def l1(i):
            for ks in range(8): a(f"ds_read_b128 {q(L1+(i*8+ks)*4)}, v{vL} offset:{(i%2)*SLOT+64*ks}")
        for i in range(4):
            if i == 3 and c['qf']:
                a(f"s_lshl_b32 s6, s3, 13\ns_add_u32 s6, s6, {OFF_QABS}\ns_add_u32 s7, s6, 4096")
                if c['spq']:
                    L = a.label("Lsq"); Ld = a.label("Lsqd")
                    a(f"s_mov_b32 s78, {c['sptime']}\ns_waitcnt lgkmcnt(0)")
                    a(f"{L}:")
                    a("s_load_dwordx16 s[56+8:56+23], s[42:43], s6 glc".replace("56+8", "64").replace("56+23", "79") if False else "s_load_dwordx8 s[64:71], s[42:43], s6 glc")
                    a("s_add_u32 s5, s7, 224\ns_load_dwordx8 s[88:95], s[42:43], s5 glc" if not c['stamp'] else "s_add_u32 s5, s7, 224\ns_load_dwordx4 s[72:75], s[42:43], s5 glc")
                    a("s_waitcnt lgkmcnt(0)")
                    a("s_max_u32 s83, s64, s68")
                    a("s_max_u32 s83, s83, s88\ns_max_u32 s83, s83, s92" if not c['stamp'] else "s_max_u32 s83, s83, s72")
                    a(f"s_cmp_lg_u32 s83, -1\ns_cbranch_scc1 {Ld}")
                    a(f"s_sleep {c['spsleep']}\ns_sub_u32 s78, s78, 1\ns_cmp_lg_u32 s78, 0\ns_cbranch_scc1 {L}")
                    a(f"{Ld}:")
            a(f"s_waitcnt vmcnt({[8, 8, 8, 0][i]})\ns_barrier")
            if c.get('bw') and i in (0, 2): s.stamp(10 + i//2)
            l1(i)
            if i < 2:
                tr(i, lambda t: PV+4*t+2*i)
                a("s_waitcnt lgkmcnt(0)\ns_barrier")
                dma(i+2, c['px'])
            if i == 2:
                L = a.label("Lclr")
                a(f"s_cmp_lg_u32 s3, 0\ns_cbranch_scc1 {L}")
                a(f"v_lshlrev_b32 v13, 3, v1\ns_mov_b32 s5, {OFF_CLR+0x1000}")
                def issue_c():
                    a(f"buffer_load_dwordx2 {p2(S)}, v13, s[44:47], s5 offen sc1")
                    a(f"buffer_load_dword v{vE}, v{vZ}, s[48:51], 0 offen sc1")
                s.poll(issue_c, [(f"v{vE}", [S, S+1])], S+2, S+3, sleep=4)
                a(f"ds_write_b32 v{vSX}, v{vE} offset:12288\ns_waitcnt lgkmcnt(0)")
                a(f"{L}:")
        tsave = c['timeout']
        if c.get('nob'): c['timeout'] = 1
        a(f"ds_read_b32 v{vE}, v{vSX} offset:12288")
        s.stamp(1)
        if c['qf']:
            def issue_q():
                for i in range(8):
                    a(f"buffer_load_dwordx4 {q(QF+4*i)}, v6, s[44:47], {'s6' if i < 4 else 's7'} offen offset:{1024*(i%4)} sc1")
            s.poll_sent(issue_q, list(range(QF, QF+32)), 13, sleep=2)
            a("s_waitcnt lgkmcnt(0)")
            a(f"v_readfirstlane_b32 s76, v{vE}")
            s.stamp(2)
            for ks in range(8):
                for ch in range(4):
                    a(f"{MF} {q(S+4*ch)}, {q(L1+(ch*8+ks)*4)}, {q(QF+4*ks)}, {'0' if ks == 0 else q(S+4*ch)}")
        else:
            a(f"s_lshl_b32 s6, s3, 9\ns_add_u32 s6, s6, {OFF_QABS}\ns_add_u32 s7, s6, {8*QS}")
            a(f"v_lshrrev_b32 v14, 3, v1\nv_mul_u32_u24 v14, {QS}, v14\nv_and_b32 v7, 7, v1\nv_lshl_add_u32 v14, v7, 4, v14")
            a(f"v_lshlrev_b32 v7, 5, v7\nv_bfe_u32 v13, v1, 3, 1\nv_lshl_add_u32 v7, v13, 4, v7\nv_lshrrev_b32 v13, 4, v1\nv_lshl_add_u32 v7, v13, 2, v7")
            def issue_q():
                for i in range(c.get('nbk', 8)): a(f"buffer_load_dwordx4 {q(QF+4*i)}, v14, s[44:47], {'s7' if i % 2 else 's6'} offen offset:{128*(i//2)} sc1")
            s.poll_sent(issue_q, list(range(QF, QF+32)), 13, sleep=2)
            a("s_waitcnt lgkmcnt(0)")
            a(f"v_readfirstlane_b32 s76, v{vE}")
            s.stamp(2)
            def mix(kp):
                A_, B_ = QF+8*kp, QF+8*kp+4
                a(f"v_mov_b64 {p2(S)}, {p2(A_)}\nv_mov_b64 {p2(S+2)}, {p2(A_+2)}")
                for r in range(4): a(f"v_mov_b32_dpp v{A_+r}, v{B_+r} row_shr:4 row_mask:0xf bank_mask:0xa")
                for r in range(4): a(f"v_mov_b32_dpp v{B_+r}, v{S+r} row_shl:4 row_mask:0xf bank_mask:0x5")
                for r in range(8): a(f"ds_bpermute_b32 v{A_+r}, v7, v{A_+r}")
            for kp in range(4): mix(kp)
            for ks in range(8):
                a(f"s_waitcnt lgkmcnt({min(15, 4*(7-ks))})")
                for ch in range(4):
                    a(f"{MF} {q(S+4*ch)}, {q(L1+(ch*8+ks)*4)}, {q(QF+4*ks)}, {'0' if ks == 0 else q(S+4*ch)}")
        PV1 = L1
        Lx = a.label("Lsx")
        labs = [a.label("Lsxw") for _ in range(4)]
        for w in range(1, 4): a(f"s_cmp_eq_u32 s3, {w}\ns_cbranch_scc1 {labs[w]}")
        for w in range(4):
            a(f"{labs[w]}:")
            for ch in range(4):
                if ch == w: continue
                k = (w - ch - 1) % 4
                a(f"ds_write_b128 v{vSX}, {q(S+4*ch)} offset:{(ch*3+k)*1024}")
            a(f"v_mov_b64 {p2(QF)}, {p2(S+4*w)}\nv_mov_b64 {p2(QF+2)}, {p2(S+4*w+2)}")
            if w < 3: a(f"s_branch {Lx}")
        a(f"{Lx}:")
        a(f"s_mul_i32 s5, s3, 3072\nv_add_u32 v13, s5, v{vSX}")
        a("s_waitcnt lgkmcnt(0)\ns_barrier")
        for k in range(3): a(f"ds_read_b128 {q(QF+4+4*k)}, v13 offset:{1024*k}")
        tr(2, lambda t: PV1+4*t)
        a("s_waitcnt lgkmcnt(15)\ns_waitcnt lgkmcnt(14)")
        a(f"v_pk_add_f32 {p2(QF)}, {p2(QF)}, {p2(QF+4)}\nv_pk_add_f32 {p2(QF+2)}, {p2(QF+2)}, {p2(QF+6)}")
        a(f"v_pk_add_f32 {p2(QF+8)}, {p2(QF+8)}, {p2(QF+12)}\nv_pk_add_f32 {p2(QF+10)}, {p2(QF+10)}, {p2(QF+14)}")
        a(f"v_pk_add_f32 {p2(QF)}, {p2(QF)}, {p2(QF+8)}\nv_pk_add_f32 {p2(QF+2)}, {p2(QF+2)}, {p2(QF+10)}")
        a(f"ds_write_b128 v13, {q(QF)}")
        a("s_waitcnt lgkmcnt(0)\ns_barrier")
        s.stamp(3)
        SR = S
        for ch in range(4): a(f"ds_read_b128 {q(SR+4*ch)}, v{vSX} offset:{3072*ch}")
        a("s_waitcnt lgkmcnt(0)")
        tr(3, lambda t: PV1+4*t+2)
        M, Lr, TT, P = QF+8, QF+10, QF+12, QF
        a(f"v_max3_f32 v{M}, v{SR}, v{SR+1}, v{SR+2}")
        for i in range(3, 16, 2): a(f"v_max3_f32 v{M}, v{M}, v{SR+i}, v{SR+min(i+1,15)}")
        s.allred_rows("v_max_f32", M, TT)
        a(f"s_mov_b32 s5, {f32(CEXP)}\nv_mul_f32 v{M}, s5, v{M}")
        for i in range(16): a(f"v_fma_f32 v{SR+i}, v{SR+i}, s5, -v{M}")
        for i in range(16): a(f"v_exp_f32 v{SR+i}, v{SR+i}")
        for i in range(8): a(f"v_cvt_pk_bf16_f32 v{P+i}, v{SR+2*i}, v{SR+2*i+1}")
        O = L1+64
        a(f"v_and_b32 v13, 15, v1\nv_mul_u32_u24 v13, {ROW}, v13\nv_lshrrev_b32 v14, 4, v1\nv_lshl_add_u32 v13, v14, 3, v13")
        a(f"s_lshl_b32 s5, s3, 9\nv_add_u32 v13, s5, v13")
        a(f"v_lshrrev_b32 v14, 5, v1\nv_mul_u32_u24 v14, {ROW}, v14\nv_and_b32 v7, 31, v1\nv_lshl_add_u32 v14, v7, 4, v14\nv_add_u32 v14, s5, v14")
        a("s_waitcnt lgkmcnt(0)")
        def fin(t):
            a(f"v_cvt_pk_bf16_f32 v{O+4*t}, v{O+4*t}, v{O+4*t+1}\nv_cvt_pk_bf16_f32 v{O+4*t+1}, v{O+4*t+2}, v{O+4*t+3}")
            a(f"ds_write_b64 v13, {p2(O+4*t)} offset:{32*t}")
        for t in range(16):
            a(f"{MF} {q(O+4*t)}, {q(PV+4*t)}, {q(P)}, 0")
            a(f"{MF} {q(O+4*t)}, {q(PV1+4*t)}, {q(P+4)}, {q(O+4*t)}")
            if t == 0:
                L = a.label("Lst3")
                a(f"s_cmp_lg_u32 s3, 0\ns_cbranch_scc1 {L}")
                for st in (8, 4, 2):
                    for i in range(0, st, 2): a(f"v_pk_add_f32 {p2(SR+i)}, {p2(SR+i)}, {p2(SR+st+i)}")
                a(f"v_add_f32 v{Lr}, v{SR}, v{SR+1}")
                s.allred_rows("v_add_f32", Lr, TT)
                a(f"v_mov_b32 v{M+1}, s76\nv_mov_b32 v{Lr+1}, s76\nv_lshlrev_b32 v{TT}, 11, v1")
                a(f"s_lshl_b32 s5, s11, 4\ns_add_u32 s5, s5, {OFF_ST3}")
                s.exec_set(0xffff, 0)
                a(f"buffer_store_dwordx4 {q(M)}, v{TT}, s[44:47], s5 offen sc1")
                s.exec_all()
                a(f"{L}:")
            if t >= 3: fin(t-3)
        fin(13); fin(14); fin(15)
        a("s_waitcnt lgkmcnt(0)")
        s.stamp(4)
        SQ = L1
        for i in range(8): a(f"ds_read_b128 {q(SQ+4*i)}, v14 offset:{2*ROW*i}")
        a(f"v_and_b32 v13, 15, v1\nv_lshlrev_b32 v13, 1, v13")
        for i in range(8):
            a(f"s_waitcnt lgkmcnt({7-i})")
            a(f"v_and_b32 v{SQ+4*i}, -4, v{SQ+4*i}\nv_add3_u32 v{O+i}, v{SQ+4*i+1}, v{SQ+4*i+2}, v{SQ+4*i+3}\nv_add_u32 v{O+i}, v{O+i}, v{SQ+4*i}")
        for m in ("quad_perm:[1,0,3,2]", "quad_perm:[2,3,0,1]", "row_half_mirror", "row_mirror"):
            for i in range(8): a(f"v_add_u32_dpp v{O+i}, v{O+i}, v{O+i} {m} {DPPF}")
        for i in range(8):
            a(f"v_add_u32 v{O+i}, s76, v{O+i}\nv_bfe_u32 v{O+i}, v{O+i}, v13, 2\nv_or_b32 v{SQ+4*i}, v{SQ+4*i}, v{O+i}")
            a(f"s_add_u32 s79, s10, {i*16*H3_C}")
            if i < c.get('nbk', 8): a(f"buffer_store_dwordx4 {q(SQ+4*i)}, v15, s[44:47], s79 offen sc1")
        s.stamp(5)
        WOB = [PV+4*t for t in range(8)]; WOA = [PV+32+4*t for t in range(8)]
        T = QF
        a(f"s_mov_b32 s14, s3\ns_mul_i32 s15, s11, {32*896}")
        s.proj_wload(WOB, 13, 56, 15, 14)
        def wob():
            for t in range(8): s.proj_wload_one(t, WOB, 13, 56, 15)
        if not c['dwb']: wob()
        a("s_lshr_b32 s12, s11, 3\ns_and_b32 s13, s11, 7")
        G = L1+32
        a(f"v_lshrrev_b32 v7, 4, v1\nv_lshlrev_b32 v7, 11, v7\nv_and_b32 v14, 15, v1\nv_lshl_add_u32 v7, v14, 4, v7")
        a(f"s_lshl_b32 s5, s12, 14\ns_lshl_b32 s6, s13, 8\ns_add_u32 s5, s5, s6\ns_add_u32 s5, s5, {OFF_H4}\ns_add_u32 s6, s5, 8192")
        def issue_h4():
            a(f"buffer_load_dwordx4 {q(G)}, v7, s[44:47], s5 offen sc1\nbuffer_load_dwordx4 {q(G+4)}, v7, s[44:47], s6 offen sc1")
        if c['dwb']:
            s.spoll(5, 0, 4, 2048*2, 1)
            wob()
            if c['dwb'] == 1: s.spoll(5, 0, c['spn'], 2048*2, c['spk'])
        else: s.spoll(5, 0, c['spn'], 2048*2, c['spk'])
        s.poll(issue_h4, [("s76", [G+1, G+3, G+5, G+7])], G+8, G+9, sleep=c['sleep'])
        s.stamp(6)
        a(f"v_add_f32 v{G}, v{G}, v{G+4}\nv_add_f32 v{G+1}, v{G+2}, v{G+6}")
        a(f"s_mul_i32 s15, s11, {FS}\ns_lshl_b32 s5, s3, 10\ns_add_u32 s15, s15, s5\ns_add_u32 s15, s15, {OFF_FIN+FIN_AB}")
        s.proj_tail(G, WOB, T, 14, 15)
        s.stamp(7)
        c['timeout'] = tsave
        a("s_cmp_ge_u32 s11, 56\ns_cbranch_scc1 L_xend\ns_cmp_ge_u32 s3, 1\ns_cbranch_scc1 L_xend")
        s.final(11, 1, L1+64, QF+16, 8)
        a("L_xend:")
        s.stamp_out()
        a("s_endpgm")
    def ga(s):
        a = s.a; c = s.c; pa = c['pa']
        a("L_A:")
        NS = c['ns']; NL = 2*NS
        Kb, Vb, T, AD = 16, 112, 208, 8
        assert NS <= 12
        NIT = (4096 - 64*4*NS)//8 * (2 if c['c1'] else 1)
        QF, AC, D, TS, MM = T, T+8, T+16, T+24, T+36
        M, Lr, F, FA, TK, TT = MM, MM+1, MM+2, MM+3, MM+4, MM+5
        vZ, vE = T+46, T+47
        a("s_sub_u32 s11, s2, 256\ns_bfe_u32 s9, s11, 0x30004\ns_bfe_u32 s12, s11, 0x10003")
        a("s_lshr_b32 s6, s11, 7\ns_lshl_b32 s6, s6, 3\ns_and_b32 s10, s11, 7\ns_add_u32 s13, s10, s6")
        a("s_lshl_b32 s10, s12, 4\ns_add_u32 s10, s10, s13")
        if c['c1']:
            a("s_lshl_b32 s14, s9, 22")
            a(f"s_lshl_b32 s8, s10, 2\ns_add_u32 s8, s8, s3\ns_mul_i32 s8, s8, {NS*2048}\ns_add_u32 s8, s8, s14")
            a(f"s_add_u32 s14, s14, {128*NS*2048}")
            a(f"s_lshl_b32 s15, s9, 9\ns_add_u32 s15, s15, {OFF_CLR}")
        else:
            a("s_lshl_b32 s14, s9, 22\ns_lshl_b32 s6, s12, 21\ns_add_u32 s14, s14, s6")
            a(f"s_lshl_b32 s8, s13, 2\ns_add_u32 s8, s8, s3\ns_mul_i32 s8, s8, {32768 if c['il'] else NS*2048}\ns_add_u32 s8, s8, s14")
            a(f"s_add_u32 s14, s14, {NS*2048 if c['il'] else 64*NS*2048}")
            a(f"s_lshl_b32 s15, s9, 1\ns_add_u32 s15, s15, s12\ns_lshl_b32 s15, s15, 8\ns_add_u32 s15, s15, {OFF_CLR}")
        a(f"v_mov_b32 v{vZ}, 0")
        s.kv_addr(AD)
        s.common2(T)
        s.kwait()
        s.srd(44, 42, 0x10000000); s.srd(48, 40, 256)
        s.srd(68, 18, 8*8192*512); s.srd(72, 20, 8*8192*512)
        Lj = a.label("Lp1j")
        a(f"s_cmp_{'lt' if c['p1x'] else 'ge'}_u32 s11, 128\ns_cbranch_scc1 {Lj}")
        if c['prioa']: a(f"s_setprio {c['prioa']}")
        s.srd(52, 16, 896); s.srd(56, 22, 448*8192)
        XA, WA, PVv = Vb, Vb+4, T+16
        a("s_and_b32 s13, s11, 127")
        Lc = a.label("Lcz")
        a(f"s_cmp_ge_u32 s13, 8\ns_cbranch_scc1 {Lc}\ns_cmp_lg_u32 s3, 3\ns_cbranch_scc1 {Lc}")
        a(f"s_lshl_b32 s6, s13, 9\ns_add_u32 s6, s6, {OFF_CLR}\nv_lshlrev_b32 v{T}, 8, v1")
        s.exec_set(3, 0)
        a(f"buffer_store_dword v{vZ}, v{T}, s[44:47], s6 offen sc1")
        s.exec_all()
        a(f"{Lc}:")
        s.p1_setup(13, T, PVv)
        if c.get('fi'): s.stamp(10)
        s.p1_loads(XA, WA, 52, 56, PVv)
        if c.get('fi'): s.stamp(11)
        s.p1_setup2(T, PVv)
        a("s_waitcnt vmcnt(3)")
        a(f"buffer_load_dword v{vE}, v{vZ}, s[48:51], 0 offen sc1")
        a("s_waitcnt vmcnt(0)")
        s.get_epoch(vE, vZ)
        a("s_setprio 3")
        s.p1_compute(XA, WA, T, PVv, 0x1000, OFF_QA)
        a(f"s_setprio 0")
        a(f"{Lj}:")
        s.stamp(6)
        vK, vV = AD, AD+1
        def ld(n, reg, voff, srd, pace):
            g, hf = n//2, n % 2
            gi = n + (NL if srd == 72 else 0)
            px_ = c['pax'] if gi < c['nax'] else pace
            py_ = c['pa0'] if gi < c['nay'] else pace
            if px_ != py_:
                lo, cond = (px_, 'lt') if px_ < py_ else (py_, 'ge')
                Lk = a.label("Lpc")
                a(f"s_cmp_{cond}_u32 s11, 128\ns_cbranch_scc1 {Lk}\ns_waitcnt vmcnt({lo-1})\n{Lk}:")
            a(f"s_add_u32 s79, s8, {(g//2)*4096}")
            a(f"s_waitcnt vmcnt({max(px_, py_)-1})")
            a(f"buffer_load_dwordx4 {q(reg)}, v{voff}, s[{srd}:{srd+3}], s79 offen offset:{(g%2)*2048+hf*256} {c['nt']}")
            if c.get('bw'):
                m = {5: 7, 13: 8, 2*NL-1: 9}
                if gi in m: s.stamp(m[gi])
        na0 = 0
        v1n = c['v1']
        a(f"v_bfe_u32 v{AD+4}, v1, 3, 1\nv_lshlrev_b32 v{AD+4}, 9, v{AD+4}")
        a(f"v_lshl_add_u32 v{AD+4}, v{AD+2}, 6, v{AD+4}\nv_lshl_add_u32 v{AD+4}, v{AD+3}, 4, v{AD+4}")
        assert na0 <= NL-8
        for n in range(na0, NL):
            ld(n, Kb+4*n, vK, 68, pa)
            if n == NL-8: a(f"buffer_load_dword v{vE}, v{vZ}, s[48:51], 0 offen sc1")
        a("s_waitcnt vmcnt(7)")
        s.get_epoch(vE, vZ)
        def vfirst():
            for n in range(v1n): ld(n, Vb+4*n, vV, 72, pa)
        a(f"s_lshl_b32 s6, s9, 12\ns_lshl_b32 s5, s3, 10\ns_add_u32 s6, s6, s5\ns_add_u32 s6, s6, {OFF_QA}")
        a(f"v_lshlrev_b32 v{T+20}, 2, v0")
        s.gather_q(T, 6, T+20, 1, vfirst, v1n, sleep=c['qsleep'])
        a("s_barrier")
        s.stamp(1)
        a(f"ds_read_b128 {q(QF)}, v{AD+4}\nds_read_b128 {q(QF+4)}, v{AD+4} offset:256")
        a(f"s_mov_b32 s13, {f32(CEXP)}")
        a(f"s_waitcnt vmcnt({v1n}) lgkmcnt(0)")
        s.stamp(2)
        nv = v1n
        SA = c['sat']
        if c['ystop']:
            a(f"s_cmp_lt_u32 s11, 128\ns_cselect_b32 s82, {NIT-c['ystop']}, -1\ns_mov_b32 s83, 0")
        def ticket():
            if SA:
                if c['ystop']:
                    Lk = a.label("Lys")
                    a(f"s_cmp_ge_u32 s83, s82\ns_mov_b32 s83, -1\ns_cbranch_scc1 {Lk}")
                    a(f"s_mov_b32 s83, 1\ns_atomic_add s83, s[42:43], s15 glc\n{Lk}:")
                else:
                    a("s_mov_b32 s83, 1\ns_atomic_add s83, s[42:43], s15 glc")
                return
            a(f"v_mov_b32 v{TK}, 1")
            s.exec_set(1, 0)
            a(f"buffer_atomic_add v{TK}, v{vZ}, s[44:47], s15 offen sc0 sc1")
            s.exec_all()
        tk_at = NL - c['tka']
        def more(k=1):
            nonlocal nv
            for _ in range(k):
                if nv < NL:
                    if nv == max(tk_at, v1n): ticket()
                    ld(nv, Vb+4*nv, vV, 72, pa); nv += 1
        def dreg(i): return D+4*i if i < 2 else Kb+8*(i-2)
        for i in range(NS):
            a(f"{MF} {q(dreg(i))}, {q(Kb+i*8)}, {q(QF)}, 0")
            a(f"{MF} {q(dreg(i))}, {q(Kb+i*8+4)}, {q(QF+4)}, {q(dreg(i))}")
            if i % 6 == 5: more()
        for r in range(4):
            for i in range(NS):
                if r == 0: a(f"v_mov_b32_dpp v{TS+i}, v{dreg(i)} quad_perm:[0,0,0,0] {DPPF}")
                else: a(f"v_add_f32_dpp v{TS+i}, v{dreg(i)+r}, v{TS+i} quad_perm:[{r},{r},{r},{r}] {DPPF}")
        more()
        for i in range(0, NS, 2): a(f"v_cvt_pk_bf16_f32 v{D+(i//2)}, v{TS+i}, v{TS+i+1}")
        for i in range(0, NS, 2): a(f"v_lshlrev_b32 v{TS+i}, 16, v{D+i//2}\nv_and_b32 v{TS+i+1}, 0xffff0000, v{D+i//2}")
        a(f"v_max3_f32 v{M}, v{TS}, v{TS+1}, v{TS+2}")
        for i in range(3, NS, 2): a(f"v_max3_f32 v{M}, v{M}, v{TS+i}, v{TS+min(i+1,NS-1)}")
        s.allred_rows("v_max_f32", M, TT)
        a(f"v_mul_f32 v{M}, s13, v{M}")
        for i in range(NS): a(f"v_fma_f32 v{TS+i}, v{TS+i}, s13, -v{M}")
        more()
        for i in range(NS): a(f"v_exp_f32 v{TS+i}, v{TS+i}")
        a(f"v_add_f32 v{Lr}, v{TS}, v{TS+1}")
        for i in range(2, NS): a(f"v_add_f32 v{Lr}, v{Lr}, v{TS+i}")
        for i in range(NS): a(f"v_cvt_pk_bf16_f32 v{TS+i}, v{TS+i}, v{TS+i}")
        s.stamp(3)
        done = 0
        def pv(i):
            ab = D + (i % 2)*4
            for r in range(4): a(f"v_and_b32 v{ab+r}, v{TS+i}, v{2+r}")
            for hf in range(2):
                a(f"{MF} {q(AC+4*hf)}, {q(ab)}, {q(Vb+8*i+4*hf)}, {'0' if i == 0 else q(AC+4*hf)}")
        def pv_upto(k):
            nonlocal done
            while done < NS and 2*done+2 <= k:
                pv(done); done += 1
        while nv < NL:
            more()
            pv_upto(nv - 1 - (pa-1))
        ntk = NL - max(tk_at, v1n)
        BUF = [Kb, Kb+32]
        Lend = a.label("Lae")
        def take(Lno, younger):
            if SA: a("s_waitcnt lgkmcnt(0)\ns_mov_b32 s5, s83")
            else:
                a(f"s_waitcnt vmcnt({younger})")
                a(f"v_readfirstlane_b32 s5, v{TK}")
            a(f"s_cmp_ge_u32 s5, {NIT}\ns_cbranch_scc1 {Lno}")
            if c['pdy']:
                a(f"s_sub_u32 s7, s5, {c['ylo']}\ns_cmp_lt_u32 s7, {c['yhi']-c['ylo']}\ns_cselect_b32 s7, 1, 0\ns_cmp_lt_u32 s11, 128\ns_cselect_b32 s7, s7, 0")
            if c['il']: a(f"s_and_b32 s6, s5, 63\ns_lshl_b32 s6, s6, 15\ns_lshr_b32 s5, s5, 6\ns_lshl_b32 s5, s5, 12\ns_add_u32 s79, s14, s5\ns_add_u32 s79, s79, s6")
            else: a(f"s_lshl_b32 s5, s5, 12\ns_add_u32 s79, s14, s5")
        def item_loads(B):
            if c.get('bw'): a("s_add_u32 s94, s94, 1")
            for n in range(8):
                if n == (c['tkn'] if SA else 0): ticket()
                if c['pdy']:
                    Lk = a.label("Lpy")
                    a(f"s_cmp_eq_u32 s7, 0\ns_cbranch_scc1 {Lk}\ns_waitcnt vmcnt({c['pdy']-1})\n{Lk}:")
                if c['pdx'] and c['pdx'] < c['pd']:
                    Lk = a.label("Lpd")
                    a(f"s_cmp_lt_u32 s11, 128\ns_cbranch_scc1 {Lk}\ns_waitcnt vmcnt({c['pdx']-1})\n{Lk}:")
                a(f"s_waitcnt vmcnt({c['pd']-1})")
                vo, srd = (vK, 68) if n < 4 else (vV, 72)
                k = n % 4
                a(f"buffer_load_dwordx4 {q(B+4*n)}, v{vo}, s[{srd}:{srd+3}], s79 offen offset:{(k//2)*2048+(k%2)*256} {c['nt']}")
        def item_compute(B, last):
            if last:
                woa()
                a("s_waitcnt vmcnt(12)")
            for i in range(2):
                a(f"{MF} {q(D+4*i)}, {q(B+8*i)}, {q(QF)}, 0")
                a(f"{MF} {q(D+4*i)}, {q(B+8*i+4)}, {q(QF+4)}, {q(D+4*i)}")
            for r in range(4):
                for i in range(2):
                    if r == 0: a(f"v_mov_b32_dpp v{TS+i}, v{D+4*i} quad_perm:[0,0,0,0] {DPPF}")
                    else: a(f"v_add_f32_dpp v{TS+i}, v{D+4*i+r}, v{TS+i} quad_perm:[{r},{r},{r},{r}] {DPPF}")
            a(f"v_cvt_pk_bf16_f32 v{TT}, v{TS}, v{TS+1}\nv_lshlrev_b32 v{TS}, 16, v{TT}\nv_and_b32 v{TS+1}, 0xffff0000, v{TT}")
            a(f"v_max_f32 v{TS+2}, v{TS}, v{TS+1}")
            s.allred_rows("v_max_f32", TS+2, TT)
            a(f"v_mul_f32 v{TS+2}, s13, v{TS+2}\nv_max_f32 v{TS+2}, v{TS+2}, v{M}")
            a(f"v_sub_f32 v{F}, v{M}, v{TS+2}\nv_fma_f32 v{TS}, v{TS}, s13, -v{TS+2}\nv_fma_f32 v{TS+1}, v{TS+1}, s13, -v{TS+2}")
            a(f"v_exp_f32 v{F}, v{F}\nv_exp_f32 v{TS}, v{TS}\nv_exp_f32 v{TS+1}, v{TS+1}\nv_mov_b32 v{M}, v{TS+2}")
            a(f"v_fma_f32 v{Lr}, v{Lr}, v{F}, v{TS}")
            a(f"v_mov_b32_dpp v{FA}, v{F} row_newbcast:0 row_mask:0x3 bank_mask:0xf")
            a(f"v_add_f32 v{Lr}, v{Lr}, v{TS+1}")
            a(f"v_cvt_pk_bf16_f32 v{TS}, v{TS}, v{TS}")
            a(f"v_mov_b32_dpp v{FA}, v{F} row_newbcast:8 row_mask:0xc bank_mask:0xf")
            a(f"v_cvt_pk_bf16_f32 v{TS+1}, v{TS+1}, v{TS+1}")
            for k in range(8): a(f"v_mul_f32 v{AC+k}, v{AC+k}, v{FA}")
            for i in range(2):
                for r in range(4): a(f"v_and_b32 v{D+4*i+r}, v{TS+i}, v{2+r}")
            if last: a("s_waitcnt vmcnt(8)")
            for i in range(2):
                for hf in range(2):
                    a(f"{MF} {q(AC+4*hf)}, {q(D+4*i)}, {q(B+16+8*i+4*hf)}, {q(AC+4*hf)}")
        E = Kb+64
        s.epi_addr(E, True)
        a(f"v_bfe_u32 v{E+2}, v0, 4, 4\nv_mul_u32_u24 v{E+2}, {HA_U}, v{E+2}")
        a(f"v_and_b32 v{E}, 15, v0\nv_lshl_add_u32 v{E+2}, v{E}, 4, v{E+2}")
        a(f"s_mul_i32 s12, s9, {16*HA_U}\ns_lshl_b32 s6, s10, 8\ns_add_u32 s12, s12, s6\ns_add_u32 s12, s12, {OFF_HA}")
        a(f"s_lshl_b32 s5, s3, 11\nv_add_u32 v{AD+4}, s5, v6")
        a(f"v_bfe_u32 v{AD+6}, v1, 3, 1\nv_lshlrev_b32 v{AD+6}, 5, v{AD+6}\ns_lshl_b32 s5, s3, 3\nv_add_u32 v{AD+7}, s5, v{AD+6}")
        a(f"v_lshrrev_b32 v{AD+5}, 7, v0\nv_lshlrev_b32 v{AD+5}, 5, v{AD+5}")
        a(f"s_lshl_b32 s10, s10, 7\ns_lshl_b32 s5, s9, 12\ns_add_u32 s10, s10, s5\ns_lshr_b32 s5, s3, 1\ns_lshl_b32 s5, s5, 4\ns_add_u32 s10, s10, s5\ns_add_u32 s10, s10, {OFF_STA}")
        Z = E+4
        a(f"v_mov_b32 v{Z+17}, s76\nv_mov_b32 v{Z+19}, s76\nv_mov_b32 v{Z+21}, s76\nv_mov_b32 v{Z+23}, s76")
        WOA = [Vb+4*t for t in range(8)]
        assert done >= 4
        s.srd(60, 24, 4096*896)
        vWO = Z+24
        a(f"s_and_b32 s97, s11, 127\ns_mul_i32 s96, s97, {32*896}")
        s.proj_wload(WOA, vWO, 60, 96, 3)
        a(f"s_cmp_{'ge' if c['a5y'] else 'lt'}_u32 s11, 128\ns_cselect_b32 s5, 0x4000000, 0\nv_add_u32 v{vWO}, s5, v{vWO}")
        def woa():
            for t in range(8): s.proj_wload_one(t, WOA, vWO, 60, 96)
        Ln0 = a.label("Ln0"); L0 = a.label("Ld0"); Lf0 = a.label("Lf0"); Lf1 = a.label("Lf1")
        d0 = done
        if c['aprio']: a(f"s_setprio {c['aprio']}")
        take(Ln0, ntk)
        item_loads(BUF[0])
        if c['tkn'] > 8: a(f"s_waitcnt vmcnt({c['tkn']})"); ticket()
        a(f"s_waitcnt vmcnt({8 if SA else 9})")
        if c['tkn'] == 8: ticket()
        for i in range(d0, NS): pv(i)
        a(f"{L0}:")
        take(Lf0, 8)
        item_loads(BUF[1])
        if c['tkn'] > 8: a(f"s_waitcnt vmcnt({c['tkn']})"); ticket()
        a(f"s_waitcnt vmcnt({8 if SA else 9})")
        if c['tkn'] == 8: ticket()
        item_compute(BUF[0], False)
        take(Lf1, 8)
        item_loads(BUF[0])
        if c['tkn'] > 8: a(f"s_waitcnt vmcnt({c['tkn']})"); ticket()
        a(f"s_waitcnt vmcnt({8 if SA else 9})")
        if c['tkn'] == 8: ticket()
        item_compute(BUF[1], False)
        a(f"s_branch {L0}")
        a(f"{Ln0}:")
        woa()
        for i in range(d0, NS):
            a(f"s_waitcnt vmcnt({NL-2*(i+1)+8})")
            pv(i)
        a(f"s_branch {Lend}")
        a(f"{Lf0}:")
        item_compute(BUF[0], True)
        a(f"s_branch {Lend}")
        a(f"{Lf1}:")
        item_compute(BUF[1], True)
        a(f"{Lend}:")
        s.allred_rows("v_add_f32", Lr, TT)
        a(f"ds_write_b64 v{AD+7}, {p2(M)} offset:{0x800}")
        s.stamp(4)
        a(f"ds_write_b128 v{AD+4}, {q(AC)} offset:{0x1000}\nds_write_b128 v{AD+4}, {q(AC+4)} offset:{0x1000+1024}")
        a("s_waitcnt lgkmcnt(0)\ns_barrier")
        Y = Z+8
        a(f"ds_read_b128 {q(Y)}, v{AD+5} offset:{0x800}\nds_read_b128 {q(Y+4)}, v{AD+5} offset:{0x810}")
        for i in range(4): a(f"ds_read_b64 {p2(Z+2*i)}, v{E+3} offset:{0x1000+2048*i}")
        a("s_waitcnt lgkmcnt(4)")
        a(f"v_max3_f32 v{Z+20}, v{Y}, v{Y+2}, v{Y+4}\nv_max_f32 v{Z+20}, v{Z+20}, v{Y+6}")
        for k in range(4): a(f"v_sub_f32 v{Y+2*k}, v{Y+2*k}, v{Z+20}")
        for k in range(4): a(f"v_exp_f32 v{Y+2*k}, v{Y+2*k}")
        a("s_waitcnt lgkmcnt(0)")
        for k in range(4):
            op = "v_mul_f32" if k == 0 else "v_fmac_f32"
            a(f"{op} v{Z+16}, v{Y+2*k}, v{Z+2*k}\n{op} v{Z+18}, v{Y+2*k}, v{Z+2*k+1}")
        a(f"buffer_store_dwordx4 {q(Z+16)}, v{E+2}, s[44:47], s12 offen sc1")
        Lx = a.label("Lax")
        a(f"s_bitcmp1_b32 s3, 0\ns_cbranch_scc1 {Lx}")
        for k in range(4):
            op = "v_mul_f32" if k == 0 else "v_fmac_f32"
            a(f"{op} v{Z+22}, v{Y+2*k}, v{Y+2*k+1}")
        s.exec_set(1, 0)
        a(f"buffer_store_dwordx4 {q(Z+20)}, v{vZ}, s[44:47], s10 offen sc1")
        s.exec_all()
        a(f"{Lx}:")
        s.stamp(5)
        a(f"s_cmp_{'ge' if c['a5y'] else 'lt'}_u32 s11, 128\ns_cbranch_scc1 L_afin")
        s.a5(97, Kb, T, WOA)
        a("s_branch L_aend")
        a("L_afin:")
        a("s_sub_u32 s97, 127, s97")
        a("s_cmp_ge_u32 s97, 56\ns_cbranch_scc1 L_aend\ns_cmp_ge_u32 s3, 1\ns_cbranch_scc1 L_aend")
        s.final(97, 0, Kb, T, 10)
        a("L_aend:")
        s.stamp_out()
        a("s_endpgm")
    def build(s):
        a = s.a
        s.prologue()
        s.gy(); s.gx(); s.ga()
        a("L_end:\ns_endpgm")
        body = a.finish()
        import re
        if s.c.get('ldsys'): body = re.sub(r"(buffer_load_dword\S* .* offen(?: offset:\d+)?) sc1", r"\1 sc0 sc1", body)
        if s.c.get('stsys'): body = re.sub(r"(buffer_store_dword\S* .* offen(?: offset:\d+)?) sc1", r"\1 sc0 sc1", body)
        if s.c.get('stnt'): body = re.sub(r"(buffer_store_dword\S* .* offen(?: offset:\d+)?) sc1", r"\1 sc1 nt", body)
        if s.c.get('ldnt'): body = re.sub(r"(buffer_load_dword\S* .* offen(?: offset:\d+)?) sc1", r"\1 sc1 nt", body)
        hdr = open("concat_heads__gqa_block_cached__compressed_kv_cla__decode.s.ref").read().split("; @launch")[0]
        out = hdr + "; @launch grid=(512,1,1) block=(256,1,1) lds=81920\n"
        out += "; generated by my own generator script (gen2.py)\n"
        out += f'.amdgcn_target "amdgcn-amd-amdhsa--gfx950"\n.text\n.globl {KN}\n.p2align 8\n.type {KN},@function\n{KN}:\n'
        out += body
        out += f""".section .rodata,"a"
.p2align 6
.amdhsa_kernel {KN}
  .amdhsa_next_free_vgpr 256
  .amdhsa_next_free_sgpr 102
  .amdhsa_accum_offset 256
  .amdhsa_group_segment_fixed_size 0
  .amdhsa_kernarg_size 112
  .amdhsa_user_sgpr_count 2
  .amdhsa_user_sgpr_kernarg_segment_ptr 1
  .amdhsa_system_sgpr_workgroup_id_x 1
.end_amdhsa_kernel
"""
        return out
if __name__ == "__main__":
    from build import build
    name = sys.argv[1]
    cfg = {}
    for kv in sys.argv[2:]:
        k, v = kv.split("=")
        cfg[k] = v if k == "nt" else int(v)
    open(name, "w").write(Gen2(**cfg).build())
    print(build(name))
```

```python
import sys, math, struct
from asmlib import Asm
from gen import Gen, q, p2, f32, DPPF, KN, CEXP
OFF_QB, OFF_QA, OFF_QABS, OFF_CLR, OFF_ST3, OFF_STA, OFF_H4, OFF_HA, OFF_FIN, OFF_H3 = \
    0x0, 0x10000, 0x20000, 0x2c000, 0x30000, 0x38000, 0x40000, 0x80000, 0x200000, 0x400000
FIN_CG = 8192+128
FS = 4096+128; FIN_AB = 128*FS
QS = 2048+128
HA_U = 8192+128
H3_C = 32768+256
OFF_STAMP = 0x8000000
OFF_CHK = 0x1A0000
ROW = 2080; SLOT = 16*ROW
import gen as G1
G1.FIN_CG = FIN_CG
MF = "v_mfma_f32_16x16x32_bf16"

class Gen2(Gen):
    def __init__(s, **cfg):
        s.c = dict(stamp=False, nt="nt", sleep=2, timeout=100000, rnd=True, pa=8, pb=8, prio=2, prioa=0, n1=7, pu=8, px=8, pax=4, nax=16, nay=4, p1x=1, vq=4, npre=0, a5y=1, dwb=1, pdy=0, ylo=0, yhi=192, aprio=0, ystop=0, pw=0, ton=3, tok=3, tfn=3, tfk=3, spk=3, dwo=1, qf=0, spq=0, sp=1, sptime=2000, spsleep=2, spn=3, il=0, sat=1, tkn=6, xx=0, pdx=0, c1=0, ssleep=2, ns=10, tka=3, pd=9, qsleep=6, px0=4, v1=8, fsleep=2, pf=0, pa0=1, na0=4, na1=6, lead=10, h3d=0)
        s.c.update(cfg)
        s.a = Asm()
    def stamp_out(s):
        if not s.c['stamp']: return
        a = s.a
        a("s_mov_b64 exec, -1\nv_mov_b32 v8, 0")
        for k in range(12): a(f"v_writelane_b32 v8, s{84+k}, {k}")
        a("v_lshlrev_b32 v9, 2, v1")
        a("s_lshl_b32 s4, s2, 2\ns_add_u32 s4, s4, s3\ns_lshl_b32 s4, s4, 6")
        a(f"s_add_u32 s4, s4, {OFF_STAMP}")
        a("s_mov_b32 exec_lo, 0xffff\ns_mov_b32 exec_hi, 0")
        a("buffer_store_dword v8, v9, s[44:47], s4 offen")
    def prologue(s):
        a = s.a
        a("s_cmp_ge_u32 s2, 512\ns_cbranch_scc1 L_end")
        a("s_load_dwordx16 s[16:31], s[0:1], 0\ns_load_dwordx8 s[32:39], s[0:1], 64\ns_load_dwordx4 s[40:43], s[0:1], 96")
        a("s_memrealtime s[4:5]")
        a("v_lshrrev_b32 v7, 6, v0\nv_and_b32 v1, 63, v0")
        a("v_readfirstlane_b32 s3, v7\nv_lshlrev_b32 v6, 4, v1")
        if s.c['xx']:
            a("s_lshr_b32 s6, s2, 6\ns_cmp_eq_u32 s6, 3\ns_cselect_b32 s7, 192, 0\ns_add_u32 s2, s2, s7\ns_cmp_eq_u32 s6, 6\ns_cselect_b32 s7, 192, 0\ns_sub_u32 s2, s2, s7")
        if s.c['pf']:
            a(f"s_cmp_lt_u32 s2, {512-s.c['pf']}\ns_cbranch_scc1 L_nopf")
            a("s_getpc_b64 s[6:7]\ns_and_b32 s6, s6, 0xffffff00")
            a(f"v_lshlrev_b32 v9, 7, v0\nv_min_u32 v9, L_end-{KN}, v9\nglobal_load_dword v200, v9, s[6:7]")
            a("L_nopf:")
        a("s_cmp_ge_u32 s2, 256\ns_cbranch_scc1 L_A")
        if s.c['prio']: a(f"s_setprio {s.c['prio']}")
        a("s_cmp_ge_u32 s2, 128\ns_cbranch_scc1 L_X")
    def kwait(s):
        a = s.a
        a("s_waitcnt lgkmcnt(0)")
        a("s_or_b32 s77, s4, 1")
        if s.c['stamp']:
            for k in range(12): a(f"s_mov_b32 s{84+k}, 0")
            a("s_mov_b32 s84, s4")
    def common2(s, t):
        a = s.a
        a(f"v_and_b32 v{t}, 1, v1\nv_lshlrev_b32 v{t}, 4, v{t}\nv_mov_b32 v{t+1}, 0xffff\nv_lshlrev_b32 v{t}, v{t}, v{t+1}")
        a(f"v_bfe_u32 v{t+1}, v1, 1, 2")
        for r in range(4):
            a(f"v_cmp_eq_u32 vcc, {r}, v{t+1}\nv_cndmask_b32 v{2+r}, 0, v{t}, vcc")
    def get_epoch(s, vE, vZ):
        a = s.a
        L = a.label("Lge"); Ld = a.label("Lged")
        a(f"s_mov_b32 s78, {s.c['timeout']}")
        a(f"{L}:")
        a(f"v_readfirstlane_b32 s76, v{vE}")
        a(f"s_cmp_lg_u32 s76, 0\ns_cbranch_scc1 {Ld}")
        a(f"buffer_load_dword v{vE}, v{vZ}, s[48:51], 0 offen sc1\ns_waitcnt vmcnt(0)")
        a(f"s_sub_u32 s78, s78, 1\ns_cmp_lg_u32 s78, 0\ns_cbranch_scc1 {L}")
        a(f"{Ld}:")
    def check_tags(s, groups, t0, t1):
        if len(groups) == 1 and groups[0][0][0] == 's':
            a = s.a; exp, tags = groups[0]
            assert len(tags) % 2 == 0
            acc = []
            for k in range(0, len(tags), 2):
                d = (t0, t1)[(k//2) % 2]
                if k < 4: a(f"v_bitop3_b32 v{d}, v{tags[k]}, v{tags[k+1]}, {exp} bitop3:0x7e")
                else:
                    a(f"v_bitop3_b32 v{tags[k]}, v{tags[k]}, v{tags[k+1]}, {exp} bitop3:0x7e"); acc.append(tags[k])
            if len(tags) > 2: acc = [t1] + acc
            for k in range(0, len(acc), 2):
                y = acc[k+1] if k+1 < len(acc) else acc[k]
                a(f"v_or3_b32 v{t0}, v{t0}, v{acc[k]}, v{y}")
            a(f"v_cmp_ne_u32 vcc, 0, v{t0}\ns_cmp_eq_u64 vcc, 0")
        else:
            Gen.check_tags(s, groups, t0, t1)
    def spoll(s, soff, extra, n=1, stride=0, need=None):
        if not n: return
        if not s.c['sp']: return
        a = s.a
        L = a.label("Lsp"); Ld = a.label("Lspd")
        a(f"s_mov_b32 s78, {s.c['sptime']}")
        for k in range(n): a(f"s_add_u32 s{64+k}, s{soff}, {extra+4+k*stride}")
        a(f"{L}:")
        for k in range(n): a(f"s_load_dword s{68+k}, s[42:43], s{64+k} glc")
        a("s_waitcnt lgkmcnt(0)")
        a("s_mov_b32 s83, 0")
        for k in range(n): a(f"s_cmp_eq_u32 s{68+k}, s76\ns_addc_u32 s83, s83, 0")
        a(f"s_cmp_ge_u32 s83, {need or n}\ns_cbranch_scc1 {Ld}")
        a(f"s_sleep {s.c['spsleep']}\ns_sub_u32 s78, s78, 1\ns_cmp_lg_u32 s78, 0\ns_cbranch_scc1 {L}")
        a(f"{Ld}:")
    def poll_sent(s, issue, regs, t0, sleep=None, pre_issued=False):
        a = s.a
        L = a.label("Lps"); Ld = a.label("Lpsd")
        a(f"s_mov_b32 s78, {s.c['timeout']}")
        Lw = a.label("Lpsw")
        if pre_issued: a(f"s_branch {Lw}")
        a(f"{L}:")
        issue()
        a(f"{Lw}:")
        a("s_waitcnt vmcnt(0)")
        a(f"v_max3_u32 v{t0}, v{regs[0]}, v{regs[1]}, v{regs[2]}")
        rest = regs[3:]
        for i in range(0, len(rest), 2):
            y = rest[i+1] if i+1 < len(rest) else rest[i]
            a(f"v_max3_u32 v{t0}, v{t0}, v{rest[i]}, v{y}")
        a(f"v_cmp_eq_u32 vcc, -1, v{t0}")
        a(f"s_cbranch_vccz {Ld}")
        sl = s.c['sleep'] if sleep is None else sleep
        if sl: a(f"s_sleep {sl}")
        a(f"s_sub_u32 s78, s78, 1\ns_cmp_lg_u32 s78, 0\ns_cbranch_scc1 {L}")
        a(f"{Ld}:")
    def gather_q(s, T, soff, lds, n, between=None, nb=0, sleep=1):
        a = s.a
        a(f"s_add_u32 s7, s{soff}, 0x8000")
        def issue():
            for k in range(n):
                a(f"buffer_load_dwordx4 {q(T+8*k)}, v6, s[44:47], s{soff} offen offset:{1024*k} sc1")
                a(f"buffer_load_dwordx4 {q(T+8*k+4)}, v6, s[44:47], s7 offen offset:{1024*k} sc1")
        grp = [("s76", [T+4*k+j for k in range(2*n) for j in (1, 3)])]
        if between:
            Lok = a.label("Lgq")
            issue(); between()
            a(f"s_waitcnt vmcnt({nb})")
            s.check_tags(grp, T+8*n, T+8*n+1)
            a(f"s_cbranch_scc1 {Lok}")
            s.poll(issue, grp, T+8*n, T+8*n+1, sleep=sleep)
            a(f"{Lok}:")
        else:
            s.poll(issue, grp, T+8*n, T+8*n+1, sleep=sleep)
        for k in range(n):
            b = T+8*k
            a(f"v_add_f32 v{b}, v{b}, v{b+4}\nv_add_f32 v{b+2}, v{b+2}, v{b+6}\nv_cvt_pk_bf16_f32 v{b}, v{b}, v{b+2}")
            a(f"ds_write_b32 v{lds}, v{b} offset:{256*k}")
        a("s_waitcnt lgkmcnt(0)")
    def epi_addr(s, E, two_heads):
        a = s.a
        a(f"v_bfe_u32 v{E+3}, v0, 6, 1\nv_lshlrev_b32 v{E+3}, 10, v{E+3}")
        if two_heads: a(f"v_bfe_u32 v{E+1}, v0, 7, 1\nv_lshl_add_u32 v{E+3}, v{E+1}, 9, v{E+3}")
        a(f"v_bfe_u32 v{E+1}, v0, 1, 1\nv_lshl_add_u32 v{E+3}, v{E+1}, 8, v{E+3}")
        a(f"v_bfe_u32 v{E+1}, v0, 2, 4\nv_lshl_add_u32 v{E+3}, v{E+1}, 4, v{E+3}")
        a(f"v_and_b32 v{E+1}, 1, v0\nv_lshl_add_u32 v{E+3}, v{E+1}, 3, v{E+3}")
    def p1_setup(s, sI, T, V):
        a = s.a
        vX, vW, vSA, vSB, vLW, vRD, vPB = range(V, V+7)
        a(f"s_and_b32 s100, s{sI}, 7\ns_lshl_b32 s100, s100, 3\ns_bfe_u32 s6, s{sI}, 0x30003\ns_add_u32 s100, s100, s6\ns_lshr_b32 s101, s{sI}, 6")
        a("s_mul_i32 s96, s101, 224\ns_mul_i32 s6, s3, 56\ns_add_u32 s96, s96, s6\ns_lshl_b32 s97, s96, 1")
        a("s_lshl_b32 s96, s96, 13\ns_lshl_b32 s6, s100, 7\ns_add_u32 s96, s96, s6")
        a(f"v_lshrrev_b32 v{T}, 3, v1\nv_mul_u32_u24 v{vX}, 14, v{T}\nv_and_b32 v{vX}, 0x7c, v{vX}")
        a(f"v_mul_u32_u24 v{vW}, {7*8192}, v{T}\nv_and_b32 v{T+1}, 7, v1\nv_lshl_add_u32 v{vW}, v{T+1}, 4, v{vW}")
    def p1_loads(s, X, W, srdX, srdW, V):
        a = s.a
        a(f"buffer_load_dwordx4 {q(X)}, v{V}, s[{srdX}:{srdX+3}], s97 offen")
        for i in range(7):
            a(f"s_add_u32 s79, s96, {i*8192}")
            a(f"buffer_load_dwordx4 {q(W+4*i)}, v{V+1}, s[{srdW}:{srdW+3}], s79 offen {s.c['nt']}")
    def p1_setup2(s, T, V):
        a = s.a
        vX, vW, vSA, vSB, vLW, vRD, vPB = range(V, V+7)
        a(f"s_lshl_b32 s100, s100, 9\ns_lshl_b32 s101, s101, 15\ns_add_u32 s100, s100, s101")
        a(f"v_bfe_u32 v{T}, v1, 3, 1\nv_cmp_eq_u32 vcc, 1, v{T}")
        a(f"v_mov_b32 v{T+8}, 0x01000100\nv_mov_b32 v{T+9}, 0x03020302\nv_mov_b32 v{T+10}, 0x05040504")
        a(f"v_cndmask_b32 v{vSA}, v{T+8}, v{T+9}, vcc\nv_cndmask_b32 v{vSB}, v{T+9}, v{T+10}, vcc")
        a(f"s_lshl_b32 s5, s3, 10\nv_add_u32 v{vLW}, s5, v6")
        a(f"v_and_b32 v{T+3}, 3, v1")
        a(f"v_lshrrev_b32 v{vRD}, 5, v1\nv_lshlrev_b32 v{vRD}, 11, v{vRD}\nv_bfe_u32 v{T}, v1, 1, 1\nv_lshl_add_u32 v{vRD}, v{T}, 8, v{vRD}")
        a(f"v_bfe_u32 v{T}, v1, 2, 3\nv_lshl_add_u32 v{vRD}, v{T}, 4, v{vRD}\nv_and_b32 v{T}, 1, v1\nv_lshl_add_u32 v{vRD}, v{T}, 3, v{vRD}")
    def p1_compute(s, X, W, T, V, lds, off, flag_vZ=None):
        a = s.a
        vX, vW, vSA, vSB, vLW, vRD, vPB = range(V, V+7)
        AB, AC = T, T+12
        for i in range(7):
            ab = AB + (i % 2)*4
            k = i//2
            if i % 2 == 0: a(f"v_perm_b32 v{AB+8}, v{X+k}, v{X+k}, v{vSA}")
            else: a(f"v_perm_b32 v{AB+8}, v{X+k+1}, v{X+k}, v{vSB}")
            for r in range(4): a(f"v_and_b32 v{ab+r}, v{AB+8}, v{2+r}")
            a(f"{MF} {q(AC)}, {q(ab)}, {q(W+4*i)}, {'0' if i == 0 else q(AC)}")
        a(f"ds_write_b128 v{vLW}, {q(AC)} offset:{lds}")
        a("s_waitcnt lgkmcnt(0)\ns_barrier")
        L = a.label("Lred")
        a(f"s_cmp_lg_u32 s3, 3\ns_cbranch_scc1 {L}")
        R = T
        for k in range(4): a(f"ds_read_b64 {p2(R+2*k)}, v{vRD} offset:{lds + (k//2)*1024 + (k%2)*640}")
        a(f"s_add_u32 s5, s100, {off}")
        a(f"v_mov_b32 v{R+9}, s76\nv_mov_b32 v{R+11}, s76")
        a("s_waitcnt lgkmcnt(0)")
        a(f"v_pk_add_f32 {p2(R)}, {p2(R)}, {p2(R+2)}\nv_pk_add_f32 {p2(R+4)}, {p2(R+4)}, {p2(R+6)}\nv_pk_add_f32 {p2(R)}, {p2(R)}, {p2(R+4)}")
        a(f"v_mov_b64 {p2(R+2)}, {p2(R)}")
        a(f"v_permlane32_swap_b32 v{R}, v{R+2}\nv_permlane32_swap_b32 v{R+1}, v{R+3}")
        a(f"v_add_f32 v{R+8}, v{R}, v{R+2}\nv_add_f32 v{R+10}, v{R+1}, v{R+3}")
        s.exec_set(0xffffffff, 0)
        a(f"buffer_store_dwordx4 {q(R+8)}, v6, s[44:47], s5 offen sc1")
        if flag_vZ is not None:
            a(f"s_lshl_b32 s5, s2, 2\ns_add_u32 s5, s5, {OFF_CLR+0x1000}")
            s.exec_set(1, 0)
            a(f"buffer_store_dword v{R+9}, v{flag_vZ}, s[44:47], s5 offen sc1")
        s.exec_all()
        a(f"{L}:")
    def proj_tail(s, A0, W, T, scb, sfin, scale=None):
        a = s.a
        a(f"v_permlane32_swap_b32 v{A0}, v{A0+1}\nv_add_f32 v{A0}, v{A0}, v{A0+1}")
        a(f"v_mov_b32 v{A0+1}, v{A0}\nv_permlane16_swap_b32 v{A0}, v{A0+1}\nv_add_f32 v{A0}, v{A0}, v{A0+1}")
        if scale is not None: a(f"v_mul_f32 v{A0}, v{A0}, v{scale}")
        a(f"v_cvt_pk_bf16_f32 v{A0}, v{A0}, v{A0}")
        a(f"v_mov_b32 v{A0+1}, v{A0}")
        a(f"v_mov_b32_dpp v{A0}, v{A0+1} row_ror:8 row_mask:0xa bank_mask:0xf")
        AC = T+8; S = T+12
        for g in range(8):
            ab = T + (g % 2)*4
            for r in range(4): a(f"v_and_b32_dpp v{ab+r}, v{A0}, v{2+r} row_newbcast:{g} {DPPF}")
            a(f"{MF} {q(AC)}, {q(ab)}, {q(W[g])}, {'0' if g == 0 else q(AC)}")
        a(f"v_cmp_gt_u32 vcc, 32, v1")
        a(f"v_mov_b32 v{S+1}, s76\nv_mov_b32 v{S+3}, s76")
        a("s_mov_b32 exec_lo, s82\ns_mov_b32 exec_hi, s82")
        a(f"v_cndmask_b32 v{S}, v{AC+2}, v{AC}, vcc\nv_cndmask_b32 v{S+2}, v{AC+3}, v{AC+1}, vcc")
        a(f"buffer_store_dwordx4 {q(S)}, v6, s[44:47], s{sfin} offen sc1")
        s.exec_all()
    def a5(s, sU, R, T, WOA):
        a = s.a; c = s.c
        OG = R; ST = R+8; Z = R+16
        a(f"s_lshr_b32 s12, s{sU}, 3")
        a(f"v_lshrrev_b32 v{T+22}, 4, v1\nv_lshlrev_b32 v{T+22}, 7, v{T+22}")
        a(f"s_lshr_b32 s8, s12, 1\ns_lshl_b32 s8, s8, 12\ns_and_b32 s6, s12, 1\ns_lshl_b32 s6, s6, 4\ns_add_u32 s8, s8, s6\ns_lshl_b32 s6, s3, 10\ns_add_u32 s8, s8, s6\ns_add_u32 s8, s8, {OFF_STA}")
        a(f"s_mul_i32 s6, s{sU}, {HA_U}\ns_lshl_b32 s5, s3, 11\ns_add_u32 s6, s6, s5\ns_add_u32 s6, s6, {OFF_HA}")
        a(f"v_lshlrev_b32 v{T+20}, 4, v0")
        a(f"s_mul_i32 s15, s{sU}, {FS}\ns_lshl_b32 s5, s3, 10\ns_add_u32 s15, s15, s5\ns_add_u32 s15, s15, {OFF_FIN}")
        def issue_o():
            a(f"buffer_load_dwordx4 {q(OG)}, v6, s[44:47], s6 offen sc1\nbuffer_load_dwordx4 {q(OG+4)}, v6, s[44:47], s6 offen offset:1024 sc1")
            a(f"buffer_load_dwordx4 {q(ST)}, v{T+22}, s[44:47], s8 offen sc1\nbuffer_load_dwordx4 {q(ST+4)}, v{T+22}, s[44:47], s8 offen offset:512 sc1")
        s.spoll(6, 0, c['ton'], 256*2, c['tok'])
        s.poll(issue_o, [("s76", [OG+k for k in range(1, 16, 2)])], Z, Z+1, sleep=c['fsleep'])
        s.stamp(7)
        a(f"v_max_f32 v{Z+2}, v{ST}, v{ST+4}")
        a(f"v_sub_f32 v{ST}, v{ST}, v{Z+2}\nv_sub_f32 v{ST+4}, v{ST+4}, v{Z+2}\nv_exp_f32 v{ST}, v{ST}\nv_exp_f32 v{ST+4}, v{ST+4}")
        a(f"v_mul_f32 v{Z}, v{ST}, v{OG}\nv_mul_f32 v{Z+1}, v{ST}, v{OG+2}\nv_mul_f32 v{Z+3}, v{ST}, v{ST+2}")
        a(f"v_fmac_f32 v{Z}, v{ST+4}, v{OG+4}\nv_fmac_f32 v{Z+1}, v{ST+4}, v{OG+6}\nv_fmac_f32 v{Z+3}, v{ST+4}, v{ST+6}")
        a(f"ds_write_b128 v{T+20}, {q(Z)} offset:{0x6000}")
        a("s_waitcnt lgkmcnt(0)\ns_barrier")
        s.stamp(8)
        for k in range(4): a(f"ds_read_b128 {q(OG+4*k)}, v6 offset:{0x6000+1024*k}")
        a("s_waitcnt lgkmcnt(0)")
        a(f"v_max3_f32 v{Z+2}, v{OG+2}, v{OG+6}, v{OG+10}\nv_max_f32 v{Z+2}, v{Z+2}, v{OG+14}")
        s.allred_rows("v_max_f32", Z+2, Z+4)
        for k in range(4): a(f"v_sub_f32 v{OG+4*k+2}, v{OG+4*k+2}, v{Z+2}")
        for k in range(4): a(f"v_exp_f32 v{OG+4*k+2}, v{OG+4*k+2}")
        for k in range(4):
            op = "v_mul_f32" if k == 0 else "v_fmac_f32"
            a(f"{op} v{Z+3}, v{OG+4*k+2}, v{OG+4*k+3}\n{op} v{Z}, v{OG+4*k+2}, v{OG+4*k}\n{op} v{Z+1}, v{OG+4*k+2}, v{OG+4*k+1}")
        s.allred_rows("v_add_f32", Z+3, Z+4)
        a(f"v_rcp_f32 v{Z+3}, v{Z+3}")
        s.proj_tail(Z, WOA, T+24, 3, 15, scale=Z+3)
        s.stamp(9)
    def final(s, sJ, ab, F, T, stp):
        a = s.a; c = s.c
        s.srd(52, 38, 1792)
        a(f"s_mov_b32 s12, {ab}\ns_mov_b32 s13, s{sJ}")
        a("s_sub_u32 s5, s13, 48\ns_lshr_b32 s6, s5, 1\ns_lshl_b32 s6, s6, 2\ns_and_b32 s5, s5, 1\ns_add_u32 s6, s6, s5\ns_add_u32 s6, s6, 48")
        a("s_cmp_ge_u32 s13, 48\ns_cselect_b32 s13, s6, s13")
        a(f"s_mul_i32 s6, s12, {FIN_AB}\ns_lshl_b32 s5, s13, 6\ns_add_u32 s6, s6, s5\ns_add_u32 s6, s6, {OFF_FIN}")
        a(f"v_lshrrev_b32 v{T+9}, 2, v1\nv_mul_u32_u24 v{T+9}, {FS}, v{T+9}\nv_and_b32 v{T+10}, 3, v1\nv_lshl_add_u32 v{T+9}, v{T+10}, 4, v{T+9}")
        def issue_f():
            for i in range(8):
                a(f"s_add_u32 s79, s6, {i*16*FS}")
                a(f"buffer_load_dwordx4 {q(F+4*i)}, v{T+9}, s[44:47], s79 offen sc1")
        a("s_mul_i32 s15, s12, 896\ns_lshr_b32 s5, s13, 4\ns_lshl_b32 s5, s5, 8\ns_add_u32 s15, s15, s5")
        a("s_and_b32 s5, s13, 3\ns_lshl_b32 s5, s5, 6\ns_add_u32 s15, s15, s5")
        a("s_bfe_u32 s5, s13, 0x10002\ns_lshl_b32 s5, s5, 3\ns_add_u32 s15, s15, s5")
        a("s_bfe_u32 s5, s13, 0x10003\ns_lshl_b32 s5, s5, 2\ns_add_u32 s15, s15, s5")
        a(f"v_lshlrev_b32 v{T+8}, 2, v1")
        s.spoll(6, 0, c['tfn'], FS*37, c['tfk'])
        s.poll(issue_f, [("s76", [F+4*i+k for i in range(8) for k in (1, 3)])], T+4, T+5, sleep=c['fsleep'])
        s.stamp(stp)
        dl = c.get('dlb' if ab else 'dla')
        if dl:
            Lsp = a.label("Ldl")
            a(f"s_memrealtime s[98:99]\ns_waitcnt lgkmcnt(0)\ns_mov_b32 s83, s98\n{Lsp}:\ns_memrealtime s[98:99]\ns_waitcnt lgkmcnt(0)\ns_sub_u32 s5, s98, s83\ns_cmp_lt_u32 s5, {dl}\ns_cbranch_scc1 {Lsp}")
        for st in (16, 8, 4):
            for i in range(0, st, 4):
                a(f"v_add_f32 v{F+i}, v{F+i}, v{F+st+i}\nv_add_f32 v{F+i+2}, v{F+i+2}, v{F+st+i+2}")
        for m in ("row_ror:8", "row_ror:4"):
            for k in (0, 2): a(f"v_add_f32_dpp v{F+k}, v{F+k}, v{F+k} {m} {DPPF}")
        for k in (0, 2): s.allred_rows("v_add_f32", F+k, F+k+1)
        a(f"v_cvt_pk_bf16_f32 v{F}, v{F}, v{F+2}")
        if c.get('thr'):
            a(f"s_memrealtime s[98:99]\ns_waitcnt lgkmcnt(0)\ns_sub_u32 s5, s98, s76\ns_cmp_gt_u32 s5, {c['thr']}\ns_cselect_b32 s5, 0x7fc07fc0, 0\nv_or_b32 v{F}, s5, v{F}")
        if c.get('spin'):
            Lsp = a.label("Lspin")
            a(f"{Lsp}:\ns_memrealtime s[98:99]\ns_waitcnt lgkmcnt(0)\ns_sub_u32 s5, s98, s76\ns_cmp_lt_u32 s5, {c['spin']}\ns_cbranch_scc1 {Lsp}")
        if c.get('enc'):
            a("s_memrealtime s[98:99]\ns_waitcnt lgkmcnt(0)\ns_sub_u32 s5, s98, s76")
            a(f"v_mov_b32 v{F+4}, s5\nv_lshrrev_b32 v{F+4}, v{T+8}, v{F+4}")
            a(f"v_and_b32 v{F+5}, 3, v{F+4}\nv_bfe_u32 v{F+4}, v{F+4}, 2, 2\nv_lshl_or_b32 v{F+5}, v{F+4}, 16, v{F+5}")
            a(f"v_and_b32 v{F}, 0xfffcfffc, v{F}\nv_or_b32 v{F}, v{F}, v{F+5}")
        s.exec_set(0xf, 0)
        a(f"buffer_store_dword v{F}, v6, s[52:55], s15 offen")
        s.exec_all()
        s.stamp(stp+1)
    def gy(s):
        a = s.a; c = s.c; nt = c['nt']; pb = c['pb']
        XB, WB, UK, UV, T = 8, 16, 72, 136, 200
        PVv = T+40
        vLW = PVv+4
        vZ, vU, vQ = T+47, T+50, T+51
        vE = T+48
        s.p1_setup(2, T, PVv)
        a(f"v_mov_b32 v{vZ}, 0\nv_mov_b32 v{vE+1}, 0")
        a("s_lshr_b32 s12, s2, 3\ns_and_b32 s13, s2, 7")
        if c['qf']:
            a(f"s_lshl_b32 s14, s13, 12\ns_lshl_b32 s6, s12, 4\ns_add_u32 s14, s14, s6\ns_add_u32 s14, s14, {OFF_QABS}")
            a(f"v_lshlrev_b32 v{T+2}, 8, v1")
        else:
            a(f"s_lshl_b32 s14, s13, 8\ns_mul_i32 s6, s12, {QS}\ns_add_u32 s14, s14, s6\ns_add_u32 s14, s14, {OFF_QABS}")
        for r in range(4): a(f"v_mov_b32 v{T+4+r}, -1")
        s.kwait()
        s.srd(44, 42, 0x10000000); s.srd(48, 40, 256)
        s.srd(52, 26, 896); s.srd(56, 30, 448*8192)
        L = a.label("Le0")
        a(f"s_cmp_lg_u32 s3, 3\ns_cbranch_scc1 {L}")
        a(f"v_mov_b32 v{vE}, s77")
        s.exec_set(1, 0)
        a(f"buffer_atomic_cmpswap {p2(vE)}, v{vZ}, s[48:51], 0 offen sc0 sc1")
        s.exec_set(0xffff, 0)
        a(f"buffer_store_dwordx4 {q(T+4)}, v{T+2 if c['qf'] else 6}, s[44:47], s14 offen sc1")
        s.exec_all()
        a(f"{L}:")
        if c.get('fi'): s.stamp(9)
        s.p1_loads(XB, WB, 52, 56, PVv)
        if c.get('fi'): s.stamp(10)
        s.srd(68, 32, 1024*8192); s.srd(72, 34, 1024*8192)
        a(f"v_lshrrev_b32 v{T+2}, 4, v1\nv_lshrrev_b32 v{vQ}, 4, v0\nv_lshlrev_b32 v{vQ}, {8 if c['qf'] else 4}, v{vQ}")
        a(f"v_bfe_u32 v{vU}, v1, 2, 2\nv_lshlrev_b32 v{vU}, 16, v{vU}\nv_lshl_add_u32 v{vU}, v{T+2}, 6, v{vU}")
        a(f"v_and_b32 v{T+3}, 3, v1\nv_lshl_add_u32 v{vU}, v{T+3}, 4, v{vU}")
        a("s_lshl_b32 s15, s13, 20\ns_lshl_b32 s5, s3, 18\ns_add_u32 s15, s15, s5\ns_lshl_b32 s5, s12, 9\ns_add_u32 s15, s15, s5")
        s.common2(T+12)
        s.p1_setup2(T, PVv)
        def ukload(n, pace):
            i, hf = n//2, n % 2
            a(f"s_add_u32 s79, s15, {i*8192}")
            if pace: a(f"s_waitcnt vmcnt({pace-1})")
            a(f"buffer_load_dwordx4 {q(UK+4*n)}, v{vU}, s[68:71], s79 offen offset:{hf*256} {nt}")
        n1 = c['n1']
        for n in range(n1): ukload(n, pb)
        a(f"s_waitcnt vmcnt({n1})")
        s.stamp(1)
        L = a.label("Le1")
        a(f"s_cmp_lg_u32 s3, 3\ns_cbranch_scc1 {L}")
        a(f"v_readfirstlane_b32 s76, v{vE}\ns_cmp_eq_u32 s76, 0\ns_cselect_b32 s76, s77, s76")
        a(f"v_mov_b32 v{vE}, s76\nds_write_b32 v{vZ}, v{vE} offset:{0x2800}")
        a(f"{L}:")
        s.p1_compute(XB, WB, T, PVv, 0, OFF_QB, vZ)
        a(f"ds_read_b32 v{vE}, v{vZ} offset:{0x2800}")
        s.stamp(2)
        for n in range(n1, 16): ukload(n, pb)
        a(f"s_waitcnt lgkmcnt(0)\nv_readfirstlane_b32 s76, v{vE}")
        tsave = c['timeout']
        if c.get('nob'): c['timeout'] = 1
        L = a.label("Lqb")
        a(f"s_cmp_ge_u32 s3, 2\ns_cbranch_scc1 {L}")
        a(f"s_lshl_b32 s6, s12, 11\ns_lshl_b32 s5, s3, 10\ns_add_u32 s6, s6, s5\ns_add_u32 s6, s6, {OFF_QB}")
        a(f"v_lshlrev_b32 v{T+20}, 2, v0\nv_add_u32 v{T+20}, 0x2000, v{T+20}")
        s.gather_q(T, 6, T+20, 1)
        a(f"{L}:")
        a(f"v_lshrrev_b32 v{T+21}, 4, v1\nv_lshlrev_b32 v{T+21}, 6, v{T+21}\nv_and_b32 v{T+22}, 3, v1\nv_lshl_add_u32 v{T+21}, v{T+22}, 4, v{T+21}")
        a("s_waitcnt vmcnt(0)\ns_barrier")
        s.stamp(3)
        QF = T; D = WB
        a(f"ds_read_b128 {q(QF)}, v{T+21} offset:{0x2000}\nds_read_b128 {q(QF+4)}, v{T+21} offset:{0x2000+256}")
        a("s_waitcnt lgkmcnt(0)")
        for i in range(8):
            a(f"{MF} {q(D+4*i)}, {q(UK+8*i)}, {q(QF)}, 0")
            a(f"{MF} {q(D+4*i)}, {q(UK+8*i+4)}, {q(QF+4)}, {q(D+4*i)}")
        R = T+8
        for r in range(4):
            for i in range(8):
                if r == 0: a(f"v_mov_b32_dpp v{R+i}, v{D+4*i} quad_perm:[0,0,0,0] {DPPF}")
                else: a(f"v_add_f32_dpp v{R+i}, v{D+4*i+r}, v{R+i} quad_perm:[{r},{r},{r},{r}] {DPPF}")
        for k in range(4): a(f"v_cvt_pk_bf16_f32 v{R+8+k}, v{R+2*k}, v{R+2*k+1}")
        for k in range(4): a(f"v_min_u32 v{R+8+k}, -2, v{R+8+k}")
        s.exec_set(0x00010001, 0x00010001)
        if c['qf']:
            a(f"buffer_store_dwordx4 {q(R+8)}, v{vQ}, s[44:47], s14 offen sc1")
            s.exec_all()
        else:
            a(f"ds_write_b128 v{vQ}, {q(R+8)} offset:{0x2900}")
            s.exec_all()
            a("s_waitcnt lgkmcnt(0)\ns_barrier")
            L = a.label("Lqp")
            a(f"s_cmp_lg_u32 s3, 3\ns_cbranch_scc1 {L}")
            s.exec_set(0xffff, 0)
            a(f"ds_read_b128 {q(R+8)}, v6 offset:{0x2900}\ns_waitcnt lgkmcnt(0)")
            a(f"buffer_store_dwordx4 {q(R+8)}, v6, s[44:47], s14 offen sc1")
            s.exec_all()
            a(f"{L}:")
        s.stamp(4)
        a(f"v_lshrrev_b32 v{vU}, 4, v1\nv_lshlrev_b32 v{vU}, 13, v{vU}\nv_and_b32 v{T+22}, 15, v1\nv_lshl_add_u32 v{vU}, v{T+22}, 4, v{vU}")
        def uvload(n, pace):
            g, hf = n//2, n % 2
            a(f"s_add_u32 s79, s15, {g*4*8192}")
            if pace: a(f"s_waitcnt vmcnt({pace-1})")
            a(f"buffer_load_dwordx4 {q(UV+4*n)}, v{vU}, s[72:75], s79 offen offset:{hf*256} {nt}")
        for n in range(16): uvload(n, c['pu'])
        HG = UK; ST = T
        WL = 0x3000
        a(f"s_mul_i32 s6, s2, {H3_C}\ns_lshl_b32 s5, s3, 13\ns_add_u32 s6, s6, s5\ns_add_u32 s6, s6, {OFF_H3}\ns_add_u32 s7, s6, 4096")
        vSH = T+26
        a(f"v_and_b32 v{vSH}, 15, v1\nv_lshlrev_b32 v{vSH}, 1, v{vSH}\ns_mov_b32 s10, 0xff\ns_sub_u32 s9, 0, s76")
        L = a.label("Lst")
        a(f"s_cmp_lg_u32 s3, 0\ns_cbranch_scc1 {L}")
        a(f"s_lshl_b32 s5, s12, 11\ns_add_u32 s5, s5, {OFF_ST3}")
        def issue_st():
            for k in range(2): a(f"buffer_load_dwordx4 {q(ST+4*k)}, v6, s[44:47], s5 offen offset:{1024*k} sc1")
        if c['stamp']:
            a("s_waitcnt vmcnt(0)"); s.stamp(5)
        s.spoll(5, 0, c['spn'], 16*37, c['spk'])
        s.poll(issue_st, [("s76", [ST+1, ST+3, ST+5, ST+7])], T+8, T+9, sleep=c['ssleep'])
        a(f"{L}:")
        a("s_barrier")
        s.stamp(6)
        def issue_hg(cond=False):
            for i in range(c.get('nbk', 8)):
                Lk = a.label("Lhg")
                if cond: a(f"s_bitcmp0_b32 s10, {i}\ns_cbranch_scc1 {Lk}")
                a(f"buffer_load_dwordx4 {q(HG+4*i)}, v6, s[44:47], {'s6' if i < 4 else 's7'} offen offset:{1024*(i%4)} sc1")
                if cond: a(f"{Lk}:")
        if c['h3d']: a(f"s_sleep {c['h3d']}")
        issue_hg()
        L = a.label("Lwt")
        a(f"s_cmp_lg_u32 s3, 0\ns_cbranch_scc1 {L}")
        M, Lr, TT, E0 = T+8, T+9, T+10, T+12
        a(f"v_max_f32 v{M}, v{ST}, v{ST+4}")
        s.allred_inrow("v_max_f32", M); s.allred_rows("v_max_f32", M, TT)
        a(f"v_sub_f32 v{E0}, v{ST}, v{M}\nv_sub_f32 v{E0+1}, v{ST+4}, v{M}\nv_exp_f32 v{E0}, v{E0}\nv_exp_f32 v{E0+1}, v{E0+1}")
        a(f"v_mul_f32 v{Lr}, v{E0}, v{ST+2}\nv_fmac_f32 v{Lr}, v{E0+1}, v{ST+6}")
        s.allred_inrow("v_add_f32", Lr); s.allred_rows("v_add_f32", Lr, TT)
        a(f"v_rcp_f32 v{Lr}, v{Lr}")
        a(f"v_and_b32 v{TT}, 3, v1\nv_lshlrev_b32 v{TT}, 7, v{TT}\nv_lshrrev_b32 v{TT+1}, 5, v1\nv_lshl_add_u32 v{TT}, v{TT+1}, 5, v{TT}")
        a(f"v_bfe_u32 v{TT+1}, v1, 2, 3\nv_lshl_add_u32 v{TT}, v{TT+1}, 2, v{TT}")
        for k in range(2):
            e = E0+k; hi = E0+2+k; lo = E0+4+k
            a(f"v_mul_f32 v{e}, v{e}, v{Lr}\nv_cvt_pk_bf16_f32 v{hi}, v{e}, v{e}\nv_and_b32 v{lo}, 0xffff0000, v{hi}\nv_sub_f32 v{lo}, v{e}, v{lo}\nv_cvt_pk_bf16_f32 v{lo}, v{lo}, v{lo}")
            a(f"ds_write_b32 v{TT}, v{hi} offset:{WL+64*k}\nds_write_b32 v{TT}, v{lo} offset:{WL+512+64*k}")
        a("s_waitcnt lgkmcnt(0)")
        a(f"{L}:")
        a(f"v_bfe_u32 v{T+20}, v1, 3, 1\nv_lshlrev_b32 v{T+20}, 9, v{T+20}\nv_lshrrev_b32 v{T+21}, 4, v1\nv_lshl_add_u32 v{T+20}, v{T+21}, 7, v{T+20}")
        a(f"s_lshl_b32 s5, s3, 5\nv_add_u32 v{T+20}, s5, v{T+20}")
        a(f"v_and_b32 v{T+22}, 1, v1\nv_lshlrev_b32 v{T+22}, 8, v{T+22}\nv_bfe_u32 v{T+23}, v1, 1, 2\nv_lshl_add_u32 v{T+22}, v{T+23}, 4, v{T+22}")
        a(f"v_lshl_add_u32 v{T+22}, v{T+21}, 2, v{T+22}\ns_lshl_b32 s5, s3, 6\nv_add_u32 v{T+22}, s5, v{T+22}")
        a("s_barrier")
        WW = T; AO = WB
        a(f"ds_read_b128 {q(WW)}, v{T+20} offset:{WL}\nds_read_b128 {q(WW+4)}, v{T+20} offset:{WL+16}")
        a("s_waitcnt lgkmcnt(0)")
        for i in range(8):
            for r in range(4): a(f"v_and_b32 v{AO+4*i+r}, v{WW+i}, v{2+r}")
        DC = T+8
        Lp = a.label("Lck"); Lw = a.label("Lckw"); Ld = a.label("Lckd")
        a(f"s_mov_b32 s78, {c['timeout']}\ns_branch {Lw}")
        a(f"{Lp}:")
        issue_hg(True)
        a(f"{Lw}:")
        a("s_waitcnt vmcnt(0)")
        SU, BT = 48, 56
        for i in range(8):
            h_ = HG+4*i
            a(f"v_and_b32 v{BT+i}, 3, v{h_}\nv_add3_u32 v{SU+i}, v{h_}, v{h_+1}, v{h_+2}\nv_and_or_b32 v{h_}, v{h_}, -4, 2")
            a(f"v_lshl_add_u32 v{BT+i}, v{BT+i}, v{vSH}, v{BT+i}\nv_add_u32 v{SU+i}, v{SU+i}, v{h_+3}")
            a(f"{MF} {q(DC)}, {q(AO+4*i)}, {q(HG+4*i)}, {'0' if i == 0 else q(DC)}")
            a(f"v_sub_u32 v{SU+i}, v{SU+i}, v{BT+i}")
        for m in ("quad_perm:[1,0,3,2]", "quad_perm:[2,3,0,1]", "row_half_mirror", "row_mirror"):
            for i in range(8): a(f"v_add_u32_dpp v{SU+i}, v{SU+i}, v{SU+i} {m} {DPPF}")
        for i in range(8): a(f"v_cmp_ne_u32 s[{64+2*(i%4)}:{65+2*(i%4)}], s9, v{SU+i}" ) if i < 4 else None
        a("s_mov_b32 s11, 0")
        for half in range(2):
            if half:
                for i in range(4, 8): a(f"v_cmp_ne_u32 s[{64+2*(i%4)}:{65+2*(i%4)}], s9, v{SU+i}")
            for i in range(4*half, 4*half+4):
                a(f"s_cmp_lg_u64 s[{64+2*(i%4)}:{65+2*(i%4)}], 0\ns_cselect_b32 s5, {1 << i}, 0\ns_or_b32 s11, s11, s5")
        a(f"s_and_b32 s10, s10, s11\ns_cbranch_scc0 {Ld}")
        a(f"s_sleep 1\ns_sub_u32 s78, s78, 1\ns_cmp_lg_u32 s78, 0\ns_cbranch_scc1 {Lp}")
        a(f"{Ld}:")
        s.stamp(7)
        a(f"ds_write_b128 v{vLW}, {q(DC)}")
        a("s_waitcnt lgkmcnt(0)\ns_barrier")
        Z = T+12
        for k in range(8): a(f"ds_read_b32 v{Z+k}, v{T+22} offset:{512*k}")
        E = T+24
        s.epi_addr(E, False)
        a(f"v_lshlrev_b32 v{E}, 4, v0")
        a(f"s_lshl_b32 s5, s3, 11\nv_add_u32 v{E+2}, s5, v6")
        a(f"s_lshl_b32 s5, s2, 11\ns_add_u32 s5, s5, {OFF_H4}")
        a("s_waitcnt lgkmcnt(0)")
        for st in (4, 2):
            for i in range(0, st, 2): a(f"v_pk_add_f32 {p2(Z+i)}, {p2(Z+i)}, {p2(Z+st+i)}")
        a(f"v_add_f32 v{Z}, v{Z}, v{Z+1}\nv_cvt_pk_bf16_f32 v{Z}, v{Z}, v{Z}")
        DD = T+28
        for g in range(8):
            ab = T + (g % 2)*4
            for r in range(4): a(f"v_and_b32_dpp v{ab+r}, v{Z}, v{2+r} row_newbcast:{g} {DPPF}")
            for hf in range(2):
                a(f"{MF} {q(DD+4*hf)}, {q(ab)}, {q(UV+8*g+4*hf)}, {'0' if g == 0 else q(DD+4*hf)}")
        a(f"ds_write_b128 v{E+2}, {q(DD)} offset:{0x4000}\nds_write_b128 v{E+2}, {q(DD+4)} offset:{0x4000+1024}")
        a("s_waitcnt lgkmcnt(0)\ns_barrier")
        a(f"s_cmp_ge_u32 s3, 2\ns_cbranch_scc1 L_ya5")
        X = T
        for i in range(4): a(f"ds_read_b64 {p2(X+2*i)}, v{E+3} offset:{0x4000+2048*i}")
        a("s_waitcnt lgkmcnt(0)")
        for st in (4, 2):
            for i in range(0, st, 2): a(f"v_pk_add_f32 {p2(X+i)}, {p2(X+i)}, {p2(X+st+i)}")
        a(f"v_mov_b32 v{X+2}, v{X+1}\nv_mov_b32 v{X+1}, s76\nv_mov_b32 v{X+3}, s76")
        a(f"buffer_store_dwordx4 {q(X)}, v{E}, s[44:47], s5 offen sc1")
        s.stamp(8)
        c['timeout'] = tsave
        a("L_ya5:")
        s.stamp_out()
        a("s_endpgm")
    def gx(s):
        a = s.a; c = s.c; nt = c['nt']; pb = c['pb']
        a("L_X:")
        L1, PV, QF, S = 16, 144, 208, 240
        vTR, vL, vSX, vZ, vE = 8, 9, 10, 11, 12
        a("s_sub_u32 s11, s2, 128")
        a("s_lshl_b32 s8, s11, 17\ns_lshl_b32 s6, s3, 13\ns_add_u32 s8, s8, s6")
        a(f"s_mul_i32 s9, s3, {4*ROW}")
        s.kwait()
        s.srd(52, 28, 8192*2048)
        def dma(i, pace):
            for rr in range(4):
                a(f"s_add_u32 m0, s9, {(i%2)*SLOT + rr*ROW}")
                a(f"s_add_u32 s79, s8, {i*32768 + rr*2048}")
                for hf in range(2):
                    if pace: a(f"s_waitcnt vmcnt({pace-1})")
                    a(f"buffer_load_dwordx4 v6, s[52:55], s79 offen offset:{1024*hf} {nt} lds")
        if c.get('fi'): s.stamp(10)
        dma(0, c['px0'])
        if c.get('fi'): s.stamp(11)
        s.srd(44, 42, 0x10000000); s.srd(48, 40, 256); s.srd(56, 36, 4096*896)
        s.common2(13)
        a(f"v_lshrrev_b32 v13, 2, v1\nv_mul_u32_u24 v{vTR}, {ROW}, v13\nv_and_b32 v13, 3, v1\nv_lshl_add_u32 v{vTR}, v13, 3, v{vTR}")
        a(f"s_lshl_b32 s5, s3, 9\nv_add_u32 v{vTR}, s5, v{vTR}")
        a(f"v_and_b32 v13, 15, v1\nv_mul_u32_u24 v{vL}, {ROW}, v13\nv_lshrrev_b32 v14, 4, v1\nv_lshl_add_u32 v{vL}, v14, 4, v{vL}\nv_add_u32 v{vL}, s5, v{vL}")
        a(f"v_add_u32 v{vSX}, {2*SLOT}, v6\nv_mov_b32 v{vZ}, 0")
        a(f"v_lshrrev_b32 v15, 5, v1\nv_lshlrev_b32 v15, 3, v15\nv_bfe_u32 v7, v1, 4, 1\nv_add_u32 v15, v15, v7\nv_mul_u32_u24 v15, {H3_C}, v15")
        a(f"v_and_b32 v7, 15, v1\nv_lshl_add_u32 v15, v7, 4, v15")
        a(f"s_mul_i32 s10, s3, {2*H3_C}\ns_lshl_b32 s5, s11, 8\ns_add_u32 s10, s10, s5\ns_add_u32 s10, s10, {OFF_H3}")
        dma(1, c['px'])
        def tr(i, dst):
            for t in range(16): a(f"ds_read_b64_tr_b16 {p2(dst(t))}, v{vTR} offset:{(i%2)*SLOT+32*t}")
        def l1(i):
            for ks in range(8): a(f"ds_read_b128 {q(L1+(i*8+ks)*4)}, v{vL} offset:{(i%2)*SLOT+64*ks}")
        for i in range(4):
            if i == 3 and c['qf']:
                a(f"s_lshl_b32 s6, s3, 13\ns_add_u32 s6, s6, {OFF_QABS}\ns_add_u32 s7, s6, 4096")
                if c['spq']:
                    L = a.label("Lsq"); Ld = a.label("Lsqd")
                    a(f"s_mov_b32 s78, {c['sptime']}\ns_waitcnt lgkmcnt(0)")
                    a(f"{L}:")
                    a("s_load_dwordx16 s[56+8:56+23], s[42:43], s6 glc".replace("56+8", "64").replace("56+23", "79") if False else "s_load_dwordx8 s[64:71], s[42:43], s6 glc")
                    a("s_add_u32 s5, s7, 224\ns_load_dwordx8 s[88:95], s[42:43], s5 glc" if not c['stamp'] else "s_add_u32 s5, s7, 224\ns_load_dwordx4 s[72:75], s[42:43], s5 glc")
                    a("s_waitcnt lgkmcnt(0)")
                    a("s_max_u32 s83, s64, s68")
                    a("s_max_u32 s83, s83, s88\ns_max_u32 s83, s83, s92" if not c['stamp'] else "s_max_u32 s83, s83, s72")
                    a(f"s_cmp_lg_u32 s83, -1\ns_cbranch_scc1 {Ld}")
                    a(f"s_sleep {c['spsleep']}\ns_sub_u32 s78, s78, 1\ns_cmp_lg_u32 s78, 0\ns_cbranch_scc1 {L}")
                    a(f"{Ld}:")
            a(f"s_waitcnt vmcnt({[8, 8, 8, 0][i]})\ns_barrier")
            if c.get('bw') and i in (0, 2): s.stamp(10 + i//2)
            l1(i)
            if i < 2:
                tr(i, lambda t: PV+4*t+2*i)
                a("s_waitcnt lgkmcnt(0)\ns_barrier")
                dma(i+2, c['px'])
            if i == 2:
                L = a.label("Lclr")
                a(f"s_cmp_lg_u32 s3, 0\ns_cbranch_scc1 {L}")
                a(f"v_lshlrev_b32 v13, 3, v1\ns_mov_b32 s5, {OFF_CLR+0x1000}")
                def issue_c():
                    a(f"buffer_load_dwordx2 {p2(S)}, v13, s[44:47], s5 offen sc1")
                    a(f"buffer_load_dword v{vE}, v{vZ}, s[48:51], 0 offen sc1")
                s.poll(issue_c, [(f"v{vE}", [S, S+1])], S+2, S+3, sleep=4)
                a(f"ds_write_b32 v{vSX}, v{vE} offset:12288\ns_waitcnt lgkmcnt(0)")
                a(f"{L}:")
        tsave = c['timeout']
        if c.get('nob'): c['timeout'] = 1
        a(f"ds_read_b32 v{vE}, v{vSX} offset:12288")
        s.stamp(1)
        if c['qf']:
            def issue_q():
                for i in range(8):
                    a(f"buffer_load_dwordx4 {q(QF+4*i)}, v6, s[44:47], {'s6' if i < 4 else 's7'} offen offset:{1024*(i%4)} sc1")
            s.poll_sent(issue_q, list(range(QF, QF+32)), 13, sleep=2)
            a("s_waitcnt lgkmcnt(0)")
            a(f"v_readfirstlane_b32 s76, v{vE}")
            s.stamp(2)
            for ks in range(8):
                for ch in range(4):
                    a(f"{MF} {q(S+4*ch)}, {q(L1+(ch*8+ks)*4)}, {q(QF+4*ks)}, {'0' if ks == 0 else q(S+4*ch)}")
        else:
            a(f"s_lshl_b32 s6, s3, 9\ns_add_u32 s6, s6, {OFF_QABS}\ns_add_u32 s7, s6, {8*QS}")
            a(f"v_lshrrev_b32 v14, 3, v1\nv_mul_u32_u24 v14, {QS}, v14\nv_and_b32 v7, 7, v1\nv_lshl_add_u32 v14, v7, 4, v14")
            a(f"v_lshlrev_b32 v7, 5, v7\nv_bfe_u32 v13, v1, 3, 1\nv_lshl_add_u32 v7, v13, 4, v7\nv_lshrrev_b32 v13, 4, v1\nv_lshl_add_u32 v7, v13, 2, v7")
            def issue_q():
                for i in range(c.get('nbk', 8)): a(f"buffer_load_dwordx4 {q(QF+4*i)}, v14, s[44:47], {'s7' if i % 2 else 's6'} offen offset:{128*(i//2)} sc1")
            s.poll_sent(issue_q, list(range(QF, QF+32)), 13, sleep=2)
            a("s_waitcnt lgkmcnt(0)")
            a(f"v_readfirstlane_b32 s76, v{vE}")
            s.stamp(2)
            def mix(kp):
                A_, B_ = QF+8*kp, QF+8*kp+4
                a(f"v_mov_b64 {p2(S)}, {p2(A_)}\nv_mov_b64 {p2(S+2)}, {p2(A_+2)}")
                for r in range(4): a(f"v_mov_b32_dpp v{A_+r}, v{B_+r} row_shr:4 row_mask:0xf bank_mask:0xa")
                for r in range(4): a(f"v_mov_b32_dpp v{B_+r}, v{S+r} row_shl:4 row_mask:0xf bank_mask:0x5")
                for r in range(8): a(f"ds_bpermute_b32 v{A_+r}, v7, v{A_+r}")
            for kp in range(4): mix(kp)
            for ks in range(8):
                a(f"s_waitcnt lgkmcnt({min(15, 4*(7-ks))})")
                for ch in range(4):
                    a(f"{MF} {q(S+4*ch)}, {q(L1+(ch*8+ks)*4)}, {q(QF+4*ks)}, {'0' if ks == 0 else q(S+4*ch)}")
        PV1 = L1
        Lx = a.label("Lsx")
        labs = [a.label("Lsxw") for _ in range(4)]
        for w in range(1, 4): a(f"s_cmp_eq_u32 s3, {w}\ns_cbranch_scc1 {labs[w]}")
        for w in range(4):
            a(f"{labs[w]}:")
            for ch in range(4):
                if ch == w: continue
                k = (w - ch - 1) % 4
                a(f"ds_write_b128 v{vSX}, {q(S+4*ch)} offset:{(ch*3+k)*1024}")
            a(f"v_mov_b64 {p2(QF)}, {p2(S+4*w)}\nv_mov_b64 {p2(QF+2)}, {p2(S+4*w+2)}")
            if w < 3: a(f"s_branch {Lx}")
        a(f"{Lx}:")
        a(f"s_mul_i32 s5, s3, 3072\nv_add_u32 v13, s5, v{vSX}")
        a("s_waitcnt lgkmcnt(0)\ns_barrier")
        for k in range(3): a(f"ds_read_b128 {q(QF+4+4*k)}, v13 offset:{1024*k}")
        tr(2, lambda t: PV1+4*t)
        a("s_waitcnt lgkmcnt(15)\ns_waitcnt lgkmcnt(14)")
        a(f"v_pk_add_f32 {p2(QF)}, {p2(QF)}, {p2(QF+4)}\nv_pk_add_f32 {p2(QF+2)}, {p2(QF+2)}, {p2(QF+6)}")
        a(f"v_pk_add_f32 {p2(QF+8)}, {p2(QF+8)}, {p2(QF+12)}\nv_pk_add_f32 {p2(QF+10)}, {p2(QF+10)}, {p2(QF+14)}")
        a(f"v_pk_add_f32 {p2(QF)}, {p2(QF)}, {p2(QF+8)}\nv_pk_add_f32 {p2(QF+2)}, {p2(QF+2)}, {p2(QF+10)}")
        a(f"ds_write_b128 v13, {q(QF)}")
        a("s_waitcnt lgkmcnt(0)\ns_barrier")
        s.stamp(3)
        SR = S
        for ch in range(4): a(f"ds_read_b128 {q(SR+4*ch)}, v{vSX} offset:{3072*ch}")
        a("s_waitcnt lgkmcnt(0)")
        tr(3, lambda t: PV1+4*t+2)
        M, Lr, TT, P = QF+8, QF+10, QF+12, QF
        a(f"v_max3_f32 v{M}, v{SR}, v{SR+1}, v{SR+2}")
        for i in range(3, 16, 2): a(f"v_max3_f32 v{M}, v{M}, v{SR+i}, v{SR+min(i+1,15)}")
        s.allred_rows("v_max_f32", M, TT)
        a(f"s_mov_b32 s5, {f32(CEXP)}\nv_mul_f32 v{M}, s5, v{M}")
        for i in range(16): a(f"v_fma_f32 v{SR+i}, v{SR+i}, s5, -v{M}")
        for i in range(16): a(f"v_exp_f32 v{SR+i}, v{SR+i}")
        for i in range(8): a(f"v_cvt_pk_bf16_f32 v{P+i}, v{SR+2*i}, v{SR+2*i+1}")
        O = L1+64
        a(f"v_and_b32 v13, 15, v1\nv_mul_u32_u24 v13, {ROW}, v13\nv_lshrrev_b32 v14, 4, v1\nv_lshl_add_u32 v13, v14, 3, v13")
        a(f"s_lshl_b32 s5, s3, 9\nv_add_u32 v13, s5, v13")
        a(f"v_lshrrev_b32 v14, 5, v1\nv_mul_u32_u24 v14, {ROW}, v14\nv_and_b32 v7, 31, v1\nv_lshl_add_u32 v14, v7, 4, v14\nv_add_u32 v14, s5, v14")
        a("s_waitcnt lgkmcnt(0)")
        def fin(t):
            a(f"v_cvt_pk_bf16_f32 v{O+4*t}, v{O+4*t}, v{O+4*t+1}\nv_cvt_pk_bf16_f32 v{O+4*t+1}, v{O+4*t+2}, v{O+4*t+3}")
            a(f"ds_write_b64 v13, {p2(O+4*t)} offset:{32*t}")
        for t in range(16):
            a(f"{MF} {q(O+4*t)}, {q(PV+4*t)}, {q(P)}, 0")
            a(f"{MF} {q(O+4*t)}, {q(PV1+4*t)}, {q(P+4)}, {q(O+4*t)}")
            if t == 0:
                L = a.label("Lst3")
                a(f"s_cmp_lg_u32 s3, 0\ns_cbranch_scc1 {L}")
                for st in (8, 4, 2):
                    for i in range(0, st, 2): a(f"v_pk_add_f32 {p2(SR+i)}, {p2(SR+i)}, {p2(SR+st+i)}")
                a(f"v_add_f32 v{Lr}, v{SR}, v{SR+1}")
                s.allred_rows("v_add_f32", Lr, TT)
                a(f"v_mov_b32 v{M+1}, s76\nv_mov_b32 v{Lr+1}, s76\nv_lshlrev_b32 v{TT}, 11, v1")
                a(f"s_lshl_b32 s5, s11, 4\ns_add_u32 s5, s5, {OFF_ST3}")
                s.exec_set(0xffff, 0)
                a(f"buffer_store_dwordx4 {q(M)}, v{TT}, s[44:47], s5 offen sc1")
                s.exec_all()
                a(f"{L}:")
            if t >= 3: fin(t-3)
        fin(13); fin(14); fin(15)
        a("s_waitcnt lgkmcnt(0)")
        s.stamp(4)
        SQ = L1
        for i in range(8): a(f"ds_read_b128 {q(SQ+4*i)}, v14 offset:{2*ROW*i}")
        a(f"v_and_b32 v13, 15, v1\nv_lshlrev_b32 v13, 1, v13")
        for i in range(8):
            a(f"s_waitcnt lgkmcnt({7-i})")
            a(f"v_and_b32 v{SQ+4*i}, -4, v{SQ+4*i}\nv_add3_u32 v{O+i}, v{SQ+4*i+1}, v{SQ+4*i+2}, v{SQ+4*i+3}\nv_add_u32 v{O+i}, v{O+i}, v{SQ+4*i}")
        for m in ("quad_perm:[1,0,3,2]", "quad_perm:[2,3,0,1]", "row_half_mirror", "row_mirror"):
            for i in range(8): a(f"v_add_u32_dpp v{O+i}, v{O+i}, v{O+i} {m} {DPPF}")
        for i in range(8):
            a(f"v_add_u32 v{O+i}, s76, v{O+i}\nv_bfe_u32 v{O+i}, v{O+i}, v13, 2\nv_or_b32 v{SQ+4*i}, v{SQ+4*i}, v{O+i}")
            a(f"s_add_u32 s79, s10, {i*16*H3_C}")
            if i < c.get('nbk', 8): a(f"buffer_store_dwordx4 {q(SQ+4*i)}, v15, s[44:47], s79 offen sc1")
        s.stamp(5)
        WOB = [PV+4*t for t in range(8)]; WOA = [PV+32+4*t for t in range(8)]
        T = QF
        a(f"s_mov_b32 s14, s3\ns_mul_i32 s15, s11, {32*896}")
        s.proj_wload(WOB, 13, 56, 15, 14)
        def wob():
            for t in range(8): s.proj_wload_one(t, WOB, 13, 56, 15)
        if not c['dwb']: wob()
        a("s_lshr_b32 s12, s11, 3\ns_and_b32 s13, s11, 7")
        G = L1+32
        a(f"v_lshrrev_b32 v7, 4, v1\nv_lshlrev_b32 v7, 11, v7\nv_and_b32 v14, 15, v1\nv_lshl_add_u32 v7, v14, 4, v7")
        a(f"s_lshl_b32 s5, s12, 14\ns_lshl_b32 s6, s13, 8\ns_add_u32 s5, s5, s6\ns_add_u32 s5, s5, {OFF_H4}\ns_add_u32 s6, s5, 8192")
        def issue_h4():
            a(f"buffer_load_dwordx4 {q(G)}, v7, s[44:47], s5 offen sc1\nbuffer_load_dwordx4 {q(G+4)}, v7, s[44:47], s6 offen sc1")
        if c['dwb']:
            s.spoll(5, 0, 4, 2048*2, 1)
            wob()
            if c['dwb'] == 1: s.spoll(5, 0, c['spn'], 2048*2, c['spk'])
        else: s.spoll(5, 0, c['spn'], 2048*2, c['spk'])
        s.poll(issue_h4, [("s76", [G+1, G+3, G+5, G+7])], G+8, G+9, sleep=c['sleep'])
        s.stamp(6)
        a(f"v_add_f32 v{G}, v{G}, v{G+4}\nv_add_f32 v{G+1}, v{G+2}, v{G+6}")
        a(f"s_mul_i32 s15, s11, {FS}\ns_lshl_b32 s5, s3, 10\ns_add_u32 s15, s15, s5\ns_add_u32 s15, s15, {OFF_FIN+FIN_AB}")
        s.proj_tail(G, WOB, T, 14, 15)
        s.stamp(7)
        c['timeout'] = tsave
        a("s_cmp_ge_u32 s11, 56\ns_cbranch_scc1 L_xend\ns_cmp_ge_u32 s3, 1\ns_cbranch_scc1 L_xend")
        s.final(11, 1, L1+64, QF+16, 8)
        a("L_xend:")
        s.stamp_out()
        a("s_endpgm")
    def ga(s):
        a = s.a; c = s.c; pa = c['pa']
        a("L_A:")
        NS = c['ns']; NL = 2*NS
        Kb, Vb, T, AD = 16, 112, 208, 8
        assert NS <= 12
        NIT = (4096 - 64*4*NS)//8 * (2 if c['c1'] else 1)
        QF, AC, D, TS, MM = T, T+8, T+16, T+24, T+36
        M, Lr, F, FA, TK, TT = MM, MM+1, MM+2, MM+3, MM+4, MM+5
        vZ, vE = T+46, T+47
        a("s_sub_u32 s11, s2, 256\ns_bfe_u32 s9, s11, 0x30004\ns_bfe_u32 s12, s11, 0x10003")
        a("s_lshr_b32 s6, s11, 7\ns_lshl_b32 s6, s6, 3\ns_and_b32 s10, s11, 7\ns_add_u32 s13, s10, s6")
        a("s_lshl_b32 s10, s12, 4\ns_add_u32 s10, s10, s13")
        if c['c1']:
            a("s_lshl_b32 s14, s9, 22")
            a(f"s_lshl_b32 s8, s10, 2\ns_add_u32 s8, s8, s3\ns_mul_i32 s8, s8, {NS*2048}\ns_add_u32 s8, s8, s14")
            a(f"s_add_u32 s14, s14, {128*NS*2048}")
            a(f"s_lshl_b32 s15, s9, 9\ns_add_u32 s15, s15, {OFF_CLR}")
        else:
            a("s_lshl_b32 s14, s9, 22\ns_lshl_b32 s6, s12, 21\ns_add_u32 s14, s14, s6")
            a(f"s_lshl_b32 s8, s13, 2\ns_add_u32 s8, s8, s3\ns_mul_i32 s8, s8, {32768 if c['il'] else NS*2048}\ns_add_u32 s8, s8, s14")
            a(f"s_add_u32 s14, s14, {NS*2048 if c['il'] else 64*NS*2048}")
            a(f"s_lshl_b32 s15, s9, 1\ns_add_u32 s15, s15, s12\ns_lshl_b32 s15, s15, 8\ns_add_u32 s15, s15, {OFF_CLR}")
        a(f"v_mov_b32 v{vZ}, 0")
        s.kv_addr(AD)
        s.common2(T)
        s.kwait()
        s.srd(44, 42, 0x10000000); s.srd(48, 40, 256)
        s.srd(68, 18, 8*8192*512); s.srd(72, 20, 8*8192*512)
        vK, vV = AD, AD+1
        def ld(n, reg, voff, srd, pace):
            g, hf = n//2, n % 2
            gi = n + (NL if srd == 72 else 0)
            px_ = (c['pa0'] if gi < c['npre'] else c['pax']) if gi < c['nax'] else pace
            py_ = c['pa0'] if gi < c['nay'] else pace
            if px_ != py_:
                lo, cond = (px_, 'lt') if px_ < py_ else (py_, 'ge')
                Lk = a.label("Lpc")
                a(f"s_cmp_{cond}_u32 s11, 128\ns_cbranch_scc1 {Lk}\ns_waitcnt vmcnt({lo-1})\n{Lk}:")
            a(f"s_add_u32 s79, s8, {(g//2)*4096}")
            a(f"s_waitcnt vmcnt({max(px_, py_)-1})")
            a(f"buffer_load_dwordx4 {q(reg)}, v{voff}, s[{srd}:{srd+3}], s79 offen offset:{(g%2)*2048+hf*256} {c['nt']}")
            if c.get('bw'):
                m = {5: 7, 13: 8, 2*NL-1: 9}
                if gi in m: s.stamp(m[gi])
        for n in range(c['npre']): ld(n, Kb+4*n, vK, 68, pa)
        Lj = a.label("Lp1j")
        a(f"s_cmp_{'lt' if c['p1x'] else 'ge'}_u32 s11, 128\ns_cbranch_scc1 {Lj}")
        if c['prioa']: a(f"s_setprio {c['prioa']}")
        s.srd(52, 16, 896); s.srd(56, 22, 448*8192)
        XA, WA, PVv = Vb, Vb+4, T+16
        a("s_and_b32 s13, s11, 127")
        Lc = a.label("Lcz")
        a(f"s_cmp_ge_u32 s13, 8\ns_cbranch_scc1 {Lc}\ns_cmp_lg_u32 s3, 3\ns_cbranch_scc1 {Lc}")
        a(f"s_lshl_b32 s6, s13, 9\ns_add_u32 s6, s6, {OFF_CLR}\nv_lshlrev_b32 v{T}, 8, v1")
        s.exec_set(3, 0)
        a(f"buffer_store_dword v{vZ}, v{T}, s[44:47], s6 offen sc1")
        s.exec_all()
        a(f"{Lc}:")
        s.p1_setup(13, T, PVv)
        if c.get('fi'): s.stamp(10)
        s.p1_loads(XA, WA, 52, 56, PVv)
        if c.get('fi'): s.stamp(11)
        s.p1_setup2(T, PVv)
        a("s_waitcnt vmcnt(3)")
        a(f"buffer_load_dword v{vE}, v{vZ}, s[48:51], 0 offen sc1")
        a("s_waitcnt vmcnt(0)")
        s.get_epoch(vE, vZ)
        a("s_setprio 3")
        s.p1_compute(XA, WA, T, PVv, 0x1000, OFF_QA)
        a(f"s_setprio 0")
        a(f"{Lj}:")
        s.stamp(6)
        na0 = c['npre']
        v1n = c['v1']
        a(f"v_bfe_u32 v{AD+4}, v1, 3, 1\nv_lshlrev_b32 v{AD+4}, 9, v{AD+4}")
        a(f"v_lshl_add_u32 v{AD+4}, v{AD+2}, 6, v{AD+4}\nv_lshl_add_u32 v{AD+4}, v{AD+3}, 4, v{AD+4}")
        assert na0 <= NL-8
        for n in range(na0, NL):
            ld(n, Kb+4*n, vK, 68, pa)
            if n == NL-8: a(f"buffer_load_dword v{vE}, v{vZ}, s[48:51], 0 offen sc1")
        a("s_waitcnt vmcnt(7)")
        s.get_epoch(vE, vZ)
        vq = c['vq']
        for n in range(vq): ld(n, Vb+4*n, vV, 72, pa)
        def vfirst():
            for n in range(vq, vq+v1n): ld(n, Vb+4*n, vV, 72, pa)
        a(f"s_lshl_b32 s6, s9, 12\ns_lshl_b32 s5, s3, 10\ns_add_u32 s6, s6, s5\ns_add_u32 s6, s6, {OFF_QA}")
        a(f"v_lshlrev_b32 v{T+20}, 2, v0")
        s.gather_q(T, 6, T+20, 1, vfirst, v1n, sleep=c['qsleep'])
        a("s_barrier")
        s.stamp(1)
        a(f"ds_read_b128 {q(QF)}, v{AD+4}\nds_read_b128 {q(QF+4)}, v{AD+4} offset:256")
        a(f"s_mov_b32 s13, {f32(CEXP)}")
        a(f"s_waitcnt vmcnt({v1n}) lgkmcnt(0)")
        s.stamp(2)
        v1n += vq
        nv = v1n
        SA = c['sat']
        if c['ystop']:
            a(f"s_cmp_lt_u32 s11, 128\ns_cselect_b32 s82, {NIT-c['ystop']}, -1\ns_mov_b32 s83, 0")
        def ticket():
            if SA:
                if c['ystop']:
                    Lk = a.label("Lys")
                    a(f"s_cmp_ge_u32 s83, s82\ns_mov_b32 s83, -1\ns_cbranch_scc1 {Lk}")
                    a(f"s_mov_b32 s83, 1\ns_atomic_add s83, s[42:43], s15 glc\n{Lk}:")
                else:
                    a("s_mov_b32 s83, 1\ns_atomic_add s83, s[42:43], s15 glc")
                return
            a(f"v_mov_b32 v{TK}, 1")
            s.exec_set(1, 0)
            a(f"buffer_atomic_add v{TK}, v{vZ}, s[44:47], s15 offen sc0 sc1")
            s.exec_all()
        tk_at = NL - c['tka']
        def more(k=1):
            nonlocal nv
            for _ in range(k):
                if nv < NL:
                    if nv == max(tk_at, v1n): ticket()
                    ld(nv, Vb+4*nv, vV, 72, pa); nv += 1
        def dreg(i): return D+4*i if i < 2 else Kb+8*(i-2)
        for i in range(NS):
            a(f"{MF} {q(dreg(i))}, {q(Kb+i*8)}, {q(QF)}, 0")
            a(f"{MF} {q(dreg(i))}, {q(Kb+i*8+4)}, {q(QF+4)}, {q(dreg(i))}")
            if i % 6 == 5: more()
        for r in range(4):
            for i in range(NS):
                if r == 0: a(f"v_mov_b32_dpp v{TS+i}, v{dreg(i)} quad_perm:[0,0,0,0] {DPPF}")
                else: a(f"v_add_f32_dpp v{TS+i}, v{dreg(i)+r}, v{TS+i} quad_perm:[{r},{r},{r},{r}] {DPPF}")
        more()
        for i in range(0, NS, 2): a(f"v_cvt_pk_bf16_f32 v{D+(i//2)}, v{TS+i}, v{TS+i+1}")
        for i in range(0, NS, 2): a(f"v_lshlrev_b32 v{TS+i}, 16, v{D+i//2}\nv_and_b32 v{TS+i+1}, 0xffff0000, v{D+i//2}")
        a(f"v_max3_f32 v{M}, v{TS}, v{TS+1}, v{TS+2}")
        for i in range(3, NS, 2): a(f"v_max3_f32 v{M}, v{M}, v{TS+i}, v{TS+min(i+1,NS-1)}")
        s.allred_rows("v_max_f32", M, TT)
        a(f"v_mul_f32 v{M}, s13, v{M}")
        for i in range(NS): a(f"v_fma_f32 v{TS+i}, v{TS+i}, s13, -v{M}")
        more()
        for i in range(NS): a(f"v_exp_f32 v{TS+i}, v{TS+i}")
        a(f"v_add_f32 v{Lr}, v{TS}, v{TS+1}")
        for i in range(2, NS): a(f"v_add_f32 v{Lr}, v{Lr}, v{TS+i}")
        for i in range(NS): a(f"v_cvt_pk_bf16_f32 v{TS+i}, v{TS+i}, v{TS+i}")
        s.stamp(3)
        done = 0
        def pv(i):
            ab = D + (i % 2)*4
            for r in range(4): a(f"v_and_b32 v{ab+r}, v{TS+i}, v{2+r}")
            for hf in range(2):
                a(f"{MF} {q(AC+4*hf)}, {q(ab)}, {q(Vb+8*i+4*hf)}, {'0' if i == 0 else q(AC+4*hf)}")
        def pv_upto(k):
            nonlocal done
            while done < NS and 2*done+2 <= k:
                pv(done); done += 1
        while nv < NL:
            more()
            pv_upto(nv - 1 - (pa-1))
        ntk = NL - max(tk_at, v1n)
        BUF = [Kb, Kb+32]
        Lend = a.label("Lae")
        def take(Lno, younger):
            if SA: a("s_waitcnt lgkmcnt(0)\ns_mov_b32 s5, s83")
            else:
                a(f"s_waitcnt vmcnt({younger})")
                a(f"v_readfirstlane_b32 s5, v{TK}")
            a(f"s_cmp_ge_u32 s5, {NIT}\ns_cbranch_scc1 {Lno}")
            if c['pdy']:
                a(f"s_sub_u32 s7, s5, {c['ylo']}\ns_cmp_lt_u32 s7, {c['yhi']-c['ylo']}\ns_cselect_b32 s7, 1, 0\ns_cmp_lt_u32 s11, 128\ns_cselect_b32 s7, s7, 0")
            if c['il']: a(f"s_and_b32 s6, s5, 63\ns_lshl_b32 s6, s6, 15\ns_lshr_b32 s5, s5, 6\ns_lshl_b32 s5, s5, 12\ns_add_u32 s79, s14, s5\ns_add_u32 s79, s79, s6")
            else: a(f"s_lshl_b32 s5, s5, 12\ns_add_u32 s79, s14, s5")
        def item_loads(B):
            if c.get('bw'): a("s_add_u32 s94, s94, 1")
            for n in range(8):
                if n == (c['tkn'] if SA else 0): ticket()
                if c['pdy']:
                    Lk = a.label("Lpy")
                    a(f"s_cmp_eq_u32 s7, 0\ns_cbranch_scc1 {Lk}\ns_waitcnt vmcnt({c['pdy']-1})\n{Lk}:")
                if c['pdx'] and c['pdx'] < c['pd']:
                    Lk = a.label("Lpd")
                    a(f"s_cmp_lt_u32 s11, 128\ns_cbranch_scc1 {Lk}\ns_waitcnt vmcnt({c['pdx']-1})\n{Lk}:")
                a(f"s_waitcnt vmcnt({c['pd']-1})")
                vo, srd = (vK, 68) if n < 4 else (vV, 72)
                k = n % 4
                a(f"buffer_load_dwordx4 {q(B+4*n)}, v{vo}, s[{srd}:{srd+3}], s79 offen offset:{(k//2)*2048+(k%2)*256} {c['nt']}")
        def item_compute(B, last):
            if last:
                woa()
                a("s_waitcnt vmcnt(12)")
            for i in range(2):
                a(f"{MF} {q(D+4*i)}, {q(B+8*i)}, {q(QF)}, 0")
                a(f"{MF} {q(D+4*i)}, {q(B+8*i+4)}, {q(QF+4)}, {q(D+4*i)}")
            for r in range(4):
                for i in range(2):
                    if r == 0: a(f"v_mov_b32_dpp v{TS+i}, v{D+4*i} quad_perm:[0,0,0,0] {DPPF}")
                    else: a(f"v_add_f32_dpp v{TS+i}, v{D+4*i+r}, v{TS+i} quad_perm:[{r},{r},{r},{r}] {DPPF}")
            a(f"v_cvt_pk_bf16_f32 v{TT}, v{TS}, v{TS+1}\nv_lshlrev_b32 v{TS}, 16, v{TT}\nv_and_b32 v{TS+1}, 0xffff0000, v{TT}")
            a(f"v_max_f32 v{TS+2}, v{TS}, v{TS+1}")
            s.allred_rows("v_max_f32", TS+2, TT)
            a(f"v_mul_f32 v{TS+2}, s13, v{TS+2}\nv_max_f32 v{TS+2}, v{TS+2}, v{M}")
            a(f"v_sub_f32 v{F}, v{M}, v{TS+2}\nv_fma_f32 v{TS}, v{TS}, s13, -v{TS+2}\nv_fma_f32 v{TS+1}, v{TS+1}, s13, -v{TS+2}")
            a(f"v_exp_f32 v{F}, v{F}\nv_exp_f32 v{TS}, v{TS}\nv_exp_f32 v{TS+1}, v{TS+1}\nv_mov_b32 v{M}, v{TS+2}")
            a(f"v_fma_f32 v{Lr}, v{Lr}, v{F}, v{TS}")
            a(f"v_mov_b32_dpp v{FA}, v{F} row_newbcast:0 row_mask:0x3 bank_mask:0xf")
            a(f"v_add_f32 v{Lr}, v{Lr}, v{TS+1}")
            a(f"v_cvt_pk_bf16_f32 v{TS}, v{TS}, v{TS}")
            a(f"v_mov_b32_dpp v{FA}, v{F} row_newbcast:8 row_mask:0xc bank_mask:0xf")
            a(f"v_cvt_pk_bf16_f32 v{TS+1}, v{TS+1}, v{TS+1}")
            for k in range(8): a(f"v_mul_f32 v{AC+k}, v{AC+k}, v{FA}")
            for i in range(2):
                for r in range(4): a(f"v_and_b32 v{D+4*i+r}, v{TS+i}, v{2+r}")
            if last: a("s_waitcnt vmcnt(8)")
            for i in range(2):
                for hf in range(2):
                    a(f"{MF} {q(AC+4*hf)}, {q(D+4*i)}, {q(B+16+8*i+4*hf)}, {q(AC+4*hf)}")
        E = Kb+64
        s.epi_addr(E, True)
        a(f"v_bfe_u32 v{E+2}, v0, 4, 4\nv_mul_u32_u24 v{E+2}, {HA_U}, v{E+2}")
        a(f"v_and_b32 v{E}, 15, v0\nv_lshl_add_u32 v{E+2}, v{E}, 4, v{E+2}")
        a(f"s_mul_i32 s12, s9, {16*HA_U}\ns_lshl_b32 s6, s10, 8\ns_add_u32 s12, s12, s6\ns_add_u32 s12, s12, {OFF_HA}")
        a(f"s_lshl_b32 s5, s3, 11\nv_add_u32 v{AD+4}, s5, v6")
        a(f"v_bfe_u32 v{AD+6}, v1, 3, 1\nv_lshlrev_b32 v{AD+6}, 5, v{AD+6}\ns_lshl_b32 s5, s3, 3\nv_add_u32 v{AD+7}, s5, v{AD+6}")
        a(f"v_lshrrev_b32 v{AD+5}, 7, v0\nv_lshlrev_b32 v{AD+5}, 5, v{AD+5}")
        a(f"s_lshl_b32 s10, s10, 7\ns_lshl_b32 s5, s9, 12\ns_add_u32 s10, s10, s5\ns_lshr_b32 s5, s3, 1\ns_lshl_b32 s5, s5, 4\ns_add_u32 s10, s10, s5\ns_add_u32 s10, s10, {OFF_STA}")
        Z = E+4
        a(f"v_mov_b32 v{Z+17}, s76\nv_mov_b32 v{Z+19}, s76\nv_mov_b32 v{Z+21}, s76\nv_mov_b32 v{Z+23}, s76")
        WOA = [Vb+4*t for t in range(8)]
        assert done >= 4
        s.srd(60, 24, 4096*896)
        vWO = Z+24
        a(f"s_and_b32 s97, s11, 127\ns_mul_i32 s96, s97, {32*896}")
        s.proj_wload(WOA, vWO, 60, 96, 3)
        a(f"s_cmp_{'ge' if c['a5y'] else 'lt'}_u32 s11, 128\ns_cselect_b32 s5, 0x4000000, 0\nv_add_u32 v{vWO}, s5, v{vWO}")
        def woa():
            for t in range(8): s.proj_wload_one(t, WOA, vWO, 60, 96)
        Ln0 = a.label("Ln0"); L0 = a.label("Ld0"); Lf0 = a.label("Lf0"); Lf1 = a.label("Lf1")
        d0 = done
        if c['aprio']: a(f"s_setprio {c['aprio']}")
        take(Ln0, ntk)
        item_loads(BUF[0])
        if c['tkn'] > 8: a(f"s_waitcnt vmcnt({c['tkn']})"); ticket()
        a(f"s_waitcnt vmcnt({8 if SA else 9})")
        if c['tkn'] == 8: ticket()
        for i in range(d0, NS): pv(i)
        a(f"{L0}:")
        take(Lf0, 8)
        item_loads(BUF[1])
        if c['tkn'] > 8: a(f"s_waitcnt vmcnt({c['tkn']})"); ticket()
        a(f"s_waitcnt vmcnt({8 if SA else 9})")
        if c['tkn'] == 8: ticket()
        item_compute(BUF[0], False)
        take(Lf1, 8)
        item_loads(BUF[0])
        if c['tkn'] > 8: a(f"s_waitcnt vmcnt({c['tkn']})"); ticket()
        a(f"s_waitcnt vmcnt({8 if SA else 9})")
        if c['tkn'] == 8: ticket()
        item_compute(BUF[1], False)
        a(f"s_branch {L0}")
        a(f"{Ln0}:")
        woa()
        for i in range(d0, NS):
            a(f"s_waitcnt vmcnt({NL-2*(i+1)+8})")
            pv(i)
        a(f"s_branch {Lend}")
        a(f"{Lf0}:")
        item_compute(BUF[0], True)
        a(f"s_branch {Lend}")
        a(f"{Lf1}:")
        item_compute(BUF[1], True)
        a(f"{Lend}:")
        s.allred_rows("v_add_f32", Lr, TT)
        a(f"ds_write_b64 v{AD+7}, {p2(M)} offset:{0x800}")
        s.stamp(4)
        a(f"ds_write_b128 v{AD+4}, {q(AC)} offset:{0x1000}\nds_write_b128 v{AD+4}, {q(AC+4)} offset:{0x1000+1024}")
        a("s_waitcnt lgkmcnt(0)\ns_barrier")
        Y = Z+8
        a(f"ds_read_b128 {q(Y)}, v{AD+5} offset:{0x800}\nds_read_b128 {q(Y+4)}, v{AD+5} offset:{0x810}")
        for i in range(4): a(f"ds_read_b64 {p2(Z+2*i)}, v{E+3} offset:{0x1000+2048*i}")
        a("s_waitcnt lgkmcnt(4)")
        a(f"v_max3_f32 v{Z+20}, v{Y}, v{Y+2}, v{Y+4}\nv_max_f32 v{Z+20}, v{Z+20}, v{Y+6}")
        for k in range(4): a(f"v_sub_f32 v{Y+2*k}, v{Y+2*k}, v{Z+20}")
        for k in range(4): a(f"v_exp_f32 v{Y+2*k}, v{Y+2*k}")
        a("s_waitcnt lgkmcnt(0)")
        for k in range(4):
            op = "v_mul_f32" if k == 0 else "v_fmac_f32"
            a(f"{op} v{Z+16}, v{Y+2*k}, v{Z+2*k}\n{op} v{Z+18}, v{Y+2*k}, v{Z+2*k+1}")
        a(f"buffer_store_dwordx4 {q(Z+16)}, v{E+2}, s[44:47], s12 offen sc1")
        Lx = a.label("Lax")
        a(f"s_bitcmp1_b32 s3, 0\ns_cbranch_scc1 {Lx}")
        for k in range(4):
            op = "v_mul_f32" if k == 0 else "v_fmac_f32"
            a(f"{op} v{Z+22}, v{Y+2*k}, v{Y+2*k+1}")
        s.exec_set(1, 0)
        a(f"buffer_store_dwordx4 {q(Z+20)}, v{vZ}, s[44:47], s10 offen sc1")
        s.exec_all()
        a(f"{Lx}:")
        s.stamp(5)
        a(f"s_cmp_{'ge' if c['a5y'] else 'lt'}_u32 s11, 128\ns_cbranch_scc1 L_afin")
        s.a5(97, Kb, T, WOA)
        a("s_branch L_aend")
        a("L_afin:")
        a("s_sub_u32 s97, 127, s97")
        a("s_cmp_ge_u32 s97, 56\ns_cbranch_scc1 L_aend\ns_cmp_ge_u32 s3, 1\ns_cbranch_scc1 L_aend")
        s.final(97, 0, Kb, T, 10)
        a("L_aend:")
        s.stamp_out()
        a("s_endpgm")
    def build(s):
        a = s.a
        s.prologue()
        s.gy(); s.gx(); s.ga()
        a("L_end:\ns_endpgm")
        body = a.finish()
        import re
        if s.c.get('ldsys'): body = re.sub(r"(buffer_load_dword\S* .* offen(?: offset:\d+)?) sc1", r"\1 sc0 sc1", body)
        if s.c.get('stsys'): body = re.sub(r"(buffer_store_dword\S* .* offen(?: offset:\d+)?) sc1", r"\1 sc0 sc1", body)
        if s.c.get('stnt'): body = re.sub(r"(buffer_store_dword\S* .* offen(?: offset:\d+)?) sc1", r"\1 sc1 nt", body)
        if s.c.get('ldnt'): body = re.sub(r"(buffer_load_dword\S* .* offen(?: offset:\d+)?) sc1", r"\1 sc1 nt", body)
        hdr = open("concat_heads__gqa_block_cached__compressed_kv_cla__decode.s.ref").read().split("; @launch")[0]
        out = hdr + "; @launch grid=(512,1,1) block=(256,1,1) lds=81920\n"
        out += """; Written with my own generator script. One persistent launch, 512 workgroups of 4 waves, two per CU, all co-resident.
;   wg   0..127 (Y): q_B = x_B*w_q (half rows x 64 cols), q_abs = q_B*w_uk^T (absorbed key projection), later ctx = softmax-merged latent * w_uv
;   wg 128..255 (X): 64 latent rows each: scores q_abs*c_kv^T, local softmax (true max), P*c_kv, later out_B partials through w_o and the last sum
;   wg 256..511 (A): q_A = x_A*wq, GQA flash-decoding over a fixed share plus 8-key work items drawn from counters, then wo and the last sum
; (chosen once per launch through d_debug), by a cleared-then-filled sentinel, or by a checksum that mixes the tag in.
"""
        out += f'.amdgcn_target "amdgcn-amd-amdhsa--gfx950"\n.text\n.globl {KN}\n.p2align 8\n.type {KN},@function\n{KN}:\n'
        out += body
        out += f""".section .rodata,"a"
.p2align 6
.amdhsa_kernel {KN}
  .amdhsa_next_free_vgpr 256
  .amdhsa_next_free_sgpr 102
  .amdhsa_accum_offset 256
  .amdhsa_group_segment_fixed_size 0
  .amdhsa_kernarg_size 112
  .amdhsa_user_sgpr_count 2
  .amdhsa_user_sgpr_kernarg_segment_ptr 1
  .amdhsa_system_sgpr_workgroup_id_x 1
.end_amdhsa_kernel
"""
        return out
if __name__ == "__main__":
    from build import build
    name = sys.argv[1]
    cfg = {}
    for kv in sys.argv[2:]:
        k, v = kv.split("=")
        cfg[k] = v if k == "nt" else int(v)
    open(name, "w").write(Gen2(**cfg).build())
    print(build(name))
```

```python
import sys, math, struct
from asmlib import Asm
from gen import Gen, q, p2, f32, DPPF, KN, CEXP
OFF_QB, OFF_QA, OFF_QABS, OFF_CLR, OFF_ST3, OFF_STA, OFF_H4, OFF_HA, OFF_FIN, OFF_H3 = \
    0x0, 0x10000, 0x20000, 0x2c000, 0x30000, 0x38000, 0x40000, 0x80000, 0x200000, 0x400000
FIN_CG = 8192+128
FS = 4096+128; FIN_AB = 128*FS
QS = 2048+128
HA_U = 8192+128
H3_C = 32768+256
OFF_STAMP = 0x8000000
OFF_CHK = 0x1A0000
ROW = 2080; SLOT = 16*ROW
import gen as G1
G1.FIN_CG = FIN_CG
MF = "v_mfma_f32_16x16x32_bf16"

class Gen2(Gen):
    def __init__(s, **cfg):
        s.c = dict(stamp=False, nt="nt", sleep=2, timeout=100000, rnd=True, pa=8, pb=8, prio=2, prioa=0, n1=7, pu=8, px=8, pax=4, nax=16, nay=4, p1x=1, p1r=0, gmix=1, x1k=3, qat=4, x1w=1, x1s=6, x1n=4, ncas=8, eat=1, eglc=0, vq=4, npre=0, a5y=1, dwb=1, pdy=0, ylo=0, yhi=192, aprio=0, ystop=0, pw=0, ton=3, tok=3, tfn=3, tfk=3, spk=3, dwo=1, qf=0, spq=0, sp=1, sptime=2000, spsleep=2, spn=3, il=0, sat=1, tkn=6, xx=0, pdx=0, c1=0, ssleep=2, ns=10, tka=3, pd=9, qsleep=6, px0=4, v1=8, fsleep=2, pf=0, pa0=1, na0=4, na1=6, lead=10, h3d=0)
        s.c.update(cfg)
        s.a = Asm()
    def stamp_out(s):
        if not s.c['stamp']: return
        a = s.a
        a("s_mov_b64 exec, -1\nv_mov_b32 v8, 0")
        for k in range(12): a(f"v_writelane_b32 v8, s{84+k}, {k}")
        a("v_lshlrev_b32 v9, 2, v1")
        a("s_lshl_b32 s4, s2, 2\ns_add_u32 s4, s4, s3\ns_lshl_b32 s4, s4, 6")
        a(f"s_add_u32 s4, s4, {OFF_STAMP}")
        a("s_mov_b32 exec_lo, 0xffff\ns_mov_b32 exec_hi, 0")
        a("buffer_store_dword v8, v9, s[44:47], s4 offen")
    def prologue(s):
        a = s.a
        a("s_cmp_ge_u32 s2, 512\ns_cbranch_scc1 L_end")
        a("s_load_dwordx16 s[16:31], s[0:1], 0\ns_load_dwordx8 s[32:39], s[0:1], 64\ns_load_dwordx4 s[40:43], s[0:1], 96")
        a("s_memrealtime s[4:5]")
        a("v_lshrrev_b32 v7, 6, v0\nv_and_b32 v1, 63, v0")
        a("v_readfirstlane_b32 s3, v7\nv_lshlrev_b32 v6, 4, v1")
        if s.c['xx']:
            a("s_lshr_b32 s6, s2, 6\ns_cmp_eq_u32 s6, 3\ns_cselect_b32 s7, 192, 0\ns_add_u32 s2, s2, s7\ns_cmp_eq_u32 s6, 6\ns_cselect_b32 s7, 192, 0\ns_sub_u32 s2, s2, s7")
        if s.c['pf']:
            a(f"s_cmp_lt_u32 s2, {512-s.c['pf']}\ns_cbranch_scc1 L_nopf")
            a("s_getpc_b64 s[6:7]\ns_and_b32 s6, s6, 0xffffff00")
            a(f"v_lshlrev_b32 v9, 7, v0\nv_min_u32 v9, L_end-{KN}, v9\nglobal_load_dword v200, v9, s[6:7]")
            a("L_nopf:")
        a("s_cmp_ge_u32 s2, 256\ns_cbranch_scc1 L_A")
        if s.c['prio']: a(f"s_setprio {s.c['prio']}")
        a("s_cmp_ge_u32 s2, 128\ns_cbranch_scc1 L_X")
    def kwait(s):
        a = s.a
        a("s_waitcnt lgkmcnt(0)")
        a("s_or_b32 s77, s4, 1")
        if s.c['stamp']:
            for k in range(12): a(f"s_mov_b32 s{84+k}, 0")
            a("s_mov_b32 s84, s4")
    def common2(s, t):
        a = s.a
        a(f"v_and_b32 v{t}, 1, v1\nv_lshlrev_b32 v{t}, 4, v{t}\nv_mov_b32 v{t+1}, 0xffff\nv_lshlrev_b32 v{t}, v{t}, v{t+1}")
        a(f"v_bfe_u32 v{t+1}, v1, 1, 2")
        for r in range(4):
            a(f"v_cmp_eq_u32 vcc, {r}, v{t+1}\nv_cndmask_b32 v{2+r}, 0, v{t}, vcc")
    def get_epoch(s, vE, vZ):
        a = s.a
        L = a.label("Lge"); Ld = a.label("Lged")
        a(f"s_mov_b32 s78, {s.c['timeout']}")
        a(f"{L}:")
        a(f"v_readfirstlane_b32 s76, v{vE}")
        a(f"s_cmp_lg_u32 s76, 0\ns_cbranch_scc1 {Ld}")
        a(f"buffer_load_dword v{vE}, v{vZ}, s[48:51], 0 offen sc1\ns_waitcnt vmcnt(0)")
        a(f"s_sub_u32 s78, s78, 1\ns_cmp_lg_u32 s78, 0\ns_cbranch_scc1 {L}")
        a(f"{Ld}:")
    def check_tags(s, groups, t0, t1):
        if len(groups) == 1 and groups[0][0][0] == 's':
            a = s.a; exp, tags = groups[0]
            assert len(tags) % 2 == 0
            acc = []
            for k in range(0, len(tags), 2):
                d = (t0, t1)[(k//2) % 2]
                if k < 4: a(f"v_bitop3_b32 v{d}, v{tags[k]}, v{tags[k+1]}, {exp} bitop3:0x7e")
                else:
                    a(f"v_bitop3_b32 v{tags[k]}, v{tags[k]}, v{tags[k+1]}, {exp} bitop3:0x7e"); acc.append(tags[k])
            if len(tags) > 2: acc = [t1] + acc
            for k in range(0, len(acc), 2):
                y = acc[k+1] if k+1 < len(acc) else acc[k]
                a(f"v_or3_b32 v{t0}, v{t0}, v{acc[k]}, v{y}")
            a(f"v_cmp_ne_u32 vcc, 0, v{t0}\ns_cmp_eq_u64 vcc, 0")
        else:
            Gen.check_tags(s, groups, t0, t1)
    def spoll(s, soff, extra, n=1, stride=0, need=None):
        if not n: return
        if not s.c['sp']: return
        a = s.a
        L = a.label("Lsp"); Ld = a.label("Lspd")
        a(f"s_mov_b32 s78, {s.c['sptime']}")
        for k in range(n): a(f"s_add_u32 s{64+k}, s{soff}, {extra+4+k*stride}")
        a(f"{L}:")
        for k in range(n): a(f"s_load_dword s{68+k}, s[42:43], s{64+k} glc")
        a("s_waitcnt lgkmcnt(0)")
        a("s_mov_b32 s83, 0")
        for k in range(n): a(f"s_cmp_eq_u32 s{68+k}, s76\ns_addc_u32 s83, s83, 0")
        a(f"s_cmp_ge_u32 s83, {need or n}\ns_cbranch_scc1 {Ld}")
        a(f"s_sleep {s.c['spsleep']}\ns_sub_u32 s78, s78, 1\ns_cmp_lg_u32 s78, 0\ns_cbranch_scc1 {L}")
        a(f"{Ld}:")
    def poll_sent(s, issue, regs, t0, sleep=None, pre_issued=False):
        a = s.a
        L = a.label("Lps"); Ld = a.label("Lpsd")
        a(f"s_mov_b32 s78, {s.c['timeout']}")
        Lw = a.label("Lpsw")
        if pre_issued: a(f"s_branch {Lw}")
        a(f"{L}:")
        issue()
        a(f"{Lw}:")
        a("s_waitcnt vmcnt(0)")
        a(f"v_max3_u32 v{t0}, v{regs[0]}, v{regs[1]}, v{regs[2]}")
        rest = regs[3:]
        for i in range(0, len(rest), 2):
            y = rest[i+1] if i+1 < len(rest) else rest[i]
            a(f"v_max3_u32 v{t0}, v{t0}, v{rest[i]}, v{y}")
        a(f"v_cmp_eq_u32 vcc, -1, v{t0}")
        a(f"s_cbranch_vccz {Ld}")
        sl = s.c['sleep'] if sleep is None else sleep
        if sl: a(f"s_sleep {sl}")
        a(f"s_sub_u32 s78, s78, 1\ns_cmp_lg_u32 s78, 0\ns_cbranch_scc1 {L}")
        a(f"{Ld}:")
    def gather_q(s, T, soff, lds, n, between=None, nb=0, sleep=1):
        a = s.a
        a(f"s_add_u32 s7, s{soff}, 0x8000")
        def issue():
            for k in range(n):
                a(f"buffer_load_dwordx4 {q(T+8*k)}, v6, s[44:47], s{soff} offen offset:{1024*k} sc1")
                a(f"buffer_load_dwordx4 {q(T+8*k+4)}, v6, s[44:47], s7 offen offset:{1024*k} sc1")
        grp = [("s76", [T+4*k+j for k in range(2*n) for j in (1, 3)])]
        if between:
            Lok = a.label("Lgq")
            issue(); between()
            a(f"s_waitcnt vmcnt({nb})")
            s.check_tags(grp, T+8*n, T+8*n+1)
            a(f"s_cbranch_scc1 {Lok}")
            s.poll(issue, grp, T+8*n, T+8*n+1, sleep=sleep)
            a(f"{Lok}:")
        else:
            s.poll(issue, grp, T+8*n, T+8*n+1, sleep=sleep)
        for k in range(n):
            b = T+8*k
            a(f"v_add_f32 v{b}, v{b}, v{b+4}\nv_add_f32 v{b+2}, v{b+2}, v{b+6}\nv_cvt_pk_bf16_f32 v{b}, v{b}, v{b+2}")
            a(f"ds_write_b32 v{lds}, v{b} offset:{256*k}")
        a("s_waitcnt lgkmcnt(0)")
    def epi_addr(s, E, two_heads):
        a = s.a
        a(f"v_bfe_u32 v{E+3}, v0, 6, 1\nv_lshlrev_b32 v{E+3}, 10, v{E+3}")
        if two_heads: a(f"v_bfe_u32 v{E+1}, v0, 7, 1\nv_lshl_add_u32 v{E+3}, v{E+1}, 9, v{E+3}")
        a(f"v_bfe_u32 v{E+1}, v0, 1, 1\nv_lshl_add_u32 v{E+3}, v{E+1}, 8, v{E+3}")
        a(f"v_bfe_u32 v{E+1}, v0, 2, 4\nv_lshl_add_u32 v{E+3}, v{E+1}, 4, v{E+3}")
        a(f"v_and_b32 v{E+1}, 1, v0\nv_lshl_add_u32 v{E+3}, v{E+1}, 3, v{E+3}")
    def p1_setup(s, sI, T, V):
        a = s.a
        vX, vW, vSA, vSB, vLW, vRD, vPB = range(V, V+7)
        if s.c['p1r']:
            a(f"s_lshr_b32 s101, s{sI}, 6\ns_add_u32 s100, s{sI}, s101\ns_and_b32 s100, s100, 7\ns_lshl_b32 s100, s100, 3\ns_bfe_u32 s6, s{sI}, 0x30003\ns_add_u32 s100, s100, s6")
        else:
            a(f"s_and_b32 s100, s{sI}, 7\ns_lshl_b32 s100, s100, 3\ns_bfe_u32 s6, s{sI}, 0x30003\ns_add_u32 s100, s100, s6\ns_lshr_b32 s101, s{sI}, 6")
        a("s_mul_i32 s96, s101, 224\ns_mul_i32 s6, s3, 56\ns_add_u32 s96, s96, s6\ns_lshl_b32 s97, s96, 1")
        a("s_lshl_b32 s96, s96, 13\ns_lshl_b32 s6, s100, 7\ns_add_u32 s96, s96, s6")
        a(f"v_lshrrev_b32 v{T}, 3, v1\nv_mul_u32_u24 v{vX}, 14, v{T}\nv_and_b32 v{vX}, 0x7c, v{vX}")
        a(f"v_mul_u32_u24 v{vW}, {7*8192}, v{T}\nv_and_b32 v{T+1}, 7, v1\nv_lshl_add_u32 v{vW}, v{T+1}, 4, v{vW}")
    def p1_loads(s, X, W, srdX, srdW, V):
        a = s.a
        a(f"buffer_load_dwordx4 {q(X)}, v{V}, s[{srdX}:{srdX+3}], s97 offen")
        for i in range(7):
            a(f"s_add_u32 s79, s96, {i*8192}")
            a(f"buffer_load_dwordx4 {q(W+4*i)}, v{V+1}, s[{srdW}:{srdW+3}], s79 offen {s.c['nt']}")
    def p1_setup2(s, T, V):
        a = s.a
        vX, vW, vSA, vSB, vLW, vRD, vPB = range(V, V+7)
        a(f"s_lshl_b32 s100, s100, 9\ns_lshl_b32 s101, s101, 15\ns_add_u32 s100, s100, s101")
        a(f"v_bfe_u32 v{T}, v1, 3, 1\nv_cmp_eq_u32 vcc, 1, v{T}")
        a(f"v_mov_b32 v{T+8}, 0x01000100\nv_mov_b32 v{T+9}, 0x03020302\nv_mov_b32 v{T+10}, 0x05040504")
        a(f"v_cndmask_b32 v{vSA}, v{T+8}, v{T+9}, vcc\nv_cndmask_b32 v{vSB}, v{T+9}, v{T+10}, vcc")
        a(f"s_lshl_b32 s5, s3, 10\nv_add_u32 v{vLW}, s5, v6")
        a(f"v_and_b32 v{T+3}, 3, v1")
        a(f"v_lshrrev_b32 v{vRD}, 5, v1\nv_lshlrev_b32 v{vRD}, 11, v{vRD}\nv_bfe_u32 v{T}, v1, 1, 1\nv_lshl_add_u32 v{vRD}, v{T}, 8, v{vRD}")
        a(f"v_bfe_u32 v{T}, v1, 2, 3\nv_lshl_add_u32 v{vRD}, v{T}, 4, v{vRD}\nv_and_b32 v{T}, 1, v1\nv_lshl_add_u32 v{vRD}, v{T}, 3, v{vRD}")
    def p1_compute(s, X, W, T, V, lds, off, flag_vZ=None):
        a = s.a
        vX, vW, vSA, vSB, vLW, vRD, vPB = range(V, V+7)
        AB, AC = T, T+12
        for i in range(7):
            ab = AB + (i % 2)*4
            k = i//2
            if i % 2 == 0: a(f"v_perm_b32 v{AB+8}, v{X+k}, v{X+k}, v{vSA}")
            else: a(f"v_perm_b32 v{AB+8}, v{X+k+1}, v{X+k}, v{vSB}")
            for r in range(4): a(f"v_and_b32 v{ab+r}, v{AB+8}, v{2+r}")
            a(f"{MF} {q(AC)}, {q(ab)}, {q(W+4*i)}, {'0' if i == 0 else q(AC)}")
        a(f"ds_write_b128 v{vLW}, {q(AC)} offset:{lds}")
        a("s_waitcnt lgkmcnt(0)\ns_barrier")
        L = a.label("Lred")
        a(f"s_cmp_lg_u32 s3, 3\ns_cbranch_scc1 {L}")
        R = T
        for k in range(4): a(f"ds_read_b64 {p2(R+2*k)}, v{vRD} offset:{lds + (k//2)*1024 + (k%2)*640}")
        a(f"s_add_u32 s5, s100, {off}")
        a(f"v_mov_b32 v{R+9}, s76\nv_mov_b32 v{R+11}, s76")
        a("s_waitcnt lgkmcnt(0)")
        a(f"v_pk_add_f32 {p2(R)}, {p2(R)}, {p2(R+2)}\nv_pk_add_f32 {p2(R+4)}, {p2(R+4)}, {p2(R+6)}\nv_pk_add_f32 {p2(R)}, {p2(R)}, {p2(R+4)}")
        a(f"v_mov_b64 {p2(R+2)}, {p2(R)}")
        a(f"v_permlane32_swap_b32 v{R}, v{R+2}\nv_permlane32_swap_b32 v{R+1}, v{R+3}")
        a(f"v_add_f32 v{R+8}, v{R}, v{R+2}\nv_add_f32 v{R+10}, v{R+1}, v{R+3}")
        s.exec_set(0xffffffff, 0)
        a(f"buffer_store_dwordx4 {q(R+8)}, v6, s[44:47], s5 offen sc1")
        if flag_vZ is not None:
            a(f"s_lshl_b32 s5, s2, 2\ns_add_u32 s5, s5, {OFF_CLR+0x1000}")
            s.exec_set(1, 0)
            a(f"buffer_store_dword v{R+9}, v{flag_vZ}, s[44:47], s5 offen sc1")
        s.exec_all()
        a(f"{L}:")
    def proj_tail(s, A0, W, T, scb, sfin, scale=None):
        a = s.a
        a(f"v_permlane32_swap_b32 v{A0}, v{A0+1}\nv_add_f32 v{A0}, v{A0}, v{A0+1}")
        a(f"v_mov_b32 v{A0+1}, v{A0}\nv_permlane16_swap_b32 v{A0}, v{A0+1}\nv_add_f32 v{A0}, v{A0}, v{A0+1}")
        if scale is not None: a(f"v_mul_f32 v{A0}, v{A0}, v{scale}")
        a(f"v_cvt_pk_bf16_f32 v{A0}, v{A0}, v{A0}")
        a(f"v_mov_b32 v{A0+1}, v{A0}")
        a(f"v_mov_b32_dpp v{A0}, v{A0+1} row_ror:8 row_mask:0xa bank_mask:0xf")
        AC = T+8; S = T+12
        for g in range(8):
            ab = T + (g % 2)*4
            for r in range(4): a(f"v_and_b32_dpp v{ab+r}, v{A0}, v{2+r} row_newbcast:{g} {DPPF}")
            a(f"{MF} {q(AC)}, {q(ab)}, {q(W[g])}, {'0' if g == 0 else q(AC)}")
        a(f"v_cmp_gt_u32 vcc, 32, v1")
        a(f"v_mov_b32 v{S+1}, s76\nv_mov_b32 v{S+3}, s76")
        a("s_mov_b32 exec_lo, s82\ns_mov_b32 exec_hi, s82")
        a(f"v_cndmask_b32 v{S}, v{AC+2}, v{AC}, vcc\nv_cndmask_b32 v{S+2}, v{AC+3}, v{AC+1}, vcc")
        a(f"buffer_store_dwordx4 {q(S)}, v6, s[44:47], s{sfin} offen sc1")
        s.exec_all()
    def a5(s, sU, R, T, WOA):
        a = s.a; c = s.c
        OG = R; ST = R+8; Z = R+16
        a(f"s_lshr_b32 s12, s{sU}, 3")
        a(f"v_lshrrev_b32 v{T+22}, 4, v1\nv_lshlrev_b32 v{T+22}, 7, v{T+22}")
        a(f"s_lshr_b32 s8, s12, 1\ns_lshl_b32 s8, s8, 12\ns_and_b32 s6, s12, 1\ns_lshl_b32 s6, s6, 4\ns_add_u32 s8, s8, s6\ns_lshl_b32 s6, s3, 10\ns_add_u32 s8, s8, s6\ns_add_u32 s8, s8, {OFF_STA}")
        a(f"s_mul_i32 s6, s{sU}, {HA_U}\ns_lshl_b32 s5, s3, 11\ns_add_u32 s6, s6, s5\ns_add_u32 s6, s6, {OFF_HA}")
        a(f"v_lshlrev_b32 v{T+20}, 4, v0")
        a(f"s_mul_i32 s15, s{sU}, {FS}\ns_lshl_b32 s5, s3, 10\ns_add_u32 s15, s15, s5\ns_add_u32 s15, s15, {OFF_FIN}")
        def issue_o():
            a(f"buffer_load_dwordx4 {q(OG)}, v6, s[44:47], s6 offen sc1\nbuffer_load_dwordx4 {q(OG+4)}, v6, s[44:47], s6 offen offset:1024 sc1")
            a(f"buffer_load_dwordx4 {q(ST)}, v{T+22}, s[44:47], s8 offen sc1\nbuffer_load_dwordx4 {q(ST+4)}, v{T+22}, s[44:47], s8 offen offset:512 sc1")
        s.spoll(6, 0, c['ton'], 256*2, c['tok'])
        s.poll(issue_o, [("s76", [OG+k for k in range(1, 16, 2)])], Z, Z+1, sleep=c['fsleep'])
        s.stamp(7)
        a(f"v_max_f32 v{Z+2}, v{ST}, v{ST+4}")
        a(f"v_sub_f32 v{ST}, v{ST}, v{Z+2}\nv_sub_f32 v{ST+4}, v{ST+4}, v{Z+2}\nv_exp_f32 v{ST}, v{ST}\nv_exp_f32 v{ST+4}, v{ST+4}")
        a(f"v_mul_f32 v{Z}, v{ST}, v{OG}\nv_mul_f32 v{Z+1}, v{ST}, v{OG+2}\nv_mul_f32 v{Z+3}, v{ST}, v{ST+2}")
        a(f"v_fmac_f32 v{Z}, v{ST+4}, v{OG+4}\nv_fmac_f32 v{Z+1}, v{ST+4}, v{OG+6}\nv_fmac_f32 v{Z+3}, v{ST+4}, v{ST+6}")
        a(f"ds_write_b128 v{T+20}, {q(Z)} offset:{0x6000}")
        a("s_waitcnt lgkmcnt(0)\ns_barrier")
        s.stamp(8)
        for k in range(4): a(f"ds_read_b128 {q(OG+4*k)}, v6 offset:{0x6000+1024*k}")
        a("s_waitcnt lgkmcnt(0)")
        a(f"v_max3_f32 v{Z+2}, v{OG+2}, v{OG+6}, v{OG+10}\nv_max_f32 v{Z+2}, v{Z+2}, v{OG+14}")
        s.allred_rows("v_max_f32", Z+2, Z+4)
        for k in range(4): a(f"v_sub_f32 v{OG+4*k+2}, v{OG+4*k+2}, v{Z+2}")
        for k in range(4): a(f"v_exp_f32 v{OG+4*k+2}, v{OG+4*k+2}")
        for k in range(4):
            op = "v_mul_f32" if k == 0 else "v_fmac_f32"
            a(f"{op} v{Z+3}, v{OG+4*k+2}, v{OG+4*k+3}\n{op} v{Z}, v{OG+4*k+2}, v{OG+4*k}\n{op} v{Z+1}, v{OG+4*k+2}, v{OG+4*k+1}")
        s.allred_rows("v_add_f32", Z+3, Z+4)
        a(f"v_rcp_f32 v{Z+3}, v{Z+3}")
        s.proj_tail(Z, WOA, T+24, 3, 15, scale=Z+3)
        s.stamp(9)
    def final(s, sJ, ab, F, T, stp):
        a = s.a; c = s.c
        s.srd(52, 38, 1792)
        a(f"s_mov_b32 s12, {ab}\ns_mov_b32 s13, s{sJ}")
        a("s_sub_u32 s5, s13, 48\ns_lshr_b32 s6, s5, 1\ns_lshl_b32 s6, s6, 2\ns_and_b32 s5, s5, 1\ns_add_u32 s6, s6, s5\ns_add_u32 s6, s6, 48")
        a("s_cmp_ge_u32 s13, 48\ns_cselect_b32 s13, s6, s13")
        a(f"s_mul_i32 s6, s12, {FIN_AB}\ns_lshl_b32 s5, s13, 6\ns_add_u32 s6, s6, s5\ns_add_u32 s6, s6, {OFF_FIN}")
        a(f"v_lshrrev_b32 v{T+9}, 2, v1\nv_mul_u32_u24 v{T+9}, {FS}, v{T+9}\nv_and_b32 v{T+10}, 3, v1\nv_lshl_add_u32 v{T+9}, v{T+10}, 4, v{T+9}")
        def issue_f():
            for i in range(8):
                a(f"s_add_u32 s79, s6, {i*16*FS}")
                a(f"buffer_load_dwordx4 {q(F+4*i)}, v{T+9}, s[44:47], s79 offen sc1")
        a("s_mul_i32 s15, s12, 896\ns_lshr_b32 s5, s13, 4\ns_lshl_b32 s5, s5, 8\ns_add_u32 s15, s15, s5")
        a("s_and_b32 s5, s13, 3\ns_lshl_b32 s5, s5, 6\ns_add_u32 s15, s15, s5")
        a("s_bfe_u32 s5, s13, 0x10002\ns_lshl_b32 s5, s5, 3\ns_add_u32 s15, s15, s5")
        a("s_bfe_u32 s5, s13, 0x10003\ns_lshl_b32 s5, s5, 2\ns_add_u32 s15, s15, s5")
        a(f"v_lshlrev_b32 v{T+8}, 2, v1")
        s.spoll(6, 0, c['tfn'], FS*37, c['tfk'])
        s.poll(issue_f, [("s76", [F+4*i+k for i in range(8) for k in (1, 3)])], T+4, T+5, sleep=c['fsleep'])
        s.stamp(stp)
        dl = c.get('dlb' if ab else 'dla')
        if dl:
            Lsp = a.label("Ldl")
            a(f"s_memrealtime s[98:99]\ns_waitcnt lgkmcnt(0)\ns_mov_b32 s83, s98\n{Lsp}:\ns_memrealtime s[98:99]\ns_waitcnt lgkmcnt(0)\ns_sub_u32 s5, s98, s83\ns_cmp_lt_u32 s5, {dl}\ns_cbranch_scc1 {Lsp}")
        for st in (16, 8, 4):
            for i in range(0, st, 4):
                a(f"v_add_f32 v{F+i}, v{F+i}, v{F+st+i}\nv_add_f32 v{F+i+2}, v{F+i+2}, v{F+st+i+2}")
        for m in ("row_ror:8", "row_ror:4"):
            for k in (0, 2): a(f"v_add_f32_dpp v{F+k}, v{F+k}, v{F+k} {m} {DPPF}")
        for k in (0, 2): s.allred_rows("v_add_f32", F+k, F+k+1)
        a(f"v_cvt_pk_bf16_f32 v{F}, v{F}, v{F+2}")
        if c.get('thr'):
            a(f"s_memrealtime s[98:99]\ns_waitcnt lgkmcnt(0)\ns_sub_u32 s5, s98, s76\ns_cmp_gt_u32 s5, {c['thr']}\ns_cselect_b32 s5, 0x7fc07fc0, 0\nv_or_b32 v{F}, s5, v{F}")
        if c.get('spin'):
            Lsp = a.label("Lspin")
            a(f"{Lsp}:\ns_memrealtime s[98:99]\ns_waitcnt lgkmcnt(0)\ns_sub_u32 s5, s98, s76\ns_cmp_lt_u32 s5, {c['spin']}\ns_cbranch_scc1 {Lsp}")
        if c.get('enc'):
            a("s_memrealtime s[98:99]\ns_waitcnt lgkmcnt(0)\ns_sub_u32 s5, s98, s76")
            a(f"v_mov_b32 v{F+4}, s5\nv_lshrrev_b32 v{F+4}, v{T+8}, v{F+4}")
            a(f"v_and_b32 v{F+5}, 3, v{F+4}\nv_bfe_u32 v{F+4}, v{F+4}, 2, 2\nv_lshl_or_b32 v{F+5}, v{F+4}, 16, v{F+5}")
            a(f"v_and_b32 v{F}, 0xfffcfffc, v{F}\nv_or_b32 v{F}, v{F}, v{F+5}")
        s.exec_set(0xf, 0)
        a(f"buffer_store_dword v{F}, v6, s[52:55], s15 offen")
        s.exec_all()
        s.stamp(stp+1)
    def gy(s):
        a = s.a; c = s.c; nt = c['nt']; pb = c['pb']
        XB, WB, UK, UV, T = 8, 16, 72, 136, 200
        PVv = T+40
        vLW = PVv+4
        vZ, vU, vQ = T+47, T+50, T+51
        vE = T+48
        s.p1_setup(2, T, PVv)
        a(f"v_mov_b32 v{vZ}, 0\nv_mov_b32 v{vE+1}, 0")
        a("s_lshr_b32 s12, s2, 3\ns_and_b32 s13, s2, 7")
        if c['qf']:
            a(f"s_lshl_b32 s14, s13, 12\ns_lshl_b32 s6, s12, 4\ns_add_u32 s14, s14, s6\ns_add_u32 s14, s14, {OFF_QABS}")
            a(f"v_lshlrev_b32 v{T+2}, 8, v1")
        else:
            a(f"s_lshl_b32 s14, s13, 8\ns_mul_i32 s6, s12, {QS}\ns_add_u32 s14, s14, s6\ns_add_u32 s14, s14, {OFF_QABS}")
        for r in range(4): a(f"v_mov_b32 v{T+4+r}, -1")
        s.kwait()
        s.srd(44, 42, 0x10000000); s.srd(48, 40, 256)
        s.srd(52, 26, 896); s.srd(56, 30, 448*8192)
        L = a.label("Le0")
        a(f"s_cmp_lg_u32 s3, 3\ns_cbranch_scc1 {L}")
        if c['ncas']:
            Lq = a.label("Lcas")
            a(f"s_cmp_ge_u32 s2, {c['ncas']}\ns_cbranch_scc1 {Lq}")
            a(f"s_mov_b32 s80, s77\ns_mov_b32 s81, 0\ns_atomic_cmpswap s[80:81], s[40:41], 0 glc\n{Lq}:")
        else:
            a(f"v_mov_b32 v{vE}, s77")
            s.exec_set(1, 0)
            a(f"buffer_atomic_cmpswap {p2(vE)}, v{vZ}, s[48:51], 0 offen sc0 sc1")
        s.exec_set(0xffff, 0)
        a(f"buffer_store_dwordx4 {q(T+4)}, v{T+2 if c['qf'] else 6}, s[44:47], s14 offen sc1")
        s.exec_all()
        a(f"{L}:")
        if c.get('fi'): s.stamp(9)
        s.p1_loads(XB, WB, 52, 56, PVv)
        if c.get('fi'): s.stamp(10)
        s.srd(68, 32, 1024*8192); s.srd(72, 34, 1024*8192)
        a(f"v_lshrrev_b32 v{T+2}, 4, v1\nv_lshrrev_b32 v{vQ}, 4, v0\nv_lshlrev_b32 v{vQ}, {8 if c['qf'] else 4}, v{vQ}")
        a(f"v_bfe_u32 v{vU}, v1, 2, 2\nv_lshlrev_b32 v{vU}, 16, v{vU}\nv_lshl_add_u32 v{vU}, v{T+2}, 6, v{vU}")
        a(f"v_and_b32 v{T+3}, 3, v1\nv_lshl_add_u32 v{vU}, v{T+3}, 4, v{vU}")
        a("s_lshl_b32 s15, s13, 20\ns_lshl_b32 s5, s3, 18\ns_add_u32 s15, s15, s5\ns_lshl_b32 s5, s12, 9\ns_add_u32 s15, s15, s5")
        s.common2(T+12)
        s.p1_setup2(T, PVv)
        def ukload(n, pace):
            i, hf = n//2, n % 2
            a(f"s_add_u32 s79, s15, {i*8192}")
            if pace: a(f"s_waitcnt vmcnt({pace-1})")
            a(f"buffer_load_dwordx4 {q(UK+4*n)}, v{vU}, s[68:71], s79 offen offset:{hf*256} {nt}")
        n1 = c['n1']
        for n in range(n1):
            ukload(n, pb)
            if c['ncas'] and n == c['eat']:
                Lq = a.label("Lel")
                a(f"s_cmp_lg_u32 s3, 3\ns_cbranch_scc1 {Lq}\ns_load_dword s76, s[40:41], 0{' glc' if c['eglc'] else ''}\n{Lq}:")
        a(f"s_waitcnt vmcnt({n1})")
        s.stamp(1)
        L = a.label("Le1")
        a(f"s_cmp_lg_u32 s3, 3\ns_cbranch_scc1 {L}")
        if c['ncas']:
            Lq = a.label("Ler"); Lo = a.label("Leo")
            a(f"s_mov_b32 s78, {c['timeout']}\n{Lq}:\ns_waitcnt lgkmcnt(0)\ns_cmp_lg_u32 s76, 0\ns_cbranch_scc1 {Lo}")
            a(f"s_load_dword s76, s[40:41], 0 glc\ns_sub_u32 s78, s78, 1\ns_cmp_lg_u32 s78, 0\ns_cbranch_scc1 {Lq}\ns_waitcnt lgkmcnt(0)\n{Lo}:")
        else:
            a(f"v_readfirstlane_b32 s76, v{vE}\ns_cmp_eq_u32 s76, 0\ns_cselect_b32 s76, s77, s76")
        a(f"v_mov_b32 v{vE}, s76\nds_write_b32 v{vZ}, v{vE} offset:{0x2800}")
        a(f"{L}:")
        s.p1_compute(XB, WB, T, PVv, 0, OFF_QB, vZ)
        a(f"ds_read_b32 v{vE}, v{vZ} offset:{0x2800}")
        s.stamp(2)
        for n in range(n1, 16): ukload(n, pb)
        a(f"s_waitcnt lgkmcnt(0)\nv_readfirstlane_b32 s76, v{vE}")
        tsave = c['timeout']
        if c.get('nob'): c['timeout'] = 1
        L = a.label("Lqb")
        a(f"s_cmp_ge_u32 s3, 2\ns_cbranch_scc1 {L}")
        a(f"s_lshl_b32 s6, s12, 11\ns_lshl_b32 s5, s3, 10\ns_add_u32 s6, s6, s5\ns_add_u32 s6, s6, {OFF_QB}")
        a(f"v_lshlrev_b32 v{T+20}, 2, v0\nv_add_u32 v{T+20}, 0x2000, v{T+20}")
        s.gather_q(T, 6, T+20, 1)
        a(f"{L}:")
        a(f"v_lshrrev_b32 v{T+21}, 4, v1\nv_lshlrev_b32 v{T+21}, 6, v{T+21}\nv_and_b32 v{T+22}, 3, v1\nv_lshl_add_u32 v{T+21}, v{T+22}, 4, v{T+21}")
        a("s_waitcnt vmcnt(0)\ns_barrier")
        s.stamp(3)
        QF = T; D = WB
        a(f"ds_read_b128 {q(QF)}, v{T+21} offset:{0x2000}\nds_read_b128 {q(QF+4)}, v{T+21} offset:{0x2000+256}")
        a("s_waitcnt lgkmcnt(0)")
        for i in range(8):
            a(f"{MF} {q(D+4*i)}, {q(UK+8*i)}, {q(QF)}, 0")
            a(f"{MF} {q(D+4*i)}, {q(UK+8*i+4)}, {q(QF+4)}, {q(D+4*i)}")
        R = T+8
        for r in range(4):
            for i in range(8):
                if r == 0: a(f"v_mov_b32_dpp v{R+i}, v{D+4*i} quad_perm:[0,0,0,0] {DPPF}")
                else: a(f"v_add_f32_dpp v{R+i}, v{D+4*i+r}, v{R+i} quad_perm:[{r},{r},{r},{r}] {DPPF}")
        for k in range(4): a(f"v_cvt_pk_bf16_f32 v{R+8+k}, v{R+2*k}, v{R+2*k+1}")
        for k in range(4): a(f"v_min_u32 v{R+8+k}, -2, v{R+8+k}")
        s.exec_set(0x00010001, 0x00010001)
        if c['qf']:
            a(f"buffer_store_dwordx4 {q(R+8)}, v{vQ}, s[44:47], s14 offen sc1")
            s.exec_all()
        else:
            a(f"ds_write_b128 v{vQ}, {q(R+8)} offset:{0x2900}")
            s.exec_all()
            a("s_waitcnt lgkmcnt(0)\ns_barrier")
            L = a.label("Lqp")
            a(f"s_cmp_lg_u32 s3, 3\ns_cbranch_scc1 {L}")
            s.exec_set(0xffff, 0)
            a(f"ds_read_b128 {q(R+8)}, v6 offset:{0x2900}\ns_waitcnt lgkmcnt(0)")
            a(f"buffer_store_dwordx4 {q(R+8)}, v6, s[44:47], s14 offen sc1")
            s.exec_all()
            a(f"{L}:")
        s.stamp(4)
        a(f"v_lshrrev_b32 v{vU}, 4, v1\nv_lshlrev_b32 v{vU}, 13, v{vU}\nv_and_b32 v{T+22}, 15, v1\nv_lshl_add_u32 v{vU}, v{T+22}, 4, v{vU}")
        def uvload(n, pace):
            g, hf = n//2, n % 2
            a(f"s_add_u32 s79, s15, {g*4*8192}")
            if pace: a(f"s_waitcnt vmcnt({pace-1})")
            a(f"buffer_load_dwordx4 {q(UV+4*n)}, v{vU}, s[72:75], s79 offen offset:{hf*256} {nt}")
        for n in range(16): uvload(n, c['pu'])
        HG = UK; ST = T
        WL = 0x3000
        a(f"s_mul_i32 s6, s2, {H3_C}\ns_lshl_b32 s5, s3, 13\ns_add_u32 s6, s6, s5\ns_add_u32 s6, s6, {OFF_H3}\ns_add_u32 s7, s6, 4096")
        vSH = T+26
        a(f"v_and_b32 v{vSH}, 15, v1\nv_lshlrev_b32 v{vSH}, 1, v{vSH}\ns_mov_b32 s10, 0xff\ns_sub_u32 s9, 0, s76")
        L = a.label("Lst")
        a(f"s_cmp_lg_u32 s3, 0\ns_cbranch_scc1 {L}")
        a(f"s_lshl_b32 s5, s12, 11\ns_add_u32 s5, s5, {OFF_ST3}")
        def issue_st():
            for k in range(2): a(f"buffer_load_dwordx4 {q(ST+4*k)}, v6, s[44:47], s5 offen offset:{1024*k} sc1")
        if c['stamp']:
            a("s_waitcnt vmcnt(0)"); s.stamp(5)
        s.spoll(5, 0, c['spn'], 16*37, c['spk'])
        s.poll(issue_st, [("s76", [ST+1, ST+3, ST+5, ST+7])], T+8, T+9, sleep=c['ssleep'])
        a(f"{L}:")
        a("s_barrier")
        s.stamp(6)
        def issue_hg(cond=False):
            for i in range(c.get('nbk', 8)):
                Lk = a.label("Lhg")
                if cond: a(f"s_bitcmp0_b32 s10, {i}\ns_cbranch_scc1 {Lk}")
                a(f"buffer_load_dwordx4 {q(HG+4*i)}, v6, s[44:47], {'s6' if i < 4 else 's7'} offen offset:{1024*(i%4)} sc1")
                if cond: a(f"{Lk}:")
        if c['h3d']: a(f"s_sleep {c['h3d']}")
        issue_hg()
        L = a.label("Lwt")
        a(f"s_cmp_lg_u32 s3, 0\ns_cbranch_scc1 {L}")
        M, Lr, TT, E0 = T+8, T+9, T+10, T+12
        a(f"v_max_f32 v{M}, v{ST}, v{ST+4}")
        s.allred_inrow("v_max_f32", M); s.allred_rows("v_max_f32", M, TT)
        a(f"v_sub_f32 v{E0}, v{ST}, v{M}\nv_sub_f32 v{E0+1}, v{ST+4}, v{M}\nv_exp_f32 v{E0}, v{E0}\nv_exp_f32 v{E0+1}, v{E0+1}")
        a(f"v_mul_f32 v{Lr}, v{E0}, v{ST+2}\nv_fmac_f32 v{Lr}, v{E0+1}, v{ST+6}")
        s.allred_inrow("v_add_f32", Lr); s.allred_rows("v_add_f32", Lr, TT)
        a(f"v_rcp_f32 v{Lr}, v{Lr}")
        a(f"v_and_b32 v{TT}, 3, v1\nv_lshlrev_b32 v{TT}, 7, v{TT}\nv_lshrrev_b32 v{TT+1}, 5, v1\nv_lshl_add_u32 v{TT}, v{TT+1}, 5, v{TT}")
        a(f"v_bfe_u32 v{TT+1}, v1, 2, 3\nv_lshl_add_u32 v{TT}, v{TT+1}, 2, v{TT}")
        for k in range(2):
            e = E0+k; hi = E0+2+k; lo = E0+4+k
            a(f"v_mul_f32 v{e}, v{e}, v{Lr}\nv_cvt_pk_bf16_f32 v{hi}, v{e}, v{e}\nv_and_b32 v{lo}, 0xffff0000, v{hi}\nv_sub_f32 v{lo}, v{e}, v{lo}\nv_cvt_pk_bf16_f32 v{lo}, v{lo}, v{lo}")
            a(f"ds_write_b32 v{TT}, v{hi} offset:{WL+64*k}\nds_write_b32 v{TT}, v{lo} offset:{WL+512+64*k}")
        a("s_waitcnt lgkmcnt(0)")
        a(f"{L}:")
        a(f"v_bfe_u32 v{T+20}, v1, 3, 1\nv_lshlrev_b32 v{T+20}, 9, v{T+20}\nv_lshrrev_b32 v{T+21}, 4, v1\nv_lshl_add_u32 v{T+20}, v{T+21}, 7, v{T+20}")
        a(f"s_lshl_b32 s5, s3, 5\nv_add_u32 v{T+20}, s5, v{T+20}")
        a(f"v_and_b32 v{T+22}, 1, v1\nv_lshlrev_b32 v{T+22}, 8, v{T+22}\nv_bfe_u32 v{T+23}, v1, 1, 2\nv_lshl_add_u32 v{T+22}, v{T+23}, 4, v{T+22}")
        a(f"v_lshl_add_u32 v{T+22}, v{T+21}, 2, v{T+22}\ns_lshl_b32 s5, s3, 6\nv_add_u32 v{T+22}, s5, v{T+22}")
        a("s_barrier")
        WW = T; AO = WB
        a(f"ds_read_b128 {q(WW)}, v{T+20} offset:{WL}\nds_read_b128 {q(WW+4)}, v{T+20} offset:{WL+16}")
        a("s_waitcnt lgkmcnt(0)")
        for i in range(8):
            for r in range(4): a(f"v_and_b32 v{AO+4*i+r}, v{WW+i}, v{2+r}")
        DC = T+8
        Lp = a.label("Lck"); Lw = a.label("Lckw"); Ld = a.label("Lckd")
        a(f"s_mov_b32 s78, {c['timeout']}\ns_branch {Lw}")
        a(f"{Lp}:")
        issue_hg(True)
        a(f"{Lw}:")
        a("s_waitcnt vmcnt(0)")
        SU, BT = 48, 56
        for i in range(8):
            h_ = HG+4*i
            a(f"v_and_b32 v{BT+i}, 3, v{h_}\nv_add3_u32 v{SU+i}, v{h_}, v{h_+1}, v{h_+2}\nv_and_or_b32 v{h_}, v{h_}, -4, 2")
            a(f"v_lshl_add_u32 v{BT+i}, v{BT+i}, v{vSH}, v{BT+i}\nv_add_u32 v{SU+i}, v{SU+i}, v{h_+3}")
            a(f"{MF} {q(DC)}, {q(AO+4*i)}, {q(HG+4*i)}, {'0' if i == 0 else q(DC)}")
            a(f"v_sub_u32 v{SU+i}, v{SU+i}, v{BT+i}")
        for m in ("quad_perm:[1,0,3,2]", "quad_perm:[2,3,0,1]", "row_half_mirror", "row_mirror"):
            for i in range(8): a(f"v_add_u32_dpp v{SU+i}, v{SU+i}, v{SU+i} {m} {DPPF}")
        for i in range(8): a(f"v_cmp_ne_u32 s[{64+2*(i%4)}:{65+2*(i%4)}], s9, v{SU+i}" ) if i < 4 else None
        a("s_mov_b32 s11, 0")
        for half in range(2):
            if half:
                for i in range(4, 8): a(f"v_cmp_ne_u32 s[{64+2*(i%4)}:{65+2*(i%4)}], s9, v{SU+i}")
            for i in range(4*half, 4*half+4):
                a(f"s_cmp_lg_u64 s[{64+2*(i%4)}:{65+2*(i%4)}], 0\ns_cselect_b32 s5, {1 << i}, 0\ns_or_b32 s11, s11, s5")
        a(f"s_and_b32 s10, s10, s11\ns_cbranch_scc0 {Ld}")
        a(f"s_sleep 1\ns_sub_u32 s78, s78, 1\ns_cmp_lg_u32 s78, 0\ns_cbranch_scc1 {Lp}")
        a(f"{Ld}:")
        s.stamp(7)
        a(f"ds_write_b128 v{vLW}, {q(DC)}")
        a("s_waitcnt lgkmcnt(0)\ns_barrier")
        Z = T+12
        for k in range(8): a(f"ds_read_b32 v{Z+k}, v{T+22} offset:{512*k}")
        E = T+24
        s.epi_addr(E, False)
        a(f"v_lshlrev_b32 v{E}, 4, v0")
        a(f"s_lshl_b32 s5, s3, 11\nv_add_u32 v{E+2}, s5, v6")
        a(f"s_lshl_b32 s5, s2, 11\ns_add_u32 s5, s5, {OFF_H4}")
        a("s_waitcnt lgkmcnt(0)")
        for st in (4, 2):
            for i in range(0, st, 2): a(f"v_pk_add_f32 {p2(Z+i)}, {p2(Z+i)}, {p2(Z+st+i)}")
        a(f"v_add_f32 v{Z}, v{Z}, v{Z+1}\nv_cvt_pk_bf16_f32 v{Z}, v{Z}, v{Z}")
        DD = T+28
        for g in range(8):
            ab = T + (g % 2)*4
            for r in range(4): a(f"v_and_b32_dpp v{ab+r}, v{Z}, v{2+r} row_newbcast:{g} {DPPF}")
            for hf in range(2):
                a(f"{MF} {q(DD+4*hf)}, {q(ab)}, {q(UV+8*g+4*hf)}, {'0' if g == 0 else q(DD+4*hf)}")
        a(f"ds_write_b128 v{E+2}, {q(DD)} offset:{0x4000}\nds_write_b128 v{E+2}, {q(DD+4)} offset:{0x4000+1024}")
        a("s_waitcnt lgkmcnt(0)\ns_barrier")
        a(f"s_cmp_ge_u32 s3, 2\ns_cbranch_scc1 L_ya5")
        X = T
        for i in range(4): a(f"ds_read_b64 {p2(X+2*i)}, v{E+3} offset:{0x4000+2048*i}")
        a("s_waitcnt lgkmcnt(0)")
        for st in (4, 2):
            for i in range(0, st, 2): a(f"v_pk_add_f32 {p2(X+i)}, {p2(X+i)}, {p2(X+st+i)}")
        a(f"v_mov_b32 v{X+2}, v{X+1}\nv_mov_b32 v{X+1}, s76\nv_mov_b32 v{X+3}, s76")
        a(f"buffer_store_dwordx4 {q(X)}, v{E}, s[44:47], s5 offen sc1")
        s.stamp(8)
        c['timeout'] = tsave
        a("L_ya5:")
        s.stamp_out()
        a("s_endpgm")
    def gx(s):
        a = s.a; c = s.c; nt = c['nt']; pb = c['pb']
        a("L_X:")
        L1, PV, QF, S = 16, 144, 208, 240
        vTR, vL, vSX, vZ, vE = 8, 9, 10, 11, 12
        a("s_sub_u32 s11, s2, 128")
        a("s_lshl_b32 s8, s11, 17\ns_lshl_b32 s6, s3, 13\ns_add_u32 s8, s8, s6")
        a(f"s_mul_i32 s9, s3, {4*ROW}")
        s.kwait()
        s.srd(52, 28, 8192*2048)
        def dma(i, pace):
            for rr in range(4):
                a(f"s_add_u32 m0, s9, {(i%2)*SLOT + rr*ROW}")
                a(f"s_add_u32 s79, s8, {i*32768 + rr*2048}")
                for hf in range(2):
                    if pace: a(f"s_waitcnt vmcnt({pace-1})")
                    a(f"buffer_load_dwordx4 v6, s[52:55], s79 offen offset:{1024*hf} {nt} lds")
        if c.get('fi'): s.stamp(10)
        dma(0, c['px0'])
        if c.get('fi'): s.stamp(11)
        s.srd(44, 42, 0x10000000); s.srd(48, 40, 256); s.srd(56, 36, 4096*896)
        s.common2(13)
        a(f"v_lshrrev_b32 v13, 2, v1\nv_mul_u32_u24 v{vTR}, {ROW}, v13\nv_and_b32 v13, 3, v1\nv_lshl_add_u32 v{vTR}, v13, 3, v{vTR}")
        a(f"s_lshl_b32 s5, s3, 9\nv_add_u32 v{vTR}, s5, v{vTR}")
        a(f"v_and_b32 v13, 15, v1\nv_mul_u32_u24 v{vL}, {ROW}, v13\nv_lshrrev_b32 v14, 4, v1\nv_lshl_add_u32 v{vL}, v14, 4, v{vL}\nv_add_u32 v{vL}, s5, v{vL}")
        a(f"v_add_u32 v{vSX}, {2*SLOT}, v6\nv_mov_b32 v{vZ}, 0")
        a(f"v_lshrrev_b32 v15, 5, v1\nv_lshlrev_b32 v15, 3, v15\nv_bfe_u32 v7, v1, 4, 1\nv_add_u32 v15, v15, v7\nv_mul_u32_u24 v15, {H3_C}, v15")
        a(f"v_and_b32 v7, 15, v1\nv_lshl_add_u32 v15, v7, 4, v15")
        a(f"s_mul_i32 s10, s3, {2*H3_C}\ns_lshl_b32 s5, s11, 8\ns_add_u32 s10, s10, s5\ns_add_u32 s10, s10, {OFF_H3}")
        dma(1, c['px'])
        def tr(i, dst):
            for t in range(16): a(f"ds_read_b64_tr_b16 {p2(dst(t))}, v{vTR} offset:{(i%2)*SLOT+32*t}")
        def l1(i):
            for ks in range(8): a(f"ds_read_b128 {q(L1+(i*8+ks)*4)}, v{vL} offset:{(i%2)*SLOT+64*ks}")
        a(f"s_lshl_b32 s6, s3, 9\ns_add_u32 s6, s6, {OFF_QABS}\ns_add_u32 s7, s6, {8*QS}\ns_mov_b32 s12, {OFF_CLR+0x1000}\ns_mov_b32 s13, 0xff")
        a(f"v_lshrrev_b32 v14, 3, v1\nv_mul_u32_u24 v14, {QS}, v14\nv_and_b32 v7, 7, v1\nv_lshl_add_u32 v14, v7, 4, v14")
        a(f"v_lshlrev_b32 v7, 5, v7\nv_bfe_u32 v13, v1, 3, 1\nv_lshl_add_u32 v7, v13, 4, v7\nv_lshrrev_b32 v13, 4, v1\nv_lshl_add_u32 v7, v13, 2, v7")
        a(f"v_lshlrev_b32 v13, 3, v1")
        def issue_c():
            a(f"buffer_load_dwordx2 {p2(S)}, v13, s[44:47], s12 offen sc1")
            a(f"buffer_load_dword v{vE}, v{vZ}, s[48:51], 0 offen sc1")
        def issue_q(cond=False):
            for i in range(8):
                Lk = a.label("Lqg")
                if cond: a(f"s_bitcmp0_b32 s13, {i}\ns_cbranch_scc1 {Lk}")
                a(f"buffer_load_dwordx4 {q(QF+4*i)}, v14, s[44:47], {'s7' if i % 2 else 's6'} offen offset:{128*(i//2)} sc1")
                if cond: a(f"{Lk}:")
        cgrp = [(f"v{vE}", [S, S+1])]
        for i in range(4):
            a(f"s_waitcnt vmcnt(8)")
            if i == 2:
                L = a.label("Lclr"); Lk = a.label("Lclk")
                a(f"s_cmp_lg_u32 s3, 0\ns_cbranch_scc1 {L}")
                s.check_tags(cgrp, S+2, S+3)
                a(f"s_cbranch_scc1 {Lk}")
                s.poll(issue_c, cgrp, S+2, S+3, sleep=4)
                a(f"{Lk}:")
                a(f"ds_write_b32 v{vSX}, v{vE} offset:12288\ns_waitcnt lgkmcnt(0)")
                a(f"{L}:")
            a("s_barrier")
            l1(i)
            if i < 2:
                tr(i, lambda t: PV+4*t+2*i)
                a("s_waitcnt lgkmcnt(0)\ns_barrier")
                if i == 1:
                    L = a.label("Lcli")
                    a(f"s_cmp_lg_u32 s3, 0\ns_cbranch_scc1 {L}")
                    issue_c()
                    a(f"{L}:")
                dma(i+2, c['px'])
            if i == 2:
                a(f"ds_read_b32 v{vE}, v{vSX} offset:12288")
                a(f"s_waitcnt vmcnt({c['qat']})")
                issue_q()
        tsave = c['timeout']
        s.stamp(1)
        if True:
            Lp = a.label("Lqp"); Lw = a.label("Lqw"); Ld = a.label("Lqd")
            a(f"s_mov_b32 s78, {c['timeout']}\ns_branch {Lw}")
            a(f"{Lp}:")
            issue_q(True)
            a(f"{Lw}:")
            a("s_waitcnt vmcnt(0)")
            for i in range(8): a(f"v_max3_u32 v{S+i}, v{QF+4*i}, v{QF+4*i+1}, v{QF+4*i+2}")
            for i in range(8): a(f"v_max_u32 v{S+i}, v{S+i}, v{QF+4*i+3}")
            a(f"v_max3_u32 v{S+8}, v{S}, v{S+1}, v{S+2}\nv_max3_u32 v{S+9}, v{S+3}, v{S+4}, v{S+5}\nv_max3_u32 v{S+8}, v{S+8}, v{S+6}, v{S+7}\nv_max_u32 v{S+8}, v{S+8}, v{S+9}")
            a(f"v_cmp_eq_u32 vcc, -1, v{S+8}\ns_cbranch_vccz {Ld}")
            a("s_mov_b32 s13, 0")
            for i in range(8):
                a(f"v_cmp_eq_u32 vcc, -1, v{S+i}\ns_cmp_lg_u64 vcc, 0\ns_cselect_b32 s5, {1 << i}, 0\ns_or_b32 s13, s13, s5")
            a(f"s_sleep 1\ns_sub_u32 s78, s78, 1\ns_cmp_lg_u32 s78, 0\ns_cbranch_scc1 {Lp}")
            a(f"{Ld}:")
            a("s_waitcnt lgkmcnt(0)")
            a(f"v_readfirstlane_b32 s76, v{vE}")
            s.stamp(2)
            def mix(kp):
                A_, B_ = QF+8*kp, QF+8*kp+4
                a(f"v_mov_b64 {p2(S)}, {p2(A_)}\nv_mov_b64 {p2(S+2)}, {p2(A_+2)}")
                for r in range(4): a(f"v_mov_b32_dpp v{A_+r}, v{B_+r} row_shr:4 row_mask:0xf bank_mask:0xa")
                for r in range(4): a(f"v_mov_b32_dpp v{B_+r}, v{S+r} row_shl:4 row_mask:0xf bank_mask:0x5")
                for r in range(8): a(f"ds_bpermute_b32 v{A_+r}, v7, v{A_+r}")
            for kp in range(4): mix(kp)
            for ks in range(8):
                a(f"s_waitcnt lgkmcnt({min(15, 4*(7-ks))})")
                for ch in range(4):
                    a(f"{MF} {q(S+4*ch)}, {q(L1+(ch*8+ks)*4)}, {q(QF+4*ks)}, {'0' if ks == 0 else q(S+4*ch)}")
        PV1 = L1
        Lx = a.label("Lsx")
        labs = [a.label("Lsxw") for _ in range(4)]
        for w in range(1, 4): a(f"s_cmp_eq_u32 s3, {w}\ns_cbranch_scc1 {labs[w]}")
        for w in range(4):
            a(f"{labs[w]}:")
            for ch in range(4):
                if ch == w: continue
                k = (w - ch - 1) % 4
                a(f"ds_write_b128 v{vSX}, {q(S+4*ch)} offset:{(ch*3+k)*1024}")
            a(f"v_mov_b64 {p2(QF)}, {p2(S+4*w)}\nv_mov_b64 {p2(QF+2)}, {p2(S+4*w+2)}")
            if w < 3: a(f"s_branch {Lx}")
        a(f"{Lx}:")
        a(f"s_mul_i32 s5, s3, 3072\nv_add_u32 v13, s5, v{vSX}")
        a("s_waitcnt lgkmcnt(0)\ns_barrier")
        for k in range(3): a(f"ds_read_b128 {q(QF+4+4*k)}, v13 offset:{1024*k}")
        tr(2, lambda t: PV1+4*t)
        a("s_waitcnt lgkmcnt(15)\ns_waitcnt lgkmcnt(14)")
        a(f"v_pk_add_f32 {p2(QF)}, {p2(QF)}, {p2(QF+4)}\nv_pk_add_f32 {p2(QF+2)}, {p2(QF+2)}, {p2(QF+6)}")
        a(f"v_pk_add_f32 {p2(QF+8)}, {p2(QF+8)}, {p2(QF+12)}\nv_pk_add_f32 {p2(QF+10)}, {p2(QF+10)}, {p2(QF+14)}")
        a(f"v_pk_add_f32 {p2(QF)}, {p2(QF)}, {p2(QF+8)}\nv_pk_add_f32 {p2(QF+2)}, {p2(QF+2)}, {p2(QF+10)}")
        a(f"ds_write_b128 v13, {q(QF)}")
        a("s_waitcnt lgkmcnt(0)\ns_barrier")
        s.stamp(3)
        SR = S
        for ch in range(4): a(f"ds_read_b128 {q(SR+4*ch)}, v{vSX} offset:{3072*ch}")
        a("s_waitcnt lgkmcnt(0)")
        tr(3, lambda t: PV1+4*t+2)
        M, Lr, TT, P = QF+8, QF+10, QF+12, QF
        a(f"v_max3_f32 v{M}, v{SR}, v{SR+1}, v{SR+2}")
        for i in range(3, 16, 2): a(f"v_max3_f32 v{M}, v{M}, v{SR+i}, v{SR+min(i+1,15)}")
        s.allred_rows("v_max_f32", M, TT)
        a(f"s_mov_b32 s5, {f32(CEXP)}\nv_mul_f32 v{M}, s5, v{M}")
        for i in range(16): a(f"v_fma_f32 v{SR+i}, v{SR+i}, s5, -v{M}")
        for i in range(16): a(f"v_exp_f32 v{SR+i}, v{SR+i}")
        for i in range(8): a(f"v_cvt_pk_bf16_f32 v{P+i}, v{SR+2*i}, v{SR+2*i+1}")
        O = L1+64
        a(f"v_and_b32 v13, 15, v1\nv_mul_u32_u24 v13, {ROW}, v13\nv_lshrrev_b32 v14, 4, v1\nv_bfe_u32 v7, v1, 2, 2\nv_xor_b32 v14, v14, v7\nv_lshl_add_u32 v13, v14, 3, v13")
        a(f"s_lshl_b32 s5, s3, 9\nv_add_u32 v13, s5, v13")
        a(f"v_lshrrev_b32 v14, 5, v1\nv_mul_u32_u24 v14, {ROW}, v14\nv_and_b32 v7, 31, v1\nv_lshl_add_u32 v14, v7, 4, v14\nv_add_u32 v14, s5, v14\nv_xor_b32 v7, 16, v14")
        a("s_waitcnt lgkmcnt(0)")
        def fin(t):
            a(f"v_cvt_pk_bf16_f32 v{O+4*t}, v{O+4*t}, v{O+4*t+1}\nv_cvt_pk_bf16_f32 v{O+4*t+1}, v{O+4*t+2}, v{O+4*t+3}")
            a(f"ds_write_b64 v13, {p2(O+4*t)} offset:{32*t}")
        for t in range(16):
            a(f"{MF} {q(O+4*t)}, {q(PV+4*t)}, {q(P)}, 0")
            a(f"{MF} {q(O+4*t)}, {q(PV1+4*t)}, {q(P+4)}, {q(O+4*t)}")
            if t == 0:
                L = a.label("Lst3")
                a(f"s_cmp_lg_u32 s3, 0\ns_cbranch_scc1 {L}")
                for st in (8, 4, 2):
                    for i in range(0, st, 2): a(f"v_pk_add_f32 {p2(SR+i)}, {p2(SR+i)}, {p2(SR+st+i)}")
                a(f"v_add_f32 v{Lr}, v{SR}, v{SR+1}")
                s.allred_rows("v_add_f32", Lr, TT)
                a(f"v_mov_b32 v{M+1}, s76\nv_mov_b32 v{Lr+1}, s76\nv_lshlrev_b32 v{TT}, 11, v1")
                a(f"s_lshl_b32 s5, s11, 4\ns_add_u32 s5, s5, {OFF_ST3}")
                s.exec_set(0xffff, 0)
                a(f"buffer_store_dwordx4 {q(M)}, v{TT}, s[44:47], s5 offen sc1")
                s.exec_all()
                a(f"{L}:")
            if t >= 3: fin(t-3)
        fin(13); fin(14); fin(15)
        a("s_waitcnt lgkmcnt(0)")
        s.stamp(4)
        SQ = L1
        nrd = []
        for i in range(8):
            xx = i//2; va = 7 if xx >= 2 else 14
            if xx % 2 == 0: a(f"ds_read_b128 {q(SQ+4*i)}, v{va} offset:{2*ROW*i}"); nrd.append(1)
            else: a(f"ds_read_b64 {p2(SQ+4*i+2)}, v{va} offset:{2*ROW*i}\nds_read_b64 {p2(SQ+4*i)}, v{va} offset:{2*ROW*i+8}"); nrd.append(2)
        a(f"v_and_b32 v13, 15, v1\nv_lshlrev_b32 v13, 1, v13")
        for i in range(8):
            a(f"s_waitcnt lgkmcnt({sum(nrd[i+1:])})")
            a(f"v_and_b32 v{SQ+4*i}, -4, v{SQ+4*i}\nv_add3_u32 v{O+i}, v{SQ+4*i+1}, v{SQ+4*i+2}, v{SQ+4*i+3}\nv_add_u32 v{O+i}, v{O+i}, v{SQ+4*i}")
        for m in ("quad_perm:[1,0,3,2]", "quad_perm:[2,3,0,1]", "row_half_mirror", "row_mirror"):
            for i in range(8): a(f"v_add_u32_dpp v{O+i}, v{O+i}, v{O+i} {m} {DPPF}")
        for i in range(8):
            a(f"v_add_u32 v{O+i}, s76, v{O+i}\nv_bfe_u32 v{O+i}, v{O+i}, v13, 2\nv_or_b32 v{SQ+4*i}, v{SQ+4*i}, v{O+i}")
            a(f"s_add_u32 s79, s10, {i*16*H3_C}")
            if i < c.get('nbk', 8): a(f"buffer_store_dwordx4 {q(SQ+4*i)}, v15, s[44:47], s79 offen sc1")
        s.stamp(5)
        WOB = [PV+4*t for t in range(8)]; WOA = [PV+32+4*t for t in range(8)]
        T = QF
        a(f"s_mov_b32 s14, s3\ns_mul_i32 s15, s11, {32*896}")
        s.proj_wload(WOB, 13, 56, 15, 14)
        def wob():
            for t in range(8): s.proj_wload_one(t, WOB, 13, 56, 15)
        if not c['dwb']: wob()
        a("s_lshr_b32 s12, s11, 3\ns_and_b32 s13, s11, 7")
        G = L1+32
        a(f"v_lshrrev_b32 v7, 4, v1\nv_lshlrev_b32 v7, 11, v7\nv_and_b32 v14, 15, v1\nv_lshl_add_u32 v7, v14, 4, v7")
        a(f"s_lshl_b32 s5, s12, 14\ns_lshl_b32 s6, s13, 8\ns_add_u32 s5, s5, s6\ns_add_u32 s5, s5, {OFF_H4}\ns_add_u32 s6, s5, 8192")
        def issue_h4():
            a(f"buffer_load_dwordx4 {q(G)}, v7, s[44:47], s5 offen sc1\nbuffer_load_dwordx4 {q(G+4)}, v7, s[44:47], s6 offen sc1")
        if c['dwb']:
            if c['x1w']:
                Lq = a.label("Lx1w")
                a(f"s_cmp_lg_u32 s3, 0\ns_cbranch_scc1 {Lq}")
                sv = c['spsleep']; c['spsleep'] = c['x1s']
                s.spoll(5, 0, c['x1n'], 2048*2, c['x1k'])
                c['spsleep'] = sv
                a(f"{Lq}:\ns_barrier")
            else: s.spoll(5, 0, 4, 2048*2, 1)
            wob()
            if c['dwb'] == 1: s.spoll(5, 0, c['spn'], 2048*2, c['spk'])
        else: s.spoll(5, 0, c['spn'], 2048*2, c['spk'])
        s.poll(issue_h4, [("s76", [G+1, G+3, G+5, G+7])], G+8, G+9, sleep=c['sleep'])
        s.stamp(6)
        a(f"v_add_f32 v{G}, v{G}, v{G+4}\nv_add_f32 v{G+1}, v{G+2}, v{G+6}")
        a(f"s_mul_i32 s15, s11, {FS}\ns_lshl_b32 s5, s3, 10\ns_add_u32 s15, s15, s5\ns_add_u32 s15, s15, {OFF_FIN+FIN_AB}")
        s.proj_tail(G, WOB, T, 14, 15)
        s.stamp(7)
        c['timeout'] = tsave
        a("s_cmp_ge_u32 s11, 56\ns_cbranch_scc1 L_xend\ns_cmp_ge_u32 s3, 1\ns_cbranch_scc1 L_xend")
        s.final(11, 1, L1+64, QF+16, 8)
        a("L_xend:")
        s.stamp_out()
        a("s_endpgm")
    def ga(s):
        a = s.a; c = s.c; pa = c['pa']
        a("L_A:")
        NS = c['ns']; NL = 2*NS
        Kb, Vb, T, AD = 16, 112, 208, 8
        assert NS <= 12
        NIT = (4096 - 64*4*NS)//8 * (2 if c['c1'] else 1)
        QF, AC, D, TS, MM = T, T+8, T+16, T+24, T+36
        M, Lr, F, FA, TK, TT = MM, MM+1, MM+2, MM+3, MM+4, MM+5
        vZ, vE = T+46, T+47
        if c['gmix']:
            a("s_sub_u32 s11, s2, 256\ns_lshr_b32 s6, s11, 3\ns_add_u32 s6, s6, s11\ns_and_b32 s12, s11, 8\ns_sub_u32 s6, s6, s12")
            a("s_bfe_u32 s9, s6, 0x30001\ns_and_b32 s12, s6, 1")
        else:
            a("s_sub_u32 s11, s2, 256\ns_bfe_u32 s9, s11, 0x30004\ns_bfe_u32 s12, s11, 0x10003")
        a("s_lshr_b32 s6, s11, 7\ns_lshl_b32 s6, s6, 3\ns_and_b32 s10, s11, 7\ns_add_u32 s13, s10, s6")
        a("s_lshl_b32 s10, s12, 4\ns_add_u32 s10, s10, s13")
        if c['c1']:
            a("s_lshl_b32 s14, s9, 22")
            a(f"s_lshl_b32 s8, s10, 2\ns_add_u32 s8, s8, s3\ns_mul_i32 s8, s8, {NS*2048}\ns_add_u32 s8, s8, s14")
            a(f"s_add_u32 s14, s14, {128*NS*2048}")
            a(f"s_lshl_b32 s15, s9, 9\ns_add_u32 s15, s15, {OFF_CLR}")
        else:
            a("s_lshl_b32 s14, s9, 22\ns_lshl_b32 s6, s12, 21\ns_add_u32 s14, s14, s6")
            a(f"s_lshl_b32 s8, s13, 2\ns_add_u32 s8, s8, s3\ns_mul_i32 s8, s8, {32768 if c['il'] else NS*2048}\ns_add_u32 s8, s8, s14")
            a(f"s_add_u32 s14, s14, {NS*2048 if c['il'] else 64*NS*2048}")
            a(f"s_lshl_b32 s15, s9, 1\ns_add_u32 s15, s15, s12\ns_lshl_b32 s15, s15, 8\ns_add_u32 s15, s15, {OFF_CLR}")
        a(f"v_mov_b32 v{vZ}, 0")
        s.kv_addr(AD)
        s.common2(T)
        s.kwait()
        s.srd(44, 42, 0x10000000); s.srd(48, 40, 256)
        s.srd(68, 18, 8*8192*512); s.srd(72, 20, 8*8192*512)
        vK, vV = AD, AD+1
        def ld(n, reg, voff, srd, pace):
            g, hf = n//2, n % 2
            gi = n + (NL if srd == 72 else 0)
            px_ = (c['pa0'] if gi < c['npre'] else c['pax']) if gi < c['nax'] else pace
            py_ = c['pa0'] if gi < c['nay'] else pace
            if px_ != py_:
                lo, cond = (px_, 'lt') if px_ < py_ else (py_, 'ge')
                Lk = a.label("Lpc")
                a(f"s_cmp_{cond}_u32 s11, 128\ns_cbranch_scc1 {Lk}\ns_waitcnt vmcnt({lo-1})\n{Lk}:")
            a(f"s_add_u32 s79, s8, {(g//2)*4096}")
            a(f"s_waitcnt vmcnt({max(px_, py_)-1})")
            a(f"buffer_load_dwordx4 {q(reg)}, v{voff}, s[{srd}:{srd+3}], s79 offen offset:{(g%2)*2048+hf*256} {c['nt']}")
            if c.get('bw'):
                m = {5: 7, 13: 8, 2*NL-1: 9}
                if gi in m: s.stamp(m[gi])
        for n in range(c['npre']): ld(n, Kb+4*n, vK, 68, pa)
        Lj = a.label("Lp1j")
        a(f"s_cmp_{'lt' if c['p1x'] else 'ge'}_u32 s11, 128\ns_cbranch_scc1 {Lj}")
        if c['prioa']: a(f"s_setprio {c['prioa']}")
        s.srd(52, 16, 896); s.srd(56, 22, 448*8192)
        XA, WA, PVv = Vb, Vb+4, T+16
        a("s_and_b32 s13, s11, 127")
        Lc = a.label("Lcz")
        a(f"s_cmp_ge_u32 s13, 8\ns_cbranch_scc1 {Lc}\ns_cmp_lg_u32 s3, 3\ns_cbranch_scc1 {Lc}")
        a(f"s_lshl_b32 s6, s13, 9\ns_add_u32 s6, s6, {OFF_CLR}\nv_lshlrev_b32 v{T}, 8, v1")
        s.exec_set(3, 0)
        a(f"buffer_store_dword v{vZ}, v{T}, s[44:47], s6 offen sc1")
        s.exec_all()
        a(f"{Lc}:")
        s.p1_setup(13, T, PVv)
        if c.get('fi'): s.stamp(10)
        s.p1_loads(XA, WA, 52, 56, PVv)
        if c.get('fi'): s.stamp(11)
        s.p1_setup2(T, PVv)
        a("s_waitcnt vmcnt(3)")
        a(f"buffer_load_dword v{vE}, v{vZ}, s[48:51], 0 offen sc1")
        a("s_waitcnt vmcnt(0)")
        s.get_epoch(vE, vZ)
        a("s_setprio 3")
        s.p1_compute(XA, WA, T, PVv, 0x1000, OFF_QA)
        a(f"s_setprio 0")
        a(f"{Lj}:")
        s.stamp(6)
        na0 = c['npre']
        v1n = c['v1']
        a(f"v_bfe_u32 v{AD+4}, v1, 3, 1\nv_lshlrev_b32 v{AD+4}, 9, v{AD+4}")
        a(f"v_lshl_add_u32 v{AD+4}, v{AD+2}, 6, v{AD+4}\nv_lshl_add_u32 v{AD+4}, v{AD+3}, 4, v{AD+4}")
        assert na0 <= NL-8
        for n in range(na0, NL):
            ld(n, Kb+4*n, vK, 68, pa)
            if n == NL-8: a(f"buffer_load_dword v{vE}, v{vZ}, s[48:51], 0 offen sc1")
        a("s_waitcnt vmcnt(7)")
        s.get_epoch(vE, vZ)
        vq = c['vq']
        for n in range(vq): ld(n, Vb+4*n, vV, 72, pa)
        def vfirst():
            for n in range(vq, vq+v1n): ld(n, Vb+4*n, vV, 72, pa)
        a(f"s_lshl_b32 s6, s9, 12\ns_lshl_b32 s5, s3, 10\ns_add_u32 s6, s6, s5\ns_add_u32 s6, s6, {OFF_QA}")
        a(f"v_lshlrev_b32 v{T+20}, 2, v0")
        s.gather_q(T, 6, T+20, 1, vfirst, v1n, sleep=c['qsleep'])
        a("s_barrier")
        s.stamp(1)
        a(f"ds_read_b128 {q(QF)}, v{AD+4}\nds_read_b128 {q(QF+4)}, v{AD+4} offset:256")
        a(f"s_mov_b32 s13, {f32(CEXP)}")
        a(f"s_waitcnt vmcnt({v1n}) lgkmcnt(0)")
        s.stamp(2)
        v1n += vq
        nv = v1n
        SA = c['sat']
        if c['ystop']:
            a(f"s_cmp_lt_u32 s11, 128\ns_cselect_b32 s82, {NIT-c['ystop']}, -1\ns_mov_b32 s83, 0")
        def ticket():
            if SA:
                if c['ystop']:
                    Lk = a.label("Lys")
                    a(f"s_cmp_ge_u32 s83, s82\ns_mov_b32 s83, -1\ns_cbranch_scc1 {Lk}")
                    a(f"s_mov_b32 s83, 1\ns_atomic_add s83, s[42:43], s15 glc\n{Lk}:")
                else:
                    a("s_mov_b32 s83, 1\ns_atomic_add s83, s[42:43], s15 glc")
                return
            a(f"v_mov_b32 v{TK}, 1")
            s.exec_set(1, 0)
            a(f"buffer_atomic_add v{TK}, v{vZ}, s[44:47], s15 offen sc0 sc1")
            s.exec_all()
        tk_at = NL - c['tka']
        def more(k=1):
            nonlocal nv
            for _ in range(k):
                if nv < NL:
                    if nv == max(tk_at, v1n): ticket()
                    ld(nv, Vb+4*nv, vV, 72, pa); nv += 1
        def dreg(i): return D+4*i if i < 2 else Kb+8*(i-2)
        for i in range(NS):
            a(f"{MF} {q(dreg(i))}, {q(Kb+i*8)}, {q(QF)}, 0")
            a(f"{MF} {q(dreg(i))}, {q(Kb+i*8+4)}, {q(QF+4)}, {q(dreg(i))}")
            if i % 6 == 5: more()
        for r in range(4):
            for i in range(NS):
                if r == 0: a(f"v_mov_b32_dpp v{TS+i}, v{dreg(i)} quad_perm:[0,0,0,0] {DPPF}")
                else: a(f"v_add_f32_dpp v{TS+i}, v{dreg(i)+r}, v{TS+i} quad_perm:[{r},{r},{r},{r}] {DPPF}")
        more()
        for i in range(0, NS, 2): a(f"v_cvt_pk_bf16_f32 v{D+(i//2)}, v{TS+i}, v{TS+i+1}")
        for i in range(0, NS, 2): a(f"v_lshlrev_b32 v{TS+i}, 16, v{D+i//2}\nv_and_b32 v{TS+i+1}, 0xffff0000, v{D+i//2}")
        a(f"v_max3_f32 v{M}, v{TS}, v{TS+1}, v{TS+2}")
        for i in range(3, NS, 2): a(f"v_max3_f32 v{M}, v{M}, v{TS+i}, v{TS+min(i+1,NS-1)}")
        s.allred_rows("v_max_f32", M, TT)
        a(f"v_mul_f32 v{M}, s13, v{M}")
        for i in range(NS): a(f"v_fma_f32 v{TS+i}, v{TS+i}, s13, -v{M}")
        more()
        for i in range(NS): a(f"v_exp_f32 v{TS+i}, v{TS+i}")
        a(f"v_add_f32 v{Lr}, v{TS}, v{TS+1}")
        for i in range(2, NS): a(f"v_add_f32 v{Lr}, v{Lr}, v{TS+i}")
        for i in range(NS): a(f"v_cvt_pk_bf16_f32 v{TS+i}, v{TS+i}, v{TS+i}")
        s.stamp(3)
        done = 0
        def pv(i):
            ab = D + (i % 2)*4
            for r in range(4): a(f"v_and_b32 v{ab+r}, v{TS+i}, v{2+r}")
            for hf in range(2):
                a(f"{MF} {q(AC+4*hf)}, {q(ab)}, {q(Vb+8*i+4*hf)}, {'0' if i == 0 else q(AC+4*hf)}")
        def pv_upto(k):
            nonlocal done
            while done < NS and 2*done+2 <= k:
                pv(done); done += 1
        while nv < NL:
            more()
            pv_upto(nv - 1 - (pa-1))
        ntk = NL - max(tk_at, v1n)
        BUF = [Kb, Kb+32]
        Lend = a.label("Lae")
        def take(Lno, younger):
            if SA: a("s_waitcnt lgkmcnt(0)\ns_mov_b32 s5, s83")
            else:
                a(f"s_waitcnt vmcnt({younger})")
                a(f"v_readfirstlane_b32 s5, v{TK}")
            a(f"s_cmp_ge_u32 s5, {NIT}\ns_cbranch_scc1 {Lno}")
            if c['pdy']:
                a(f"s_sub_u32 s7, s5, {c['ylo']}\ns_cmp_lt_u32 s7, {c['yhi']-c['ylo']}\ns_cselect_b32 s7, 1, 0\ns_cmp_lt_u32 s11, 128\ns_cselect_b32 s7, s7, 0")
            if c['il']: a(f"s_and_b32 s6, s5, 63\ns_lshl_b32 s6, s6, 15\ns_lshr_b32 s5, s5, 6\ns_lshl_b32 s5, s5, 12\ns_add_u32 s79, s14, s5\ns_add_u32 s79, s79, s6")
            else: a(f"s_lshl_b32 s5, s5, 12\ns_add_u32 s79, s14, s5")
        def item_loads(B):
            if c.get('bw'): a("s_add_u32 s94, s94, 1")
            for n in range(8):
                if n == (c['tkn'] if SA else 0): ticket()
                if c['pdy']:
                    Lk = a.label("Lpy")
                    a(f"s_cmp_eq_u32 s7, 0\ns_cbranch_scc1 {Lk}\ns_waitcnt vmcnt({c['pdy']-1})\n{Lk}:")
                if c['pdx'] and c['pdx'] < c['pd']:
                    Lk = a.label("Lpd")
                    a(f"s_cmp_lt_u32 s11, 128\ns_cbranch_scc1 {Lk}\ns_waitcnt vmcnt({c['pdx']-1})\n{Lk}:")
                a(f"s_waitcnt vmcnt({c['pd']-1})")
                vo, srd = (vK, 68) if n < 4 else (vV, 72)
                k = n % 4
                a(f"buffer_load_dwordx4 {q(B+4*n)}, v{vo}, s[{srd}:{srd+3}], s79 offen offset:{(k//2)*2048+(k%2)*256} {c['nt']}")
        def item_compute(B, last):
            if last:
                woa()
                a("s_waitcnt vmcnt(12)")
            for i in range(2):
                a(f"{MF} {q(D+4*i)}, {q(B+8*i)}, {q(QF)}, 0")
                a(f"{MF} {q(D+4*i)}, {q(B+8*i+4)}, {q(QF+4)}, {q(D+4*i)}")
            for r in range(4):
                for i in range(2):
                    if r == 0: a(f"v_mov_b32_dpp v{TS+i}, v{D+4*i} quad_perm:[0,0,0,0] {DPPF}")
                    else: a(f"v_add_f32_dpp v{TS+i}, v{D+4*i+r}, v{TS+i} quad_perm:[{r},{r},{r},{r}] {DPPF}")
            a(f"v_cvt_pk_bf16_f32 v{TT}, v{TS}, v{TS+1}\nv_lshlrev_b32 v{TS}, 16, v{TT}\nv_and_b32 v{TS+1}, 0xffff0000, v{TT}")
            a(f"v_max_f32 v{TS+2}, v{TS}, v{TS+1}")
            s.allred_rows("v_max_f32", TS+2, TT)
            a(f"v_mul_f32 v{TS+2}, s13, v{TS+2}\nv_max_f32 v{TS+2}, v{TS+2}, v{M}")
            a(f"v_sub_f32 v{F}, v{M}, v{TS+2}\nv_fma_f32 v{TS}, v{TS}, s13, -v{TS+2}\nv_fma_f32 v{TS+1}, v{TS+1}, s13, -v{TS+2}")
            a(f"v_exp_f32 v{F}, v{F}\nv_exp_f32 v{TS}, v{TS}\nv_exp_f32 v{TS+1}, v{TS+1}\nv_mov_b32 v{M}, v{TS+2}")
            a(f"v_fma_f32 v{Lr}, v{Lr}, v{F}, v{TS}")
            a(f"v_mov_b32_dpp v{FA}, v{F} row_newbcast:0 row_mask:0x3 bank_mask:0xf")
            a(f"v_add_f32 v{Lr}, v{Lr}, v{TS+1}")
            a(f"v_cvt_pk_bf16_f32 v{TS}, v{TS}, v{TS}")
            a(f"v_mov_b32_dpp v{FA}, v{F} row_newbcast:8 row_mask:0xc bank_mask:0xf")
            a(f"v_cvt_pk_bf16_f32 v{TS+1}, v{TS+1}, v{TS+1}")
            for k in range(8): a(f"v_mul_f32 v{AC+k}, v{AC+k}, v{FA}")
            for i in range(2):
                for r in range(4): a(f"v_and_b32 v{D+4*i+r}, v{TS+i}, v{2+r}")
            if last: a("s_waitcnt vmcnt(8)")
            for i in range(2):
                for hf in range(2):
                    a(f"{MF} {q(AC+4*hf)}, {q(D+4*i)}, {q(B+16+8*i+4*hf)}, {q(AC+4*hf)}")
        E = Kb+64
        s.epi_addr(E, True)
        a(f"v_bfe_u32 v{E+2}, v0, 4, 4\nv_mul_u32_u24 v{E+2}, {HA_U}, v{E+2}")
        a(f"v_and_b32 v{E}, 15, v0\nv_lshl_add_u32 v{E+2}, v{E}, 4, v{E+2}")
        a(f"s_mul_i32 s12, s9, {16*HA_U}\ns_lshl_b32 s6, s10, 8\ns_add_u32 s12, s12, s6\ns_add_u32 s12, s12, {OFF_HA}")
        a(f"s_lshl_b32 s5, s3, 11\nv_add_u32 v{AD+4}, s5, v6")
        a(f"v_bfe_u32 v{AD+6}, v1, 3, 1\nv_lshlrev_b32 v{AD+6}, 5, v{AD+6}\ns_lshl_b32 s5, s3, 3\nv_add_u32 v{AD+7}, s5, v{AD+6}")
        a(f"v_lshrrev_b32 v{AD+5}, 7, v0\nv_lshlrev_b32 v{AD+5}, 5, v{AD+5}")
        a(f"s_lshl_b32 s10, s10, 7\ns_lshl_b32 s5, s9, 12\ns_add_u32 s10, s10, s5\ns_lshr_b32 s5, s3, 1\ns_lshl_b32 s5, s5, 4\ns_add_u32 s10, s10, s5\ns_add_u32 s10, s10, {OFF_STA}")
        Z = E+4
        a(f"v_mov_b32 v{Z+17}, s76\nv_mov_b32 v{Z+19}, s76\nv_mov_b32 v{Z+21}, s76\nv_mov_b32 v{Z+23}, s76")
        WOA = [Vb+4*t for t in range(8)]
        assert done >= 4
        s.srd(60, 24, 4096*896)
        vWO = Z+24
        a(f"s_and_b32 s97, s11, 127\ns_mul_i32 s96, s97, {32*896}")
        s.proj_wload(WOA, vWO, 60, 96, 3)
        a(f"s_cmp_{'ge' if c['a5y'] else 'lt'}_u32 s11, 128\ns_cselect_b32 s5, 0x4000000, 0\nv_add_u32 v{vWO}, s5, v{vWO}")
        def woa():
            for t in range(8): s.proj_wload_one(t, WOA, vWO, 60, 96)
        Ln0 = a.label("Ln0"); L0 = a.label("Ld0"); Lf0 = a.label("Lf0"); Lf1 = a.label("Lf1")
        d0 = done
        if c['aprio']: a(f"s_setprio {c['aprio']}")
        take(Ln0, ntk)
        item_loads(BUF[0])
        if c['tkn'] > 8: a(f"s_waitcnt vmcnt({c['tkn']})"); ticket()
        a(f"s_waitcnt vmcnt({8 if SA else 9})")
        if c['tkn'] == 8: ticket()
        for i in range(d0, NS): pv(i)
        a(f"{L0}:")
        take(Lf0, 8)
        item_loads(BUF[1])
        if c['tkn'] > 8: a(f"s_waitcnt vmcnt({c['tkn']})"); ticket()
        a(f"s_waitcnt vmcnt({8 if SA else 9})")
        if c['tkn'] == 8: ticket()
        item_compute(BUF[0], False)
        take(Lf1, 8)
        item_loads(BUF[0])
        if c['tkn'] > 8: a(f"s_waitcnt vmcnt({c['tkn']})"); ticket()
        a(f"s_waitcnt vmcnt({8 if SA else 9})")
        if c['tkn'] == 8: ticket()
        item_compute(BUF[1], False)
        a(f"s_branch {L0}")
        a(f"{Ln0}:")
        woa()
        for i in range(d0, NS):
            a(f"s_waitcnt vmcnt({NL-2*(i+1)+8})")
            pv(i)
        a(f"s_branch {Lend}")
        a(f"{Lf0}:")
        item_compute(BUF[0], True)
        a(f"s_branch {Lend}")
        a(f"{Lf1}:")
        item_compute(BUF[1], True)
        a(f"{Lend}:")
        s.allred_rows("v_add_f32", Lr, TT)
        a(f"ds_write_b64 v{AD+7}, {p2(M)} offset:{0x800}")
        s.stamp(4)
        a(f"ds_write_b128 v{AD+4}, {q(AC)} offset:{0x1000}\nds_write_b128 v{AD+4}, {q(AC+4)} offset:{0x1000+1024}")
        a("s_waitcnt lgkmcnt(0)\ns_barrier")
        Y = Z+8
        a(f"ds_read_b128 {q(Y)}, v{AD+5} offset:{0x800}\nds_read_b128 {q(Y+4)}, v{AD+5} offset:{0x810}")
        for i in range(4): a(f"ds_read_b64 {p2(Z+2*i)}, v{E+3} offset:{0x1000+2048*i}")
        a("s_waitcnt lgkmcnt(4)")
        a(f"v_max3_f32 v{Z+20}, v{Y}, v{Y+2}, v{Y+4}\nv_max_f32 v{Z+20}, v{Z+20}, v{Y+6}")
        for k in range(4): a(f"v_sub_f32 v{Y+2*k}, v{Y+2*k}, v{Z+20}")
        for k in range(4): a(f"v_exp_f32 v{Y+2*k}, v{Y+2*k}")
        a("s_waitcnt lgkmcnt(0)")
        for k in range(4):
            op = "v_mul_f32" if k == 0 else "v_fmac_f32"
            a(f"{op} v{Z+16}, v{Y+2*k}, v{Z+2*k}\n{op} v{Z+18}, v{Y+2*k}, v{Z+2*k+1}")
        a(f"buffer_store_dwordx4 {q(Z+16)}, v{E+2}, s[44:47], s12 offen sc1")
        Lx = a.label("Lax")
        a(f"s_bitcmp1_b32 s3, 0\ns_cbranch_scc1 {Lx}")
        for k in range(4):
            op = "v_mul_f32" if k == 0 else "v_fmac_f32"
            a(f"{op} v{Z+22}, v{Y+2*k}, v{Y+2*k+1}")
        s.exec_set(1, 0)
        a(f"buffer_store_dwordx4 {q(Z+20)}, v{vZ}, s[44:47], s10 offen sc1")
        s.exec_all()
        a(f"{Lx}:")
        s.stamp(5)
        a(f"s_cmp_{'ge' if c['a5y'] else 'lt'}_u32 s11, 128\ns_cbranch_scc1 L_afin")
        s.a5(97, Kb, T, WOA)
        a("s_branch L_aend")
        a("L_afin:")
        a("s_sub_u32 s97, 127, s97")
        a("s_cmp_ge_u32 s97, 56\ns_cbranch_scc1 L_aend\ns_cmp_ge_u32 s3, 1\ns_cbranch_scc1 L_aend")
        s.final(97, 0, Kb, T, 10)
        a("L_aend:")
        s.stamp_out()
        a("s_endpgm")
    def build(s):
        a = s.a
        s.prologue()
        s.gy(); s.gx(); s.ga()
        a("L_end:\ns_endpgm")
        body = a.finish()
        import re
        if s.c.get('ldsys'): body = re.sub(r"(buffer_load_dword\S* .* offen(?: offset:\d+)?) sc1", r"\1 sc0 sc1", body)
        if s.c.get('stsys'): body = re.sub(r"(buffer_store_dword\S* .* offen(?: offset:\d+)?) sc1", r"\1 sc0 sc1", body)
        if s.c.get('stnt'): body = re.sub(r"(buffer_store_dword\S* .* offen(?: offset:\d+)?) sc1", r"\1 sc1 nt", body)
        if s.c.get('ldnt'): body = re.sub(r"(buffer_load_dword\S* .* offen(?: offset:\d+)?) sc1", r"\1 sc1 nt", body)
        hdr = open("concat_heads__gqa_block_cached__compressed_kv_cla__decode.s.ref").read().split("; @launch")[0]
        out = hdr + "; @launch grid=(512,1,1) block=(256,1,1) lds=81920\n"
        out += """; Written with my own generator script. One persistent launch, 512 workgroups of 4 waves, two per CU, all co-resident.
;   wg   0..127 (Y): q_B = x_B*w_q (half rows x 64 cols), q_abs = q_B*w_uk^T (absorbed key projection), later ctx = softmax-merged latent * w_uv
;   wg 128..255 (X): 64 latent rows each: scores q_abs*c_kv^T, local softmax (true max), P*c_kv, later out_B partials through w_o and the last sum
;   wg 256..511 (A): q_A = x_A*wq, GQA flash-decoding over a fixed share plus 8-key work items drawn from counters, then wo and the last sum
; (chosen once per launch through d_debug), by a cleared-then-filled sentinel, or by a checksum that mixes the tag in.
"""
        out += f'.amdgcn_target "amdgcn-amd-amdhsa--gfx950"\n.text\n.globl {KN}\n.p2align 8\n.type {KN},@function\n{KN}:\n'
        out += body
        out += f""".section .rodata,"a"
.p2align 6
.amdhsa_kernel {KN}
  .amdhsa_next_free_vgpr 256
  .amdhsa_next_free_sgpr 102
  .amdhsa_accum_offset 256
  .amdhsa_group_segment_fixed_size 0
  .amdhsa_kernarg_size 112
  .amdhsa_user_sgpr_count 2
  .amdhsa_user_sgpr_kernarg_segment_ptr 1
  .amdhsa_system_sgpr_workgroup_id_x 1
.end_amdhsa_kernel
"""
        return out
if __name__ == "__main__":
    from build import build
    name = sys.argv[1]
    cfg = {}
    for kv in sys.argv[2:]:
        k, v = kv.split("=")
        cfg[k] = v if k == "nt" else int(v)
    open(name, "w").write(Gen2(**cfg).build())
    print(build(name))
```

```python
import sys, math, struct
from asmlib import Asm
from gen import Gen, q, p2, f32, DPPF, KN, CEXP
OFF_QB, OFF_QA, OFF_QABS, OFF_CLR, OFF_ST3, OFF_STA, OFF_H4, OFF_HA, OFF_FIN, OFF_H3 = \
    0x0, 0x10000, 0x20000, 0x2c000, 0x30000, 0x38000, 0x40000, 0x80000, 0x200000, 0x400000
FIN_CG = 8192+128
FS = 4096+128; FIN_AB = 128*FS
QS = 2048+128
HA_U = 8192+128
H3_C = 32768+256
OFF_STAMP = 0x8000000
OFF_CHK = 0x1A0000
ROW = 2080; SLOT = 16*ROW
import gen as G1
G1.FIN_CG = FIN_CG
MF = "v_mfma_f32_16x16x32_bf16"

class Gen2(Gen):
    def __init__(s, **cfg):
        s.c = dict(stamp=False, nt="nt", sleep=2, timeout=100000, rnd=True, pa=8, pb=8, prio=2, prioa=0, n1=7, pu=8, px=8, pax=4, nax=16, nay=4, p1x=1, osc=0, p1r=0, gmix=1, x1k=3, qat=4, x1w=1, x1s=6, x1n=4, ncas=8, eat=3, eglc=0, vq=4, npre=0, a5y=1, dwb=1, pdy=0, ylo=0, yhi=192, aprio=0, ystop=0, pw=0, ton=3, tok=3, tfn=3, tfk=3, spk=3, dwo=1, qf=0, spq=0, sp=1, sptime=2000, spsleep=2, spn=3, il=0, sat=1, tkn=6, xx=0, pdx=0, c1=0, ssleep=2, ns=10, tka=3, pd=9, qsleep=6, px0=4, v1=8, fsleep=2, pf=0, pa0=1, na0=4, na1=6, lead=10, h3d=0)
        s.c.update(cfg)
        s.a = Asm()
    def stamp_out(s):
        if not s.c['stamp']: return
        a = s.a
        a("s_mov_b64 exec, -1\nv_mov_b32 v8, 0")
        for k in range(12): a(f"v_writelane_b32 v8, s{84+k}, {k}")
        a("v_lshlrev_b32 v9, 2, v1")
        a("s_lshl_b32 s4, s2, 2\ns_add_u32 s4, s4, s3\ns_lshl_b32 s4, s4, 6")
        a(f"s_add_u32 s4, s4, {OFF_STAMP}")
        a("s_mov_b32 exec_lo, 0xffff\ns_mov_b32 exec_hi, 0")
        a("buffer_store_dword v8, v9, s[44:47], s4 offen")
    def prologue(s):
        a = s.a
        a("s_cmp_ge_u32 s2, 512\ns_cbranch_scc1 L_end")
        a("s_load_dwordx16 s[16:31], s[0:1], 0\ns_load_dwordx8 s[32:39], s[0:1], 64\ns_load_dwordx4 s[40:43], s[0:1], 96")
        a("s_memrealtime s[4:5]")
        a("v_lshrrev_b32 v7, 6, v0\nv_and_b32 v1, 63, v0")
        a("v_readfirstlane_b32 s3, v7\nv_lshlrev_b32 v6, 4, v1")
        if s.c['xx']:
            a("s_lshr_b32 s6, s2, 6\ns_cmp_eq_u32 s6, 3\ns_cselect_b32 s7, 192, 0\ns_add_u32 s2, s2, s7\ns_cmp_eq_u32 s6, 6\ns_cselect_b32 s7, 192, 0\ns_sub_u32 s2, s2, s7")
        if s.c['pf']:
            a(f"s_cmp_lt_u32 s2, {512-s.c['pf']}\ns_cbranch_scc1 L_nopf")
            a("s_getpc_b64 s[6:7]\ns_and_b32 s6, s6, 0xffffff00")
            a(f"v_lshlrev_b32 v9, 7, v0\nv_min_u32 v9, L_end-{KN}, v9\nglobal_load_dword v200, v9, s[6:7]")
            a("L_nopf:")
        a("s_cmp_ge_u32 s2, 256\ns_cbranch_scc1 L_A")
        if s.c['prio']: a(f"s_setprio {s.c['prio']}")
        a("s_cmp_ge_u32 s2, 128\ns_cbranch_scc1 L_X")
    def kwait(s):
        a = s.a
        a("s_waitcnt lgkmcnt(0)")
        a("s_or_b32 s77, s4, 1")
        if s.c['stamp']:
            for k in range(12): a(f"s_mov_b32 s{84+k}, 0")
            a("s_mov_b32 s84, s4")
    def common2(s, t):
        a = s.a
        a(f"v_and_b32 v{t}, 1, v1\nv_lshlrev_b32 v{t}, 4, v{t}\nv_mov_b32 v{t+1}, 0xffff\nv_lshlrev_b32 v{t}, v{t}, v{t+1}")
        a(f"v_bfe_u32 v{t+1}, v1, 1, 2")
        for r in range(4):
            a(f"v_cmp_eq_u32 vcc, {r}, v{t+1}\nv_cndmask_b32 v{2+r}, 0, v{t}, vcc")
    def get_epoch(s, vE, vZ):
        a = s.a
        L = a.label("Lge"); Ld = a.label("Lged")
        a(f"s_mov_b32 s78, {s.c['timeout']}")
        a(f"{L}:")
        a(f"v_readfirstlane_b32 s76, v{vE}")
        a(f"s_cmp_lg_u32 s76, 0\ns_cbranch_scc1 {Ld}")
        a(f"buffer_load_dword v{vE}, v{vZ}, s[48:51], 0 offen sc1\ns_waitcnt vmcnt(0)")
        a(f"s_sub_u32 s78, s78, 1\ns_cmp_lg_u32 s78, 0\ns_cbranch_scc1 {L}")
        a(f"{Ld}:")
    def check_tags(s, groups, t0, t1):
        if len(groups) == 1 and groups[0][0][0] == 's':
            a = s.a; exp, tags = groups[0]
            assert len(tags) % 2 == 0
            acc = []
            for k in range(0, len(tags), 2):
                d = (t0, t1)[(k//2) % 2]
                if k < 4: a(f"v_bitop3_b32 v{d}, v{tags[k]}, v{tags[k+1]}, {exp} bitop3:0x7e")
                else:
                    a(f"v_bitop3_b32 v{tags[k]}, v{tags[k]}, v{tags[k+1]}, {exp} bitop3:0x7e"); acc.append(tags[k])
            if len(tags) > 2: acc = [t1] + acc
            for k in range(0, len(acc), 2):
                y = acc[k+1] if k+1 < len(acc) else acc[k]
                a(f"v_or3_b32 v{t0}, v{t0}, v{acc[k]}, v{y}")
            a(f"v_cmp_ne_u32 vcc, 0, v{t0}\ns_cmp_eq_u64 vcc, 0")
        else:
            Gen.check_tags(s, groups, t0, t1)
    def spoll(s, soff, extra, n=1, stride=0, need=None):
        if not n: return
        if not s.c['sp']: return
        a = s.a
        L = a.label("Lsp"); Ld = a.label("Lspd")
        a(f"s_mov_b32 s78, {s.c['sptime']}")
        for k in range(n): a(f"s_add_u32 s{64+k}, s{soff}, {extra+4+k*stride}")
        a(f"{L}:")
        for k in range(n): a(f"s_load_dword s{68+k}, s[42:43], s{64+k} glc")
        a("s_waitcnt lgkmcnt(0)")
        a("s_mov_b32 s83, 0")
        for k in range(n): a(f"s_cmp_eq_u32 s{68+k}, s76\ns_addc_u32 s83, s83, 0")
        a(f"s_cmp_ge_u32 s83, {need or n}\ns_cbranch_scc1 {Ld}")
        a(f"s_sleep {s.c['spsleep']}\ns_sub_u32 s78, s78, 1\ns_cmp_lg_u32 s78, 0\ns_cbranch_scc1 {L}")
        a(f"{Ld}:")
    def poll_sent(s, issue, regs, t0, sleep=None, pre_issued=False):
        a = s.a
        L = a.label("Lps"); Ld = a.label("Lpsd")
        a(f"s_mov_b32 s78, {s.c['timeout']}")
        Lw = a.label("Lpsw")
        if pre_issued: a(f"s_branch {Lw}")
        a(f"{L}:")
        issue()
        a(f"{Lw}:")
        a("s_waitcnt vmcnt(0)")
        a(f"v_max3_u32 v{t0}, v{regs[0]}, v{regs[1]}, v{regs[2]}")
        rest = regs[3:]
        for i in range(0, len(rest), 2):
            y = rest[i+1] if i+1 < len(rest) else rest[i]
            a(f"v_max3_u32 v{t0}, v{t0}, v{rest[i]}, v{y}")
        a(f"v_cmp_eq_u32 vcc, -1, v{t0}")
        a(f"s_cbranch_vccz {Ld}")
        sl = s.c['sleep'] if sleep is None else sleep
        if sl: a(f"s_sleep {sl}")
        a(f"s_sub_u32 s78, s78, 1\ns_cmp_lg_u32 s78, 0\ns_cbranch_scc1 {L}")
        a(f"{Ld}:")
    def gather_q(s, T, soff, lds, n, between=None, nb=0, sleep=1):
        a = s.a
        a(f"s_add_u32 s7, s{soff}, 0x8000")
        def issue():
            for k in range(n):
                a(f"buffer_load_dwordx4 {q(T+8*k)}, v6, s[44:47], s{soff} offen offset:{1024*k} sc1")
                a(f"buffer_load_dwordx4 {q(T+8*k+4)}, v6, s[44:47], s7 offen offset:{1024*k} sc1")
        grp = [("s76", [T+4*k+j for k in range(2*n) for j in (1, 3)])]
        if between:
            Lok = a.label("Lgq")
            issue(); between()
            a(f"s_waitcnt vmcnt({nb})")
            s.check_tags(grp, T+8*n, T+8*n+1)
            a(f"s_cbranch_scc1 {Lok}")
            s.poll(issue, grp, T+8*n, T+8*n+1, sleep=sleep)
            a(f"{Lok}:")
        else:
            s.poll(issue, grp, T+8*n, T+8*n+1, sleep=sleep)
        for k in range(n):
            b = T+8*k
            a(f"v_add_f32 v{b}, v{b}, v{b+4}\nv_add_f32 v{b+2}, v{b+2}, v{b+6}\nv_cvt_pk_bf16_f32 v{b}, v{b}, v{b+2}")
            a(f"ds_write_b32 v{lds}, v{b} offset:{256*k}")
        a("s_waitcnt lgkmcnt(0)")
    def epi_addr(s, E, two_heads):
        a = s.a
        a(f"v_bfe_u32 v{E+3}, v0, 6, 1\nv_lshlrev_b32 v{E+3}, 10, v{E+3}")
        if two_heads: a(f"v_bfe_u32 v{E+1}, v0, 7, 1\nv_lshl_add_u32 v{E+3}, v{E+1}, 9, v{E+3}")
        a(f"v_bfe_u32 v{E+1}, v0, 1, 1\nv_lshl_add_u32 v{E+3}, v{E+1}, 8, v{E+3}")
        a(f"v_bfe_u32 v{E+1}, v0, 2, 4\nv_lshl_add_u32 v{E+3}, v{E+1}, 4, v{E+3}")
        a(f"v_and_b32 v{E+1}, 1, v0\nv_lshl_add_u32 v{E+3}, v{E+1}, 3, v{E+3}")
    def p1_setup(s, sI, T, V):
        a = s.a
        vX, vW, vSA, vSB, vLW, vRD, vPB = range(V, V+7)
        if s.c['p1r']:
            a(f"s_lshr_b32 s101, s{sI}, 6\ns_add_u32 s100, s{sI}, s101\ns_and_b32 s100, s100, 7\ns_lshl_b32 s100, s100, 3\ns_bfe_u32 s6, s{sI}, 0x30003\ns_add_u32 s100, s100, s6")
        else:
            a(f"s_and_b32 s100, s{sI}, 7\ns_lshl_b32 s100, s100, 3\ns_bfe_u32 s6, s{sI}, 0x30003\ns_add_u32 s100, s100, s6\ns_lshr_b32 s101, s{sI}, 6")
        a("s_mul_i32 s96, s101, 224\ns_mul_i32 s6, s3, 56\ns_add_u32 s96, s96, s6\ns_lshl_b32 s97, s96, 1")
        a("s_lshl_b32 s96, s96, 13\ns_lshl_b32 s6, s100, 7\ns_add_u32 s96, s96, s6")
        a(f"v_lshrrev_b32 v{T}, 3, v1\nv_mul_u32_u24 v{vX}, 14, v{T}\nv_and_b32 v{vX}, 0x7c, v{vX}")
        a(f"v_mul_u32_u24 v{vW}, {7*8192}, v{T}\nv_and_b32 v{T+1}, 7, v1\nv_lshl_add_u32 v{vW}, v{T+1}, 4, v{vW}")
    def p1_loads(s, X, W, srdX, srdW, V):
        a = s.a
        a(f"buffer_load_dwordx4 {q(X)}, v{V}, s[{srdX}:{srdX+3}], s97 offen")
        for i in range(7):
            a(f"s_add_u32 s79, s96, {i*8192}")
            a(f"buffer_load_dwordx4 {q(W+4*i)}, v{V+1}, s[{srdW}:{srdW+3}], s79 offen {s.c['nt']}")
    def p1_setup2(s, T, V):
        a = s.a
        vX, vW, vSA, vSB, vLW, vRD, vPB = range(V, V+7)
        a(f"s_lshl_b32 s100, s100, 9\ns_lshl_b32 s101, s101, 15\ns_add_u32 s100, s100, s101")
        a(f"v_bfe_u32 v{T}, v1, 3, 1\nv_cmp_eq_u32 vcc, 1, v{T}")
        a(f"v_mov_b32 v{T+8}, 0x01000100\nv_mov_b32 v{T+9}, 0x03020302\nv_mov_b32 v{T+10}, 0x05040504")
        a(f"v_cndmask_b32 v{vSA}, v{T+8}, v{T+9}, vcc\nv_cndmask_b32 v{vSB}, v{T+9}, v{T+10}, vcc")
        a(f"s_lshl_b32 s5, s3, 10\nv_add_u32 v{vLW}, s5, v6")
        a(f"v_and_b32 v{T+3}, 3, v1")
        a(f"v_lshrrev_b32 v{vRD}, 5, v1\nv_lshlrev_b32 v{vRD}, 11, v{vRD}\nv_bfe_u32 v{T}, v1, 1, 1\nv_lshl_add_u32 v{vRD}, v{T}, 8, v{vRD}")
        a(f"v_bfe_u32 v{T}, v1, 2, 3\nv_lshl_add_u32 v{vRD}, v{T}, 4, v{vRD}\nv_and_b32 v{T}, 1, v1\nv_lshl_add_u32 v{vRD}, v{T}, 3, v{vRD}")
    def p1_compute(s, X, W, T, V, lds, off, flag_vZ=None, hook=None):
        a = s.a
        vX, vW, vSA, vSB, vLW, vRD, vPB = range(V, V+7)
        AB, AC = T, T+12
        for i in range(7):
            ab = AB + (i % 2)*4
            k = i//2
            if i % 2 == 0: a(f"v_perm_b32 v{AB+8}, v{X+k}, v{X+k}, v{vSA}")
            else: a(f"v_perm_b32 v{AB+8}, v{X+k+1}, v{X+k}, v{vSB}")
            for r in range(4): a(f"v_and_b32 v{ab+r}, v{AB+8}, v{2+r}")
            a(f"{MF} {q(AC)}, {q(ab)}, {q(W+4*i)}, {'0' if i == 0 else q(AC)}")
        if hook: hook()
        a(f"ds_write_b128 v{vLW}, {q(AC)} offset:{lds}")
        a("s_waitcnt lgkmcnt(0)\ns_barrier")
        L = a.label("Lred")
        a(f"s_cmp_lg_u32 s3, 3\ns_cbranch_scc1 {L}")
        R = T
        for k in range(4): a(f"ds_read_b64 {p2(R+2*k)}, v{vRD} offset:{lds + (k//2)*1024 + (k%2)*640}")
        a(f"s_add_u32 s5, s100, {off}")
        a(f"v_mov_b32 v{R+9}, s76\nv_mov_b32 v{R+11}, s76")
        a("s_waitcnt lgkmcnt(0)")
        a(f"v_pk_add_f32 {p2(R)}, {p2(R)}, {p2(R+2)}\nv_pk_add_f32 {p2(R+4)}, {p2(R+4)}, {p2(R+6)}\nv_pk_add_f32 {p2(R)}, {p2(R)}, {p2(R+4)}")
        a(f"v_mov_b64 {p2(R+2)}, {p2(R)}")
        a(f"v_permlane32_swap_b32 v{R}, v{R+2}\nv_permlane32_swap_b32 v{R+1}, v{R+3}")
        a(f"v_add_f32 v{R+8}, v{R}, v{R+2}\nv_add_f32 v{R+10}, v{R+1}, v{R+3}")
        s.exec_set(0xffffffff, 0)
        a(f"buffer_store_dwordx4 {q(R+8)}, v6, s[44:47], s5 offen sc1")
        if flag_vZ is not None:
            a(f"s_lshl_b32 s5, s2, 2\ns_add_u32 s5, s5, {OFF_CLR+0x1000}")
            s.exec_set(1, 0)
            a(f"buffer_store_dword v{R+9}, v{flag_vZ}, s[44:47], s5 offen sc1")
        s.exec_all()
        a(f"{L}:")
    def proj_tail(s, A0, W, T, scb, sfin, scale=None):
        a = s.a
        a(f"v_permlane32_swap_b32 v{A0}, v{A0+1}\nv_add_f32 v{A0}, v{A0}, v{A0+1}")
        a(f"v_mov_b32 v{A0+1}, v{A0}\nv_permlane16_swap_b32 v{A0}, v{A0+1}\nv_add_f32 v{A0}, v{A0}, v{A0+1}")
        if scale is not None: a(f"v_mul_f32 v{A0}, v{A0}, v{scale}")
        a(f"v_cvt_pk_bf16_f32 v{A0}, v{A0}, v{A0}")
        a(f"v_mov_b32 v{A0+1}, v{A0}")
        a(f"v_mov_b32_dpp v{A0}, v{A0+1} row_ror:8 row_mask:0xa bank_mask:0xf")
        AC = T+8; S = T+12
        for g in range(8):
            ab = T + (g % 2)*4
            for r in range(4): a(f"v_and_b32_dpp v{ab+r}, v{A0}, v{2+r} row_newbcast:{g} {DPPF}")
            a(f"{MF} {q(AC)}, {q(ab)}, {q(W[g])}, {'0' if g == 0 else q(AC)}")
        a(f"v_cmp_gt_u32 vcc, 32, v1")
        a(f"v_mov_b32 v{S+1}, s76\nv_mov_b32 v{S+3}, s76")
        a("s_mov_b32 exec_lo, s82\ns_mov_b32 exec_hi, s82")
        a(f"v_cndmask_b32 v{S}, v{AC+2}, v{AC}, vcc\nv_cndmask_b32 v{S+2}, v{AC+3}, v{AC+1}, vcc")
        a(f"buffer_store_dwordx4 {q(S)}, v6, s[44:47], s{sfin} offen sc1")
        s.exec_all()
    def a5(s, sU, R, T, WOA):
        a = s.a; c = s.c
        OG = R; ST = R+8; Z = R+16
        a(f"s_lshr_b32 s12, s{sU}, 3")
        a(f"v_lshrrev_b32 v{T+22}, 4, v1\nv_lshlrev_b32 v{T+22}, 7, v{T+22}")
        a(f"s_lshr_b32 s8, s12, 1\ns_lshl_b32 s8, s8, 12\ns_and_b32 s6, s12, 1\ns_lshl_b32 s6, s6, 4\ns_add_u32 s8, s8, s6\ns_lshl_b32 s6, s3, 10\ns_add_u32 s8, s8, s6\ns_add_u32 s8, s8, {OFF_STA}")
        a(f"s_mul_i32 s6, s{sU}, {HA_U}\ns_lshl_b32 s5, s3, 11\ns_add_u32 s6, s6, s5\ns_add_u32 s6, s6, {OFF_HA}")
        a(f"v_lshlrev_b32 v{T+20}, 4, v0")
        a(f"s_mul_i32 s15, s{sU}, {FS}\ns_lshl_b32 s5, s3, 10\ns_add_u32 s15, s15, s5\ns_add_u32 s15, s15, {OFF_FIN}")
        def issue_o():
            a(f"buffer_load_dwordx4 {q(OG)}, v6, s[44:47], s6 offen sc1\nbuffer_load_dwordx4 {q(OG+4)}, v6, s[44:47], s6 offen offset:1024 sc1")
            a(f"buffer_load_dwordx4 {q(ST)}, v{T+22}, s[44:47], s8 offen sc1\nbuffer_load_dwordx4 {q(ST+4)}, v{T+22}, s[44:47], s8 offen offset:512 sc1")
        s.spoll(6, 0, c['ton'], 256*2, c['tok'])
        s.poll(issue_o, [("s76", [OG+k for k in range(1, 16, 2)])], Z, Z+1, sleep=c['fsleep'])
        s.stamp(7)
        a(f"v_max_f32 v{Z+2}, v{ST}, v{ST+4}")
        a(f"v_sub_f32 v{ST}, v{ST}, v{Z+2}\nv_sub_f32 v{ST+4}, v{ST+4}, v{Z+2}\nv_exp_f32 v{ST}, v{ST}\nv_exp_f32 v{ST+4}, v{ST+4}")
        a(f"v_mul_f32 v{Z}, v{ST}, v{OG}\nv_mul_f32 v{Z+1}, v{ST}, v{OG+2}\nv_mul_f32 v{Z+3}, v{ST}, v{ST+2}")
        a(f"v_fmac_f32 v{Z}, v{ST+4}, v{OG+4}\nv_fmac_f32 v{Z+1}, v{ST+4}, v{OG+6}\nv_fmac_f32 v{Z+3}, v{ST+4}, v{ST+6}")
        a(f"ds_write_b128 v{T+20}, {q(Z)} offset:{0x6000}")
        a("s_waitcnt lgkmcnt(0)\ns_barrier")
        s.stamp(8)
        for k in range(4): a(f"ds_read_b128 {q(OG+4*k)}, v6 offset:{0x6000+1024*k}")
        a("s_waitcnt lgkmcnt(0)")
        a(f"v_max3_f32 v{Z+2}, v{OG+2}, v{OG+6}, v{OG+10}\nv_max_f32 v{Z+2}, v{Z+2}, v{OG+14}")
        s.allred_rows("v_max_f32", Z+2, Z+4)
        for k in range(4): a(f"v_sub_f32 v{OG+4*k+2}, v{OG+4*k+2}, v{Z+2}")
        for k in range(4): a(f"v_exp_f32 v{OG+4*k+2}, v{OG+4*k+2}")
        for k in range(4):
            op = "v_mul_f32" if k == 0 else "v_fmac_f32"
            a(f"{op} v{Z+3}, v{OG+4*k+2}, v{OG+4*k+3}\n{op} v{Z}, v{OG+4*k+2}, v{OG+4*k}\n{op} v{Z+1}, v{OG+4*k+2}, v{OG+4*k+1}")
        s.allred_rows("v_add_f32", Z+3, Z+4)
        a(f"v_rcp_f32 v{Z+3}, v{Z+3}")
        s.proj_tail(Z, WOA, T+24, 3, 15, scale=Z+3)
        s.stamp(9)
    def final(s, sJ, ab, F, T, stp):
        a = s.a; c = s.c
        s.srd(52, 38, 1792)
        a(f"s_mov_b32 s12, {ab}\ns_mov_b32 s13, s{sJ}")
        a("s_sub_u32 s5, s13, 48\ns_lshr_b32 s6, s5, 1\ns_lshl_b32 s6, s6, 2\ns_and_b32 s5, s5, 1\ns_add_u32 s6, s6, s5\ns_add_u32 s6, s6, 48")
        a("s_cmp_ge_u32 s13, 48\ns_cselect_b32 s13, s6, s13")
        a(f"s_mul_i32 s6, s12, {FIN_AB}\ns_lshl_b32 s5, s13, 6\ns_add_u32 s6, s6, s5\ns_add_u32 s6, s6, {OFF_FIN}")
        a(f"v_lshrrev_b32 v{T+9}, 2, v1\nv_mul_u32_u24 v{T+9}, {FS}, v{T+9}\nv_and_b32 v{T+10}, 3, v1\nv_lshl_add_u32 v{T+9}, v{T+10}, 4, v{T+9}")
        def issue_f():
            for i in range(8):
                a(f"s_add_u32 s79, s6, {i*16*FS}")
                a(f"buffer_load_dwordx4 {q(F+4*i)}, v{T+9}, s[44:47], s79 offen sc1")
        a("s_mul_i32 s15, s12, 896\ns_lshr_b32 s5, s13, 4\ns_lshl_b32 s5, s5, 8\ns_add_u32 s15, s15, s5")
        a("s_and_b32 s5, s13, 3\ns_lshl_b32 s5, s5, 6\ns_add_u32 s15, s15, s5")
        a("s_bfe_u32 s5, s13, 0x10002\ns_lshl_b32 s5, s5, 3\ns_add_u32 s15, s15, s5")
        a("s_bfe_u32 s5, s13, 0x10003\ns_lshl_b32 s5, s5, 2\ns_add_u32 s15, s15, s5")
        a(f"v_lshlrev_b32 v{T+8}, 2, v1")
        s.spoll(6, 0, c['tfn'], FS*37, c['tfk'])
        s.poll(issue_f, [("s76", [F+4*i+k for i in range(8) for k in (1, 3)])], T+4, T+5, sleep=c['fsleep'])
        s.stamp(stp)
        dl = c.get('dlb' if ab else 'dla')
        if dl:
            Lsp = a.label("Ldl")
            a(f"s_memrealtime s[98:99]\ns_waitcnt lgkmcnt(0)\ns_mov_b32 s83, s98\n{Lsp}:\ns_memrealtime s[98:99]\ns_waitcnt lgkmcnt(0)\ns_sub_u32 s5, s98, s83\ns_cmp_lt_u32 s5, {dl}\ns_cbranch_scc1 {Lsp}")
        for st in (16, 8, 4):
            for i in range(0, st, 4):
                a(f"v_add_f32 v{F+i}, v{F+i}, v{F+st+i}\nv_add_f32 v{F+i+2}, v{F+i+2}, v{F+st+i+2}")
        for m in ("row_ror:8", "row_ror:4"):
            for k in (0, 2): a(f"v_add_f32_dpp v{F+k}, v{F+k}, v{F+k} {m} {DPPF}")
        for k in (0, 2): s.allred_rows("v_add_f32", F+k, F+k+1)
        a(f"v_cvt_pk_bf16_f32 v{F}, v{F}, v{F+2}")
        if c.get('thr'):
            a(f"s_memrealtime s[98:99]\ns_waitcnt lgkmcnt(0)\ns_sub_u32 s5, s98, s76\ns_cmp_gt_u32 s5, {c['thr']}\ns_cselect_b32 s5, 0x7fc07fc0, 0\nv_or_b32 v{F}, s5, v{F}")
        if c.get('spin'):
            Lsp = a.label("Lspin")
            a(f"{Lsp}:\ns_memrealtime s[98:99]\ns_waitcnt lgkmcnt(0)\ns_sub_u32 s5, s98, s76\ns_cmp_lt_u32 s5, {c['spin']}\ns_cbranch_scc1 {Lsp}")
        if c.get('enc'):
            a("s_memrealtime s[98:99]\ns_waitcnt lgkmcnt(0)\ns_sub_u32 s5, s98, s76")
            a(f"v_mov_b32 v{F+4}, s5\nv_lshrrev_b32 v{F+4}, v{T+8}, v{F+4}")
            a(f"v_and_b32 v{F+5}, 3, v{F+4}\nv_bfe_u32 v{F+4}, v{F+4}, 2, 2\nv_lshl_or_b32 v{F+5}, v{F+4}, 16, v{F+5}")
            a(f"v_and_b32 v{F}, 0xfffcfffc, v{F}\nv_or_b32 v{F}, v{F}, v{F+5}")
        s.exec_set(0xf, 0)
        a(f"buffer_store_dword v{F}, v6, s[52:55], s15 offen {['', 'sc1', 'sc0 sc1', 'nt'][c['osc']]}")
        s.exec_all()
        s.stamp(stp+1)
    def gy(s):
        a = s.a; c = s.c; nt = c['nt']; pb = c['pb']
        XB, WB, UK, UV, T = 8, 16, 72, 136, 200
        PVv = T+40
        vLW = PVv+4
        vZ, vU, vQ = T+47, T+50, T+51
        vE = T+48
        s.p1_setup(2, T, PVv)
        a(f"v_mov_b32 v{vZ}, 0\nv_mov_b32 v{vE+1}, 0")
        a("s_lshr_b32 s12, s2, 3\ns_and_b32 s13, s2, 7")
        if c['qf']:
            a(f"s_lshl_b32 s14, s13, 12\ns_lshl_b32 s6, s12, 4\ns_add_u32 s14, s14, s6\ns_add_u32 s14, s14, {OFF_QABS}")
            a(f"v_lshlrev_b32 v{T+2}, 8, v1")
        else:
            a(f"s_lshl_b32 s14, s13, 8\ns_mul_i32 s6, s12, {QS}\ns_add_u32 s14, s14, s6\ns_add_u32 s14, s14, {OFF_QABS}")
        for r in range(4): a(f"v_mov_b32 v{T+4+r}, -1")
        s.kwait()
        s.srd(44, 42, 0x10000000); s.srd(48, 40, 256)
        s.srd(52, 26, 896); s.srd(56, 30, 448*8192)
        L = a.label("Le0")
        a(f"s_cmp_lg_u32 s3, 3\ns_cbranch_scc1 {L}")
        if c['ncas']:
            Lq = a.label("Lcas")
            a(f"s_cmp_ge_u32 s2, {c['ncas']}\ns_cbranch_scc1 {Lq}")
            a(f"s_mov_b32 s80, s77\ns_mov_b32 s81, 0\ns_atomic_cmpswap s[80:81], s[40:41], 0 glc\n{Lq}:")
        else:
            a(f"v_mov_b32 v{vE}, s77")
            s.exec_set(1, 0)
            a(f"buffer_atomic_cmpswap {p2(vE)}, v{vZ}, s[48:51], 0 offen sc0 sc1")
        s.exec_set(0xffff, 0)
        a(f"buffer_store_dwordx4 {q(T+4)}, v{T+2 if c['qf'] else 6}, s[44:47], s14 offen sc1")
        s.exec_all()
        a(f"{L}:")
        if c.get('fi'): s.stamp(9)
        s.p1_loads(XB, WB, 52, 56, PVv)
        if c.get('fi'): s.stamp(10)
        s.srd(68, 32, 1024*8192); s.srd(72, 34, 1024*8192)
        a(f"v_lshrrev_b32 v{T+2}, 4, v1\nv_lshrrev_b32 v{vQ}, 4, v0\nv_lshlrev_b32 v{vQ}, {8 if c['qf'] else 4}, v{vQ}")
        a(f"v_bfe_u32 v{vU}, v1, 2, 2\nv_lshlrev_b32 v{vU}, 16, v{vU}\nv_lshl_add_u32 v{vU}, v{T+2}, 6, v{vU}")
        a(f"v_and_b32 v{T+3}, 3, v1\nv_lshl_add_u32 v{vU}, v{T+3}, 4, v{vU}")
        a("s_lshl_b32 s15, s13, 20\ns_lshl_b32 s5, s3, 18\ns_add_u32 s15, s15, s5\ns_lshl_b32 s5, s12, 9\ns_add_u32 s15, s15, s5")
        s.common2(T+12)
        s.p1_setup2(T, PVv)
        def ukload(n, pace):
            i, hf = n//2, n % 2
            a(f"s_add_u32 s79, s15, {i*8192}")
            if pace: a(f"s_waitcnt vmcnt({pace-1})")
            a(f"buffer_load_dwordx4 {q(UK+4*n)}, v{vU}, s[68:71], s79 offen offset:{hf*256} {nt}")
        n1 = c['n1']
        for n in range(n1):
            ukload(n, pb)
            if c['ncas'] and n == c['eat']:
                Lq = a.label("Lel")
                a(f"s_cmp_lg_u32 s3, 3\ns_cbranch_scc1 {Lq}\ns_load_dword s76, s[40:41], 0{' glc' if c['eglc'] else ''}\n{Lq}:")
        a(f"s_waitcnt vmcnt({n1})")
        s.stamp(1)
        def ehook():
            L = a.label("Le1"); Lo = a.label("Leo")
            a(f"s_cmp_lg_u32 s3, 3\ns_cbranch_scc1 {L}")
            a(f"s_waitcnt lgkmcnt(0)\ns_cmp_lg_u32 s76, 0\ns_cbranch_scc1 {Lo}")
            a(f"v_mov_b32 v{vE}, 0")
            s.get_epoch(vE, vZ)
            a(f"{Lo}:")
            a(f"v_mov_b32 v{vE}, s76\nds_write_b32 v{vZ}, v{vE} offset:{0x2800}")
            a(f"{L}:")
        s.p1_compute(XB, WB, T, PVv, 0, OFF_QB, vZ, ehook)
        a(f"ds_read_b32 v{vE}, v{vZ} offset:{0x2800}")
        s.stamp(2)
        for n in range(n1, 16): ukload(n, pb)
        a(f"s_waitcnt lgkmcnt(0)\nv_readfirstlane_b32 s76, v{vE}")
        tsave = c['timeout']
        if c.get('nob'): c['timeout'] = 1
        L = a.label("Lqb")
        a(f"s_cmp_ge_u32 s3, 2\ns_cbranch_scc1 {L}")
        a(f"s_lshl_b32 s6, s12, 11\ns_lshl_b32 s5, s3, 10\ns_add_u32 s6, s6, s5\ns_add_u32 s6, s6, {OFF_QB}")
        a(f"v_lshlrev_b32 v{T+20}, 2, v0\nv_add_u32 v{T+20}, 0x2000, v{T+20}")
        s.gather_q(T, 6, T+20, 1)
        a(f"{L}:")
        a(f"v_lshrrev_b32 v{T+21}, 4, v1\nv_lshlrev_b32 v{T+21}, 6, v{T+21}\nv_and_b32 v{T+22}, 3, v1\nv_lshl_add_u32 v{T+21}, v{T+22}, 4, v{T+21}")
        a("s_waitcnt vmcnt(0)\ns_barrier")
        s.stamp(3)
        QF = T; D = WB
        a(f"ds_read_b128 {q(QF)}, v{T+21} offset:{0x2000}\nds_read_b128 {q(QF+4)}, v{T+21} offset:{0x2000+256}")
        a("s_waitcnt lgkmcnt(0)")
        for i in range(8):
            a(f"{MF} {q(D+4*i)}, {q(UK+8*i)}, {q(QF)}, 0")
            a(f"{MF} {q(D+4*i)}, {q(UK+8*i+4)}, {q(QF+4)}, {q(D+4*i)}")
        R = T+8
        for r in range(4):
            for i in range(8):
                if r == 0: a(f"v_mov_b32_dpp v{R+i}, v{D+4*i} quad_perm:[0,0,0,0] {DPPF}")
                else: a(f"v_add_f32_dpp v{R+i}, v{D+4*i+r}, v{R+i} quad_perm:[{r},{r},{r},{r}] {DPPF}")
        for k in range(4): a(f"v_cvt_pk_bf16_f32 v{R+8+k}, v{R+2*k}, v{R+2*k+1}")
        for k in range(4): a(f"v_min_u32 v{R+8+k}, -2, v{R+8+k}")
        s.exec_set(0x00010001, 0x00010001)
        if c['qf']:
            a(f"buffer_store_dwordx4 {q(R+8)}, v{vQ}, s[44:47], s14 offen sc1")
            s.exec_all()
        else:
            a(f"ds_write_b128 v{vQ}, {q(R+8)} offset:{0x2900}")
            s.exec_all()
            a("s_waitcnt lgkmcnt(0)\ns_barrier")
            L = a.label("Lqp")
            a(f"s_cmp_lg_u32 s3, 3\ns_cbranch_scc1 {L}")
            s.exec_set(0xffff, 0)
            a(f"ds_read_b128 {q(R+8)}, v6 offset:{0x2900}\ns_waitcnt lgkmcnt(0)")
            a(f"buffer_store_dwordx4 {q(R+8)}, v6, s[44:47], s14 offen sc1")
            s.exec_all()
            a(f"{L}:")
        s.stamp(4)
        a(f"v_lshrrev_b32 v{vU}, 4, v1\nv_lshlrev_b32 v{vU}, 13, v{vU}\nv_and_b32 v{T+22}, 15, v1\nv_lshl_add_u32 v{vU}, v{T+22}, 4, v{vU}")
        def uvload(n, pace):
            g, hf = n//2, n % 2
            a(f"s_add_u32 s79, s15, {g*4*8192}")
            if pace: a(f"s_waitcnt vmcnt({pace-1})")
            a(f"buffer_load_dwordx4 {q(UV+4*n)}, v{vU}, s[72:75], s79 offen offset:{hf*256} {nt}")
        for n in range(16): uvload(n, c['pu'])
        HG = UK; ST = T
        WL = 0x3000
        a(f"s_mul_i32 s6, s2, {H3_C}\ns_lshl_b32 s5, s3, 13\ns_add_u32 s6, s6, s5\ns_add_u32 s6, s6, {OFF_H3}\ns_add_u32 s7, s6, 4096")
        vSH = T+26
        a(f"v_and_b32 v{vSH}, 15, v1\nv_lshlrev_b32 v{vSH}, 1, v{vSH}\ns_mov_b32 s10, 0xff\ns_sub_u32 s9, 0, s76")
        L = a.label("Lst")
        a(f"s_cmp_lg_u32 s3, 0\ns_cbranch_scc1 {L}")
        a(f"s_lshl_b32 s5, s12, 11\ns_add_u32 s5, s5, {OFF_ST3}")
        def issue_st():
            for k in range(2): a(f"buffer_load_dwordx4 {q(ST+4*k)}, v6, s[44:47], s5 offen offset:{1024*k} sc1")
        if c['stamp']:
            a("s_waitcnt vmcnt(0)"); s.stamp(5)
        s.spoll(5, 0, c['spn'], 16*37, c['spk'])
        s.poll(issue_st, [("s76", [ST+1, ST+3, ST+5, ST+7])], T+8, T+9, sleep=c['ssleep'])
        a(f"{L}:")
        a("s_barrier")
        s.stamp(6)
        def issue_hg(cond=False):
            for i in range(c.get('nbk', 8)):
                Lk = a.label("Lhg")
                if cond: a(f"s_bitcmp0_b32 s10, {i}\ns_cbranch_scc1 {Lk}")
                a(f"buffer_load_dwordx4 {q(HG+4*i)}, v6, s[44:47], {'s6' if i < 4 else 's7'} offen offset:{1024*(i%4)} sc1")
                if cond: a(f"{Lk}:")
        if c['h3d']: a(f"s_sleep {c['h3d']}")
        issue_hg()
        L = a.label("Lwt")
        a(f"s_cmp_lg_u32 s3, 0\ns_cbranch_scc1 {L}")
        M, Lr, TT, E0 = T+8, T+9, T+10, T+12
        a(f"v_max_f32 v{M}, v{ST}, v{ST+4}")
        s.allred_inrow("v_max_f32", M); s.allred_rows("v_max_f32", M, TT)
        a(f"v_sub_f32 v{E0}, v{ST}, v{M}\nv_sub_f32 v{E0+1}, v{ST+4}, v{M}\nv_exp_f32 v{E0}, v{E0}\nv_exp_f32 v{E0+1}, v{E0+1}")
        a(f"v_mul_f32 v{Lr}, v{E0}, v{ST+2}\nv_fmac_f32 v{Lr}, v{E0+1}, v{ST+6}")
        s.allred_inrow("v_add_f32", Lr); s.allred_rows("v_add_f32", Lr, TT)
        a(f"v_rcp_f32 v{Lr}, v{Lr}")
        a(f"v_and_b32 v{TT}, 3, v1\nv_lshlrev_b32 v{TT}, 7, v{TT}\nv_lshrrev_b32 v{TT+1}, 5, v1\nv_lshl_add_u32 v{TT}, v{TT+1}, 5, v{TT}")
        a(f"v_bfe_u32 v{TT+1}, v1, 2, 3\nv_lshl_add_u32 v{TT}, v{TT+1}, 2, v{TT}")
        for k in range(2):
            e = E0+k; hi = E0+2+k; lo = E0+4+k
            a(f"v_mul_f32 v{e}, v{e}, v{Lr}\nv_cvt_pk_bf16_f32 v{hi}, v{e}, v{e}\nv_and_b32 v{lo}, 0xffff0000, v{hi}\nv_sub_f32 v{lo}, v{e}, v{lo}\nv_cvt_pk_bf16_f32 v{lo}, v{lo}, v{lo}")
            a(f"ds_write_b32 v{TT}, v{hi} offset:{WL+64*k}\nds_write_b32 v{TT}, v{lo} offset:{WL+512+64*k}")
        a("s_waitcnt lgkmcnt(0)")
        a(f"{L}:")
        a(f"v_bfe_u32 v{T+20}, v1, 3, 1\nv_lshlrev_b32 v{T+20}, 9, v{T+20}\nv_lshrrev_b32 v{T+21}, 4, v1\nv_lshl_add_u32 v{T+20}, v{T+21}, 7, v{T+20}")
        a(f"s_lshl_b32 s5, s3, 5\nv_add_u32 v{T+20}, s5, v{T+20}")
        a(f"v_and_b32 v{T+22}, 1, v1\nv_lshlrev_b32 v{T+22}, 8, v{T+22}\nv_bfe_u32 v{T+23}, v1, 1, 2\nv_lshl_add_u32 v{T+22}, v{T+23}, 4, v{T+22}")
        a(f"v_lshl_add_u32 v{T+22}, v{T+21}, 2, v{T+22}\ns_lshl_b32 s5, s3, 6\nv_add_u32 v{T+22}, s5, v{T+22}")
        a("s_barrier")
        WW = T; AO = WB
        a(f"ds_read_b128 {q(WW)}, v{T+20} offset:{WL}\nds_read_b128 {q(WW+4)}, v{T+20} offset:{WL+16}")
        a("s_waitcnt lgkmcnt(0)")
        for i in range(8):
            for r in range(4): a(f"v_and_b32 v{AO+4*i+r}, v{WW+i}, v{2+r}")
        DC = T+8
        Lp = a.label("Lck"); Lw = a.label("Lckw"); Ld = a.label("Lckd")
        a(f"s_mov_b32 s78, {c['timeout']}\ns_branch {Lw}")
        a(f"{Lp}:")
        issue_hg(True)
        a(f"{Lw}:")
        a("s_waitcnt vmcnt(0)")
        SU, BT = 48, 56
        for i in range(8):
            h_ = HG+4*i
            a(f"v_and_b32 v{BT+i}, 3, v{h_}\nv_add3_u32 v{SU+i}, v{h_}, v{h_+1}, v{h_+2}\nv_and_or_b32 v{h_}, v{h_}, -4, 2")
            a(f"v_lshl_add_u32 v{BT+i}, v{BT+i}, v{vSH}, v{BT+i}\nv_add_u32 v{SU+i}, v{SU+i}, v{h_+3}")
            a(f"{MF} {q(DC)}, {q(AO+4*i)}, {q(HG+4*i)}, {'0' if i == 0 else q(DC)}")
            a(f"v_sub_u32 v{SU+i}, v{SU+i}, v{BT+i}")
        for m in ("quad_perm:[1,0,3,2]", "quad_perm:[2,3,0,1]", "row_half_mirror", "row_mirror"):
            for i in range(8): a(f"v_add_u32_dpp v{SU+i}, v{SU+i}, v{SU+i} {m} {DPPF}")
        for i in range(8): a(f"v_cmp_ne_u32 s[{64+2*(i%4)}:{65+2*(i%4)}], s9, v{SU+i}" ) if i < 4 else None
        a("s_mov_b32 s11, 0")
        for half in range(2):
            if half:
                for i in range(4, 8): a(f"v_cmp_ne_u32 s[{64+2*(i%4)}:{65+2*(i%4)}], s9, v{SU+i}")
            for i in range(4*half, 4*half+4):
                a(f"s_cmp_lg_u64 s[{64+2*(i%4)}:{65+2*(i%4)}], 0\ns_cselect_b32 s5, {1 << i}, 0\ns_or_b32 s11, s11, s5")
        a(f"s_and_b32 s10, s10, s11\ns_cbranch_scc0 {Ld}")
        a(f"s_sleep 1\ns_sub_u32 s78, s78, 1\ns_cmp_lg_u32 s78, 0\ns_cbranch_scc1 {Lp}")
        a(f"{Ld}:")
        s.stamp(7)
        a(f"ds_write_b128 v{vLW}, {q(DC)}")
        a("s_waitcnt lgkmcnt(0)\ns_barrier")
        Z = T+12
        for k in range(8): a(f"ds_read_b32 v{Z+k}, v{T+22} offset:{512*k}")
        E = T+24
        s.epi_addr(E, False)
        a(f"v_lshlrev_b32 v{E}, 4, v0")
        a(f"s_lshl_b32 s5, s3, 11\nv_add_u32 v{E+2}, s5, v6")
        a(f"s_lshl_b32 s5, s2, 11\ns_add_u32 s5, s5, {OFF_H4}")
        a("s_waitcnt lgkmcnt(0)")
        for st in (4, 2):
            for i in range(0, st, 2): a(f"v_pk_add_f32 {p2(Z+i)}, {p2(Z+i)}, {p2(Z+st+i)}")
        a(f"v_add_f32 v{Z}, v{Z}, v{Z+1}\nv_cvt_pk_bf16_f32 v{Z}, v{Z}, v{Z}")
        DD = T+28
        for g in range(8):
            ab = T + (g % 2)*4
            for r in range(4): a(f"v_and_b32_dpp v{ab+r}, v{Z}, v{2+r} row_newbcast:{g} {DPPF}")
            for hf in range(2):
                a(f"{MF} {q(DD+4*hf)}, {q(ab)}, {q(UV+8*g+4*hf)}, {'0' if g == 0 else q(DD+4*hf)}")
        a(f"ds_write_b128 v{E+2}, {q(DD)} offset:{0x4000}\nds_write_b128 v{E+2}, {q(DD+4)} offset:{0x4000+1024}")
        a("s_waitcnt lgkmcnt(0)\ns_barrier")
        a(f"s_cmp_ge_u32 s3, 2\ns_cbranch_scc1 L_ya5")
        X = T
        for i in range(4): a(f"ds_read_b64 {p2(X+2*i)}, v{E+3} offset:{0x4000+2048*i}")
        a("s_waitcnt lgkmcnt(0)")
        for st in (4, 2):
            for i in range(0, st, 2): a(f"v_pk_add_f32 {p2(X+i)}, {p2(X+i)}, {p2(X+st+i)}")
        a(f"v_mov_b32 v{X+2}, v{X+1}\nv_mov_b32 v{X+1}, s76\nv_mov_b32 v{X+3}, s76")
        a(f"buffer_store_dwordx4 {q(X)}, v{E}, s[44:47], s5 offen sc1")
        s.stamp(8)
        c['timeout'] = tsave
        a("L_ya5:")
        s.stamp_out()
        a("s_endpgm")
    def gx(s):
        a = s.a; c = s.c; nt = c['nt']; pb = c['pb']
        a("L_X:")
        L1, PV, QF, S = 16, 144, 208, 240
        vTR, vL, vSX, vZ, vE = 8, 9, 10, 11, 12
        a("s_sub_u32 s11, s2, 128")
        a("s_lshl_b32 s8, s11, 17\ns_lshl_b32 s6, s3, 13\ns_add_u32 s8, s8, s6")
        a(f"s_mul_i32 s9, s3, {4*ROW}")
        s.kwait()
        s.srd(52, 28, 8192*2048)
        def dma(i, pace):
            for rr in range(4):
                a(f"s_add_u32 m0, s9, {(i%2)*SLOT + rr*ROW}")
                a(f"s_add_u32 s79, s8, {i*32768 + rr*2048}")
                for hf in range(2):
                    if pace: a(f"s_waitcnt vmcnt({pace-1})")
                    a(f"buffer_load_dwordx4 v6, s[52:55], s79 offen offset:{1024*hf} {nt} lds")
        if c.get('fi'): s.stamp(10)
        dma(0, c['px0'])
        if c.get('fi'): s.stamp(11)
        s.srd(44, 42, 0x10000000); s.srd(48, 40, 256); s.srd(56, 36, 4096*896)
        s.common2(13)
        a(f"v_lshrrev_b32 v13, 2, v1\nv_mul_u32_u24 v{vTR}, {ROW}, v13\nv_and_b32 v13, 3, v1\nv_lshl_add_u32 v{vTR}, v13, 3, v{vTR}")
        a(f"s_lshl_b32 s5, s3, 9\nv_add_u32 v{vTR}, s5, v{vTR}")
        a(f"v_and_b32 v13, 15, v1\nv_mul_u32_u24 v{vL}, {ROW}, v13\nv_lshrrev_b32 v14, 4, v1\nv_lshl_add_u32 v{vL}, v14, 4, v{vL}\nv_add_u32 v{vL}, s5, v{vL}")
        a(f"v_add_u32 v{vSX}, {2*SLOT}, v6\nv_mov_b32 v{vZ}, 0")
        a(f"v_lshrrev_b32 v15, 5, v1\nv_lshlrev_b32 v15, 3, v15\nv_bfe_u32 v7, v1, 4, 1\nv_add_u32 v15, v15, v7\nv_mul_u32_u24 v15, {H3_C}, v15")
        a(f"v_and_b32 v7, 15, v1\nv_lshl_add_u32 v15, v7, 4, v15")
        a(f"s_mul_i32 s10, s3, {2*H3_C}\ns_lshl_b32 s5, s11, 8\ns_add_u32 s10, s10, s5\ns_add_u32 s10, s10, {OFF_H3}")
        dma(1, c['px'])
        def tr(i, dst):
            for t in range(16): a(f"ds_read_b64_tr_b16 {p2(dst(t))}, v{vTR} offset:{(i%2)*SLOT+32*t}")
        def l1(i):
            for ks in range(8): a(f"ds_read_b128 {q(L1+(i*8+ks)*4)}, v{vL} offset:{(i%2)*SLOT+64*ks}")
        a(f"s_lshl_b32 s6, s3, 9\ns_add_u32 s6, s6, {OFF_QABS}\ns_add_u32 s7, s6, {8*QS}\ns_mov_b32 s12, {OFF_CLR+0x1000}\ns_mov_b32 s13, 0xff")
        a(f"v_lshrrev_b32 v14, 3, v1\nv_mul_u32_u24 v14, {QS}, v14\nv_and_b32 v7, 7, v1\nv_lshl_add_u32 v14, v7, 4, v14")
        a(f"v_lshlrev_b32 v7, 5, v7\nv_bfe_u32 v13, v1, 3, 1\nv_lshl_add_u32 v7, v13, 4, v7\nv_lshrrev_b32 v13, 4, v1\nv_lshl_add_u32 v7, v13, 2, v7")
        a(f"v_lshlrev_b32 v13, 3, v1")
        def issue_c():
            a(f"buffer_load_dwordx2 {p2(S)}, v13, s[44:47], s12 offen sc1")
            a(f"buffer_load_dword v{vE}, v{vZ}, s[48:51], 0 offen sc1")
        def issue_q(cond=False):
            for i in range(8):
                Lk = a.label("Lqg")
                if cond: a(f"s_bitcmp0_b32 s13, {i}\ns_cbranch_scc1 {Lk}")
                a(f"buffer_load_dwordx4 {q(QF+4*i)}, v14, s[44:47], {'s7' if i % 2 else 's6'} offen offset:{128*(i//2)} sc1")
                if cond: a(f"{Lk}:")
        cgrp = [(f"v{vE}", [S, S+1])]
        for i in range(4):
            a(f"s_waitcnt vmcnt(8)")
            if i == 2:
                L = a.label("Lclr"); Lk = a.label("Lclk")
                a(f"s_cmp_lg_u32 s3, 0\ns_cbranch_scc1 {L}")
                s.check_tags(cgrp, S+2, S+3)
                a(f"s_cbranch_scc1 {Lk}")
                s.poll(issue_c, cgrp, S+2, S+3, sleep=4)
                a(f"{Lk}:")
                a(f"ds_write_b32 v{vSX}, v{vE} offset:12288\ns_waitcnt lgkmcnt(0)")
                a(f"{L}:")
            a("s_barrier")
            l1(i)
            if i < 2:
                tr(i, lambda t: PV+4*t+2*i)
                a("s_waitcnt lgkmcnt(0)\ns_barrier")
                if i == 1:
                    L = a.label("Lcli")
                    a(f"s_cmp_lg_u32 s3, 0\ns_cbranch_scc1 {L}")
                    issue_c()
                    a(f"{L}:")
                dma(i+2, c['px'])
            if i == 2:
                a(f"ds_read_b32 v{vE}, v{vSX} offset:12288")
                a(f"s_waitcnt vmcnt({c['qat']})")
                issue_q()
        tsave = c['timeout']
        s.stamp(1)
        if True:
            Lp = a.label("Lqp"); Lw = a.label("Lqw"); Ld = a.label("Lqd")
            a(f"s_mov_b32 s78, {c['timeout']}\ns_branch {Lw}")
            a(f"{Lp}:")
            issue_q(True)
            a(f"{Lw}:")
            a("s_waitcnt vmcnt(0)")
            for i in range(8): a(f"v_max3_u32 v{S+i}, v{QF+4*i}, v{QF+4*i+1}, v{QF+4*i+2}")
            for i in range(8): a(f"v_max_u32 v{S+i}, v{S+i}, v{QF+4*i+3}")
            a(f"v_max3_u32 v{S+8}, v{S}, v{S+1}, v{S+2}\nv_max3_u32 v{S+9}, v{S+3}, v{S+4}, v{S+5}\nv_max3_u32 v{S+8}, v{S+8}, v{S+6}, v{S+7}\nv_max_u32 v{S+8}, v{S+8}, v{S+9}")
            a(f"v_cmp_eq_u32 vcc, -1, v{S+8}\ns_cbranch_vccz {Ld}")
            a("s_mov_b32 s13, 0")
            for i in range(8):
                a(f"v_cmp_eq_u32 vcc, -1, v{S+i}\ns_cmp_lg_u64 vcc, 0\ns_cselect_b32 s5, {1 << i}, 0\ns_or_b32 s13, s13, s5")
            a(f"s_sleep 1\ns_sub_u32 s78, s78, 1\ns_cmp_lg_u32 s78, 0\ns_cbranch_scc1 {Lp}")
            a(f"{Ld}:")
            a("s_waitcnt lgkmcnt(0)")
            a(f"v_readfirstlane_b32 s76, v{vE}")
            s.stamp(2)
            def mix(kp):
                A_, B_ = QF+8*kp, QF+8*kp+4
                a(f"v_mov_b64 {p2(S)}, {p2(A_)}\nv_mov_b64 {p2(S+2)}, {p2(A_+2)}")
                for r in range(4): a(f"v_mov_b32_dpp v{A_+r}, v{B_+r} row_shr:4 row_mask:0xf bank_mask:0xa")
                for r in range(4): a(f"v_mov_b32_dpp v{B_+r}, v{S+r} row_shl:4 row_mask:0xf bank_mask:0x5")
                for r in range(8): a(f"ds_bpermute_b32 v{A_+r}, v7, v{A_+r}")
            for kp in range(4): mix(kp)
            for ks in range(8):
                a(f"s_waitcnt lgkmcnt({min(15, 4*(7-ks))})")
                for ch in range(4):
                    a(f"{MF} {q(S+4*ch)}, {q(L1+(ch*8+ks)*4)}, {q(QF+4*ks)}, {'0' if ks == 0 else q(S+4*ch)}")
        PV1 = L1
        Lx = a.label("Lsx")
        labs = [a.label("Lsxw") for _ in range(4)]
        for w in range(1, 4): a(f"s_cmp_eq_u32 s3, {w}\ns_cbranch_scc1 {labs[w]}")
        for w in range(4):
            a(f"{labs[w]}:")
            for ch in range(4):
                if ch == w: continue
                k = (w - ch - 1) % 4
                a(f"ds_write_b128 v{vSX}, {q(S+4*ch)} offset:{(ch*3+k)*1024}")
            a(f"v_mov_b64 {p2(QF)}, {p2(S+4*w)}\nv_mov_b64 {p2(QF+2)}, {p2(S+4*w+2)}")
            if w < 3: a(f"s_branch {Lx}")
        a(f"{Lx}:")
        a(f"s_mul_i32 s5, s3, 3072\nv_add_u32 v13, s5, v{vSX}")
        a("s_waitcnt lgkmcnt(0)\ns_barrier")
        for k in range(3): a(f"ds_read_b128 {q(QF+4+4*k)}, v13 offset:{1024*k}")
        tr(2, lambda t: PV1+4*t)
        a("s_waitcnt lgkmcnt(15)\ns_waitcnt lgkmcnt(14)")
        a(f"v_pk_add_f32 {p2(QF)}, {p2(QF)}, {p2(QF+4)}\nv_pk_add_f32 {p2(QF+2)}, {p2(QF+2)}, {p2(QF+6)}")
        a(f"v_pk_add_f32 {p2(QF+8)}, {p2(QF+8)}, {p2(QF+12)}\nv_pk_add_f32 {p2(QF+10)}, {p2(QF+10)}, {p2(QF+14)}")
        a(f"v_pk_add_f32 {p2(QF)}, {p2(QF)}, {p2(QF+8)}\nv_pk_add_f32 {p2(QF+2)}, {p2(QF+2)}, {p2(QF+10)}")
        a(f"ds_write_b128 v13, {q(QF)}")
        a("s_waitcnt lgkmcnt(0)\ns_barrier")
        s.stamp(3)
        SR = S
        for ch in range(4): a(f"ds_read_b128 {q(SR+4*ch)}, v{vSX} offset:{3072*ch}")
        a("s_waitcnt lgkmcnt(0)")
        tr(3, lambda t: PV1+4*t+2)
        M, Lr, TT, P = QF+8, QF+10, QF+12, QF
        a(f"v_max3_f32 v{M}, v{SR}, v{SR+1}, v{SR+2}")
        for i in range(3, 16, 2): a(f"v_max3_f32 v{M}, v{M}, v{SR+i}, v{SR+min(i+1,15)}")
        s.allred_rows("v_max_f32", M, TT)
        a(f"s_mov_b32 s5, {f32(CEXP)}\nv_mul_f32 v{M}, s5, v{M}")
        for i in range(16): a(f"v_fma_f32 v{SR+i}, v{SR+i}, s5, -v{M}")
        for i in range(16): a(f"v_exp_f32 v{SR+i}, v{SR+i}")
        for i in range(8): a(f"v_cvt_pk_bf16_f32 v{P+i}, v{SR+2*i}, v{SR+2*i+1}")
        O = L1+64
        a(f"v_and_b32 v13, 15, v1\nv_mul_u32_u24 v13, {ROW}, v13\nv_lshrrev_b32 v14, 4, v1\nv_bfe_u32 v7, v1, 2, 2\nv_xor_b32 v14, v14, v7\nv_lshl_add_u32 v13, v14, 3, v13")
        a(f"s_lshl_b32 s5, s3, 9\nv_add_u32 v13, s5, v13")
        a(f"v_lshrrev_b32 v14, 5, v1\nv_mul_u32_u24 v14, {ROW}, v14\nv_and_b32 v7, 31, v1\nv_lshl_add_u32 v14, v7, 4, v14\nv_add_u32 v14, s5, v14\nv_xor_b32 v7, 16, v14")
        a("s_waitcnt lgkmcnt(0)")
        def fin(t):
            a(f"v_cvt_pk_bf16_f32 v{O+4*t}, v{O+4*t}, v{O+4*t+1}\nv_cvt_pk_bf16_f32 v{O+4*t+1}, v{O+4*t+2}, v{O+4*t+3}")
            a(f"ds_write_b64 v13, {p2(O+4*t)} offset:{32*t}")
        for t in range(16):
            a(f"{MF} {q(O+4*t)}, {q(PV+4*t)}, {q(P)}, 0")
            a(f"{MF} {q(O+4*t)}, {q(PV1+4*t)}, {q(P+4)}, {q(O+4*t)}")
            if t == 0:
                L = a.label("Lst3")
                a(f"s_cmp_lg_u32 s3, 0\ns_cbranch_scc1 {L}")
                for st in (8, 4, 2):
                    for i in range(0, st, 2): a(f"v_pk_add_f32 {p2(SR+i)}, {p2(SR+i)}, {p2(SR+st+i)}")
                a(f"v_add_f32 v{Lr}, v{SR}, v{SR+1}")
                s.allred_rows("v_add_f32", Lr, TT)
                a(f"v_mov_b32 v{M+1}, s76\nv_mov_b32 v{Lr+1}, s76\nv_lshlrev_b32 v{TT}, 11, v1")
                a(f"s_lshl_b32 s5, s11, 4\ns_add_u32 s5, s5, {OFF_ST3}")
                s.exec_set(0xffff, 0)
                a(f"buffer_store_dwordx4 {q(M)}, v{TT}, s[44:47], s5 offen sc1")
                s.exec_all()
                a(f"{L}:")
            if t >= 3: fin(t-3)
        fin(13); fin(14); fin(15)
        a("s_waitcnt lgkmcnt(0)")
        s.stamp(4)
        SQ = L1
        nrd = []
        for i in range(8):
            xx = i//2; va = 7 if xx >= 2 else 14
            if xx % 2 == 0: a(f"ds_read_b128 {q(SQ+4*i)}, v{va} offset:{2*ROW*i}"); nrd.append(1)
            else: a(f"ds_read_b64 {p2(SQ+4*i+2)}, v{va} offset:{2*ROW*i}\nds_read_b64 {p2(SQ+4*i)}, v{va} offset:{2*ROW*i+8}"); nrd.append(2)
        a(f"v_and_b32 v13, 15, v1\nv_lshlrev_b32 v13, 1, v13")
        for i in range(8):
            a(f"s_waitcnt lgkmcnt({sum(nrd[i+1:])})")
            a(f"v_and_b32 v{SQ+4*i}, -4, v{SQ+4*i}\nv_add3_u32 v{O+i}, v{SQ+4*i+1}, v{SQ+4*i+2}, v{SQ+4*i+3}\nv_add_u32 v{O+i}, v{O+i}, v{SQ+4*i}")
        for m in ("quad_perm:[1,0,3,2]", "quad_perm:[2,3,0,1]", "row_half_mirror", "row_mirror"):
            for i in range(8): a(f"v_add_u32_dpp v{O+i}, v{O+i}, v{O+i} {m} {DPPF}")
        for i in range(8):
            a(f"v_add_u32 v{O+i}, s76, v{O+i}\nv_bfe_u32 v{O+i}, v{O+i}, v13, 2\nv_or_b32 v{SQ+4*i}, v{SQ+4*i}, v{O+i}")
            a(f"s_add_u32 s79, s10, {i*16*H3_C}")
            if i < c.get('nbk', 8): a(f"buffer_store_dwordx4 {q(SQ+4*i)}, v15, s[44:47], s79 offen sc1")
        s.stamp(5)
        WOB = [PV+4*t for t in range(8)]; WOA = [PV+32+4*t for t in range(8)]
        T = QF
        a(f"s_mov_b32 s14, s3\ns_mul_i32 s15, s11, {32*896}")
        s.proj_wload(WOB, 13, 56, 15, 14)
        def wob():
            for t in range(8): s.proj_wload_one(t, WOB, 13, 56, 15)
        if not c['dwb']: wob()
        a("s_lshr_b32 s12, s11, 3\ns_and_b32 s13, s11, 7")
        G = L1+32
        a(f"v_lshrrev_b32 v7, 4, v1\nv_lshlrev_b32 v7, 11, v7\nv_and_b32 v14, 15, v1\nv_lshl_add_u32 v7, v14, 4, v7")
        a(f"s_lshl_b32 s5, s12, 14\ns_lshl_b32 s6, s13, 8\ns_add_u32 s5, s5, s6\ns_add_u32 s5, s5, {OFF_H4}\ns_add_u32 s6, s5, 8192")
        def issue_h4():
            a(f"buffer_load_dwordx4 {q(G)}, v7, s[44:47], s5 offen sc1\nbuffer_load_dwordx4 {q(G+4)}, v7, s[44:47], s6 offen sc1")
        if c['dwb']:
            if c['x1w']:
                Lq = a.label("Lx1w")
                a(f"s_cmp_lg_u32 s3, 0\ns_cbranch_scc1 {Lq}")
                sv = c['spsleep']; c['spsleep'] = c['x1s']
                s.spoll(5, 0, c['x1n'], 2048*2, c['x1k'])
                c['spsleep'] = sv
                a(f"{Lq}:\ns_barrier")
            else: s.spoll(5, 0, 4, 2048*2, 1)
            wob()
            if c['dwb'] == 1: s.spoll(5, 0, c['spn'], 2048*2, c['spk'])
        else: s.spoll(5, 0, c['spn'], 2048*2, c['spk'])
        s.poll(issue_h4, [("s76", [G+1, G+3, G+5, G+7])], G+8, G+9, sleep=c['sleep'])
        s.stamp(6)
        a(f"v_add_f32 v{G}, v{G}, v{G+4}\nv_add_f32 v{G+1}, v{G+2}, v{G+6}")
        a(f"s_mul_i32 s15, s11, {FS}\ns_lshl_b32 s5, s3, 10\ns_add_u32 s15, s15, s5\ns_add_u32 s15, s15, {OFF_FIN+FIN_AB}")
        s.proj_tail(G, WOB, T, 14, 15)
        s.stamp(7)
        c['timeout'] = tsave
        a("s_cmp_ge_u32 s11, 56\ns_cbranch_scc1 L_xend\ns_cmp_ge_u32 s3, 1\ns_cbranch_scc1 L_xend")
        s.final(11, 1, L1+64, QF+16, 8)
        a("L_xend:")
        s.stamp_out()
        a("s_endpgm")
    def ga(s):
        a = s.a; c = s.c; pa = c['pa']
        a("L_A:")
        NS = c['ns']; NL = 2*NS
        Kb, Vb, T, AD = 16, 112, 208, 8
        assert NS <= 12
        NIT = (4096 - 64*4*NS)//8 * (2 if c['c1'] else 1)
        QF, AC, D, TS, MM = T, T+8, T+16, T+24, T+36
        M, Lr, F, FA, TK, TT = MM, MM+1, MM+2, MM+3, MM+4, MM+5
        vZ, vE = T+46, T+47
        if c['gmix']:
            a("s_sub_u32 s11, s2, 256\ns_lshr_b32 s6, s11, 3\ns_add_u32 s6, s6, s11\ns_and_b32 s12, s11, 8\ns_sub_u32 s6, s6, s12")
            a("s_bfe_u32 s9, s6, 0x30001\ns_and_b32 s12, s6, 1")
        else:
            a("s_sub_u32 s11, s2, 256\ns_bfe_u32 s9, s11, 0x30004\ns_bfe_u32 s12, s11, 0x10003")
        a("s_lshr_b32 s6, s11, 7\ns_lshl_b32 s6, s6, 3\ns_and_b32 s10, s11, 7\ns_add_u32 s13, s10, s6")
        a("s_lshl_b32 s10, s12, 4\ns_add_u32 s10, s10, s13")
        if c['c1']:
            a("s_lshl_b32 s14, s9, 22")
            a(f"s_lshl_b32 s8, s10, 2\ns_add_u32 s8, s8, s3\ns_mul_i32 s8, s8, {NS*2048}\ns_add_u32 s8, s8, s14")
            a(f"s_add_u32 s14, s14, {128*NS*2048}")
            a(f"s_lshl_b32 s15, s9, 9\ns_add_u32 s15, s15, {OFF_CLR}")
        else:
            a("s_lshl_b32 s14, s9, 22\ns_lshl_b32 s6, s12, 21\ns_add_u32 s14, s14, s6")
            a(f"s_lshl_b32 s8, s13, 2\ns_add_u32 s8, s8, s3\ns_mul_i32 s8, s8, {32768 if c['il'] else NS*2048}\ns_add_u32 s8, s8, s14")
            a(f"s_add_u32 s14, s14, {NS*2048 if c['il'] else 64*NS*2048}")
            a(f"s_lshl_b32 s15, s9, 1\ns_add_u32 s15, s15, s12\ns_lshl_b32 s15, s15, 8\ns_add_u32 s15, s15, {OFF_CLR}")
        a(f"v_mov_b32 v{vZ}, 0")
        s.kv_addr(AD)
        s.common2(T)
        s.kwait()
        s.srd(44, 42, 0x10000000); s.srd(48, 40, 256)
        s.srd(68, 18, 8*8192*512); s.srd(72, 20, 8*8192*512)
        vK, vV = AD, AD+1
        def ld(n, reg, voff, srd, pace):
            g, hf = n//2, n % 2
            gi = n + (NL if srd == 72 else 0)
            px_ = (c['pa0'] if gi < c['npre'] else c['pax']) if gi < c['nax'] else pace
            py_ = c['pa0'] if gi < c['nay'] else pace
            if px_ != py_:
                lo, cond = (px_, 'lt') if px_ < py_ else (py_, 'ge')
                Lk = a.label("Lpc")
                a(f"s_cmp_{cond}_u32 s11, 128\ns_cbranch_scc1 {Lk}\ns_waitcnt vmcnt({lo-1})\n{Lk}:")
            a(f"s_add_u32 s79, s8, {(g//2)*4096}")
            a(f"s_waitcnt vmcnt({max(px_, py_)-1})")
            a(f"buffer_load_dwordx4 {q(reg)}, v{voff}, s[{srd}:{srd+3}], s79 offen offset:{(g%2)*2048+hf*256} {c['nt']}")
            if c.get('bw'):
                m = {5: 7, 13: 8, 2*NL-1: 9}
                if gi in m: s.stamp(m[gi])
        for n in range(c['npre']): ld(n, Kb+4*n, vK, 68, pa)
        Lj = a.label("Lp1j")
        a(f"s_cmp_{'lt' if c['p1x'] else 'ge'}_u32 s11, 128\ns_cbranch_scc1 {Lj}")
        if c['prioa']: a(f"s_setprio {c['prioa']}")
        s.srd(52, 16, 896); s.srd(56, 22, 448*8192)
        XA, WA, PVv = Vb, Vb+4, T+16
        a("s_and_b32 s13, s11, 127")
        Lc = a.label("Lcz")
        a(f"s_cmp_ge_u32 s13, 8\ns_cbranch_scc1 {Lc}\ns_cmp_lg_u32 s3, 3\ns_cbranch_scc1 {Lc}")
        a(f"s_lshl_b32 s6, s13, 9\ns_add_u32 s6, s6, {OFF_CLR}\nv_lshlrev_b32 v{T}, 8, v1")
        s.exec_set(3, 0)
        a(f"buffer_store_dword v{vZ}, v{T}, s[44:47], s6 offen sc1")
        s.exec_all()
        a(f"{Lc}:")
        s.p1_setup(13, T, PVv)
        if c.get('fi'): s.stamp(10)
        s.p1_loads(XA, WA, 52, 56, PVv)
        if c.get('fi'): s.stamp(11)
        s.p1_setup2(T, PVv)
        a("s_waitcnt vmcnt(3)")
        a(f"buffer_load_dword v{vE}, v{vZ}, s[48:51], 0 offen sc1")
        a("s_waitcnt vmcnt(0)")
        s.get_epoch(vE, vZ)
        a("s_setprio 3")
        s.p1_compute(XA, WA, T, PVv, 0x1000, OFF_QA)
        a(f"s_setprio 0")
        a(f"{Lj}:")
        s.stamp(6)
        na0 = c['npre']
        v1n = c['v1']
        a(f"v_bfe_u32 v{AD+4}, v1, 3, 1\nv_lshlrev_b32 v{AD+4}, 9, v{AD+4}")
        a(f"v_lshl_add_u32 v{AD+4}, v{AD+2}, 6, v{AD+4}\nv_lshl_add_u32 v{AD+4}, v{AD+3}, 4, v{AD+4}")
        assert na0 <= NL-8
        for n in range(na0, NL):
            ld(n, Kb+4*n, vK, 68, pa)
            if n == NL-8: a(f"buffer_load_dword v{vE}, v{vZ}, s[48:51], 0 offen sc1")
        a("s_waitcnt vmcnt(7)")
        s.get_epoch(vE, vZ)
        vq = c['vq']
        for n in range(vq): ld(n, Vb+4*n, vV, 72, pa)
        def vfirst():
            for n in range(vq, vq+v1n): ld(n, Vb+4*n, vV, 72, pa)
        a(f"s_lshl_b32 s6, s9, 12\ns_lshl_b32 s5, s3, 10\ns_add_u32 s6, s6, s5\ns_add_u32 s6, s6, {OFF_QA}")
        a(f"v_lshlrev_b32 v{T+20}, 2, v0")
        s.gather_q(T, 6, T+20, 1, vfirst, v1n, sleep=c['qsleep'])
        a("s_barrier")
        s.stamp(1)
        a(f"ds_read_b128 {q(QF)}, v{AD+4}\nds_read_b128 {q(QF+4)}, v{AD+4} offset:256")
        a(f"s_mov_b32 s13, {f32(CEXP)}")
        a(f"s_waitcnt vmcnt({v1n}) lgkmcnt(0)")
        s.stamp(2)
        v1n += vq
        nv = v1n
        SA = c['sat']
        if c['ystop']:
            a(f"s_cmp_lt_u32 s11, 128\ns_cselect_b32 s82, {NIT-c['ystop']}, -1\ns_mov_b32 s83, 0")
        def ticket():
            if SA:
                if c['ystop']:
                    Lk = a.label("Lys")
                    a(f"s_cmp_ge_u32 s83, s82\ns_mov_b32 s83, -1\ns_cbranch_scc1 {Lk}")
                    a(f"s_mov_b32 s83, 1\ns_atomic_add s83, s[42:43], s15 glc\n{Lk}:")
                else:
                    a("s_mov_b32 s83, 1\ns_atomic_add s83, s[42:43], s15 glc")
                return
            a(f"v_mov_b32 v{TK}, 1")
            s.exec_set(1, 0)
            a(f"buffer_atomic_add v{TK}, v{vZ}, s[44:47], s15 offen sc0 sc1")
            s.exec_all()
        tk_at = NL - c['tka']
        def more(k=1):
            nonlocal nv
            for _ in range(k):
                if nv < NL:
                    if nv == max(tk_at, v1n): ticket()
                    ld(nv, Vb+4*nv, vV, 72, pa); nv += 1
        def dreg(i): return D+4*i if i < 2 else Kb+8*(i-2)
        for i in range(NS):
            a(f"{MF} {q(dreg(i))}, {q(Kb+i*8)}, {q(QF)}, 0")
            a(f"{MF} {q(dreg(i))}, {q(Kb+i*8+4)}, {q(QF+4)}, {q(dreg(i))}")
            if i % 6 == 5: more()
        for r in range(4):
            for i in range(NS):
                if r == 0: a(f"v_mov_b32_dpp v{TS+i}, v{dreg(i)} quad_perm:[0,0,0,0] {DPPF}")
                else: a(f"v_add_f32_dpp v{TS+i}, v{dreg(i)+r}, v{TS+i} quad_perm:[{r},{r},{r},{r}] {DPPF}")
        more()
        for i in range(0, NS, 2): a(f"v_cvt_pk_bf16_f32 v{D+(i//2)}, v{TS+i}, v{TS+i+1}")
        for i in range(0, NS, 2): a(f"v_lshlrev_b32 v{TS+i}, 16, v{D+i//2}\nv_and_b32 v{TS+i+1}, 0xffff0000, v{D+i//2}")
        a(f"v_max3_f32 v{M}, v{TS}, v{TS+1}, v{TS+2}")
        for i in range(3, NS, 2): a(f"v_max3_f32 v{M}, v{M}, v{TS+i}, v{TS+min(i+1,NS-1)}")
        s.allred_rows("v_max_f32", M, TT)
        a(f"v_mul_f32 v{M}, s13, v{M}")
        for i in range(NS): a(f"v_fma_f32 v{TS+i}, v{TS+i}, s13, -v{M}")
        more()
        for i in range(NS): a(f"v_exp_f32 v{TS+i}, v{TS+i}")
        a(f"v_add_f32 v{Lr}, v{TS}, v{TS+1}")
        for i in range(2, NS): a(f"v_add_f32 v{Lr}, v{Lr}, v{TS+i}")
        for i in range(NS): a(f"v_cvt_pk_bf16_f32 v{TS+i}, v{TS+i}, v{TS+i}")
        s.stamp(3)
        done = 0
        def pv(i):
            ab = D + (i % 2)*4
            for r in range(4): a(f"v_and_b32 v{ab+r}, v{TS+i}, v{2+r}")
            for hf in range(2):
                a(f"{MF} {q(AC+4*hf)}, {q(ab)}, {q(Vb+8*i+4*hf)}, {'0' if i == 0 else q(AC+4*hf)}")
        def pv_upto(k):
            nonlocal done
            while done < NS and 2*done+2 <= k:
                pv(done); done += 1
        while nv < NL:
            more()
            pv_upto(nv - 1 - (pa-1))
        ntk = NL - max(tk_at, v1n)
        BUF = [Kb, Kb+32]
        Lend = a.label("Lae")
        def take(Lno, younger):
            if SA: a("s_waitcnt lgkmcnt(0)\ns_mov_b32 s5, s83")
            else:
                a(f"s_waitcnt vmcnt({younger})")
                a(f"v_readfirstlane_b32 s5, v{TK}")
            a(f"s_cmp_ge_u32 s5, {NIT}\ns_cbranch_scc1 {Lno}")
            if c['pdy']:
                a(f"s_sub_u32 s7, s5, {c['ylo']}\ns_cmp_lt_u32 s7, {c['yhi']-c['ylo']}\ns_cselect_b32 s7, 1, 0\ns_cmp_lt_u32 s11, 128\ns_cselect_b32 s7, s7, 0")
            if c['il']: a(f"s_and_b32 s6, s5, 63\ns_lshl_b32 s6, s6, 15\ns_lshr_b32 s5, s5, 6\ns_lshl_b32 s5, s5, 12\ns_add_u32 s79, s14, s5\ns_add_u32 s79, s79, s6")
            else: a(f"s_lshl_b32 s5, s5, 12\ns_add_u32 s79, s14, s5")
        def item_loads(B):
            if c.get('bw'): a("s_add_u32 s94, s94, 1")
            for n in range(8):
                if n == (c['tkn'] if SA else 0): ticket()
                if c['pdy']:
                    Lk = a.label("Lpy")
                    a(f"s_cmp_eq_u32 s7, 0\ns_cbranch_scc1 {Lk}\ns_waitcnt vmcnt({c['pdy']-1})\n{Lk}:")
                if c['pdx'] and c['pdx'] < c['pd']:
                    Lk = a.label("Lpd")
                    a(f"s_cmp_lt_u32 s11, 128\ns_cbranch_scc1 {Lk}\ns_waitcnt vmcnt({c['pdx']-1})\n{Lk}:")
                a(f"s_waitcnt vmcnt({c['pd']-1})")
                vo, srd = (vK, 68) if n < 4 else (vV, 72)
                k = n % 4
                a(f"buffer_load_dwordx4 {q(B+4*n)}, v{vo}, s[{srd}:{srd+3}], s79 offen offset:{(k//2)*2048+(k%2)*256} {c['nt']}")
        def item_compute(B, last):
            if last:
                woa()
                a("s_waitcnt vmcnt(12)")
            for i in range(2):
                a(f"{MF} {q(D+4*i)}, {q(B+8*i)}, {q(QF)}, 0")
                a(f"{MF} {q(D+4*i)}, {q(B+8*i+4)}, {q(QF+4)}, {q(D+4*i)}")
            for r in range(4):
                for i in range(2):
                    if r == 0: a(f"v_mov_b32_dpp v{TS+i}, v{D+4*i} quad_perm:[0,0,0,0] {DPPF}")
                    else: a(f"v_add_f32_dpp v{TS+i}, v{D+4*i+r}, v{TS+i} quad_perm:[{r},{r},{r},{r}] {DPPF}")
            a(f"v_cvt_pk_bf16_f32 v{TT}, v{TS}, v{TS+1}\nv_lshlrev_b32 v{TS}, 16, v{TT}\nv_and_b32 v{TS+1}, 0xffff0000, v{TT}")
            a(f"v_max_f32 v{TS+2}, v{TS}, v{TS+1}")
            s.allred_rows("v_max_f32", TS+2, TT)
            a(f"v_mul_f32 v{TS+2}, s13, v{TS+2}\nv_max_f32 v{TS+2}, v{TS+2}, v{M}")
            a(f"v_sub_f32 v{F}, v{M}, v{TS+2}\nv_fma_f32 v{TS}, v{TS}, s13, -v{TS+2}\nv_fma_f32 v{TS+1}, v{TS+1}, s13, -v{TS+2}")
            a(f"v_exp_f32 v{F}, v{F}\nv_exp_f32 v{TS}, v{TS}\nv_exp_f32 v{TS+1}, v{TS+1}\nv_mov_b32 v{M}, v{TS+2}")
            a(f"v_fma_f32 v{Lr}, v{Lr}, v{F}, v{TS}")
            a(f"v_mov_b32_dpp v{FA}, v{F} row_newbcast:0 row_mask:0x3 bank_mask:0xf")
            a(f"v_add_f32 v{Lr}, v{Lr}, v{TS+1}")
            a(f"v_cvt_pk_bf16_f32 v{TS}, v{TS}, v{TS}")
            a(f"v_mov_b32_dpp v{FA}, v{F} row_newbcast:8 row_mask:0xc bank_mask:0xf")
            a(f"v_cvt_pk_bf16_f32 v{TS+1}, v{TS+1}, v{TS+1}")
            for k in range(8): a(f"v_mul_f32 v{AC+k}, v{AC+k}, v{FA}")
            for i in range(2):
                for r in range(4): a(f"v_and_b32 v{D+4*i+r}, v{TS+i}, v{2+r}")
            if last: a("s_waitcnt vmcnt(8)")
            for i in range(2):
                for hf in range(2):
                    a(f"{MF} {q(AC+4*hf)}, {q(D+4*i)}, {q(B+16+8*i+4*hf)}, {q(AC+4*hf)}")
        E = Kb+64
        s.epi_addr(E, True)
        a(f"v_bfe_u32 v{E+2}, v0, 4, 4\nv_mul_u32_u24 v{E+2}, {HA_U}, v{E+2}")
        a(f"v_and_b32 v{E}, 15, v0\nv_lshl_add_u32 v{E+2}, v{E}, 4, v{E+2}")
        a(f"s_mul_i32 s12, s9, {16*HA_U}\ns_lshl_b32 s6, s10, 8\ns_add_u32 s12, s12, s6\ns_add_u32 s12, s12, {OFF_HA}")
        a(f"s_lshl_b32 s5, s3, 11\nv_add_u32 v{AD+4}, s5, v6")
        a(f"v_bfe_u32 v{AD+6}, v1, 3, 1\nv_lshlrev_b32 v{AD+6}, 5, v{AD+6}\ns_lshl_b32 s5, s3, 3\nv_add_u32 v{AD+7}, s5, v{AD+6}")
        a(f"v_lshrrev_b32 v{AD+5}, 7, v0\nv_lshlrev_b32 v{AD+5}, 5, v{AD+5}")
        a(f"s_lshl_b32 s10, s10, 7\ns_lshl_b32 s5, s9, 12\ns_add_u32 s10, s10, s5\ns_lshr_b32 s5, s3, 1\ns_lshl_b32 s5, s5, 4\ns_add_u32 s10, s10, s5\ns_add_u32 s10, s10, {OFF_STA}")
        Z = E+4
        a(f"v_mov_b32 v{Z+17}, s76\nv_mov_b32 v{Z+19}, s76\nv_mov_b32 v{Z+21}, s76\nv_mov_b32 v{Z+23}, s76")
        WOA = [Vb+4*t for t in range(8)]
        assert done >= 4
        s.srd(60, 24, 4096*896)
        vWO = Z+24
        a(f"s_and_b32 s97, s11, 127\ns_mul_i32 s96, s97, {32*896}")
        s.proj_wload(WOA, vWO, 60, 96, 3)
        a(f"s_cmp_{'ge' if c['a5y'] else 'lt'}_u32 s11, 128\ns_cselect_b32 s5, 0x4000000, 0\nv_add_u32 v{vWO}, s5, v{vWO}")
        def woa():
            for t in range(8): s.proj_wload_one(t, WOA, vWO, 60, 96)
        Ln0 = a.label("Ln0"); L0 = a.label("Ld0"); Lf0 = a.label("Lf0"); Lf1 = a.label("Lf1")
        d0 = done
        if c['aprio']: a(f"s_setprio {c['aprio']}")
        take(Ln0, ntk)
        item_loads(BUF[0])
        if c['tkn'] > 8: a(f"s_waitcnt vmcnt({c['tkn']})"); ticket()
        a(f"s_waitcnt vmcnt({8 if SA else 9})")
        if c['tkn'] == 8: ticket()
        for i in range(d0, NS): pv(i)
        a(f"{L0}:")
        take(Lf0, 8)
        item_loads(BUF[1])
        if c['tkn'] > 8: a(f"s_waitcnt vmcnt({c['tkn']})"); ticket()
        a(f"s_waitcnt vmcnt({8 if SA else 9})")
        if c['tkn'] == 8: ticket()
        item_compute(BUF[0], False)
        take(Lf1, 8)
        item_loads(BUF[0])
        if c['tkn'] > 8: a(f"s_waitcnt vmcnt({c['tkn']})"); ticket()
        a(f"s_waitcnt vmcnt({8 if SA else 9})")
        if c['tkn'] == 8: ticket()
        item_compute(BUF[1], False)
        a(f"s_branch {L0}")
        a(f"{Ln0}:")
        woa()
        for i in range(d0, NS):
            a(f"s_waitcnt vmcnt({NL-2*(i+1)+8})")
            pv(i)
        a(f"s_branch {Lend}")
        a(f"{Lf0}:")
        item_compute(BUF[0], True)
        a(f"s_branch {Lend}")
        a(f"{Lf1}:")
        item_compute(BUF[1], True)
        a(f"{Lend}:")
        s.allred_rows("v_add_f32", Lr, TT)
        a(f"ds_write_b64 v{AD+7}, {p2(M)} offset:{0x800}")
        s.stamp(4)
        a(f"ds_write_b128 v{AD+4}, {q(AC)} offset:{0x1000}\nds_write_b128 v{AD+4}, {q(AC+4)} offset:{0x1000+1024}")
        a("s_waitcnt lgkmcnt(0)\ns_barrier")
        Y = Z+8
        a(f"ds_read_b128 {q(Y)}, v{AD+5} offset:{0x800}\nds_read_b128 {q(Y+4)}, v{AD+5} offset:{0x810}")
        for i in range(4): a(f"ds_read_b64 {p2(Z+2*i)}, v{E+3} offset:{0x1000+2048*i}")
        a("s_waitcnt lgkmcnt(4)")
        a(f"v_max3_f32 v{Z+20}, v{Y}, v{Y+2}, v{Y+4}\nv_max_f32 v{Z+20}, v{Z+20}, v{Y+6}")
        for k in range(4): a(f"v_sub_f32 v{Y+2*k}, v{Y+2*k}, v{Z+20}")
        for k in range(4): a(f"v_exp_f32 v{Y+2*k}, v{Y+2*k}")
        a("s_waitcnt lgkmcnt(0)")
        for k in range(4):
            op = "v_mul_f32" if k == 0 else "v_fmac_f32"
            a(f"{op} v{Z+16}, v{Y+2*k}, v{Z+2*k}\n{op} v{Z+18}, v{Y+2*k}, v{Z+2*k+1}")
        a(f"buffer_store_dwordx4 {q(Z+16)}, v{E+2}, s[44:47], s12 offen sc1")
        Lx = a.label("Lax")
        a(f"s_bitcmp1_b32 s3, 0\ns_cbranch_scc1 {Lx}")
        for k in range(4):
            op = "v_mul_f32" if k == 0 else "v_fmac_f32"
            a(f"{op} v{Z+22}, v{Y+2*k}, v{Y+2*k+1}")
        s.exec_set(1, 0)
        a(f"buffer_store_dwordx4 {q(Z+20)}, v{vZ}, s[44:47], s10 offen sc1")
        s.exec_all()
        a(f"{Lx}:")
        s.stamp(5)
        a(f"s_cmp_{'ge' if c['a5y'] else 'lt'}_u32 s11, 128\ns_cbranch_scc1 L_afin")
        s.a5(97, Kb, T, WOA)
        a("s_branch L_aend")
        a("L_afin:")
        a("s_sub_u32 s97, 127, s97")
        a("s_cmp_ge_u32 s97, 56\ns_cbranch_scc1 L_aend\ns_cmp_ge_u32 s3, 1\ns_cbranch_scc1 L_aend")
        s.final(97, 0, Kb, T, 10)
        a("L_aend:")
        s.stamp_out()
        a("s_endpgm")
    def build(s):
        a = s.a
        s.prologue()
        s.gy(); s.gx(); s.ga()
        a("L_end:\ns_endpgm")
        body = a.finish()
        import re
        if s.c.get('ldsys'): body = re.sub(r"(buffer_load_dword\S* .* offen(?: offset:\d+)?) sc1", r"\1 sc0 sc1", body)
        if s.c.get('stsys'): body = re.sub(r"(buffer_store_dword\S* .* offen(?: offset:\d+)?) sc1", r"\1 sc0 sc1", body)
        if s.c.get('stnt'): body = re.sub(r"(buffer_store_dword\S* .* offen(?: offset:\d+)?) sc1", r"\1 sc1 nt", body)
        if s.c.get('ldnt'): body = re.sub(r"(buffer_load_dword\S* .* offen(?: offset:\d+)?) sc1", r"\1 sc1 nt", body)
        hdr = open("concat_heads__gqa_block_cached__compressed_kv_cla__decode.s.ref").read().split("; @launch")[0]
        out = hdr + "; @launch grid=(512,1,1) block=(256,1,1) lds=81920\n"
        out += """; Written with my own generator script. One persistent launch, 512 workgroups of 4 waves, two per CU, all co-resident.
;   wg   0..127 (Y): q_B = x_B*w_q (half rows x 64 cols), q_abs = q_B*w_uk^T (absorbed key projection), later ctx = softmax-merged latent * w_uv
;   wg 128..255 (X): 64 latent rows each: scores q_abs*c_kv^T, local softmax (true max), P*c_kv, later out_B partials through w_o and the last sum
;   wg 256..511 (A): q_A = x_A*wq, GQA flash-decoding over a fixed share plus 8-key work items drawn from counters, then wo and the last sum
; (chosen once per launch through d_debug), by a cleared-then-filled sentinel, or by a checksum that mixes the tag in.
"""
        out += f'.amdgcn_target "amdgcn-amd-amdhsa--gfx950"\n.text\n.globl {KN}\n.p2align 8\n.type {KN},@function\n{KN}:\n'
        out += body
        out += f""".section .rodata,"a"
.p2align 6
.amdhsa_kernel {KN}
  .amdhsa_next_free_vgpr 256
  .amdhsa_next_free_sgpr 102
  .amdhsa_accum_offset 256
  .amdhsa_group_segment_fixed_size 0
  .amdhsa_kernarg_size 112
  .amdhsa_user_sgpr_count 2
  .amdhsa_user_sgpr_kernarg_segment_ptr 1
  .amdhsa_system_sgpr_workgroup_id_x 1
.end_amdhsa_kernel
"""
        return out
if __name__ == "__main__":
    from build import build
    name = sys.argv[1]
    cfg = {}
    for kv in sys.argv[2:]:
        k, v = kv.split("=")
        cfg[k] = v if k == "nt" else int(v)
    open(name, "w").write(Gen2(**cfg).build())
    print(build(name))
```

```python
import sys, math, struct
from asmlib import Asm
from gen import Gen, q, p2, f32, DPPF, KN, CEXP
OFF_QB, OFF_QA, OFF_QABS, OFF_CLR, OFF_ST3, OFF_STA, OFF_H4, OFF_HA, OFF_FIN, OFF_H3 = \
    0x0, 0x10000, 0x20000, 0x2c000, 0x30000, 0x38000, 0x40000, 0x80000, 0x200000, 0x400000
FIN_CG = 8192+128
FS = 4096+128; FIN_AB = 128*FS
QS = 2048+128
HA_U = 8192+128
H3_C = 32768+256
OFF_STAMP = 0x8000000
OFF_CHK = 0x1A0000
ROW = 2080; SLOT = 16*ROW
import gen as G1
G1.FIN_CG = FIN_CG
MF = "v_mfma_f32_16x16x32_bf16"

class Gen2(Gen):
    def __init__(s, **cfg):
        s.c = dict(stamp=False, nt="nt", sleep=2, timeout=100000, rnd=True, pa=8, pb=8, prio=2, prioa=0, n1=7, pu=8, px=8, pax=4, nax=16, nay=4, p1x=1, hk=0, osc=0, p1r=0, gmix=1, x1k=3, qat=4, x1w=1, x1s=6, x1n=4, ncas=8, eat=3, eglc=0, vq=4, npre=0, a5y=1, dwb=1, pdy=0, ylo=0, yhi=192, aprio=0, ystop=0, pw=0, ton=3, tok=3, tfn=3, tfk=3, spk=3, dwo=1, qf=0, spq=0, sp=1, sptime=2000, spsleep=2, spn=3, il=0, sat=1, tkn=6, xx=0, pdx=0, c1=0, ssleep=2, ns=10, tka=3, pd=9, qsleep=6, px0=4, v1=8, fsleep=2, pf=0, pa0=1, na0=4, na1=6, lead=10, h3d=0)
        s.c.update(cfg)
        s.a = Asm()
    def stamp_out(s):
        if not s.c['stamp']: return
        a = s.a
        a("s_mov_b64 exec, -1\nv_mov_b32 v8, 0")
        for k in range(12): a(f"v_writelane_b32 v8, s{84+k}, {k}")
        a("v_lshlrev_b32 v9, 2, v1")
        a("s_lshl_b32 s4, s2, 2\ns_add_u32 s4, s4, s3\ns_lshl_b32 s4, s4, 6")
        a(f"s_add_u32 s4, s4, {OFF_STAMP}")
        a("s_mov_b32 exec_lo, 0xffff\ns_mov_b32 exec_hi, 0")
        a("buffer_store_dword v8, v9, s[44:47], s4 offen")
    def prologue(s):
        a = s.a
        a("s_cmp_ge_u32 s2, 512\ns_cbranch_scc1 L_end")
        a("s_load_dwordx16 s[16:31], s[0:1], 0\ns_load_dwordx8 s[32:39], s[0:1], 64\ns_load_dwordx4 s[40:43], s[0:1], 96")
        a("s_memrealtime s[4:5]")
        a("v_lshrrev_b32 v7, 6, v0\nv_and_b32 v1, 63, v0")
        a("v_readfirstlane_b32 s3, v7\nv_lshlrev_b32 v6, 4, v1")
        if s.c['xx']:
            a("s_lshr_b32 s6, s2, 6\ns_cmp_eq_u32 s6, 3\ns_cselect_b32 s7, 192, 0\ns_add_u32 s2, s2, s7\ns_cmp_eq_u32 s6, 6\ns_cselect_b32 s7, 192, 0\ns_sub_u32 s2, s2, s7")
        if s.c['pf']:
            a(f"s_cmp_lt_u32 s2, {512-s.c['pf']}\ns_cbranch_scc1 L_nopf")
            a("s_getpc_b64 s[6:7]\ns_and_b32 s6, s6, 0xffffff00")
            a(f"v_lshlrev_b32 v9, 7, v0\nv_min_u32 v9, L_end-{KN}, v9\nglobal_load_dword v200, v9, s[6:7]")
            a("L_nopf:")
        a("s_cmp_ge_u32 s2, 256\ns_cbranch_scc1 L_A")
        if s.c['prio']: a(f"s_setprio {s.c['prio']}")
        a("s_cmp_ge_u32 s2, 128\ns_cbranch_scc1 L_X")
    def kwait(s):
        a = s.a
        a("s_waitcnt lgkmcnt(0)")
        a("s_or_b32 s77, s4, 1")
        if s.c['stamp']:
            for k in range(12): a(f"s_mov_b32 s{84+k}, 0")
            a("s_mov_b32 s84, s4")
    def common2(s, t):
        a = s.a
        a(f"v_and_b32 v{t}, 1, v1\nv_lshlrev_b32 v{t}, 4, v{t}\nv_mov_b32 v{t+1}, 0xffff\nv_lshlrev_b32 v{t}, v{t}, v{t+1}")
        a(f"v_bfe_u32 v{t+1}, v1, 1, 2")
        for r in range(4):
            a(f"v_cmp_eq_u32 vcc, {r}, v{t+1}\nv_cndmask_b32 v{2+r}, 0, v{t}, vcc")
    def get_epoch(s, vE, vZ):
        a = s.a
        L = a.label("Lge"); Ld = a.label("Lged")
        a(f"s_mov_b32 s78, {s.c['timeout']}")
        a(f"{L}:")
        a(f"v_readfirstlane_b32 s76, v{vE}")
        a(f"s_cmp_lg_u32 s76, 0\ns_cbranch_scc1 {Ld}")
        a(f"buffer_load_dword v{vE}, v{vZ}, s[48:51], 0 offen sc1\ns_waitcnt vmcnt(0)")
        a(f"s_sub_u32 s78, s78, 1\ns_cmp_lg_u32 s78, 0\ns_cbranch_scc1 {L}")
        a(f"{Ld}:")
    def check_tags(s, groups, t0, t1):
        if len(groups) == 1 and groups[0][0][0] == 's':
            a = s.a; exp, tags = groups[0]
            assert len(tags) % 2 == 0
            acc = []
            for k in range(0, len(tags), 2):
                d = (t0, t1)[(k//2) % 2]
                if k < 4: a(f"v_bitop3_b32 v{d}, v{tags[k]}, v{tags[k+1]}, {exp} bitop3:0x7e")
                else:
                    a(f"v_bitop3_b32 v{tags[k]}, v{tags[k]}, v{tags[k+1]}, {exp} bitop3:0x7e"); acc.append(tags[k])
            if len(tags) > 2: acc = [t1] + acc
            for k in range(0, len(acc), 2):
                y = acc[k+1] if k+1 < len(acc) else acc[k]
                a(f"v_or3_b32 v{t0}, v{t0}, v{acc[k]}, v{y}")
            a(f"v_cmp_ne_u32 vcc, 0, v{t0}\ns_cmp_eq_u64 vcc, 0")
        else:
            Gen.check_tags(s, groups, t0, t1)
    def spoll(s, soff, extra, n=1, stride=0, need=None):
        if not n: return
        if not s.c['sp']: return
        a = s.a
        L = a.label("Lsp"); Ld = a.label("Lspd")
        a(f"s_mov_b32 s78, {s.c['sptime']}")
        for k in range(n): a(f"s_add_u32 s{64+k}, s{soff}, {extra+4+k*stride}")
        a(f"{L}:")
        for k in range(n): a(f"s_load_dword s{68+k}, s[42:43], s{64+k} glc")
        a("s_waitcnt lgkmcnt(0)")
        a("s_mov_b32 s83, 0")
        for k in range(n): a(f"s_cmp_eq_u32 s{68+k}, s76\ns_addc_u32 s83, s83, 0")
        a(f"s_cmp_ge_u32 s83, {need or n}\ns_cbranch_scc1 {Ld}")
        a(f"s_sleep {s.c['spsleep']}\ns_sub_u32 s78, s78, 1\ns_cmp_lg_u32 s78, 0\ns_cbranch_scc1 {L}")
        a(f"{Ld}:")
    def poll_sent(s, issue, regs, t0, sleep=None, pre_issued=False):
        a = s.a
        L = a.label("Lps"); Ld = a.label("Lpsd")
        a(f"s_mov_b32 s78, {s.c['timeout']}")
        Lw = a.label("Lpsw")
        if pre_issued: a(f"s_branch {Lw}")
        a(f"{L}:")
        issue()
        a(f"{Lw}:")
        a("s_waitcnt vmcnt(0)")
        a(f"v_max3_u32 v{t0}, v{regs[0]}, v{regs[1]}, v{regs[2]}")
        rest = regs[3:]
        for i in range(0, len(rest), 2):
            y = rest[i+1] if i+1 < len(rest) else rest[i]
            a(f"v_max3_u32 v{t0}, v{t0}, v{rest[i]}, v{y}")
        a(f"v_cmp_eq_u32 vcc, -1, v{t0}")
        a(f"s_cbranch_vccz {Ld}")
        sl = s.c['sleep'] if sleep is None else sleep
        if sl: a(f"s_sleep {sl}")
        a(f"s_sub_u32 s78, s78, 1\ns_cmp_lg_u32 s78, 0\ns_cbranch_scc1 {L}")
        a(f"{Ld}:")
    def gather_q(s, T, soff, lds, n, between=None, nb=0, sleep=1):
        a = s.a
        a(f"s_add_u32 s7, s{soff}, 0x8000")
        def issue():
            for k in range(n):
                a(f"buffer_load_dwordx4 {q(T+8*k)}, v6, s[44:47], s{soff} offen offset:{1024*k} sc1")
                a(f"buffer_load_dwordx4 {q(T+8*k+4)}, v6, s[44:47], s7 offen offset:{1024*k} sc1")
        grp = [("s76", [T+4*k+j for k in range(2*n) for j in (1, 3)])]
        if between:
            Lok = a.label("Lgq")
            issue(); between()
            a(f"s_waitcnt vmcnt({nb})")
            s.check_tags(grp, T+8*n, T+8*n+1)
            a(f"s_cbranch_scc1 {Lok}")
            s.poll(issue, grp, T+8*n, T+8*n+1, sleep=sleep)
            a(f"{Lok}:")
        else:
            s.poll(issue, grp, T+8*n, T+8*n+1, sleep=sleep)
        for k in range(n):
            b = T+8*k
            a(f"v_add_f32 v{b}, v{b}, v{b+4}\nv_add_f32 v{b+2}, v{b+2}, v{b+6}\nv_cvt_pk_bf16_f32 v{b}, v{b}, v{b+2}")
            a(f"ds_write_b32 v{lds}, v{b} offset:{256*k}")
        a("s_waitcnt lgkmcnt(0)")
    def epi_addr(s, E, two_heads):
        a = s.a
        a(f"v_bfe_u32 v{E+3}, v0, 6, 1\nv_lshlrev_b32 v{E+3}, 10, v{E+3}")
        if two_heads: a(f"v_bfe_u32 v{E+1}, v0, 7, 1\nv_lshl_add_u32 v{E+3}, v{E+1}, 9, v{E+3}")
        a(f"v_bfe_u32 v{E+1}, v0, 1, 1\nv_lshl_add_u32 v{E+3}, v{E+1}, 8, v{E+3}")
        a(f"v_bfe_u32 v{E+1}, v0, 2, 4\nv_lshl_add_u32 v{E+3}, v{E+1}, 4, v{E+3}")
        a(f"v_and_b32 v{E+1}, 1, v0\nv_lshl_add_u32 v{E+3}, v{E+1}, 3, v{E+3}")
    def p1_setup(s, sI, T, V):
        a = s.a
        vX, vW, vSA, vSB, vLW, vRD, vPB = range(V, V+7)
        if s.c['p1r']:
            a(f"s_lshr_b32 s101, s{sI}, 6\ns_add_u32 s100, s{sI}, s101\ns_and_b32 s100, s100, 7\ns_lshl_b32 s100, s100, 3\ns_bfe_u32 s6, s{sI}, 0x30003\ns_add_u32 s100, s100, s6")
        else:
            a(f"s_and_b32 s100, s{sI}, 7\ns_lshl_b32 s100, s100, 3\ns_bfe_u32 s6, s{sI}, 0x30003\ns_add_u32 s100, s100, s6\ns_lshr_b32 s101, s{sI}, 6")
        a("s_mul_i32 s96, s101, 224\ns_mul_i32 s6, s3, 56\ns_add_u32 s96, s96, s6\ns_lshl_b32 s97, s96, 1")
        a("s_lshl_b32 s96, s96, 13\ns_lshl_b32 s6, s100, 7\ns_add_u32 s96, s96, s6")
        a(f"v_lshrrev_b32 v{T}, 3, v1\nv_mul_u32_u24 v{vX}, 14, v{T}\nv_and_b32 v{vX}, 0x7c, v{vX}")
        a(f"v_mul_u32_u24 v{vW}, {7*8192}, v{T}\nv_and_b32 v{T+1}, 7, v1\nv_lshl_add_u32 v{vW}, v{T+1}, 4, v{vW}")
    def p1_loads(s, X, W, srdX, srdW, V):
        a = s.a
        a(f"buffer_load_dwordx4 {q(X)}, v{V}, s[{srdX}:{srdX+3}], s97 offen")
        for i in range(7):
            a(f"s_add_u32 s79, s96, {i*8192}")
            a(f"buffer_load_dwordx4 {q(W+4*i)}, v{V+1}, s[{srdW}:{srdW+3}], s79 offen {s.c['nt']}")
    def p1_setup2(s, T, V):
        a = s.a
        vX, vW, vSA, vSB, vLW, vRD, vPB = range(V, V+7)
        a(f"s_lshl_b32 s100, s100, 9\ns_lshl_b32 s101, s101, 15\ns_add_u32 s100, s100, s101")
        a(f"v_bfe_u32 v{T}, v1, 3, 1\nv_cmp_eq_u32 vcc, 1, v{T}")
        a(f"v_mov_b32 v{T+8}, 0x01000100\nv_mov_b32 v{T+9}, 0x03020302\nv_mov_b32 v{T+10}, 0x05040504")
        a(f"v_cndmask_b32 v{vSA}, v{T+8}, v{T+9}, vcc\nv_cndmask_b32 v{vSB}, v{T+9}, v{T+10}, vcc")
        a(f"s_lshl_b32 s5, s3, 10\nv_add_u32 v{vLW}, s5, v6")
        a(f"v_and_b32 v{T+3}, 3, v1")
        a(f"v_lshrrev_b32 v{vRD}, 5, v1\nv_lshlrev_b32 v{vRD}, 11, v{vRD}\nv_bfe_u32 v{T}, v1, 1, 1\nv_lshl_add_u32 v{vRD}, v{T}, 8, v{vRD}")
        a(f"v_bfe_u32 v{T}, v1, 2, 3\nv_lshl_add_u32 v{vRD}, v{T}, 4, v{vRD}\nv_and_b32 v{T}, 1, v1\nv_lshl_add_u32 v{vRD}, v{T}, 3, v{vRD}")
    def p1_compute(s, X, W, T, V, lds, off, flag_vZ=None, hook=None):
        a = s.a
        vX, vW, vSA, vSB, vLW, vRD, vPB = range(V, V+7)
        AB, AC = T, T+12
        for i in range(7):
            ab = AB + (i % 2)*4
            k = i//2
            if i % 2 == 0: a(f"v_perm_b32 v{AB+8}, v{X+k}, v{X+k}, v{vSA}")
            else: a(f"v_perm_b32 v{AB+8}, v{X+k+1}, v{X+k}, v{vSB}")
            for r in range(4): a(f"v_and_b32 v{ab+r}, v{AB+8}, v{2+r}")
            a(f"{MF} {q(AC)}, {q(ab)}, {q(W+4*i)}, {'0' if i == 0 else q(AC)}")
        if hook: hook()
        a(f"ds_write_b128 v{vLW}, {q(AC)} offset:{lds}")
        a("s_waitcnt lgkmcnt(0)\ns_barrier")
        L = a.label("Lred")
        a(f"s_cmp_lg_u32 s3, 3\ns_cbranch_scc1 {L}")
        R = T
        for k in range(4): a(f"ds_read_b64 {p2(R+2*k)}, v{vRD} offset:{lds + (k//2)*1024 + (k%2)*640}")
        a(f"s_add_u32 s5, s100, {off}")
        a(f"v_mov_b32 v{R+9}, s76\nv_mov_b32 v{R+11}, s76")
        a("s_waitcnt lgkmcnt(0)")
        a(f"v_pk_add_f32 {p2(R)}, {p2(R)}, {p2(R+2)}\nv_pk_add_f32 {p2(R+4)}, {p2(R+4)}, {p2(R+6)}\nv_pk_add_f32 {p2(R)}, {p2(R)}, {p2(R+4)}")
        a(f"v_mov_b64 {p2(R+2)}, {p2(R)}")
        a(f"v_permlane32_swap_b32 v{R}, v{R+2}\nv_permlane32_swap_b32 v{R+1}, v{R+3}")
        a(f"v_add_f32 v{R+8}, v{R}, v{R+2}\nv_add_f32 v{R+10}, v{R+1}, v{R+3}")
        s.exec_set(0xffffffff, 0)
        a(f"buffer_store_dwordx4 {q(R+8)}, v6, s[44:47], s5 offen sc1")
        if flag_vZ is not None:
            a(f"s_lshl_b32 s5, s2, 2\ns_add_u32 s5, s5, {OFF_CLR+0x1000}")
            s.exec_set(1, 0)
            a(f"buffer_store_dword v{R+9}, v{flag_vZ}, s[44:47], s5 offen sc1")
        s.exec_all()
        a(f"{L}:")
    def proj_tail(s, A0, W, T, scb, sfin, scale=None):
        a = s.a
        a(f"v_permlane32_swap_b32 v{A0}, v{A0+1}\nv_add_f32 v{A0}, v{A0}, v{A0+1}")
        a(f"v_mov_b32 v{A0+1}, v{A0}\nv_permlane16_swap_b32 v{A0}, v{A0+1}\nv_add_f32 v{A0}, v{A0}, v{A0+1}")
        if scale is not None: a(f"v_mul_f32 v{A0}, v{A0}, v{scale}")
        a(f"v_cvt_pk_bf16_f32 v{A0}, v{A0}, v{A0}")
        a(f"v_mov_b32 v{A0+1}, v{A0}")
        a(f"v_mov_b32_dpp v{A0}, v{A0+1} row_ror:8 row_mask:0xa bank_mask:0xf")
        AC = T+8; S = T+12
        for g in range(8):
            ab = T + (g % 2)*4
            for r in range(4): a(f"v_and_b32_dpp v{ab+r}, v{A0}, v{2+r} row_newbcast:{g} {DPPF}")
            a(f"{MF} {q(AC)}, {q(ab)}, {q(W[g])}, {'0' if g == 0 else q(AC)}")
        a(f"v_cmp_gt_u32 vcc, 32, v1")
        a(f"v_mov_b32 v{S+1}, s76\nv_mov_b32 v{S+3}, s76")
        a("s_mov_b32 exec_lo, s82\ns_mov_b32 exec_hi, s82")
        a(f"v_cndmask_b32 v{S}, v{AC+2}, v{AC}, vcc\nv_cndmask_b32 v{S+2}, v{AC+3}, v{AC+1}, vcc")
        a(f"buffer_store_dwordx4 {q(S)}, v6, s[44:47], s{sfin} offen sc1")
        s.exec_all()
    def a5(s, sU, R, T, WOA):
        a = s.a; c = s.c
        OG = R; ST = R+8; Z = R+16
        a(f"s_lshr_b32 s12, s{sU}, 3")
        a(f"v_lshrrev_b32 v{T+22}, 4, v1\nv_lshlrev_b32 v{T+22}, 7, v{T+22}")
        a(f"s_lshr_b32 s8, s12, 1\ns_lshl_b32 s8, s8, 12\ns_and_b32 s6, s12, 1\ns_lshl_b32 s6, s6, 4\ns_add_u32 s8, s8, s6\ns_lshl_b32 s6, s3, 10\ns_add_u32 s8, s8, s6\ns_add_u32 s8, s8, {OFF_STA}")
        a(f"s_mul_i32 s6, s{sU}, {HA_U}\ns_lshl_b32 s5, s3, 11\ns_add_u32 s6, s6, s5\ns_add_u32 s6, s6, {OFF_HA}")
        a(f"v_lshlrev_b32 v{T+20}, 4, v0")
        a(f"s_mul_i32 s15, s{sU}, {FS}\ns_lshl_b32 s5, s3, 10\ns_add_u32 s15, s15, s5\ns_add_u32 s15, s15, {OFF_FIN}")
        def issue_o():
            a(f"buffer_load_dwordx4 {q(OG)}, v6, s[44:47], s6 offen sc1\nbuffer_load_dwordx4 {q(OG+4)}, v6, s[44:47], s6 offen offset:1024 sc1")
            a(f"buffer_load_dwordx4 {q(ST)}, v{T+22}, s[44:47], s8 offen sc1\nbuffer_load_dwordx4 {q(ST+4)}, v{T+22}, s[44:47], s8 offen offset:512 sc1")
        s.spoll(6, 0, c['ton'], 256*2, c['tok'])
        s.poll(issue_o, [("s76", [OG+k for k in range(1, 16, 2)])], Z, Z+1, sleep=c['fsleep'])
        s.stamp(7)
        a(f"v_max_f32 v{Z+2}, v{ST}, v{ST+4}")
        a(f"v_sub_f32 v{ST}, v{ST}, v{Z+2}\nv_sub_f32 v{ST+4}, v{ST+4}, v{Z+2}\nv_exp_f32 v{ST}, v{ST}\nv_exp_f32 v{ST+4}, v{ST+4}")
        a(f"v_mul_f32 v{Z}, v{ST}, v{OG}\nv_mul_f32 v{Z+1}, v{ST}, v{OG+2}\nv_mul_f32 v{Z+3}, v{ST}, v{ST+2}")
        a(f"v_fmac_f32 v{Z}, v{ST+4}, v{OG+4}\nv_fmac_f32 v{Z+1}, v{ST+4}, v{OG+6}\nv_fmac_f32 v{Z+3}, v{ST+4}, v{ST+6}")
        a(f"ds_write_b128 v{T+20}, {q(Z)} offset:{0x6000}")
        a("s_waitcnt lgkmcnt(0)\ns_barrier")
        s.stamp(8)
        for k in range(4): a(f"ds_read_b128 {q(OG+4*k)}, v6 offset:{0x6000+1024*k}")
        a("s_waitcnt lgkmcnt(0)")
        a(f"v_max3_f32 v{Z+2}, v{OG+2}, v{OG+6}, v{OG+10}\nv_max_f32 v{Z+2}, v{Z+2}, v{OG+14}")
        s.allred_rows("v_max_f32", Z+2, Z+4)
        for k in range(4): a(f"v_sub_f32 v{OG+4*k+2}, v{OG+4*k+2}, v{Z+2}")
        for k in range(4): a(f"v_exp_f32 v{OG+4*k+2}, v{OG+4*k+2}")
        for k in range(4):
            op = "v_mul_f32" if k == 0 else "v_fmac_f32"
            a(f"{op} v{Z+3}, v{OG+4*k+2}, v{OG+4*k+3}\n{op} v{Z}, v{OG+4*k+2}, v{OG+4*k}\n{op} v{Z+1}, v{OG+4*k+2}, v{OG+4*k+1}")
        s.allred_rows("v_add_f32", Z+3, Z+4)
        a(f"v_rcp_f32 v{Z+3}, v{Z+3}")
        s.proj_tail(Z, WOA, T+24, 3, 15, scale=Z+3)
        s.stamp(9)
    def final(s, sJ, ab, F, T, stp):
        a = s.a; c = s.c
        s.srd(52, 38, 1792)
        a(f"s_mov_b32 s12, {ab}\ns_mov_b32 s13, s{sJ}")
        a("s_sub_u32 s5, s13, 48\ns_lshr_b32 s6, s5, 1\ns_lshl_b32 s6, s6, 2\ns_and_b32 s5, s5, 1\ns_add_u32 s6, s6, s5\ns_add_u32 s6, s6, 48")
        a("s_cmp_ge_u32 s13, 48\ns_cselect_b32 s13, s6, s13")
        a(f"s_mul_i32 s6, s12, {FIN_AB}\ns_lshl_b32 s5, s13, 6\ns_add_u32 s6, s6, s5\ns_add_u32 s6, s6, {OFF_FIN}")
        a(f"v_lshrrev_b32 v{T+9}, 2, v1\nv_mul_u32_u24 v{T+9}, {FS}, v{T+9}\nv_and_b32 v{T+10}, 3, v1\nv_lshl_add_u32 v{T+9}, v{T+10}, 4, v{T+9}")
        def issue_f():
            for i in range(8):
                a(f"s_add_u32 s79, s6, {i*16*FS}")
                a(f"buffer_load_dwordx4 {q(F+4*i)}, v{T+9}, s[44:47], s79 offen sc1")
        a("s_mul_i32 s15, s12, 896\ns_lshr_b32 s5, s13, 4\ns_lshl_b32 s5, s5, 8\ns_add_u32 s15, s15, s5")
        a("s_and_b32 s5, s13, 3\ns_lshl_b32 s5, s5, 6\ns_add_u32 s15, s15, s5")
        a("s_bfe_u32 s5, s13, 0x10002\ns_lshl_b32 s5, s5, 3\ns_add_u32 s15, s15, s5")
        a("s_bfe_u32 s5, s13, 0x10003\ns_lshl_b32 s5, s5, 2\ns_add_u32 s15, s15, s5")
        a(f"v_lshlrev_b32 v{T+8}, 2, v1")
        s.spoll(6, 0, c['tfn'], FS*37, c['tfk'])
        s.poll(issue_f, [("s76", [F+4*i+k for i in range(8) for k in (1, 3)])], T+4, T+5, sleep=c['fsleep'])
        s.stamp(stp)
        dl = c.get('dlb' if ab else 'dla')
        if dl:
            Lsp = a.label("Ldl")
            a(f"s_memrealtime s[98:99]\ns_waitcnt lgkmcnt(0)\ns_mov_b32 s83, s98\n{Lsp}:\ns_memrealtime s[98:99]\ns_waitcnt lgkmcnt(0)\ns_sub_u32 s5, s98, s83\ns_cmp_lt_u32 s5, {dl}\ns_cbranch_scc1 {Lsp}")
        for st in (16, 8, 4):
            for i in range(0, st, 4):
                a(f"v_add_f32 v{F+i}, v{F+i}, v{F+st+i}\nv_add_f32 v{F+i+2}, v{F+i+2}, v{F+st+i+2}")
        for m in ("row_ror:8", "row_ror:4"):
            for k in (0, 2): a(f"v_add_f32_dpp v{F+k}, v{F+k}, v{F+k} {m} {DPPF}")
        for k in (0, 2): s.allred_rows("v_add_f32", F+k, F+k+1)
        a(f"v_cvt_pk_bf16_f32 v{F}, v{F}, v{F+2}")
        if c.get('thr'):
            a(f"s_memrealtime s[98:99]\ns_waitcnt lgkmcnt(0)\ns_sub_u32 s5, s98, s76\ns_cmp_gt_u32 s5, {c['thr']}\ns_cselect_b32 s5, 0x7fc07fc0, 0\nv_or_b32 v{F}, s5, v{F}")
        if c.get('spin'):
            Lsp = a.label("Lspin")
            a(f"{Lsp}:\ns_memrealtime s[98:99]\ns_waitcnt lgkmcnt(0)\ns_sub_u32 s5, s98, s76\ns_cmp_lt_u32 s5, {c['spin']}\ns_cbranch_scc1 {Lsp}")
        if c.get('enc'):
            a("s_memrealtime s[98:99]\ns_waitcnt lgkmcnt(0)\ns_sub_u32 s5, s98, s76")
            a(f"v_mov_b32 v{F+4}, s5\nv_lshrrev_b32 v{F+4}, v{T+8}, v{F+4}")
            a(f"v_and_b32 v{F+5}, 3, v{F+4}\nv_bfe_u32 v{F+4}, v{F+4}, 2, 2\nv_lshl_or_b32 v{F+5}, v{F+4}, 16, v{F+5}")
            a(f"v_and_b32 v{F}, 0xfffcfffc, v{F}\nv_or_b32 v{F}, v{F}, v{F+5}")
        s.exec_set(0xf, 0)
        a(f"buffer_store_dword v{F}, v6, s[52:55], s15 offen {['', 'sc1', 'sc0 sc1', 'nt'][c['osc']]}")
        s.exec_all()
        s.stamp(stp+1)
    def gy(s):
        a = s.a; c = s.c; nt = c['nt']; pb = c['pb']
        XB, WB, UK, UV, T = 8, 16, 72, 136, 200
        PVv = T+40
        vLW = PVv+4
        vZ, vU, vQ = T+47, T+50, T+51
        vE = T+48
        s.p1_setup(2, T, PVv)
        a(f"v_mov_b32 v{vZ}, 0\nv_mov_b32 v{vE+1}, 0")
        a("s_lshr_b32 s12, s2, 3\ns_and_b32 s13, s2, 7")
        if c['qf']:
            a(f"s_lshl_b32 s14, s13, 12\ns_lshl_b32 s6, s12, 4\ns_add_u32 s14, s14, s6\ns_add_u32 s14, s14, {OFF_QABS}")
            a(f"v_lshlrev_b32 v{T+2}, 8, v1")
        else:
            a(f"s_lshl_b32 s14, s13, 8\ns_mul_i32 s6, s12, {QS}\ns_add_u32 s14, s14, s6\ns_add_u32 s14, s14, {OFF_QABS}")
        for r in range(4): a(f"v_mov_b32 v{T+4+r}, -1")
        s.kwait()
        s.srd(44, 42, 0x10000000); s.srd(48, 40, 256)
        s.srd(52, 26, 896); s.srd(56, 30, 448*8192)
        L = a.label("Le0")
        a(f"s_cmp_lg_u32 s3, 3\ns_cbranch_scc1 {L}")
        if c['ncas']:
            Lq = a.label("Lcas")
            a(f"s_cmp_ge_u32 s2, {c['ncas']}\ns_cbranch_scc1 {Lq}")
            a(f"s_mov_b32 s80, s77\ns_mov_b32 s81, 0\ns_atomic_cmpswap s[80:81], s[40:41], 0 glc\n{Lq}:")
        else:
            a(f"v_mov_b32 v{vE}, s77")
            s.exec_set(1, 0)
            a(f"buffer_atomic_cmpswap {p2(vE)}, v{vZ}, s[48:51], 0 offen sc0 sc1")
        s.exec_set(0xffff, 0)
        a(f"buffer_store_dwordx4 {q(T+4)}, v{T+2 if c['qf'] else 6}, s[44:47], s14 offen sc1")
        s.exec_all()
        a(f"{L}:")
        if c.get('fi'): s.stamp(9)
        s.p1_loads(XB, WB, 52, 56, PVv)
        if c.get('fi'): s.stamp(10)
        s.srd(68, 32, 1024*8192); s.srd(72, 34, 1024*8192)
        a(f"v_lshrrev_b32 v{T+2}, 4, v1\nv_lshrrev_b32 v{vQ}, 4, v0\nv_lshlrev_b32 v{vQ}, {8 if c['qf'] else 4}, v{vQ}")
        a(f"v_bfe_u32 v{vU}, v1, 2, 2\nv_lshlrev_b32 v{vU}, 16, v{vU}\nv_lshl_add_u32 v{vU}, v{T+2}, 6, v{vU}")
        a(f"v_and_b32 v{T+3}, 3, v1\nv_lshl_add_u32 v{vU}, v{T+3}, 4, v{vU}")
        a("s_lshl_b32 s15, s13, 20\ns_lshl_b32 s5, s3, 18\ns_add_u32 s15, s15, s5\ns_lshl_b32 s5, s12, 9\ns_add_u32 s15, s15, s5")
        s.common2(T+12)
        s.p1_setup2(T, PVv)
        def ukload(n, pace):
            i, hf = n//2, n % 2
            a(f"s_add_u32 s79, s15, {i*8192}")
            if pace: a(f"s_waitcnt vmcnt({pace-1})")
            a(f"buffer_load_dwordx4 {q(UK+4*n)}, v{vU}, s[68:71], s79 offen offset:{hf*256} {nt}")
        n1 = c['n1']
        for n in range(n1):
            ukload(n, pb)
            if c['ncas'] and n == c['eat']:
                Lq = a.label("Lel")
                a(f"s_cmp_lg_u32 s3, 3\ns_cbranch_scc1 {Lq}\ns_load_dword s76, s[40:41], 0{' glc' if c['eglc'] else ''}\n{Lq}:")
        a(f"s_waitcnt vmcnt({n1})")
        s.stamp(1)
        def ehook():
            L = a.label("Le1"); Lo = a.label("Leo")
            a(f"s_cmp_lg_u32 s3, 3\ns_cbranch_scc1 {L}")
            Lf = a.label("Lef")
            a(f"s_waitcnt lgkmcnt(0)\ns_cmp_eq_u32 s76, 0\ns_cbranch_scc1 {Lf}")
            a(f"s_sub_u32 s5, s77, s76\ns_add_u32 s5, s5, 800\ns_cmp_lt_u32 s5, 1600\ns_cbranch_scc1 {Lo}")
            a(f"{Lf}:")
            a(f"v_mov_b32 v{vE}, 0")
            s.get_epoch(vE, vZ)
            a(f"{Lo}:")
            a(f"v_mov_b32 v{vE}, s76\nds_write_b32 v{vZ}, v{vE} offset:{0x2800}")
            a(f"{L}:")
        s.p1_compute(XB, WB, T, PVv, 0, OFF_QB, vZ, ehook)
        a(f"ds_read_b32 v{vE}, v{vZ} offset:{0x2800}")
        s.stamp(2)
        for n in range(n1, 16): ukload(n, pb)
        a(f"s_waitcnt lgkmcnt(0)\nv_readfirstlane_b32 s76, v{vE}")
        tsave = c['timeout']
        if c.get('nob'): c['timeout'] = 1
        L = a.label("Lqb")
        a(f"s_cmp_ge_u32 s3, 2\ns_cbranch_scc1 {L}")
        a(f"s_lshl_b32 s6, s12, 11\ns_lshl_b32 s5, s3, 10\ns_add_u32 s6, s6, s5\ns_add_u32 s6, s6, {OFF_QB}")
        a(f"v_lshlrev_b32 v{T+20}, 2, v0\nv_add_u32 v{T+20}, 0x2000, v{T+20}")
        s.gather_q(T, 6, T+20, 1)
        a(f"{L}:")
        a(f"v_lshrrev_b32 v{T+21}, 4, v1\nv_lshlrev_b32 v{T+21}, 6, v{T+21}\nv_and_b32 v{T+22}, 3, v1\nv_lshl_add_u32 v{T+21}, v{T+22}, 4, v{T+21}")
        a("s_waitcnt vmcnt(0)\ns_barrier")
        s.stamp(3)
        QF = T; D = WB
        a(f"ds_read_b128 {q(QF)}, v{T+21} offset:{0x2000}\nds_read_b128 {q(QF+4)}, v{T+21} offset:{0x2000+256}")
        a("s_waitcnt lgkmcnt(0)")
        for i in range(8):
            a(f"{MF} {q(D+4*i)}, {q(UK+8*i)}, {q(QF)}, 0")
            a(f"{MF} {q(D+4*i)}, {q(UK+8*i+4)}, {q(QF+4)}, {q(D+4*i)}")
        R = T+8
        for r in range(4):
            for i in range(8):
                if r == 0: a(f"v_mov_b32_dpp v{R+i}, v{D+4*i} quad_perm:[0,0,0,0] {DPPF}")
                else: a(f"v_add_f32_dpp v{R+i}, v{D+4*i+r}, v{R+i} quad_perm:[{r},{r},{r},{r}] {DPPF}")
        for k in range(4): a(f"v_cvt_pk_bf16_f32 v{R+8+k}, v{R+2*k}, v{R+2*k+1}")
        for k in range(4): a(f"v_min_u32 v{R+8+k}, -2, v{R+8+k}")
        s.exec_set(0x00010001, 0x00010001)
        if c['qf']:
            a(f"buffer_store_dwordx4 {q(R+8)}, v{vQ}, s[44:47], s14 offen sc1")
            s.exec_all()
        else:
            a(f"ds_write_b128 v{vQ}, {q(R+8)} offset:{0x2900}")
            s.exec_all()
            a("s_waitcnt lgkmcnt(0)\ns_barrier")
            L = a.label("Lqp")
            a(f"s_cmp_lg_u32 s3, 3\ns_cbranch_scc1 {L}")
            s.exec_set(0xffff, 0)
            a(f"ds_read_b128 {q(R+8)}, v6 offset:{0x2900}\ns_waitcnt lgkmcnt(0)")
            a(f"buffer_store_dwordx4 {q(R+8)}, v6, s[44:47], s14 offen sc1")
            s.exec_all()
            a(f"{L}:")
        s.stamp(4)
        a(f"v_lshrrev_b32 v{vU}, 4, v1\nv_lshlrev_b32 v{vU}, 13, v{vU}\nv_and_b32 v{T+22}, 15, v1\nv_lshl_add_u32 v{vU}, v{T+22}, 4, v{vU}")
        def uvload(n, pace):
            g, hf = n//2, n % 2
            a(f"s_add_u32 s79, s15, {g*4*8192}")
            if pace: a(f"s_waitcnt vmcnt({pace-1})")
            a(f"buffer_load_dwordx4 {q(UV+4*n)}, v{vU}, s[72:75], s79 offen offset:{hf*256} {nt}")
        for n in range(16): uvload(n, c['pu'])
        HG = UK; ST = T
        WL = 0x3000
        a(f"s_mul_i32 s6, s2, {H3_C}\ns_lshl_b32 s5, s3, 13\ns_add_u32 s6, s6, s5\ns_add_u32 s6, s6, {OFF_H3}\ns_add_u32 s7, s6, 4096")
        vSH = T+26
        a(f"v_and_b32 v{vSH}, 15, v1\nv_lshlrev_b32 v{vSH}, 1, v{vSH}\ns_mov_b32 s10, 0xff\ns_sub_u32 s9, 0, s76")
        L = a.label("Lst")
        a(f"s_cmp_lg_u32 s3, 0\ns_cbranch_scc1 {L}")
        a(f"s_lshl_b32 s5, s12, 11\ns_add_u32 s5, s5, {OFF_ST3}")
        def issue_st():
            for k in range(2): a(f"buffer_load_dwordx4 {q(ST+4*k)}, v6, s[44:47], s5 offen offset:{1024*k} sc1")
        if c['stamp']:
            a("s_waitcnt vmcnt(0)"); s.stamp(5)
        s.spoll(5, 0, c['spn'], 16*37, c['spk'])
        s.poll(issue_st, [("s76", [ST+1, ST+3, ST+5, ST+7])], T+8, T+9, sleep=c['ssleep'])
        a(f"{L}:")
        a("s_barrier")
        s.stamp(6)
        def issue_hg(cond=False):
            for i in range(c.get('nbk', 8)):
                Lk = a.label("Lhg")
                if cond: a(f"s_bitcmp0_b32 s10, {i}\ns_cbranch_scc1 {Lk}")
                a(f"buffer_load_dwordx4 {q(HG+4*i)}, v6, s[44:47], {'s6' if i < 4 else 's7'} offen offset:{1024*(i%4)} sc1")
                if cond: a(f"{Lk}:")
        if c['h3d']: a(f"s_sleep {c['h3d']}")
        issue_hg()
        L = a.label("Lwt")
        a(f"s_cmp_lg_u32 s3, 0\ns_cbranch_scc1 {L}")
        M, Lr, TT, E0 = T+8, T+9, T+10, T+12
        a(f"v_max_f32 v{M}, v{ST}, v{ST+4}")
        s.allred_inrow("v_max_f32", M); s.allred_rows("v_max_f32", M, TT)
        a(f"v_sub_f32 v{E0}, v{ST}, v{M}\nv_sub_f32 v{E0+1}, v{ST+4}, v{M}\nv_exp_f32 v{E0}, v{E0}\nv_exp_f32 v{E0+1}, v{E0+1}")
        a(f"v_mul_f32 v{Lr}, v{E0}, v{ST+2}\nv_fmac_f32 v{Lr}, v{E0+1}, v{ST+6}")
        s.allred_inrow("v_add_f32", Lr); s.allred_rows("v_add_f32", Lr, TT)
        a(f"v_rcp_f32 v{Lr}, v{Lr}")
        a(f"v_and_b32 v{TT}, 3, v1\nv_lshlrev_b32 v{TT}, 7, v{TT}\nv_lshrrev_b32 v{TT+1}, 5, v1\nv_lshl_add_u32 v{TT}, v{TT+1}, 5, v{TT}")
        a(f"v_bfe_u32 v{TT+1}, v1, 2, 3\nv_lshl_add_u32 v{TT}, v{TT+1}, 2, v{TT}")
        for k in range(2):
            e = E0+k; hi = E0+2+k; lo = E0+4+k
            a(f"v_mul_f32 v{e}, v{e}, v{Lr}\nv_cvt_pk_bf16_f32 v{hi}, v{e}, v{e}\nv_and_b32 v{lo}, 0xffff0000, v{hi}\nv_sub_f32 v{lo}, v{e}, v{lo}\nv_cvt_pk_bf16_f32 v{lo}, v{lo}, v{lo}")
            a(f"ds_write_b32 v{TT}, v{hi} offset:{WL+64*k}\nds_write_b32 v{TT}, v{lo} offset:{WL+512+64*k}")
        a("s_waitcnt lgkmcnt(0)")
        a(f"{L}:")
        a(f"v_bfe_u32 v{T+20}, v1, 3, 1\nv_lshlrev_b32 v{T+20}, 9, v{T+20}\nv_lshrrev_b32 v{T+21}, 4, v1\nv_lshl_add_u32 v{T+20}, v{T+21}, 7, v{T+20}")
        a(f"s_lshl_b32 s5, s3, 5\nv_add_u32 v{T+20}, s5, v{T+20}")
        a(f"v_and_b32 v{T+22}, 1, v1\nv_lshlrev_b32 v{T+22}, 8, v{T+22}\nv_bfe_u32 v{T+23}, v1, 1, 2\nv_lshl_add_u32 v{T+22}, v{T+23}, 4, v{T+22}")
        a(f"v_lshl_add_u32 v{T+22}, v{T+21}, 2, v{T+22}\ns_lshl_b32 s5, s3, 6\nv_add_u32 v{T+22}, s5, v{T+22}")
        a("s_barrier")
        WW = T; AO = WB
        a(f"ds_read_b128 {q(WW)}, v{T+20} offset:{WL}\nds_read_b128 {q(WW+4)}, v{T+20} offset:{WL+16}")
        a("s_waitcnt lgkmcnt(0)")
        for i in range(8):
            for r in range(4): a(f"v_and_b32 v{AO+4*i+r}, v{WW+i}, v{2+r}")
        DC = T+8
        Lp = a.label("Lck"); Lw = a.label("Lckw"); Ld = a.label("Lckd")
        a(f"s_mov_b32 s78, {c['timeout']}\ns_branch {Lw}")
        a(f"{Lp}:")
        issue_hg(True)
        a(f"{Lw}:")
        a("s_waitcnt vmcnt(0)")
        SU, BT = 48, 56
        for i in range(8):
            h_ = HG+4*i
            a(f"v_and_b32 v{BT+i}, 3, v{h_}\nv_add3_u32 v{SU+i}, v{h_}, v{h_+1}, v{h_+2}\nv_and_or_b32 v{h_}, v{h_}, -4, 2")
            a(f"v_lshl_add_u32 v{BT+i}, v{BT+i}, v{vSH}, v{BT+i}\nv_add_u32 v{SU+i}, v{SU+i}, v{h_+3}")
            a(f"{MF} {q(DC)}, {q(AO+4*i)}, {q(HG+4*i)}, {'0' if i == 0 else q(DC)}")
            a(f"v_sub_u32 v{SU+i}, v{SU+i}, v{BT+i}")
        for m in ("quad_perm:[1,0,3,2]", "quad_perm:[2,3,0,1]", "row_half_mirror", "row_mirror"):
            for i in range(8): a(f"v_add_u32_dpp v{SU+i}, v{SU+i}, v{SU+i} {m} {DPPF}")
        for i in range(8): a(f"v_cmp_ne_u32 s[{64+2*(i%4)}:{65+2*(i%4)}], s9, v{SU+i}" ) if i < 4 else None
        a("s_mov_b32 s11, 0")
        for half in range(2):
            if half:
                for i in range(4, 8): a(f"v_cmp_ne_u32 s[{64+2*(i%4)}:{65+2*(i%4)}], s9, v{SU+i}")
            for i in range(4*half, 4*half+4):
                a(f"s_cmp_lg_u64 s[{64+2*(i%4)}:{65+2*(i%4)}], 0\ns_cselect_b32 s5, {1 << i}, 0\ns_or_b32 s11, s11, s5")
        a(f"s_and_b32 s10, s10, s11\ns_cbranch_scc0 {Ld}")
        a(f"s_sleep 1\ns_sub_u32 s78, s78, 1\ns_cmp_lg_u32 s78, 0\ns_cbranch_scc1 {Lp}")
        a(f"{Ld}:")
        s.stamp(7)
        a(f"ds_write_b128 v{vLW}, {q(DC)}")
        a("s_waitcnt lgkmcnt(0)\ns_barrier")
        Z = T+12
        for k in range(8): a(f"ds_read_b32 v{Z+k}, v{T+22} offset:{512*k}")
        E = T+24
        s.epi_addr(E, False)
        a(f"v_lshlrev_b32 v{E}, 4, v0")
        a(f"s_lshl_b32 s5, s3, 11\nv_add_u32 v{E+2}, s5, v6")
        a(f"s_lshl_b32 s5, s2, 11\ns_add_u32 s5, s5, {OFF_H4}")
        a("s_waitcnt lgkmcnt(0)")
        for st in (4, 2):
            for i in range(0, st, 2): a(f"v_pk_add_f32 {p2(Z+i)}, {p2(Z+i)}, {p2(Z+st+i)}")
        a(f"v_add_f32 v{Z}, v{Z}, v{Z+1}\nv_cvt_pk_bf16_f32 v{Z}, v{Z}, v{Z}")
        DD = T+28
        for g in range(8):
            ab = T + (g % 2)*4
            for r in range(4): a(f"v_and_b32_dpp v{ab+r}, v{Z}, v{2+r} row_newbcast:{g} {DPPF}")
            for hf in range(2):
                a(f"{MF} {q(DD+4*hf)}, {q(ab)}, {q(UV+8*g+4*hf)}, {'0' if g == 0 else q(DD+4*hf)}")
        a(f"ds_write_b128 v{E+2}, {q(DD)} offset:{0x4000}\nds_write_b128 v{E+2}, {q(DD+4)} offset:{0x4000+1024}")
        a("s_waitcnt lgkmcnt(0)\ns_barrier")
        a(f"s_cmp_ge_u32 s3, 2\ns_cbranch_scc1 L_ya5")
        X = T
        for i in range(4): a(f"ds_read_b64 {p2(X+2*i)}, v{E+3} offset:{0x4000+2048*i}")
        a("s_waitcnt lgkmcnt(0)")
        for st in (4, 2):
            for i in range(0, st, 2): a(f"v_pk_add_f32 {p2(X+i)}, {p2(X+i)}, {p2(X+st+i)}")
        a(f"v_mov_b32 v{X+2}, v{X+1}\nv_mov_b32 v{X+1}, s76\nv_mov_b32 v{X+3}, s76")
        a(f"buffer_store_dwordx4 {q(X)}, v{E}, s[44:47], s5 offen sc1")
        s.stamp(8)
        c['timeout'] = tsave
        a("L_ya5:")
        s.stamp_out()
        a("s_endpgm")
    def gx(s):
        a = s.a; c = s.c; nt = c['nt']; pb = c['pb']
        a("L_X:")
        L1, PV, QF, S = 16, 144, 208, 240
        vTR, vL, vSX, vZ, vE = 8, 9, 10, 11, 12
        a("s_sub_u32 s11, s2, 128")
        a("s_lshl_b32 s8, s11, 17\ns_lshl_b32 s6, s3, 13\ns_add_u32 s8, s8, s6")
        a(f"s_mul_i32 s9, s3, {4*ROW}")
        s.kwait()
        s.srd(52, 28, 8192*2048)
        def dma(i, pace):
            for rr in range(4):
                a(f"s_add_u32 m0, s9, {(i%2)*SLOT + rr*ROW}")
                a(f"s_add_u32 s79, s8, {i*32768 + rr*2048}")
                for hf in range(2):
                    if pace: a(f"s_waitcnt vmcnt({pace-1})")
                    a(f"buffer_load_dwordx4 v6, s[52:55], s79 offen offset:{1024*hf} {nt} lds")
        if c.get('fi'): s.stamp(10)
        dma(0, c['px0'])
        if c.get('fi'): s.stamp(11)
        s.srd(44, 42, 0x10000000); s.srd(48, 40, 256); s.srd(56, 36, 4096*896)
        s.common2(13)
        a(f"v_lshrrev_b32 v13, 2, v1\nv_mul_u32_u24 v{vTR}, {ROW}, v13\nv_and_b32 v13, 3, v1\nv_lshl_add_u32 v{vTR}, v13, 3, v{vTR}")
        a(f"s_lshl_b32 s5, s3, 9\nv_add_u32 v{vTR}, s5, v{vTR}")
        a(f"v_and_b32 v13, 15, v1\nv_mul_u32_u24 v{vL}, {ROW}, v13\nv_lshrrev_b32 v14, 4, v1\nv_lshl_add_u32 v{vL}, v14, 4, v{vL}\nv_add_u32 v{vL}, s5, v{vL}")
        a(f"v_add_u32 v{vSX}, {2*SLOT}, v6\nv_mov_b32 v{vZ}, 0")
        a(f"v_lshrrev_b32 v15, 5, v1\nv_lshlrev_b32 v15, 3, v15\nv_bfe_u32 v7, v1, 4, 1\nv_add_u32 v15, v15, v7\nv_mul_u32_u24 v15, {H3_C}, v15")
        a(f"v_and_b32 v7, 15, v1\nv_lshl_add_u32 v15, v7, 4, v15")
        a(f"s_mul_i32 s10, s3, {2*H3_C}\ns_lshl_b32 s5, s11, 8\ns_add_u32 s10, s10, s5\ns_add_u32 s10, s10, {OFF_H3}")
        dma(1, c['px'])
        def tr(i, dst):
            for t in range(16): a(f"ds_read_b64_tr_b16 {p2(dst(t))}, v{vTR} offset:{(i%2)*SLOT+32*t}")
        def l1(i):
            for ks in range(8): a(f"ds_read_b128 {q(L1+(i*8+ks)*4)}, v{vL} offset:{(i%2)*SLOT+64*ks}")
        a(f"s_lshl_b32 s6, s3, 9\ns_add_u32 s6, s6, {OFF_QABS}\ns_add_u32 s7, s6, {8*QS}\ns_mov_b32 s12, {OFF_CLR+0x1000}\ns_mov_b32 s13, 0xff")
        a(f"v_lshrrev_b32 v14, 3, v1\nv_mul_u32_u24 v14, {QS}, v14\nv_and_b32 v7, 7, v1\nv_lshl_add_u32 v14, v7, 4, v14")
        a(f"v_lshlrev_b32 v7, 5, v7\nv_bfe_u32 v13, v1, 3, 1\nv_lshl_add_u32 v7, v13, 4, v7\nv_lshrrev_b32 v13, 4, v1\nv_lshl_add_u32 v7, v13, 2, v7")
        a(f"v_lshlrev_b32 v13, 3, v1")
        def issue_c():
            a(f"buffer_load_dwordx2 {p2(S)}, v13, s[44:47], s12 offen sc1")
            a(f"buffer_load_dword v{vE}, v{vZ}, s[48:51], 0 offen sc1")
        def issue_q(cond=False):
            for i in range(8):
                Lk = a.label("Lqg")
                if cond: a(f"s_bitcmp0_b32 s13, {i}\ns_cbranch_scc1 {Lk}")
                a(f"buffer_load_dwordx4 {q(QF+4*i)}, v14, s[44:47], {'s7' if i % 2 else 's6'} offen offset:{128*(i//2)} sc1")
                if cond: a(f"{Lk}:")
        cgrp = [(f"v{vE}", [S, S+1])]
        for i in range(4):
            a(f"s_waitcnt vmcnt(8)")
            if i == 2:
                L = a.label("Lclr"); Lk = a.label("Lclk")
                a(f"s_cmp_lg_u32 s3, 0\ns_cbranch_scc1 {L}")
                s.check_tags(cgrp, S+2, S+3)
                a(f"s_cbranch_scc1 {Lk}")
                s.poll(issue_c, cgrp, S+2, S+3, sleep=4)
                a(f"{Lk}:")
                a(f"ds_write_b32 v{vSX}, v{vE} offset:12288\ns_waitcnt lgkmcnt(0)")
                a(f"{L}:")
            a("s_barrier")
            l1(i)
            if i < 2:
                tr(i, lambda t: PV+4*t+2*i)
                a("s_waitcnt lgkmcnt(0)\ns_barrier")
                if i == 1:
                    L = a.label("Lcli")
                    a(f"s_cmp_lg_u32 s3, 0\ns_cbranch_scc1 {L}")
                    issue_c()
                    a(f"{L}:")
                dma(i+2, c['px'])
            if i == 2:
                a(f"ds_read_b32 v{vE}, v{vSX} offset:12288")
                a(f"s_waitcnt vmcnt({c['qat']})")
                issue_q()
        tsave = c['timeout']
        s.stamp(1)
        if True:
            Lp = a.label("Lqp"); Lw = a.label("Lqw"); Ld = a.label("Lqd")
            a(f"s_mov_b32 s78, {c['timeout']}\ns_branch {Lw}")
            a(f"{Lp}:")
            issue_q(True)
            a(f"{Lw}:")
            a("s_waitcnt vmcnt(0)")
            for i in range(8): a(f"v_max3_u32 v{S+i}, v{QF+4*i}, v{QF+4*i+1}, v{QF+4*i+2}")
            for i in range(8): a(f"v_max_u32 v{S+i}, v{S+i}, v{QF+4*i+3}")
            a(f"v_max3_u32 v{S+8}, v{S}, v{S+1}, v{S+2}\nv_max3_u32 v{S+9}, v{S+3}, v{S+4}, v{S+5}\nv_max3_u32 v{S+8}, v{S+8}, v{S+6}, v{S+7}\nv_max_u32 v{S+8}, v{S+8}, v{S+9}")
            a(f"v_cmp_eq_u32 vcc, -1, v{S+8}\ns_cbranch_vccz {Ld}")
            a("s_mov_b32 s13, 0")
            for i in range(8):
                a(f"v_cmp_eq_u32 vcc, -1, v{S+i}\ns_cmp_lg_u64 vcc, 0\ns_cselect_b32 s5, {1 << i}, 0\ns_or_b32 s13, s13, s5")
            a(f"s_sleep 1\ns_sub_u32 s78, s78, 1\ns_cmp_lg_u32 s78, 0\ns_cbranch_scc1 {Lp}")
            a(f"{Ld}:")
            a("s_waitcnt lgkmcnt(0)")
            a(f"v_readfirstlane_b32 s76, v{vE}")
            s.stamp(2)
            def mix(kp):
                A_, B_ = QF+8*kp, QF+8*kp+4
                a(f"v_mov_b64 {p2(S)}, {p2(A_)}\nv_mov_b64 {p2(S+2)}, {p2(A_+2)}")
                for r in range(4): a(f"v_mov_b32_dpp v{A_+r}, v{B_+r} row_shr:4 row_mask:0xf bank_mask:0xa")
                for r in range(4): a(f"v_mov_b32_dpp v{B_+r}, v{S+r} row_shl:4 row_mask:0xf bank_mask:0x5")
                for r in range(8): a(f"ds_bpermute_b32 v{A_+r}, v7, v{A_+r}")
            for kp in range(4): mix(kp)
            for ks in range(8):
                a(f"s_waitcnt lgkmcnt({min(15, 4*(7-ks))})")
                for ch in range(4):
                    a(f"{MF} {q(S+4*ch)}, {q(L1+(ch*8+ks)*4)}, {q(QF+4*ks)}, {'0' if ks == 0 else q(S+4*ch)}")
        PV1 = L1
        Lx = a.label("Lsx")
        labs = [a.label("Lsxw") for _ in range(4)]
        for w in range(1, 4): a(f"s_cmp_eq_u32 s3, {w}\ns_cbranch_scc1 {labs[w]}")
        for w in range(4):
            a(f"{labs[w]}:")
            for ch in range(4):
                if ch == w: continue
                k = (w - ch - 1) % 4
                a(f"ds_write_b128 v{vSX}, {q(S+4*ch)} offset:{(ch*3+k)*1024}")
            a(f"v_mov_b64 {p2(QF)}, {p2(S+4*w)}\nv_mov_b64 {p2(QF+2)}, {p2(S+4*w+2)}")
            if w < 3: a(f"s_branch {Lx}")
        a(f"{Lx}:")
        a(f"s_mul_i32 s5, s3, 3072\nv_add_u32 v13, s5, v{vSX}")
        a("s_waitcnt lgkmcnt(0)\ns_barrier")
        for k in range(3): a(f"ds_read_b128 {q(QF+4+4*k)}, v13 offset:{1024*k}")
        tr(2, lambda t: PV1+4*t)
        a("s_waitcnt lgkmcnt(15)\ns_waitcnt lgkmcnt(14)")
        a(f"v_pk_add_f32 {p2(QF)}, {p2(QF)}, {p2(QF+4)}\nv_pk_add_f32 {p2(QF+2)}, {p2(QF+2)}, {p2(QF+6)}")
        a(f"v_pk_add_f32 {p2(QF+8)}, {p2(QF+8)}, {p2(QF+12)}\nv_pk_add_f32 {p2(QF+10)}, {p2(QF+10)}, {p2(QF+14)}")
        a(f"v_pk_add_f32 {p2(QF)}, {p2(QF)}, {p2(QF+8)}\nv_pk_add_f32 {p2(QF+2)}, {p2(QF+2)}, {p2(QF+10)}")
        a(f"ds_write_b128 v13, {q(QF)}")
        a("s_waitcnt lgkmcnt(0)\ns_barrier")
        s.stamp(3)
        SR = S
        for ch in range(4): a(f"ds_read_b128 {q(SR+4*ch)}, v{vSX} offset:{3072*ch}")
        a("s_waitcnt lgkmcnt(0)")
        tr(3, lambda t: PV1+4*t+2)
        M, Lr, TT, P = QF+8, QF+10, QF+12, QF
        a(f"v_max3_f32 v{M}, v{SR}, v{SR+1}, v{SR+2}")
        for i in range(3, 16, 2): a(f"v_max3_f32 v{M}, v{M}, v{SR+i}, v{SR+min(i+1,15)}")
        s.allred_rows("v_max_f32", M, TT)
        a(f"s_mov_b32 s5, {f32(CEXP)}\nv_mul_f32 v{M}, s5, v{M}")
        for i in range(16): a(f"v_fma_f32 v{SR+i}, v{SR+i}, s5, -v{M}")
        for i in range(16): a(f"v_exp_f32 v{SR+i}, v{SR+i}")
        for i in range(8): a(f"v_cvt_pk_bf16_f32 v{P+i}, v{SR+2*i}, v{SR+2*i+1}")
        O = L1+64
        a(f"v_and_b32 v13, 15, v1\nv_mul_u32_u24 v13, {ROW}, v13\nv_lshrrev_b32 v14, 4, v1\nv_bfe_u32 v7, v1, 2, 2\nv_xor_b32 v14, v14, v7\nv_lshl_add_u32 v13, v14, 3, v13")
        a(f"s_lshl_b32 s5, s3, 9\nv_add_u32 v13, s5, v13")
        a(f"v_lshrrev_b32 v14, 5, v1\nv_mul_u32_u24 v14, {ROW}, v14\nv_and_b32 v7, 31, v1\nv_lshl_add_u32 v14, v7, 4, v14\nv_add_u32 v14, s5, v14\nv_xor_b32 v7, 16, v14")
        a("s_waitcnt lgkmcnt(0)")
        def fin(t):
            a(f"v_cvt_pk_bf16_f32 v{O+4*t}, v{O+4*t}, v{O+4*t+1}\nv_cvt_pk_bf16_f32 v{O+4*t+1}, v{O+4*t+2}, v{O+4*t+3}")
            a(f"ds_write_b64 v13, {p2(O+4*t)} offset:{32*t}")
        for t in range(16):
            a(f"{MF} {q(O+4*t)}, {q(PV+4*t)}, {q(P)}, 0")
            a(f"{MF} {q(O+4*t)}, {q(PV1+4*t)}, {q(P+4)}, {q(O+4*t)}")
            if t == 0:
                L = a.label("Lst3")
                a(f"s_cmp_lg_u32 s3, 0\ns_cbranch_scc1 {L}")
                for st in (8, 4, 2):
                    for i in range(0, st, 2): a(f"v_pk_add_f32 {p2(SR+i)}, {p2(SR+i)}, {p2(SR+st+i)}")
                a(f"v_add_f32 v{Lr}, v{SR}, v{SR+1}")
                s.allred_rows("v_add_f32", Lr, TT)
                a(f"v_mov_b32 v{M+1}, s76\nv_mov_b32 v{Lr+1}, s76\nv_lshlrev_b32 v{TT}, 11, v1")
                a(f"s_lshl_b32 s5, s11, 4\ns_add_u32 s5, s5, {OFF_ST3}")
                s.exec_set(0xffff, 0)
                a(f"buffer_store_dwordx4 {q(M)}, v{TT}, s[44:47], s5 offen sc1")
                s.exec_all()
                a(f"{L}:")
            if t >= 3: fin(t-3)
        fin(13); fin(14); fin(15)
        a("s_waitcnt lgkmcnt(0)")
        s.stamp(4)
        SQ = L1
        nrd = []
        for i in range(8):
            xx = i//2; va = 7 if xx >= 2 else 14
            if xx % 2 == 0: a(f"ds_read_b128 {q(SQ+4*i)}, v{va} offset:{2*ROW*i}"); nrd.append(1)
            else: a(f"ds_read_b64 {p2(SQ+4*i+2)}, v{va} offset:{2*ROW*i}\nds_read_b64 {p2(SQ+4*i)}, v{va} offset:{2*ROW*i+8}"); nrd.append(2)
        a(f"v_and_b32 v13, 15, v1\nv_lshlrev_b32 v13, 1, v13")
        for i in range(8):
            a(f"s_waitcnt lgkmcnt({sum(nrd[i+1:])})")
            a(f"v_and_b32 v{SQ+4*i}, -4, v{SQ+4*i}\nv_add3_u32 v{O+i}, v{SQ+4*i+1}, v{SQ+4*i+2}, v{SQ+4*i+3}\nv_add_u32 v{O+i}, v{O+i}, v{SQ+4*i}")
        for m in ("quad_perm:[1,0,3,2]", "quad_perm:[2,3,0,1]", "row_half_mirror", "row_mirror"):
            for i in range(8): a(f"v_add_u32_dpp v{O+i}, v{O+i}, v{O+i} {m} {DPPF}")
        for i in range(8):
            a(f"v_add_u32 v{O+i}, s76, v{O+i}\nv_bfe_u32 v{O+i}, v{O+i}, v13, 2\nv_or_b32 v{SQ+4*i}, v{SQ+4*i}, v{O+i}")
            a(f"s_add_u32 s79, s10, {i*16*H3_C}")
            if i < c.get('nbk', 8): a(f"buffer_store_dwordx4 {q(SQ+4*i)}, v15, s[44:47], s79 offen sc1")
        s.stamp(5)
        WOB = [PV+4*t for t in range(8)]; WOA = [PV+32+4*t for t in range(8)]
        T = QF
        a(f"s_mov_b32 s14, s3\ns_mul_i32 s15, s11, {32*896}")
        s.proj_wload(WOB, 13, 56, 15, 14)
        def wob():
            for t in range(8): s.proj_wload_one(t, WOB, 13, 56, 15)
        if not c['dwb']: wob()
        a("s_lshr_b32 s12, s11, 3\ns_and_b32 s13, s11, 7")
        G = L1+32
        a(f"v_lshrrev_b32 v7, 4, v1\nv_lshlrev_b32 v7, 11, v7\nv_and_b32 v14, 15, v1\nv_lshl_add_u32 v7, v14, 4, v7")
        a(f"s_lshl_b32 s5, s12, 14\ns_lshl_b32 s6, s13, 8\ns_add_u32 s5, s5, s6\ns_add_u32 s5, s5, {OFF_H4}\ns_add_u32 s6, s5, 8192")
        def issue_h4():
            a(f"buffer_load_dwordx4 {q(G)}, v7, s[44:47], s5 offen sc1\nbuffer_load_dwordx4 {q(G+4)}, v7, s[44:47], s6 offen sc1")
        if c['dwb']:
            if c['x1w']:
                Lq = a.label("Lx1w")
                a(f"s_cmp_lg_u32 s3, 0\ns_cbranch_scc1 {Lq}")
                sv = c['spsleep']; c['spsleep'] = c['x1s']
                s.spoll(5, 0, c['x1n'], 2048*2, c['x1k'])
                c['spsleep'] = sv
                a(f"{Lq}:\ns_barrier")
            else: s.spoll(5, 0, 4, 2048*2, 1)
            wob()
            if c['dwb'] == 1: s.spoll(5, 0, c['spn'], 2048*2, c['spk'])
        else: s.spoll(5, 0, c['spn'], 2048*2, c['spk'])
        s.poll(issue_h4, [("s76", [G+1, G+3, G+5, G+7])], G+8, G+9, sleep=c['sleep'])
        s.stamp(6)
        a(f"v_add_f32 v{G}, v{G}, v{G+4}\nv_add_f32 v{G+1}, v{G+2}, v{G+6}")
        a(f"s_mul_i32 s15, s11, {FS}\ns_lshl_b32 s5, s3, 10\ns_add_u32 s15, s15, s5\ns_add_u32 s15, s15, {OFF_FIN+FIN_AB}")
        s.proj_tail(G, WOB, T, 14, 15)
        s.stamp(7)
        c['timeout'] = tsave
        a("s_cmp_ge_u32 s11, 56\ns_cbranch_scc1 L_xend\ns_cmp_ge_u32 s3, 1\ns_cbranch_scc1 L_xend")
        s.final(11, 1, L1+64, QF+16, 8)
        a("L_xend:")
        s.stamp_out()
        a("s_endpgm")
    def ga(s):
        a = s.a; c = s.c; pa = c['pa']
        a("L_A:")
        NS = c['ns']; NL = 2*NS
        Kb, Vb, T, AD = 16, 112, 208, 8
        assert NS <= 12
        NIT = (4096 - 64*4*NS)//8 * (2 if c['c1'] else 1)
        QF, AC, D, TS, MM = T, T+8, T+16, T+24, T+36
        M, Lr, F, FA, TK, TT = MM, MM+1, MM+2, MM+3, MM+4, MM+5
        vZ, vE = T+46, T+47
        if c['gmix']:
            a("s_sub_u32 s11, s2, 256\ns_lshr_b32 s6, s11, 3\ns_add_u32 s6, s6, s11\ns_and_b32 s12, s11, 8\ns_sub_u32 s6, s6, s12")
            a("s_bfe_u32 s9, s6, 0x30001\ns_and_b32 s12, s6, 1")
        else:
            a("s_sub_u32 s11, s2, 256\ns_bfe_u32 s9, s11, 0x30004\ns_bfe_u32 s12, s11, 0x10003")
        a("s_lshr_b32 s6, s11, 7\ns_lshl_b32 s6, s6, 3\ns_and_b32 s10, s11, 7\ns_add_u32 s13, s10, s6")
        a("s_lshl_b32 s10, s12, 4\ns_add_u32 s10, s10, s13")
        if c['c1']:
            a("s_lshl_b32 s14, s9, 22")
            a(f"s_lshl_b32 s8, s10, 2\ns_add_u32 s8, s8, s3\ns_mul_i32 s8, s8, {NS*2048}\ns_add_u32 s8, s8, s14")
            a(f"s_add_u32 s14, s14, {128*NS*2048}")
            a(f"s_lshl_b32 s15, s9, 9\ns_add_u32 s15, s15, {OFF_CLR}")
        else:
            a("s_lshl_b32 s14, s9, 22\ns_lshl_b32 s6, s12, 21\ns_add_u32 s14, s14, s6")
            a(f"s_lshl_b32 s8, s13, 2\ns_add_u32 s8, s8, s3\ns_mul_i32 s8, s8, {32768 if c['il'] else NS*2048}\ns_add_u32 s8, s8, s14")
            a(f"s_add_u32 s14, s14, {NS*2048 if c['il'] else 64*NS*2048}")
            a(f"s_lshl_b32 s15, s9, 1\ns_add_u32 s15, s15, s12\ns_lshl_b32 s15, s15, 8\ns_add_u32 s15, s15, {OFF_CLR}")
        a(f"v_mov_b32 v{vZ}, 0")
        s.kv_addr(AD)
        s.common2(T)
        s.kwait()
        s.srd(44, 42, 0x10000000); s.srd(48, 40, 256)
        s.srd(68, 18, 8*8192*512); s.srd(72, 20, 8*8192*512)
        vK, vV = AD, AD+1
        def ld(n, reg, voff, srd, pace):
            g, hf = n//2, n % 2
            gi = n + (NL if srd == 72 else 0)
            px_ = (c['pa0'] if gi < c['npre'] else c['pax']) if gi < c['nax'] else pace
            py_ = c['pa0'] if gi < c['nay'] else pace
            if px_ != py_:
                lo, cond = (px_, 'lt') if px_ < py_ else (py_, 'ge')
                Lk = a.label("Lpc")
                a(f"s_cmp_{cond}_u32 s11, 128\ns_cbranch_scc1 {Lk}\ns_waitcnt vmcnt({lo-1})\n{Lk}:")
            a(f"s_add_u32 s79, s8, {(g//2)*4096}")
            a(f"s_waitcnt vmcnt({max(px_, py_)-1})")
            a(f"buffer_load_dwordx4 {q(reg)}, v{voff}, s[{srd}:{srd+3}], s79 offen offset:{(g%2)*2048+hf*256} {c['nt']}")
            if c.get('bw'):
                m = {5: 7, 13: 8, 2*NL-1: 9}
                if gi in m: s.stamp(m[gi])
        for n in range(c['npre']): ld(n, Kb+4*n, vK, 68, pa)
        Lj = a.label("Lp1j")
        a(f"s_cmp_{'lt' if c['p1x'] else 'ge'}_u32 s11, 128\ns_cbranch_scc1 {Lj}")
        if c['prioa']: a(f"s_setprio {c['prioa']}")
        s.srd(52, 16, 896); s.srd(56, 22, 448*8192)
        XA, WA, PVv = Vb, Vb+4, T+16
        a("s_and_b32 s13, s11, 127")
        Lc = a.label("Lcz")
        a(f"s_cmp_ge_u32 s13, 8\ns_cbranch_scc1 {Lc}\ns_cmp_lg_u32 s3, 3\ns_cbranch_scc1 {Lc}")
        a(f"s_lshl_b32 s6, s13, 9\ns_add_u32 s6, s6, {OFF_CLR}\nv_lshlrev_b32 v{T}, 8, v1")
        s.exec_set(3, 0)
        a(f"buffer_store_dword v{vZ}, v{T}, s[44:47], s6 offen sc1")
        s.exec_all()
        a(f"{Lc}:")
        s.p1_setup(13, T, PVv)
        if c.get('fi'): s.stamp(10)
        s.p1_loads(XA, WA, 52, 56, PVv)
        if c.get('fi'): s.stamp(11)
        s.p1_setup2(T, PVv)
        a("s_waitcnt vmcnt(3)")
        a(f"buffer_load_dword v{vE}, v{vZ}, s[48:51], 0 offen sc1")
        a("s_waitcnt vmcnt(0)")
        s.get_epoch(vE, vZ)
        a("s_setprio 3")
        s.p1_compute(XA, WA, T, PVv, 0x1000, OFF_QA)
        a(f"s_setprio 0")
        a(f"{Lj}:")
        s.stamp(6)
        na0 = c['npre']
        v1n = c['v1']
        a(f"v_bfe_u32 v{AD+4}, v1, 3, 1\nv_lshlrev_b32 v{AD+4}, 9, v{AD+4}")
        a(f"v_lshl_add_u32 v{AD+4}, v{AD+2}, 6, v{AD+4}\nv_lshl_add_u32 v{AD+4}, v{AD+3}, 4, v{AD+4}")
        assert na0 <= NL-8
        for n in range(na0, NL):
            ld(n, Kb+4*n, vK, 68, pa)
            if n == NL-8: a(f"buffer_load_dword v{vE}, v{vZ}, s[48:51], 0 offen sc1")
        a("s_waitcnt vmcnt(7)")
        s.get_epoch(vE, vZ)
        vq = c['vq']
        for n in range(vq): ld(n, Vb+4*n, vV, 72, pa)
        def vfirst():
            for n in range(vq, vq+v1n): ld(n, Vb+4*n, vV, 72, pa)
        a(f"s_lshl_b32 s6, s9, 12\ns_lshl_b32 s5, s3, 10\ns_add_u32 s6, s6, s5\ns_add_u32 s6, s6, {OFF_QA}")
        a(f"v_lshlrev_b32 v{T+20}, 2, v0")
        s.gather_q(T, 6, T+20, 1, vfirst, v1n, sleep=c['qsleep'])
        a("s_barrier")
        s.stamp(1)
        a(f"ds_read_b128 {q(QF)}, v{AD+4}\nds_read_b128 {q(QF+4)}, v{AD+4} offset:256")
        a(f"s_mov_b32 s13, {f32(CEXP)}")
        a(f"s_waitcnt vmcnt({v1n}) lgkmcnt(0)")
        s.stamp(2)
        v1n += vq
        nv = v1n
        SA = c['sat']
        if c['ystop']:
            a(f"s_cmp_lt_u32 s11, 128\ns_cselect_b32 s82, {NIT-c['ystop']}, -1\ns_mov_b32 s83, 0")
        def ticket():
            if SA:
                if c['ystop']:
                    Lk = a.label("Lys")
                    a(f"s_cmp_ge_u32 s83, s82\ns_mov_b32 s83, -1\ns_cbranch_scc1 {Lk}")
                    a(f"s_mov_b32 s83, 1\ns_atomic_add s83, s[42:43], s15 glc\n{Lk}:")
                else:
                    a("s_mov_b32 s83, 1\ns_atomic_add s83, s[42:43], s15 glc")
                return
            a(f"v_mov_b32 v{TK}, 1")
            s.exec_set(1, 0)
            a(f"buffer_atomic_add v{TK}, v{vZ}, s[44:47], s15 offen sc0 sc1")
            s.exec_all()
        tk_at = NL - c['tka']
        def more(k=1):
            nonlocal nv
            for _ in range(k):
                if nv < NL:
                    if nv == max(tk_at, v1n): ticket()
                    ld(nv, Vb+4*nv, vV, 72, pa); nv += 1
        def dreg(i): return D+4*i if i < 2 else Kb+8*(i-2)
        for i in range(NS):
            a(f"{MF} {q(dreg(i))}, {q(Kb+i*8)}, {q(QF)}, 0")
            a(f"{MF} {q(dreg(i))}, {q(Kb+i*8+4)}, {q(QF+4)}, {q(dreg(i))}")
            if i % 6 == 5: more()
        for r in range(4):
            for i in range(NS):
                if r == 0: a(f"v_mov_b32_dpp v{TS+i}, v{dreg(i)} quad_perm:[0,0,0,0] {DPPF}")
                else: a(f"v_add_f32_dpp v{TS+i}, v{dreg(i)+r}, v{TS+i} quad_perm:[{r},{r},{r},{r}] {DPPF}")
        more()
        for i in range(0, NS, 2): a(f"v_cvt_pk_bf16_f32 v{D+(i//2)}, v{TS+i}, v{TS+i+1}")
        for i in range(0, NS, 2): a(f"v_lshlrev_b32 v{TS+i}, 16, v{D+i//2}\nv_and_b32 v{TS+i+1}, 0xffff0000, v{D+i//2}")
        a(f"v_max3_f32 v{M}, v{TS}, v{TS+1}, v{TS+2}")
        for i in range(3, NS, 2): a(f"v_max3_f32 v{M}, v{M}, v{TS+i}, v{TS+min(i+1,NS-1)}")
        s.allred_rows("v_max_f32", M, TT)
        a(f"v_mul_f32 v{M}, s13, v{M}")
        for i in range(NS): a(f"v_fma_f32 v{TS+i}, v{TS+i}, s13, -v{M}")
        more()
        for i in range(NS): a(f"v_exp_f32 v{TS+i}, v{TS+i}")
        a(f"v_add_f32 v{Lr}, v{TS}, v{TS+1}")
        for i in range(2, NS): a(f"v_add_f32 v{Lr}, v{Lr}, v{TS+i}")
        for i in range(NS): a(f"v_cvt_pk_bf16_f32 v{TS+i}, v{TS+i}, v{TS+i}")
        s.stamp(3)
        done = 0
        def pv(i):
            ab = D + (i % 2)*4
            for r in range(4): a(f"v_and_b32 v{ab+r}, v{TS+i}, v{2+r}")
            for hf in range(2):
                a(f"{MF} {q(AC+4*hf)}, {q(ab)}, {q(Vb+8*i+4*hf)}, {'0' if i == 0 else q(AC+4*hf)}")
        def pv_upto(k):
            nonlocal done
            while done < NS and 2*done+2 <= k:
                pv(done); done += 1
        while nv < NL:
            more()
            pv_upto(nv - 1 - (pa-1))
        ntk = NL - max(tk_at, v1n)
        BUF = [Kb, Kb+32]
        Lend = a.label("Lae")
        vK2, vV2 = MM+6, MM+7
        def take(Lno, younger, sb=52):
            if SA: a("s_waitcnt lgkmcnt(0)\ns_mov_b32 s5, s83")
            else:
                a(f"s_waitcnt vmcnt({younger})")
                a(f"v_readfirstlane_b32 s5, v{TK}")
            a(f"s_cmp_ge_u32 s5, {NIT + c['hk']}\ns_cbranch_scc1 {Lno}")
            if c['pdy']:
                a(f"s_sub_u32 s7, s5, {c['ylo']}\ns_cmp_lt_u32 s7, {c['yhi']-c['ylo']}\ns_cselect_b32 s7, 1, 0\ns_cmp_lt_u32 s11, 128\ns_cselect_b32 s7, s7, 0")
            if c['il']: a(f"s_and_b32 s6, s5, 63\ns_lshl_b32 s6, s6, 15\ns_lshr_b32 s5, s5, 6\ns_lshl_b32 s5, s5, 12\ns_add_u32 s79, s14, s5\ns_add_u32 s79, s79, s6")
            elif c['hk']:
                T0 = NIT - c['hk']
                a(f"s_min_u32 s6, s5, {T0}\ns_add_u32 s6, s6, s5\ns_lshl_b32 s6, s6, 11\ns_add_u32 s79, s14, s6")
                a(f"s_cmp_ge_u32 s5, {T0}\ns_cselect_b32 s{sb}, 0xff800000, 0\ns_cselect_b32 s6, 0x4000000, 0")
                a(f"v_add_u32 v{vK2}, s6, v{vK}\nv_add_u32 v{vV2}, s6, v{vV}")
            else: a(f"s_lshl_b32 s5, s5, 12\ns_add_u32 s79, s14, s5")
        def item_loads(B):
            if c.get('bw'): a("s_add_u32 s94, s94, 1")
            for n in range(8):
                if n == (c['tkn'] if SA else 0): ticket()
                if c['pdy']:
                    Lk = a.label("Lpy")
                    a(f"s_cmp_eq_u32 s7, 0\ns_cbranch_scc1 {Lk}\ns_waitcnt vmcnt({c['pdy']-1})\n{Lk}:")
                if c['pdx'] and c['pdx'] < c['pd']:
                    Lk = a.label("Lpd")
                    a(f"s_cmp_lt_u32 s11, 128\ns_cbranch_scc1 {Lk}\ns_waitcnt vmcnt({c['pdx']-1})\n{Lk}:")
                a(f"s_waitcnt vmcnt({c['pd']-1})")
                vo, srd = (vK, 68) if n < 4 else (vV, 72)
                k = n % 4
                if c['hk'] and k >= 2: vo = vK2 if n < 4 else vV2
                a(f"buffer_load_dwordx4 {q(B+4*n)}, v{vo}, s[{srd}:{srd+3}], s79 offen offset:{(k//2)*2048+(k%2)*256} {c['nt']}")
        def item_compute(B, last):
            if last:
                woa()
                a("s_waitcnt vmcnt(12)")
            for i in range(2):
                a(f"{MF} {q(D+4*i)}, {q(B+8*i)}, {q(QF)}, 0")
                a(f"{MF} {q(D+4*i)}, {q(B+8*i+4)}, {q(QF+4)}, {q(D+4*i)}")
            for r in range(4):
                for i in range(2):
                    if r == 0: a(f"v_mov_b32_dpp v{TS+i}, v{D+4*i} quad_perm:[0,0,0,0] {DPPF}")
                    else: a(f"v_add_f32_dpp v{TS+i}, v{D+4*i+r}, v{TS+i} quad_perm:[{r},{r},{r},{r}] {DPPF}")
            a(f"v_cvt_pk_bf16_f32 v{TT}, v{TS}, v{TS+1}\nv_lshlrev_b32 v{TS}, 16, v{TT}\nv_and_b32 v{TS+1}, 0xffff0000, v{TT}")
            if c['hk']: a(f"v_add_f32 v{TS+1}, s{52 + (0 if B == BUF[0] else 1)}, v{TS+1}")
            a(f"v_max_f32 v{TS+2}, v{TS}, v{TS+1}")
            s.allred_rows("v_max_f32", TS+2, TT)
            a(f"v_mul_f32 v{TS+2}, s13, v{TS+2}\nv_max_f32 v{TS+2}, v{TS+2}, v{M}")
            a(f"v_sub_f32 v{F}, v{M}, v{TS+2}\nv_fma_f32 v{TS}, v{TS}, s13, -v{TS+2}\nv_fma_f32 v{TS+1}, v{TS+1}, s13, -v{TS+2}")
            a(f"v_exp_f32 v{F}, v{F}\nv_exp_f32 v{TS}, v{TS}\nv_exp_f32 v{TS+1}, v{TS+1}\nv_mov_b32 v{M}, v{TS+2}")
            a(f"v_fma_f32 v{Lr}, v{Lr}, v{F}, v{TS}")
            a(f"v_mov_b32_dpp v{FA}, v{F} row_newbcast:0 row_mask:0x3 bank_mask:0xf")
            a(f"v_add_f32 v{Lr}, v{Lr}, v{TS+1}")
            a(f"v_cvt_pk_bf16_f32 v{TS}, v{TS}, v{TS}")
            a(f"v_mov_b32_dpp v{FA}, v{F} row_newbcast:8 row_mask:0xc bank_mask:0xf")
            a(f"v_cvt_pk_bf16_f32 v{TS+1}, v{TS+1}, v{TS+1}")
            for k in range(8): a(f"v_mul_f32 v{AC+k}, v{AC+k}, v{FA}")
            for i in range(2):
                for r in range(4): a(f"v_and_b32 v{D+4*i+r}, v{TS+i}, v{2+r}")
            if last: a("s_waitcnt vmcnt(8)")
            for i in range(2):
                for hf in range(2):
                    a(f"{MF} {q(AC+4*hf)}, {q(D+4*i)}, {q(B+16+8*i+4*hf)}, {q(AC+4*hf)}")
        E = Kb+64
        s.epi_addr(E, True)
        a(f"v_bfe_u32 v{E+2}, v0, 4, 4\nv_mul_u32_u24 v{E+2}, {HA_U}, v{E+2}")
        a(f"v_and_b32 v{E}, 15, v0\nv_lshl_add_u32 v{E+2}, v{E}, 4, v{E+2}")
        a(f"s_mul_i32 s12, s9, {16*HA_U}\ns_lshl_b32 s6, s10, 8\ns_add_u32 s12, s12, s6\ns_add_u32 s12, s12, {OFF_HA}")
        a(f"s_lshl_b32 s5, s3, 11\nv_add_u32 v{AD+4}, s5, v6")
        a(f"v_bfe_u32 v{AD+6}, v1, 3, 1\nv_lshlrev_b32 v{AD+6}, 5, v{AD+6}\ns_lshl_b32 s5, s3, 3\nv_add_u32 v{AD+7}, s5, v{AD+6}")
        a(f"v_lshrrev_b32 v{AD+5}, 7, v0\nv_lshlrev_b32 v{AD+5}, 5, v{AD+5}")
        a(f"s_lshl_b32 s10, s10, 7\ns_lshl_b32 s5, s9, 12\ns_add_u32 s10, s10, s5\ns_lshr_b32 s5, s3, 1\ns_lshl_b32 s5, s5, 4\ns_add_u32 s10, s10, s5\ns_add_u32 s10, s10, {OFF_STA}")
        Z = E+4
        a(f"v_mov_b32 v{Z+17}, s76\nv_mov_b32 v{Z+19}, s76\nv_mov_b32 v{Z+21}, s76\nv_mov_b32 v{Z+23}, s76")
        WOA = [Vb+4*t for t in range(8)]
        assert done >= 4
        s.srd(60, 24, 4096*896)
        vWO = Z+24
        a(f"s_and_b32 s97, s11, 127\ns_mul_i32 s96, s97, {32*896}")
        s.proj_wload(WOA, vWO, 60, 96, 3)
        a(f"s_cmp_{'ge' if c['a5y'] else 'lt'}_u32 s11, 128\ns_cselect_b32 s5, 0x4000000, 0\nv_add_u32 v{vWO}, s5, v{vWO}")
        def woa():
            for t in range(8): s.proj_wload_one(t, WOA, vWO, 60, 96)
        Ln0 = a.label("Ln0"); L0 = a.label("Ld0"); Lf0 = a.label("Lf0"); Lf1 = a.label("Lf1")
        d0 = done
        if c['aprio']: a(f"s_setprio {c['aprio']}")
        take(Ln0, ntk)
        item_loads(BUF[0])
        if c['tkn'] > 8: a(f"s_waitcnt vmcnt({c['tkn']})"); ticket()
        a(f"s_waitcnt vmcnt({8 if SA else 9})")
        if c['tkn'] == 8: ticket()
        for i in range(d0, NS): pv(i)
        a(f"{L0}:")
        take(Lf0, 8, 53)
        item_loads(BUF[1])
        if c['tkn'] > 8: a(f"s_waitcnt vmcnt({c['tkn']})"); ticket()
        a(f"s_waitcnt vmcnt({8 if SA else 9})")
        if c['tkn'] == 8: ticket()
        item_compute(BUF[0], False)
        take(Lf1, 8)
        item_loads(BUF[0])
        if c['tkn'] > 8: a(f"s_waitcnt vmcnt({c['tkn']})"); ticket()
        a(f"s_waitcnt vmcnt({8 if SA else 9})")
        if c['tkn'] == 8: ticket()
        item_compute(BUF[1], False)
        a(f"s_branch {L0}")
        a(f"{Ln0}:")
        woa()
        for i in range(d0, NS):
            a(f"s_waitcnt vmcnt({NL-2*(i+1)+8})")
            pv(i)
        a(f"s_branch {Lend}")
        a(f"{Lf0}:")
        item_compute(BUF[0], True)
        a(f"s_branch {Lend}")
        a(f"{Lf1}:")
        item_compute(BUF[1], True)
        a(f"{Lend}:")
        s.allred_rows("v_add_f32", Lr, TT)
        a(f"ds_write_b64 v{AD+7}, {p2(M)} offset:{0x800}")
        s.stamp(4)
        a(f"ds_write_b128 v{AD+4}, {q(AC)} offset:{0x1000}\nds_write_b128 v{AD+4}, {q(AC+4)} offset:{0x1000+1024}")
        a("s_waitcnt lgkmcnt(0)\ns_barrier")
        Y = Z+8
        a(f"ds_read_b128 {q(Y)}, v{AD+5} offset:{0x800}\nds_read_b128 {q(Y+4)}, v{AD+5} offset:{0x810}")
        for i in range(4): a(f"ds_read_b64 {p2(Z+2*i)}, v{E+3} offset:{0x1000+2048*i}")
        a("s_waitcnt lgkmcnt(4)")
        a(f"v_max3_f32 v{Z+20}, v{Y}, v{Y+2}, v{Y+4}\nv_max_f32 v{Z+20}, v{Z+20}, v{Y+6}")
        for k in range(4): a(f"v_sub_f32 v{Y+2*k}, v{Y+2*k}, v{Z+20}")
        for k in range(4): a(f"v_exp_f32 v{Y+2*k}, v{Y+2*k}")
        a("s_waitcnt lgkmcnt(0)")
        for k in range(4):
            op = "v_mul_f32" if k == 0 else "v_fmac_f32"
            a(f"{op} v{Z+16}, v{Y+2*k}, v{Z+2*k}\n{op} v{Z+18}, v{Y+2*k}, v{Z+2*k+1}")
        a(f"buffer_store_dwordx4 {q(Z+16)}, v{E+2}, s[44:47], s12 offen sc1")
        Lx = a.label("Lax")
        a(f"s_bitcmp1_b32 s3, 0\ns_cbranch_scc1 {Lx}")
        for k in range(4):
            op = "v_mul_f32" if k == 0 else "v_fmac_f32"
            a(f"{op} v{Z+22}, v{Y+2*k}, v{Y+2*k+1}")
        s.exec_set(1, 0)
        a(f"buffer_store_dwordx4 {q(Z+20)}, v{vZ}, s[44:47], s10 offen sc1")
        s.exec_all()
        a(f"{Lx}:")
        s.stamp(5)
        a(f"s_cmp_{'ge' if c['a5y'] else 'lt'}_u32 s11, 128\ns_cbranch_scc1 L_afin")
        s.a5(97, Kb, T, WOA)
        a("s_branch L_aend")
        a("L_afin:")
        a("s_sub_u32 s97, 127, s97")
        a("s_cmp_ge_u32 s97, 56\ns_cbranch_scc1 L_aend\ns_cmp_ge_u32 s3, 1\ns_cbranch_scc1 L_aend")
        s.final(97, 0, Kb, T, 10)
        a("L_aend:")
        s.stamp_out()
        a("s_endpgm")
    def build(s):
        a = s.a
        s.prologue()
        s.gy(); s.gx(); s.ga()
        a("L_end:\ns_endpgm")
        body = a.finish()
        import re
        if s.c.get('ldsys'): body = re.sub(r"(buffer_load_dword\S* .* offen(?: offset:\d+)?) sc1", r"\1 sc0 sc1", body)
        if s.c.get('stsys'): body = re.sub(r"(buffer_store_dword\S* .* offen(?: offset:\d+)?) sc1", r"\1 sc0 sc1", body)
        if s.c.get('stnt'): body = re.sub(r"(buffer_store_dword\S* .* offen(?: offset:\d+)?) sc1", r"\1 sc1 nt", body)
        if s.c.get('ldnt'): body = re.sub(r"(buffer_load_dword\S* .* offen(?: offset:\d+)?) sc1", r"\1 sc1 nt", body)
        hdr = open("concat_heads__gqa_block_cached__compressed_kv_cla__decode.s.ref").read().split("; @launch")[0]
        out = hdr + "; @launch grid=(512,1,1) block=(256,1,1) lds=81920\n"
        out += """; Written with my own generator script. One persistent launch, 512 workgroups of 4 waves, two per CU, all co-resident.
;   wg   0..127 (Y): q_B = x_B*w_q (half rows x 64 cols), q_abs = q_B*w_uk^T (absorbed key projection), later ctx = softmax-merged latent * w_uv
;   wg 128..255 (X): 64 latent rows each: scores q_abs*c_kv^T, local softmax (true max), P*c_kv, later out_B partials through w_o and the last sum
;   wg 256..511 (A): q_A = x_A*wq, GQA flash-decoding over a fixed share plus 8-key work items drawn from counters, then wo and the last sum
; (chosen once per launch through d_debug), by a cleared-then-filled sentinel, or by a checksum that mixes the tag in.
"""
        out += f'.amdgcn_target "amdgcn-amd-amdhsa--gfx950"\n.text\n.globl {KN}\n.p2align 8\n.type {KN},@function\n{KN}:\n'
        out += body
        out += f""".section .rodata,"a"
.p2align 6
.amdhsa_kernel {KN}
  .amdhsa_next_free_vgpr 256
  .amdhsa_next_free_sgpr 102
  .amdhsa_accum_offset 256
  .amdhsa_group_segment_fixed_size 0
  .amdhsa_kernarg_size 112
  .amdhsa_user_sgpr_count 2
  .amdhsa_user_sgpr_kernarg_segment_ptr 1
  .amdhsa_system_sgpr_workgroup_id_x 1
.end_amdhsa_kernel
"""
        return out
if __name__ == "__main__":
    from build import build
    name = sys.argv[1]
    cfg = {}
    for kv in sys.argv[2:]:
        k, v = kv.split("=")
        cfg[k] = v if k == "nt" else int(v)
    open(name, "w").write(Gen2(**cfg).build())
    print(build(name))
```

```python
import sys, math, struct
from asmlib import Asm
from gen import Gen, q, p2, f32, DPPF, KN, CEXP
OFF_QB, OFF_QA, OFF_QABS, OFF_CLR, OFF_ST3, OFF_STA, OFF_H4, OFF_HA, OFF_FIN, OFF_H3 = \
    0x0, 0x10000, 0x20000, 0x2c000, 0x30000, 0x38000, 0x40000, 0x80000, 0x200000, 0x400000
FIN_CG = 8192+128
FS = 4096+128; FIN_AB = 128*FS
QS = 2048+128
HA_U = 8192+128
H3_C = 32768+256
OFF_STAMP = 0x8000000
OFF_CHK = 0x1A0000
ROW = 2080; SLOT = 16*ROW
import gen as G1
G1.FIN_CG = FIN_CG
MF = "v_mfma_f32_16x16x32_bf16"

class Gen2(Gen):
    def __init__(s, **cfg):
        s.c = dict(stamp=False, nt="nt", sleep=2, timeout=100000, rnd=True, pa=8, pb=8, prio=2, prioa=0, n1=7, pu=8, px=8, pax=4, nax=16, nay=4, p1x=1, dn=3, hk=0, osc=0, p1r=0, gmix=1, x1k=3, qat=4, x1w=1, x1s=6, x1n=4, ncas=8, eat=3, eglc=0, vq=4, npre=0, a5y=1, dwb=1, pdy=0, ylo=0, yhi=192, aprio=0, ystop=0, pw=0, ton=3, tok=3, tfn=3, tfk=3, spk=3, dwo=1, qf=0, spq=0, sp=1, sptime=2000, spsleep=2, spn=3, il=0, sat=1, tkn=6, xx=0, pdx=0, c1=0, ssleep=2, ns=10, tka=3, pd=9, qsleep=6, px0=4, v1=8, fsleep=2, pf=0, pa0=1, na0=4, na1=6, lead=10, h3d=0)
        s.c.update(cfg)
        s.a = Asm()
    def stamp_out(s):
        if not s.c['stamp']: return
        a = s.a
        a("s_mov_b64 exec, -1\nv_mov_b32 v8, 0")
        for k in range(12): a(f"v_writelane_b32 v8, s{84+k}, {k}")
        a("v_lshlrev_b32 v9, 2, v1")
        a("s_lshl_b32 s4, s2, 2\ns_add_u32 s4, s4, s3\ns_lshl_b32 s4, s4, 6")
        a(f"s_add_u32 s4, s4, {OFF_STAMP}")
        a("s_mov_b32 exec_lo, 0xffff\ns_mov_b32 exec_hi, 0")
        a("buffer_store_dword v8, v9, s[44:47], s4 offen")
    def prologue(s):
        a = s.a
        a("s_cmp_ge_u32 s2, 512\ns_cbranch_scc1 L_end")
        a("s_load_dwordx16 s[16:31], s[0:1], 0\ns_load_dwordx8 s[32:39], s[0:1], 64\ns_load_dwordx4 s[40:43], s[0:1], 96")
        a("s_memrealtime s[4:5]")
        a("v_lshrrev_b32 v7, 6, v0\nv_and_b32 v1, 63, v0")
        a("v_readfirstlane_b32 s3, v7\nv_lshlrev_b32 v6, 4, v1")
        if s.c['xx']:
            a("s_lshr_b32 s6, s2, 6\ns_cmp_eq_u32 s6, 3\ns_cselect_b32 s7, 192, 0\ns_add_u32 s2, s2, s7\ns_cmp_eq_u32 s6, 6\ns_cselect_b32 s7, 192, 0\ns_sub_u32 s2, s2, s7")
        if s.c['pf']:
            a(f"s_cmp_lt_u32 s2, {512-s.c['pf']}\ns_cbranch_scc1 L_nopf")
            a("s_getpc_b64 s[6:7]\ns_and_b32 s6, s6, 0xffffff00")
            a(f"v_lshlrev_b32 v9, 7, v0\nv_min_u32 v9, L_end-{KN}, v9\nglobal_load_dword v200, v9, s[6:7]")
            a("L_nopf:")
        a("s_cmp_ge_u32 s2, 256\ns_cbranch_scc1 L_A")
        if s.c['prio']: a(f"s_setprio {s.c['prio']}")
        a("s_cmp_ge_u32 s2, 128\ns_cbranch_scc1 L_X")
    def kwait(s):
        a = s.a
        a("s_waitcnt lgkmcnt(0)")
        a("s_or_b32 s77, s4, 1")
        if s.c['stamp']:
            for k in range(12): a(f"s_mov_b32 s{84+k}, 0")
            a("s_mov_b32 s84, s4")
    def common2(s, t):
        a = s.a
        a(f"v_and_b32 v{t}, 1, v1\nv_lshlrev_b32 v{t}, 4, v{t}\nv_mov_b32 v{t+1}, 0xffff\nv_lshlrev_b32 v{t}, v{t}, v{t+1}")
        a(f"v_bfe_u32 v{t+1}, v1, 1, 2")
        for r in range(4):
            a(f"v_cmp_eq_u32 vcc, {r}, v{t+1}\nv_cndmask_b32 v{2+r}, 0, v{t}, vcc")
    def get_epoch(s, vE, vZ):
        a = s.a
        L = a.label("Lge"); Ld = a.label("Lged")
        a(f"s_mov_b32 s78, {s.c['timeout']}")
        a(f"{L}:")
        a(f"v_readfirstlane_b32 s76, v{vE}")
        a(f"s_cmp_lg_u32 s76, 0\ns_cbranch_scc1 {Ld}")
        a(f"buffer_load_dword v{vE}, v{vZ}, s[48:51], 0 offen sc1\ns_waitcnt vmcnt(0)")
        a(f"s_sub_u32 s78, s78, 1\ns_cmp_lg_u32 s78, 0\ns_cbranch_scc1 {L}")
        a(f"{Ld}:")
    def check_tags(s, groups, t0, t1):
        if len(groups) == 1 and groups[0][0][0] == 's':
            a = s.a; exp, tags = groups[0]
            assert len(tags) % 2 == 0
            acc = []
            for k in range(0, len(tags), 2):
                d = (t0, t1)[(k//2) % 2]
                if k < 4: a(f"v_bitop3_b32 v{d}, v{tags[k]}, v{tags[k+1]}, {exp} bitop3:0x7e")
                else:
                    a(f"v_bitop3_b32 v{tags[k]}, v{tags[k]}, v{tags[k+1]}, {exp} bitop3:0x7e"); acc.append(tags[k])
            if len(tags) > 2: acc = [t1] + acc
            for k in range(0, len(acc), 2):
                y = acc[k+1] if k+1 < len(acc) else acc[k]
                a(f"v_or3_b32 v{t0}, v{t0}, v{acc[k]}, v{y}")
            a(f"v_cmp_ne_u32 vcc, 0, v{t0}\ns_cmp_eq_u64 vcc, 0")
        else:
            Gen.check_tags(s, groups, t0, t1)
    def spoll(s, soff, extra, n=1, stride=0, need=None):
        if not n: return
        if not s.c['sp']: return
        a = s.a
        L = a.label("Lsp"); Ld = a.label("Lspd")
        a(f"s_mov_b32 s78, {s.c['sptime']}")
        for k in range(n): a(f"s_add_u32 s{64+k}, s{soff}, {extra+4+k*stride}")
        a(f"{L}:")
        for k in range(n): a(f"s_load_dword s{68+k}, s[42:43], s{64+k} glc")
        a("s_waitcnt lgkmcnt(0)")
        a("s_mov_b32 s83, 0")
        for k in range(n): a(f"s_cmp_eq_u32 s{68+k}, s76\ns_addc_u32 s83, s83, 0")
        a(f"s_cmp_ge_u32 s83, {need or n}\ns_cbranch_scc1 {Ld}")
        a(f"s_sleep {s.c['spsleep']}\ns_sub_u32 s78, s78, 1\ns_cmp_lg_u32 s78, 0\ns_cbranch_scc1 {L}")
        a(f"{Ld}:")
    def poll_sent(s, issue, regs, t0, sleep=None, pre_issued=False):
        a = s.a
        L = a.label("Lps"); Ld = a.label("Lpsd")
        a(f"s_mov_b32 s78, {s.c['timeout']}")
        Lw = a.label("Lpsw")
        if pre_issued: a(f"s_branch {Lw}")
        a(f"{L}:")
        issue()
        a(f"{Lw}:")
        a("s_waitcnt vmcnt(0)")
        a(f"v_max3_u32 v{t0}, v{regs[0]}, v{regs[1]}, v{regs[2]}")
        rest = regs[3:]
        for i in range(0, len(rest), 2):
            y = rest[i+1] if i+1 < len(rest) else rest[i]
            a(f"v_max3_u32 v{t0}, v{t0}, v{rest[i]}, v{y}")
        a(f"v_cmp_eq_u32 vcc, -1, v{t0}")
        a(f"s_cbranch_vccz {Ld}")
        sl = s.c['sleep'] if sleep is None else sleep
        if sl: a(f"s_sleep {sl}")
        a(f"s_sub_u32 s78, s78, 1\ns_cmp_lg_u32 s78, 0\ns_cbranch_scc1 {L}")
        a(f"{Ld}:")
    def gather_q(s, T, soff, lds, n, between=None, nb=0, sleep=1):
        a = s.a
        a(f"s_add_u32 s7, s{soff}, 0x8000")
        def issue():
            for k in range(n):
                a(f"buffer_load_dwordx4 {q(T+8*k)}, v6, s[44:47], s{soff} offen offset:{1024*k} sc1")
                a(f"buffer_load_dwordx4 {q(T+8*k+4)}, v6, s[44:47], s7 offen offset:{1024*k} sc1")
        grp = [("s76", [T+4*k+j for k in range(2*n) for j in (1, 3)])]
        if between:
            Lok = a.label("Lgq")
            issue(); between()
            a(f"s_waitcnt vmcnt({nb})")
            s.check_tags(grp, T+8*n, T+8*n+1)
            a(f"s_cbranch_scc1 {Lok}")
            s.poll(issue, grp, T+8*n, T+8*n+1, sleep=sleep)
            a(f"{Lok}:")
        else:
            s.poll(issue, grp, T+8*n, T+8*n+1, sleep=sleep)
        for k in range(n):
            b = T+8*k
            a(f"v_add_f32 v{b}, v{b}, v{b+4}\nv_add_f32 v{b+2}, v{b+2}, v{b+6}\nv_cvt_pk_bf16_f32 v{b}, v{b}, v{b+2}")
            a(f"ds_write_b32 v{lds}, v{b} offset:{256*k}")
        a("s_waitcnt lgkmcnt(0)")
    def epi_addr(s, E, two_heads):
        a = s.a
        a(f"v_bfe_u32 v{E+3}, v0, 6, 1\nv_lshlrev_b32 v{E+3}, 10, v{E+3}")
        if two_heads: a(f"v_bfe_u32 v{E+1}, v0, 7, 1\nv_lshl_add_u32 v{E+3}, v{E+1}, 9, v{E+3}")
        a(f"v_bfe_u32 v{E+1}, v0, 1, 1\nv_lshl_add_u32 v{E+3}, v{E+1}, 8, v{E+3}")
        a(f"v_bfe_u32 v{E+1}, v0, 2, 4\nv_lshl_add_u32 v{E+3}, v{E+1}, 4, v{E+3}")
        a(f"v_and_b32 v{E+1}, 1, v0\nv_lshl_add_u32 v{E+3}, v{E+1}, 3, v{E+3}")
    def p1_setup(s, sI, T, V):
        a = s.a
        vX, vW, vSA, vSB, vLW, vRD, vPB = range(V, V+7)
        if s.c['p1r']:
            a(f"s_lshr_b32 s101, s{sI}, 6\ns_add_u32 s100, s{sI}, s101\ns_and_b32 s100, s100, 7\ns_lshl_b32 s100, s100, 3\ns_bfe_u32 s6, s{sI}, 0x30003\ns_add_u32 s100, s100, s6")
        else:
            a(f"s_and_b32 s100, s{sI}, 7\ns_lshl_b32 s100, s100, 3\ns_bfe_u32 s6, s{sI}, 0x30003\ns_add_u32 s100, s100, s6\ns_lshr_b32 s101, s{sI}, 6")
        a("s_mul_i32 s96, s101, 224\ns_mul_i32 s6, s3, 56\ns_add_u32 s96, s96, s6\ns_lshl_b32 s97, s96, 1")
        a("s_lshl_b32 s96, s96, 13\ns_lshl_b32 s6, s100, 7\ns_add_u32 s96, s96, s6")
        a(f"v_lshrrev_b32 v{T}, 3, v1\nv_mul_u32_u24 v{vX}, 14, v{T}\nv_and_b32 v{vX}, 0x7c, v{vX}")
        a(f"v_mul_u32_u24 v{vW}, {7*8192}, v{T}\nv_and_b32 v{T+1}, 7, v1\nv_lshl_add_u32 v{vW}, v{T+1}, 4, v{vW}")
    def p1_loads(s, X, W, srdX, srdW, V):
        a = s.a
        a(f"buffer_load_dwordx4 {q(X)}, v{V}, s[{srdX}:{srdX+3}], s97 offen")
        for i in range(7):
            a(f"s_add_u32 s79, s96, {i*8192}")
            a(f"buffer_load_dwordx4 {q(W+4*i)}, v{V+1}, s[{srdW}:{srdW+3}], s79 offen {s.c['nt']}")
    def p1_setup2(s, T, V):
        a = s.a
        vX, vW, vSA, vSB, vLW, vRD, vPB = range(V, V+7)
        a(f"s_lshl_b32 s100, s100, 9\ns_lshl_b32 s101, s101, 15\ns_add_u32 s100, s100, s101")
        a(f"v_bfe_u32 v{T}, v1, 3, 1\nv_cmp_eq_u32 vcc, 1, v{T}")
        a(f"v_mov_b32 v{T+8}, 0x01000100\nv_mov_b32 v{T+9}, 0x03020302\nv_mov_b32 v{T+10}, 0x05040504")
        a(f"v_cndmask_b32 v{vSA}, v{T+8}, v{T+9}, vcc\nv_cndmask_b32 v{vSB}, v{T+9}, v{T+10}, vcc")
        a(f"s_lshl_b32 s5, s3, 10\nv_add_u32 v{vLW}, s5, v6")
        a(f"v_and_b32 v{T+3}, 3, v1")
        a(f"v_lshrrev_b32 v{vRD}, 5, v1\nv_lshlrev_b32 v{vRD}, 11, v{vRD}\nv_bfe_u32 v{T}, v1, 1, 1\nv_lshl_add_u32 v{vRD}, v{T}, 8, v{vRD}")
        a(f"v_bfe_u32 v{T}, v1, 2, 3\nv_lshl_add_u32 v{vRD}, v{T}, 4, v{vRD}\nv_and_b32 v{T}, 1, v1\nv_lshl_add_u32 v{vRD}, v{T}, 3, v{vRD}")
    def p1_compute(s, X, W, T, V, lds, off, flag_vZ=None, hook=None):
        a = s.a
        vX, vW, vSA, vSB, vLW, vRD, vPB = range(V, V+7)
        AB, AC = T, T+12
        for i in range(7):
            ab = AB + (i % 2)*4
            k = i//2
            if i % 2 == 0: a(f"v_perm_b32 v{AB+8}, v{X+k}, v{X+k}, v{vSA}")
            else: a(f"v_perm_b32 v{AB+8}, v{X+k+1}, v{X+k}, v{vSB}")
            for r in range(4): a(f"v_and_b32 v{ab+r}, v{AB+8}, v{2+r}")
            a(f"{MF} {q(AC)}, {q(ab)}, {q(W+4*i)}, {'0' if i == 0 else q(AC)}")
        if hook: hook()
        a(f"ds_write_b128 v{vLW}, {q(AC)} offset:{lds}")
        a("s_waitcnt lgkmcnt(0)\ns_barrier")
        L = a.label("Lred")
        a(f"s_cmp_lg_u32 s3, 3\ns_cbranch_scc1 {L}")
        R = T
        for k in range(4): a(f"ds_read_b64 {p2(R+2*k)}, v{vRD} offset:{lds + (k//2)*1024 + (k%2)*640}")
        a(f"s_add_u32 s5, s100, {off}")
        a(f"v_mov_b32 v{R+9}, s76\nv_mov_b32 v{R+11}, s76")
        a("s_waitcnt lgkmcnt(0)")
        a(f"v_pk_add_f32 {p2(R)}, {p2(R)}, {p2(R+2)}\nv_pk_add_f32 {p2(R+4)}, {p2(R+4)}, {p2(R+6)}\nv_pk_add_f32 {p2(R)}, {p2(R)}, {p2(R+4)}")
        a(f"v_mov_b64 {p2(R+2)}, {p2(R)}")
        a(f"v_permlane32_swap_b32 v{R}, v{R+2}\nv_permlane32_swap_b32 v{R+1}, v{R+3}")
        a(f"v_add_f32 v{R+8}, v{R}, v{R+2}\nv_add_f32 v{R+10}, v{R+1}, v{R+3}")
        s.exec_set(0xffffffff, 0)
        a(f"buffer_store_dwordx4 {q(R+8)}, v6, s[44:47], s5 offen sc1")
        if flag_vZ is not None:
            a(f"s_lshl_b32 s5, s2, 2\ns_add_u32 s5, s5, {OFF_CLR+0x1000}")
            s.exec_set(1, 0)
            a(f"buffer_store_dword v{R+9}, v{flag_vZ}, s[44:47], s5 offen sc1")
        s.exec_all()
        a(f"{L}:")
    def proj_tail(s, A0, W, T, scb, sfin, scale=None):
        a = s.a
        a(f"v_permlane32_swap_b32 v{A0}, v{A0+1}\nv_add_f32 v{A0}, v{A0}, v{A0+1}")
        a(f"v_mov_b32 v{A0+1}, v{A0}\nv_permlane16_swap_b32 v{A0}, v{A0+1}\nv_add_f32 v{A0}, v{A0}, v{A0+1}")
        if scale is not None: a(f"v_mul_f32 v{A0}, v{A0}, v{scale}")
        a(f"v_cvt_pk_bf16_f32 v{A0}, v{A0}, v{A0}")
        a(f"v_mov_b32 v{A0+1}, v{A0}")
        a(f"v_mov_b32_dpp v{A0}, v{A0+1} row_ror:8 row_mask:0xa bank_mask:0xf")
        AC = T+8; S = T+12
        for g in range(8):
            ab = T + (g % 2)*4
            for r in range(4): a(f"v_and_b32_dpp v{ab+r}, v{A0}, v{2+r} row_newbcast:{g} {DPPF}")
            a(f"{MF} {q(AC)}, {q(ab)}, {q(W[g])}, {'0' if g == 0 else q(AC)}")
        a(f"v_cmp_gt_u32 vcc, 32, v1")
        a(f"v_mov_b32 v{S+1}, s76\nv_mov_b32 v{S+3}, s76")
        a("s_mov_b32 exec_lo, s82\ns_mov_b32 exec_hi, s82")
        a(f"v_cndmask_b32 v{S}, v{AC+2}, v{AC}, vcc\nv_cndmask_b32 v{S+2}, v{AC+3}, v{AC+1}, vcc")
        a(f"buffer_store_dwordx4 {q(S)}, v6, s[44:47], s{sfin} offen sc1")
        s.exec_all()
    def a5(s, sU, R, T, WOA):
        a = s.a; c = s.c
        OG = R; ST = R+8; Z = R+16
        a(f"s_lshr_b32 s12, s{sU}, 3")
        a(f"v_lshrrev_b32 v{T+22}, 4, v1\nv_lshlrev_b32 v{T+22}, 7, v{T+22}")
        a(f"s_lshr_b32 s8, s12, 1\ns_lshl_b32 s8, s8, 12\ns_and_b32 s6, s12, 1\ns_lshl_b32 s6, s6, 4\ns_add_u32 s8, s8, s6\ns_lshl_b32 s6, s3, 10\ns_add_u32 s8, s8, s6\ns_add_u32 s8, s8, {OFF_STA}")
        a(f"s_mul_i32 s6, s{sU}, {HA_U}\ns_lshl_b32 s5, s3, 11\ns_add_u32 s6, s6, s5\ns_add_u32 s6, s6, {OFF_HA}")
        a(f"v_lshlrev_b32 v{T+20}, 4, v0")
        a(f"s_mul_i32 s15, s{sU}, {FS}\ns_lshl_b32 s5, s3, 10\ns_add_u32 s15, s15, s5\ns_add_u32 s15, s15, {OFF_FIN}")
        def issue_o():
            a(f"buffer_load_dwordx4 {q(OG)}, v6, s[44:47], s6 offen sc1\nbuffer_load_dwordx4 {q(OG+4)}, v6, s[44:47], s6 offen offset:1024 sc1")
            a(f"buffer_load_dwordx4 {q(ST)}, v{T+22}, s[44:47], s8 offen sc1\nbuffer_load_dwordx4 {q(ST+4)}, v{T+22}, s[44:47], s8 offen offset:512 sc1")
        s.spoll(6, 0, c['ton'], 256*2, c['tok'])
        s.poll(issue_o, [("s76", [OG+k for k in range(1, 16, 2)])], Z, Z+1, sleep=c['fsleep'])
        s.stamp(7)
        a(f"v_max_f32 v{Z+2}, v{ST}, v{ST+4}")
        a(f"v_sub_f32 v{ST}, v{ST}, v{Z+2}\nv_sub_f32 v{ST+4}, v{ST+4}, v{Z+2}\nv_exp_f32 v{ST}, v{ST}\nv_exp_f32 v{ST+4}, v{ST+4}")
        a(f"v_mul_f32 v{Z}, v{ST}, v{OG}\nv_mul_f32 v{Z+1}, v{ST}, v{OG+2}\nv_mul_f32 v{Z+3}, v{ST}, v{ST+2}")
        a(f"v_fmac_f32 v{Z}, v{ST+4}, v{OG+4}\nv_fmac_f32 v{Z+1}, v{ST+4}, v{OG+6}\nv_fmac_f32 v{Z+3}, v{ST+4}, v{ST+6}")
        a(f"ds_write_b128 v{T+20}, {q(Z)} offset:{0x6000}")
        a("s_waitcnt lgkmcnt(0)\ns_barrier")
        s.stamp(8)
        for k in range(4): a(f"ds_read_b128 {q(OG+4*k)}, v6 offset:{0x6000+1024*k}")
        a("s_waitcnt lgkmcnt(0)")
        a(f"v_max3_f32 v{Z+2}, v{OG+2}, v{OG+6}, v{OG+10}\nv_max_f32 v{Z+2}, v{Z+2}, v{OG+14}")
        s.allred_rows("v_max_f32", Z+2, Z+4)
        for k in range(4): a(f"v_sub_f32 v{OG+4*k+2}, v{OG+4*k+2}, v{Z+2}")
        for k in range(4): a(f"v_exp_f32 v{OG+4*k+2}, v{OG+4*k+2}")
        for k in range(4):
            op = "v_mul_f32" if k == 0 else "v_fmac_f32"
            a(f"{op} v{Z+3}, v{OG+4*k+2}, v{OG+4*k+3}\n{op} v{Z}, v{OG+4*k+2}, v{OG+4*k}\n{op} v{Z+1}, v{OG+4*k+2}, v{OG+4*k+1}")
        s.allred_rows("v_add_f32", Z+3, Z+4)
        a(f"v_rcp_f32 v{Z+3}, v{Z+3}")
        s.proj_tail(Z, WOA, T+24, 3, 15, scale=Z+3)
        s.stamp(9)
    def final(s, sJ, ab, F, T, stp):
        a = s.a; c = s.c
        s.srd(52, 38, 1792)
        a(f"s_mov_b32 s12, {ab}\ns_mov_b32 s13, s{sJ}")
        a("s_sub_u32 s5, s13, 48\ns_lshr_b32 s6, s5, 1\ns_lshl_b32 s6, s6, 2\ns_and_b32 s5, s5, 1\ns_add_u32 s6, s6, s5\ns_add_u32 s6, s6, 48")
        a("s_cmp_ge_u32 s13, 48\ns_cselect_b32 s13, s6, s13")
        a(f"s_mul_i32 s6, s12, {FIN_AB}\ns_lshl_b32 s5, s13, 6\ns_add_u32 s6, s6, s5\ns_add_u32 s6, s6, {OFF_FIN}")
        a(f"v_lshrrev_b32 v{T+9}, 2, v1\nv_mul_u32_u24 v{T+9}, {FS}, v{T+9}\nv_and_b32 v{T+10}, 3, v1\nv_lshl_add_u32 v{T+9}, v{T+10}, 4, v{T+9}")
        def issue_f():
            for i in range(8):
                a(f"s_add_u32 s79, s6, {i*16*FS}")
                a(f"buffer_load_dwordx4 {q(F+4*i)}, v{T+9}, s[44:47], s79 offen sc1")
        a("s_mul_i32 s15, s12, 896\ns_lshr_b32 s5, s13, 4\ns_lshl_b32 s5, s5, 8\ns_add_u32 s15, s15, s5")
        a("s_and_b32 s5, s13, 3\ns_lshl_b32 s5, s5, 6\ns_add_u32 s15, s15, s5")
        a("s_bfe_u32 s5, s13, 0x10002\ns_lshl_b32 s5, s5, 3\ns_add_u32 s15, s15, s5")
        a("s_bfe_u32 s5, s13, 0x10003\ns_lshl_b32 s5, s5, 2\ns_add_u32 s15, s15, s5")
        a(f"v_lshlrev_b32 v{T+8}, 2, v1")
        s.spoll(6, 0, c['tfn'], FS*37, c['tfk'])
        s.poll(issue_f, [("s76", [F+4*i+k for i in range(8) for k in (1, 3)])], T+4, T+5, sleep=c['fsleep'])
        s.stamp(stp)
        dl = c.get('dlb' if ab else 'dla')
        if dl:
            Lsp = a.label("Ldl")
            a(f"s_memrealtime s[98:99]\ns_waitcnt lgkmcnt(0)\ns_mov_b32 s83, s98\n{Lsp}:\ns_memrealtime s[98:99]\ns_waitcnt lgkmcnt(0)\ns_sub_u32 s5, s98, s83\ns_cmp_lt_u32 s5, {dl}\ns_cbranch_scc1 {Lsp}")
        for st in (16, 8, 4):
            for i in range(0, st, 4):
                a(f"v_add_f32 v{F+i}, v{F+i}, v{F+st+i}\nv_add_f32 v{F+i+2}, v{F+i+2}, v{F+st+i+2}")
        for m in ("row_ror:8", "row_ror:4"):
            for k in (0, 2): a(f"v_add_f32_dpp v{F+k}, v{F+k}, v{F+k} {m} {DPPF}")
        for k in (0, 2): s.allred_rows("v_add_f32", F+k, F+k+1)
        a(f"v_cvt_pk_bf16_f32 v{F}, v{F}, v{F+2}")
        if c.get('thr'):
            a(f"s_memrealtime s[98:99]\ns_waitcnt lgkmcnt(0)\ns_sub_u32 s5, s98, s76\ns_cmp_gt_u32 s5, {c['thr']}\ns_cselect_b32 s5, 0x7fc07fc0, 0\nv_or_b32 v{F}, s5, v{F}")
        if c.get('spin'):
            Lsp = a.label("Lspin")
            a(f"{Lsp}:\ns_memrealtime s[98:99]\ns_waitcnt lgkmcnt(0)\ns_sub_u32 s5, s98, s76\ns_cmp_lt_u32 s5, {c['spin']}\ns_cbranch_scc1 {Lsp}")
        if c.get('enc'):
            a("s_memrealtime s[98:99]\ns_waitcnt lgkmcnt(0)\ns_sub_u32 s5, s98, s76")
            a(f"v_mov_b32 v{F+4}, s5\nv_lshrrev_b32 v{F+4}, v{T+8}, v{F+4}")
            a(f"v_and_b32 v{F+5}, 3, v{F+4}\nv_bfe_u32 v{F+4}, v{F+4}, 2, 2\nv_lshl_or_b32 v{F+5}, v{F+4}, 16, v{F+5}")
            a(f"v_and_b32 v{F}, 0xfffcfffc, v{F}\nv_or_b32 v{F}, v{F}, v{F+5}")
        s.exec_set(0xf, 0)
        a(f"buffer_store_dword v{F}, v6, s[52:55], s15 offen {['', 'sc1', 'sc0 sc1', 'nt'][c['osc']]}")
        s.exec_all()
        s.stamp(stp+1)
    def gy(s):
        a = s.a; c = s.c; nt = c['nt']; pb = c['pb']
        XB, WB, UK, UV, T = 8, 16, 72, 136, 200
        PVv = T+40
        vLW = PVv+4
        vZ, vU, vQ = T+47, T+50, T+51
        vE = T+48
        s.p1_setup(2, T, PVv)
        a(f"v_mov_b32 v{vZ}, 0\nv_mov_b32 v{vE+1}, 0")
        a("s_lshr_b32 s12, s2, 3\ns_and_b32 s13, s2, 7")
        if c['qf']:
            a(f"s_lshl_b32 s14, s13, 12\ns_lshl_b32 s6, s12, 4\ns_add_u32 s14, s14, s6\ns_add_u32 s14, s14, {OFF_QABS}")
            a(f"v_lshlrev_b32 v{T+2}, 8, v1")
        else:
            a(f"s_lshl_b32 s14, s13, 8\ns_mul_i32 s6, s12, {QS}\ns_add_u32 s14, s14, s6\ns_add_u32 s14, s14, {OFF_QABS}")
        for r in range(4): a(f"v_mov_b32 v{T+4+r}, -1")
        s.kwait()
        s.srd(44, 42, 0x10000000); s.srd(48, 40, 256)
        s.srd(52, 26, 896); s.srd(56, 30, 448*8192)
        L = a.label("Le0")
        a(f"s_cmp_lg_u32 s3, 3\ns_cbranch_scc1 {L}")
        if c['ncas']:
            Lq = a.label("Lcas")
            a(f"s_cmp_ge_u32 s2, {c['ncas']}\ns_cbranch_scc1 {Lq}")
            a(f"s_mov_b32 s80, s77\ns_mov_b32 s81, 0\ns_atomic_cmpswap s[80:81], s[40:41], 0 glc\n{Lq}:")
        else:
            a(f"v_mov_b32 v{vE}, s77")
            s.exec_set(1, 0)
            a(f"buffer_atomic_cmpswap {p2(vE)}, v{vZ}, s[48:51], 0 offen sc0 sc1")
        s.exec_set(0xffff, 0)
        a(f"buffer_store_dwordx4 {q(T+4)}, v{T+2 if c['qf'] else 6}, s[44:47], s14 offen sc1")
        s.exec_all()
        a(f"{L}:")
        if c.get('fi'): s.stamp(9)
        s.p1_loads(XB, WB, 52, 56, PVv)
        if c.get('fi'): s.stamp(10)
        s.srd(68, 32, 1024*8192); s.srd(72, 34, 1024*8192)
        a(f"v_lshrrev_b32 v{T+2}, 4, v1\nv_lshrrev_b32 v{vQ}, 4, v0\nv_lshlrev_b32 v{vQ}, {8 if c['qf'] else 4}, v{vQ}")
        a(f"v_bfe_u32 v{vU}, v1, 2, 2\nv_lshlrev_b32 v{vU}, 16, v{vU}\nv_lshl_add_u32 v{vU}, v{T+2}, 6, v{vU}")
        a(f"v_and_b32 v{T+3}, 3, v1\nv_lshl_add_u32 v{vU}, v{T+3}, 4, v{vU}")
        a("s_lshl_b32 s15, s13, 20\ns_lshl_b32 s5, s3, 18\ns_add_u32 s15, s15, s5\ns_lshl_b32 s5, s12, 9\ns_add_u32 s15, s15, s5")
        s.common2(T+12)
        s.p1_setup2(T, PVv)
        def ukload(n, pace):
            i, hf = n//2, n % 2
            a(f"s_add_u32 s79, s15, {i*8192}")
            if pace: a(f"s_waitcnt vmcnt({pace-1})")
            a(f"buffer_load_dwordx4 {q(UK+4*n)}, v{vU}, s[68:71], s79 offen offset:{hf*256} {nt}")
        n1 = c['n1']
        for n in range(n1):
            ukload(n, pb)
            if c['ncas'] and n == c['eat']:
                Lq = a.label("Lel")
                a(f"s_cmp_lg_u32 s3, 3\ns_cbranch_scc1 {Lq}\ns_load_dword s76, s[40:41], 0{' glc' if c['eglc'] else ''}\n{Lq}:")
        a(f"s_waitcnt vmcnt({n1})")
        s.stamp(1)
        def ehook():
            L = a.label("Le1"); Lo = a.label("Leo")
            a(f"s_cmp_lg_u32 s3, 3\ns_cbranch_scc1 {L}")
            Lf = a.label("Lef")
            a(f"s_waitcnt lgkmcnt(0)\ns_cmp_eq_u32 s76, 0\ns_cbranch_scc1 {Lf}")
            a(f"s_sub_u32 s5, s77, s76\ns_add_u32 s5, s5, 800\ns_cmp_lt_u32 s5, 1600\ns_cbranch_scc1 {Lo}")
            a(f"{Lf}:")
            a(f"v_mov_b32 v{vE}, 0")
            s.get_epoch(vE, vZ)
            a(f"{Lo}:")
            a(f"v_mov_b32 v{vE}, s76\nds_write_b32 v{vZ}, v{vE} offset:{0x2800}")
            a(f"{L}:")
        s.p1_compute(XB, WB, T, PVv, 0, OFF_QB, vZ, ehook)
        a(f"ds_read_b32 v{vE}, v{vZ} offset:{0x2800}")
        s.stamp(2)
        for n in range(n1, 16): ukload(n, pb)
        a(f"s_waitcnt lgkmcnt(0)\nv_readfirstlane_b32 s76, v{vE}")
        tsave = c['timeout']
        if c.get('nob'): c['timeout'] = 1
        L = a.label("Lqb")
        a(f"s_cmp_ge_u32 s3, 2\ns_cbranch_scc1 {L}")
        a(f"s_lshl_b32 s6, s12, 11\ns_lshl_b32 s5, s3, 10\ns_add_u32 s6, s6, s5\ns_add_u32 s6, s6, {OFF_QB}")
        a(f"v_lshlrev_b32 v{T+20}, 2, v0\nv_add_u32 v{T+20}, 0x2000, v{T+20}")
        s.gather_q(T, 6, T+20, 1)
        a(f"{L}:")
        a(f"v_lshrrev_b32 v{T+21}, 4, v1\nv_lshlrev_b32 v{T+21}, 6, v{T+21}\nv_and_b32 v{T+22}, 3, v1\nv_lshl_add_u32 v{T+21}, v{T+22}, 4, v{T+21}")
        a("s_waitcnt vmcnt(0)\ns_barrier")
        s.stamp(3)
        QF = T; D = WB
        a(f"ds_read_b128 {q(QF)}, v{T+21} offset:{0x2000}\nds_read_b128 {q(QF+4)}, v{T+21} offset:{0x2000+256}")
        a("s_waitcnt lgkmcnt(0)")
        for i in range(8):
            a(f"{MF} {q(D+4*i)}, {q(UK+8*i)}, {q(QF)}, 0")
            a(f"{MF} {q(D+4*i)}, {q(UK+8*i+4)}, {q(QF+4)}, {q(D+4*i)}")
        R = T+8
        for r in range(4):
            for i in range(8):
                if r == 0: a(f"v_mov_b32_dpp v{R+i}, v{D+4*i} quad_perm:[0,0,0,0] {DPPF}")
                else: a(f"v_add_f32_dpp v{R+i}, v{D+4*i+r}, v{R+i} quad_perm:[{r},{r},{r},{r}] {DPPF}")
        for k in range(4): a(f"v_cvt_pk_bf16_f32 v{R+8+k}, v{R+2*k}, v{R+2*k+1}")
        for k in range(4): a(f"v_min_u32 v{R+8+k}, -2, v{R+8+k}")
        s.exec_set(0x00010001, 0x00010001)
        if c['qf']:
            a(f"buffer_store_dwordx4 {q(R+8)}, v{vQ}, s[44:47], s14 offen sc1")
            s.exec_all()
        else:
            a(f"ds_write_b128 v{vQ}, {q(R+8)} offset:{0x2900}")
            s.exec_all()
            a("s_waitcnt lgkmcnt(0)\ns_barrier")
            L = a.label("Lqp")
            a(f"s_cmp_lg_u32 s3, 3\ns_cbranch_scc1 {L}")
            s.exec_set(0xffff, 0)
            a(f"ds_read_b128 {q(R+8)}, v6 offset:{0x2900}\ns_waitcnt lgkmcnt(0)")
            a(f"buffer_store_dwordx4 {q(R+8)}, v6, s[44:47], s14 offen sc1")
            s.exec_all()
            a(f"{L}:")
        s.stamp(4)
        a(f"v_lshrrev_b32 v{vU}, 4, v1\nv_lshlrev_b32 v{vU}, 13, v{vU}\nv_and_b32 v{T+22}, 15, v1\nv_lshl_add_u32 v{vU}, v{T+22}, 4, v{vU}")
        def uvload(n, pace):
            g, hf = n//2, n % 2
            a(f"s_add_u32 s79, s15, {g*4*8192}")
            if pace: a(f"s_waitcnt vmcnt({pace-1})")
            a(f"buffer_load_dwordx4 {q(UV+4*n)}, v{vU}, s[72:75], s79 offen offset:{hf*256} {nt}")
        for n in range(16): uvload(n, c['pu'])
        HG = UK; ST = T
        WL = 0x3000
        a(f"s_mul_i32 s6, s2, {H3_C}\ns_lshl_b32 s5, s3, 13\ns_add_u32 s6, s6, s5\ns_add_u32 s6, s6, {OFF_H3}\ns_add_u32 s7, s6, 4096")
        vSH = T+26
        a(f"v_and_b32 v{vSH}, 15, v1\nv_lshlrev_b32 v{vSH}, 1, v{vSH}\ns_mov_b32 s10, 0xff\ns_sub_u32 s9, 0, s76")
        L = a.label("Lst")
        a(f"s_cmp_lg_u32 s3, 0\ns_cbranch_scc1 {L}")
        a(f"s_lshl_b32 s5, s12, 11\ns_add_u32 s5, s5, {OFF_ST3}")
        def issue_st():
            for k in range(2): a(f"buffer_load_dwordx4 {q(ST+4*k)}, v6, s[44:47], s5 offen offset:{1024*k} sc1")
        if c['stamp']:
            a("s_waitcnt vmcnt(0)"); s.stamp(5)
        sgrp = [("s76", [ST+1, ST+3, ST+5, ST+7])]
        if c['dn']:
            a(f"s_and_b32 s8, s2, 31\ns_lshl_b32 s8, s8, 7\ns_add_u32 s8, s8, {OFF_CHK}")
            s.spoll(8, 0, 4, 4096, c['dn'])
            issue_st()
        else:
            s.spoll(5, 0, c['spn'], 16*37, c['spk'])
            s.poll(issue_st, sgrp, T+8, T+9, sleep=c['ssleep'])
        a(f"{L}:")
        a("s_barrier")
        s.stamp(6)
        def issue_hg(cond=False):
            for i in range(c.get('nbk', 8)):
                Lk = a.label("Lhg")
                if cond: a(f"s_bitcmp0_b32 s10, {i}\ns_cbranch_scc1 {Lk}")
                a(f"buffer_load_dwordx4 {q(HG+4*i)}, v6, s[44:47], {'s6' if i < 4 else 's7'} offen offset:{1024*(i%4)} sc1")
                if cond: a(f"{Lk}:")
        if c['h3d']: a(f"s_sleep {c['h3d']}")
        issue_hg()
        L = a.label("Lwt")
        a(f"s_cmp_lg_u32 s3, 0\ns_cbranch_scc1 {L}")
        if c['dn']:
            Lk = a.label("Lsok")
            a("s_waitcnt vmcnt(8)")
            s.check_tags(sgrp, T+8, T+9)
            a(f"s_cbranch_scc1 {Lk}")
            s.poll(issue_st, sgrp, T+8, T+9, sleep=c['ssleep'])
            a(f"{Lk}:")
        M, Lr, TT, E0 = T+8, T+9, T+10, T+12
        a(f"v_max_f32 v{M}, v{ST}, v{ST+4}")
        s.allred_inrow("v_max_f32", M); s.allred_rows("v_max_f32", M, TT)
        a(f"v_sub_f32 v{E0}, v{ST}, v{M}\nv_sub_f32 v{E0+1}, v{ST+4}, v{M}\nv_exp_f32 v{E0}, v{E0}\nv_exp_f32 v{E0+1}, v{E0+1}")
        a(f"v_mul_f32 v{Lr}, v{E0}, v{ST+2}\nv_fmac_f32 v{Lr}, v{E0+1}, v{ST+6}")
        s.allred_inrow("v_add_f32", Lr); s.allred_rows("v_add_f32", Lr, TT)
        a(f"v_rcp_f32 v{Lr}, v{Lr}")
        a(f"v_and_b32 v{TT}, 3, v1\nv_lshlrev_b32 v{TT}, 7, v{TT}\nv_lshrrev_b32 v{TT+1}, 5, v1\nv_lshl_add_u32 v{TT}, v{TT+1}, 5, v{TT}")
        a(f"v_bfe_u32 v{TT+1}, v1, 2, 3\nv_lshl_add_u32 v{TT}, v{TT+1}, 2, v{TT}")
        for k in range(2):
            e = E0+k; hi = E0+2+k; lo = E0+4+k
            a(f"v_mul_f32 v{e}, v{e}, v{Lr}\nv_cvt_pk_bf16_f32 v{hi}, v{e}, v{e}\nv_and_b32 v{lo}, 0xffff0000, v{hi}\nv_sub_f32 v{lo}, v{e}, v{lo}\nv_cvt_pk_bf16_f32 v{lo}, v{lo}, v{lo}")
            a(f"ds_write_b32 v{TT}, v{hi} offset:{WL+64*k}\nds_write_b32 v{TT}, v{lo} offset:{WL+512+64*k}")
        a("s_waitcnt lgkmcnt(0)")
        a(f"{L}:")
        a(f"v_bfe_u32 v{T+20}, v1, 3, 1\nv_lshlrev_b32 v{T+20}, 9, v{T+20}\nv_lshrrev_b32 v{T+21}, 4, v1\nv_lshl_add_u32 v{T+20}, v{T+21}, 7, v{T+20}")
        a(f"s_lshl_b32 s5, s3, 5\nv_add_u32 v{T+20}, s5, v{T+20}")
        a(f"v_and_b32 v{T+22}, 1, v1\nv_lshlrev_b32 v{T+22}, 8, v{T+22}\nv_bfe_u32 v{T+23}, v1, 1, 2\nv_lshl_add_u32 v{T+22}, v{T+23}, 4, v{T+22}")
        a(f"v_lshl_add_u32 v{T+22}, v{T+21}, 2, v{T+22}\ns_lshl_b32 s5, s3, 6\nv_add_u32 v{T+22}, s5, v{T+22}")
        a("s_barrier")
        WW = T; AO = WB
        a(f"ds_read_b128 {q(WW)}, v{T+20} offset:{WL}\nds_read_b128 {q(WW+4)}, v{T+20} offset:{WL+16}")
        a("s_waitcnt lgkmcnt(0)")
        for i in range(8):
            for r in range(4): a(f"v_and_b32 v{AO+4*i+r}, v{WW+i}, v{2+r}")
        DC = T+8
        Lp = a.label("Lck"); Lw = a.label("Lckw"); Ld = a.label("Lckd")
        a(f"s_mov_b32 s78, {c['timeout']}\ns_branch {Lw}")
        a(f"{Lp}:")
        issue_hg(True)
        a(f"{Lw}:")
        a("s_waitcnt vmcnt(0)")
        SU, BT = 48, 56
        for i in range(8):
            h_ = HG+4*i
            a(f"v_and_b32 v{BT+i}, 3, v{h_}\nv_add3_u32 v{SU+i}, v{h_}, v{h_+1}, v{h_+2}\nv_and_or_b32 v{h_}, v{h_}, -4, 2")
            a(f"v_lshl_add_u32 v{BT+i}, v{BT+i}, v{vSH}, v{BT+i}\nv_add_u32 v{SU+i}, v{SU+i}, v{h_+3}")
            a(f"{MF} {q(DC)}, {q(AO+4*i)}, {q(HG+4*i)}, {'0' if i == 0 else q(DC)}")
            a(f"v_sub_u32 v{SU+i}, v{SU+i}, v{BT+i}")
        for m in ("quad_perm:[1,0,3,2]", "quad_perm:[2,3,0,1]", "row_half_mirror", "row_mirror"):
            for i in range(8): a(f"v_add_u32_dpp v{SU+i}, v{SU+i}, v{SU+i} {m} {DPPF}")
        for i in range(8): a(f"v_cmp_ne_u32 s[{64+2*(i%4)}:{65+2*(i%4)}], s9, v{SU+i}" ) if i < 4 else None
        a("s_mov_b32 s11, 0")
        for half in range(2):
            if half:
                for i in range(4, 8): a(f"v_cmp_ne_u32 s[{64+2*(i%4)}:{65+2*(i%4)}], s9, v{SU+i}")
            for i in range(4*half, 4*half+4):
                a(f"s_cmp_lg_u64 s[{64+2*(i%4)}:{65+2*(i%4)}], 0\ns_cselect_b32 s5, {1 << i}, 0\ns_or_b32 s11, s11, s5")
        a(f"s_and_b32 s10, s10, s11\ns_cbranch_scc0 {Ld}")
        a(f"s_sleep 1\ns_sub_u32 s78, s78, 1\ns_cmp_lg_u32 s78, 0\ns_cbranch_scc1 {Lp}")
        a(f"{Ld}:")
        s.stamp(7)
        a(f"ds_write_b128 v{vLW}, {q(DC)}")
        a("s_waitcnt lgkmcnt(0)\ns_barrier")
        Z = T+12
        for k in range(8): a(f"ds_read_b32 v{Z+k}, v{T+22} offset:{512*k}")
        E = T+24
        s.epi_addr(E, False)
        a(f"v_lshlrev_b32 v{E}, 4, v0")
        a(f"s_lshl_b32 s5, s3, 11\nv_add_u32 v{E+2}, s5, v6")
        a(f"s_lshl_b32 s5, s2, 11\ns_add_u32 s5, s5, {OFF_H4}")
        a("s_waitcnt lgkmcnt(0)")
        for st in (4, 2):
            for i in range(0, st, 2): a(f"v_pk_add_f32 {p2(Z+i)}, {p2(Z+i)}, {p2(Z+st+i)}")
        a(f"v_add_f32 v{Z}, v{Z}, v{Z+1}\nv_cvt_pk_bf16_f32 v{Z}, v{Z}, v{Z}")
        DD = T+28
        for g in range(8):
            ab = T + (g % 2)*4
            for r in range(4): a(f"v_and_b32_dpp v{ab+r}, v{Z}, v{2+r} row_newbcast:{g} {DPPF}")
            for hf in range(2):
                a(f"{MF} {q(DD+4*hf)}, {q(ab)}, {q(UV+8*g+4*hf)}, {'0' if g == 0 else q(DD+4*hf)}")
        a(f"ds_write_b128 v{E+2}, {q(DD)} offset:{0x4000}\nds_write_b128 v{E+2}, {q(DD+4)} offset:{0x4000+1024}")
        a("s_waitcnt lgkmcnt(0)\ns_barrier")
        a(f"s_cmp_ge_u32 s3, 2\ns_cbranch_scc1 L_ya5")
        X = T
        for i in range(4): a(f"ds_read_b64 {p2(X+2*i)}, v{E+3} offset:{0x4000+2048*i}")
        a("s_waitcnt lgkmcnt(0)")
        for st in (4, 2):
            for i in range(0, st, 2): a(f"v_pk_add_f32 {p2(X+i)}, {p2(X+i)}, {p2(X+st+i)}")
        a(f"v_mov_b32 v{X+2}, v{X+1}\nv_mov_b32 v{X+1}, s76\nv_mov_b32 v{X+3}, s76")
        a(f"buffer_store_dwordx4 {q(X)}, v{E}, s[44:47], s5 offen sc1")
        s.stamp(8)
        c['timeout'] = tsave
        a("L_ya5:")
        s.stamp_out()
        a("s_endpgm")
    def gx(s):
        a = s.a; c = s.c; nt = c['nt']; pb = c['pb']
        a("L_X:")
        L1, PV, QF, S = 16, 144, 208, 240
        vTR, vL, vSX, vZ, vE = 8, 9, 10, 11, 12
        a("s_sub_u32 s11, s2, 128")
        a("s_lshl_b32 s8, s11, 17\ns_lshl_b32 s6, s3, 13\ns_add_u32 s8, s8, s6")
        a(f"s_mul_i32 s9, s3, {4*ROW}")
        s.kwait()
        s.srd(52, 28, 8192*2048)
        def dma(i, pace):
            for rr in range(4):
                a(f"s_add_u32 m0, s9, {(i%2)*SLOT + rr*ROW}")
                a(f"s_add_u32 s79, s8, {i*32768 + rr*2048}")
                for hf in range(2):
                    if pace: a(f"s_waitcnt vmcnt({pace-1})")
                    a(f"buffer_load_dwordx4 v6, s[52:55], s79 offen offset:{1024*hf} {nt} lds")
        if c.get('fi'): s.stamp(10)
        dma(0, c['px0'])
        if c.get('fi'): s.stamp(11)
        s.srd(44, 42, 0x10000000); s.srd(48, 40, 256); s.srd(56, 36, 4096*896)
        s.common2(13)
        a(f"v_lshrrev_b32 v13, 2, v1\nv_mul_u32_u24 v{vTR}, {ROW}, v13\nv_and_b32 v13, 3, v1\nv_lshl_add_u32 v{vTR}, v13, 3, v{vTR}")
        a(f"s_lshl_b32 s5, s3, 9\nv_add_u32 v{vTR}, s5, v{vTR}")
        a(f"v_and_b32 v13, 15, v1\nv_mul_u32_u24 v{vL}, {ROW}, v13\nv_lshrrev_b32 v14, 4, v1\nv_lshl_add_u32 v{vL}, v14, 4, v{vL}\nv_add_u32 v{vL}, s5, v{vL}")
        a(f"v_add_u32 v{vSX}, {2*SLOT}, v6\nv_mov_b32 v{vZ}, 0")
        a(f"v_lshrrev_b32 v15, 5, v1\nv_lshlrev_b32 v15, 3, v15\nv_bfe_u32 v7, v1, 4, 1\nv_add_u32 v15, v15, v7\nv_mul_u32_u24 v15, {H3_C}, v15")
        a(f"v_and_b32 v7, 15, v1\nv_lshl_add_u32 v15, v7, 4, v15")
        a(f"s_mul_i32 s10, s3, {2*H3_C}\ns_lshl_b32 s5, s11, 8\ns_add_u32 s10, s10, s5\ns_add_u32 s10, s10, {OFF_H3}")
        dma(1, c['px'])
        def tr(i, dst):
            for t in range(16): a(f"ds_read_b64_tr_b16 {p2(dst(t))}, v{vTR} offset:{(i%2)*SLOT+32*t}")
        def l1(i):
            for ks in range(8): a(f"ds_read_b128 {q(L1+(i*8+ks)*4)}, v{vL} offset:{(i%2)*SLOT+64*ks}")
        a(f"s_lshl_b32 s6, s3, 9\ns_add_u32 s6, s6, {OFF_QABS}\ns_add_u32 s7, s6, {8*QS}\ns_mov_b32 s12, {OFF_CLR+0x1000}\ns_mov_b32 s13, 0xff")
        a(f"v_lshrrev_b32 v14, 3, v1\nv_mul_u32_u24 v14, {QS}, v14\nv_and_b32 v7, 7, v1\nv_lshl_add_u32 v14, v7, 4, v14")
        a(f"v_lshlrev_b32 v7, 5, v7\nv_bfe_u32 v13, v1, 3, 1\nv_lshl_add_u32 v7, v13, 4, v7\nv_lshrrev_b32 v13, 4, v1\nv_lshl_add_u32 v7, v13, 2, v7")
        a(f"v_lshlrev_b32 v13, 3, v1")
        def issue_c():
            a(f"buffer_load_dwordx2 {p2(S)}, v13, s[44:47], s12 offen sc1")
            a(f"buffer_load_dword v{vE}, v{vZ}, s[48:51], 0 offen sc1")
        def issue_q(cond=False):
            for i in range(8):
                Lk = a.label("Lqg")
                if cond: a(f"s_bitcmp0_b32 s13, {i}\ns_cbranch_scc1 {Lk}")
                a(f"buffer_load_dwordx4 {q(QF+4*i)}, v14, s[44:47], {'s7' if i % 2 else 's6'} offen offset:{128*(i//2)} sc1")
                if cond: a(f"{Lk}:")
        cgrp = [(f"v{vE}", [S, S+1])]
        for i in range(4):
            a(f"s_waitcnt vmcnt(8)")
            if i == 2:
                L = a.label("Lclr"); Lk = a.label("Lclk")
                a(f"s_cmp_lg_u32 s3, 0\ns_cbranch_scc1 {L}")
                s.check_tags(cgrp, S+2, S+3)
                a(f"s_cbranch_scc1 {Lk}")
                s.poll(issue_c, cgrp, S+2, S+3, sleep=4)
                a(f"{Lk}:")
                a(f"ds_write_b32 v{vSX}, v{vE} offset:12288\ns_waitcnt lgkmcnt(0)")
                a(f"{L}:")
            a("s_barrier")
            l1(i)
            if i < 2:
                tr(i, lambda t: PV+4*t+2*i)
                a("s_waitcnt lgkmcnt(0)\ns_barrier")
                if i == 1:
                    L = a.label("Lcli")
                    a(f"s_cmp_lg_u32 s3, 0\ns_cbranch_scc1 {L}")
                    issue_c()
                    a(f"{L}:")
                dma(i+2, c['px'])
            if i == 2:
                a(f"ds_read_b32 v{vE}, v{vSX} offset:12288")
                a(f"s_waitcnt vmcnt({c['qat']})")
                issue_q()
        tsave = c['timeout']
        s.stamp(1)
        if True:
            Lp = a.label("Lqp"); Lw = a.label("Lqw"); Ld = a.label("Lqd")
            a(f"s_mov_b32 s78, {c['timeout']}\ns_branch {Lw}")
            a(f"{Lp}:")
            issue_q(True)
            a(f"{Lw}:")
            a("s_waitcnt vmcnt(0)")
            for i in range(8): a(f"v_max3_u32 v{S+i}, v{QF+4*i}, v{QF+4*i+1}, v{QF+4*i+2}")
            for i in range(8): a(f"v_max_u32 v{S+i}, v{S+i}, v{QF+4*i+3}")
            a(f"v_max3_u32 v{S+8}, v{S}, v{S+1}, v{S+2}\nv_max3_u32 v{S+9}, v{S+3}, v{S+4}, v{S+5}\nv_max3_u32 v{S+8}, v{S+8}, v{S+6}, v{S+7}\nv_max_u32 v{S+8}, v{S+8}, v{S+9}")
            a(f"v_cmp_eq_u32 vcc, -1, v{S+8}\ns_cbranch_vccz {Ld}")
            a("s_mov_b32 s13, 0")
            for i in range(8):
                a(f"v_cmp_eq_u32 vcc, -1, v{S+i}\ns_cmp_lg_u64 vcc, 0\ns_cselect_b32 s5, {1 << i}, 0\ns_or_b32 s13, s13, s5")
            a(f"s_sleep 1\ns_sub_u32 s78, s78, 1\ns_cmp_lg_u32 s78, 0\ns_cbranch_scc1 {Lp}")
            a(f"{Ld}:")
            a("s_waitcnt lgkmcnt(0)")
            a(f"v_readfirstlane_b32 s76, v{vE}")
            s.stamp(2)
            TM = [11, 12, 13, 14]
            def mix(kp):
                A_, B_ = QF+8*kp, QF+8*kp+4
                o = []
                for r in range(4): o.append(f"v_mov_b32 v{TM[r]}, v{A_+r}")
                for r in range(4): o.append(f"v_mov_b32_dpp v{A_+r}, v{B_+r} row_shr:4 row_mask:0xf bank_mask:0xa")
                for r in range(4): o.append(f"v_mov_b32_dpp v{B_+r}, v{TM[r]} row_shl:4 row_mask:0xf bank_mask:0x5")
                for r in range(8): o.append(f"ds_bpermute_b32 v{A_+r}, v7, v{A_+r}")
                return o
            pend = mix(0) + mix(1)[:12]
            rest = mix(1)[12:] + mix(2) + mix(3)
            nb = 0
            def emit(l):
                nonlocal nb
                a(l)
                if l.startswith("ds_"): nb += 1
            for l in pend: emit(l)
            for ks in range(8):
                while nb < 4*(ks+1): emit(rest.pop(0))
                a(f"s_waitcnt lgkmcnt({min(15, nb - 4*(ks+1))})")
                for ch in range(4):
                    a(f"{MF} {q(S+4*ch)}, {q(L1+(ch*8+ks)*4)}, {q(QF+4*ks)}, {'0' if ks == 0 else q(S+4*ch)}")
                    for _ in range(3):
                        if rest: emit(rest.pop(0))
            assert not rest
            a(f"v_and_b32 v11, 15, v1\nv_mul_u32_u24 v11, {ROW}, v11\nv_lshrrev_b32 v14, 4, v1\nv_bfe_u32 v7, v1, 2, 2\nv_xor_b32 v14, v14, v7\nv_lshl_add_u32 v11, v14, 3, v11")
            a(f"s_lshl_b32 s5, s3, 9\nv_add_u32 v11, s5, v11")
            a(f"v_lshrrev_b32 v14, 5, v1\nv_mul_u32_u24 v14, {ROW}, v14\nv_and_b32 v7, 31, v1\nv_lshl_add_u32 v14, v7, 4, v14\nv_add_u32 v14, s5, v14\nv_xor_b32 v7, 16, v14")
            a(f"v_and_b32 v12, 15, v1\nv_lshlrev_b32 v12, 1, v12")
        PV1 = L1
        Lx = a.label("Lsx")
        labs = [a.label("Lsxw") for _ in range(4)]
        for w in range(1, 4): a(f"s_cmp_eq_u32 s3, {w}\ns_cbranch_scc1 {labs[w]}")
        for w in range(4):
            a(f"{labs[w]}:")
            for ch in range(4):
                if ch == w: continue
                k = (w - ch - 1) % 4
                a(f"ds_write_b128 v{vSX}, {q(S+4*ch)} offset:{(ch*3+k)*1024}")
            a(f"v_mov_b64 {p2(QF)}, {p2(S+4*w)}\nv_mov_b64 {p2(QF+2)}, {p2(S+4*w+2)}")
            if w < 3: a(f"s_branch {Lx}")
        a(f"{Lx}:")
        a(f"s_mul_i32 s5, s3, 3072\nv_add_u32 v13, s5, v{vSX}")
        a("s_waitcnt lgkmcnt(0)\ns_barrier")
        for k in range(3): a(f"ds_read_b128 {q(QF+4+4*k)}, v13 offset:{1024*k}")
        tr(2, lambda t: PV1+4*t)
        a("s_waitcnt lgkmcnt(15)\ns_waitcnt lgkmcnt(14)")
        a(f"v_pk_add_f32 {p2(QF)}, {p2(QF)}, {p2(QF+4)}\nv_pk_add_f32 {p2(QF+2)}, {p2(QF+2)}, {p2(QF+6)}")
        a(f"v_pk_add_f32 {p2(QF+8)}, {p2(QF+8)}, {p2(QF+12)}\nv_pk_add_f32 {p2(QF+10)}, {p2(QF+10)}, {p2(QF+14)}")
        a(f"v_pk_add_f32 {p2(QF)}, {p2(QF)}, {p2(QF+8)}\nv_pk_add_f32 {p2(QF+2)}, {p2(QF+2)}, {p2(QF+10)}")
        a(f"ds_write_b128 v13, {q(QF)}")
        a("s_waitcnt lgkmcnt(0)\ns_barrier")
        s.stamp(3)
        SR = S
        for ch in range(4): a(f"ds_read_b128 {q(SR+4*ch)}, v{vSX} offset:{3072*ch}")
        a("s_waitcnt lgkmcnt(0)")
        tr(3, lambda t: PV1+4*t+2)
        M, Lr, TT, P = QF+8, QF+10, QF+12, QF
        a(f"v_max3_f32 v{M}, v{SR}, v{SR+1}, v{SR+2}")
        for i in range(3, 16, 2): a(f"v_max3_f32 v{M}, v{M}, v{SR+i}, v{SR+min(i+1,15)}")
        s.allred_rows("v_max_f32", M, TT)
        a(f"s_mov_b32 s5, {f32(CEXP)}\nv_mul_f32 v{M}, s5, v{M}")
        for i in range(16): a(f"v_fma_f32 v{SR+i}, v{SR+i}, s5, -v{M}")
        for i in range(16): a(f"v_exp_f32 v{SR+i}, v{SR+i}")
        for i in range(8): a(f"v_cvt_pk_bf16_f32 v{P+i}, v{SR+2*i}, v{SR+2*i+1}")
        O = L1+64
        a("s_waitcnt lgkmcnt(0)")
        def fin(t):
            a(f"v_cvt_pk_bf16_f32 v{O+4*t}, v{O+4*t}, v{O+4*t+1}\nv_cvt_pk_bf16_f32 v{O+4*t+1}, v{O+4*t+2}, v{O+4*t+3}")
            a(f"ds_write_b64 v11, {p2(O+4*t)} offset:{32*t}")
        for t in range(16):
            a(f"{MF} {q(O+4*t)}, {q(PV+4*t)}, {q(P)}, 0")
            a(f"{MF} {q(O+4*t)}, {q(PV1+4*t)}, {q(P+4)}, {q(O+4*t)}")
            if t == 0:
                L = a.label("Lst3")
                a(f"s_cmp_lg_u32 s3, 0\ns_cbranch_scc1 {L}")
                for st in (8, 4, 2):
                    for i in range(0, st, 2): a(f"v_pk_add_f32 {p2(SR+i)}, {p2(SR+i)}, {p2(SR+st+i)}")
                a(f"v_add_f32 v{Lr}, v{SR}, v{SR+1}")
                s.allred_rows("v_add_f32", Lr, TT)
                a(f"v_mov_b32 v{M+1}, s76\nv_mov_b32 v{Lr+1}, s76\nv_lshlrev_b32 v{TT}, 11, v1")
                a(f"s_lshl_b32 s5, s11, 4\ns_add_u32 s5, s5, {OFF_ST3}")
                s.exec_set(0xffff, 0)
                a(f"buffer_store_dwordx4 {q(M)}, v{TT}, s[44:47], s5 offen sc1")
                s.exec_all()
                a(f"{L}:")
            if t >= 3: fin(t-3)
        fin(13); fin(14); fin(15)
        a("s_waitcnt lgkmcnt(0)")
        s.stamp(4)
        SQ = L1
        nrd = []
        for i in range(8):
            xx = i//2; va = 7 if xx >= 2 else 14
            if xx % 2 == 0: a(f"ds_read_b128 {q(SQ+4*i)}, v{va} offset:{2*ROW*i}"); nrd.append(1)
            else: a(f"ds_read_b64 {p2(SQ+4*i+2)}, v{va} offset:{2*ROW*i}\nds_read_b64 {p2(SQ+4*i)}, v{va} offset:{2*ROW*i+8}"); nrd.append(2)
        for i in range(8):
            a(f"s_waitcnt lgkmcnt({sum(nrd[i+1:])})")
            a(f"v_and_b32 v{SQ+4*i}, -4, v{SQ+4*i}\nv_add3_u32 v{O+i}, v{SQ+4*i+1}, v{SQ+4*i+2}, v{SQ+4*i+3}\nv_add_u32 v{O+i}, v{O+i}, v{SQ+4*i}")
        for m in ("quad_perm:[1,0,3,2]", "quad_perm:[2,3,0,1]", "row_half_mirror", "row_mirror"):
            for i in range(8): a(f"v_add_u32_dpp v{O+i}, v{O+i}, v{O+i} {m} {DPPF}")
        for i in range(8):
            a(f"v_add_u32 v{O+i}, s76, v{O+i}\nv_bfe_u32 v{O+i}, v{O+i}, v12, 2\nv_or_b32 v{SQ+4*i}, v{SQ+4*i}, v{O+i}")
            a(f"s_add_u32 s79, s10, {i*16*H3_C}")
            if i < c.get('nbk', 8): a(f"buffer_store_dwordx4 {q(SQ+4*i)}, v15, s[44:47], s79 offen sc1")
        if c['dn']:
            L = a.label("Ldn")
            a(f"s_cmp_lg_u32 s3, 0\ns_cbranch_scc1 {L}")
            a(f"s_lshl_b32 s5, s11, 7\ns_add_u32 s5, s5, {OFF_CHK}")
            s.exec_set(1, 0)
            a(f"buffer_store_dwordx4 {q(M)}, v6, s[44:47], s5 offen sc1")
            s.exec_all()
            a(f"{L}:")
        s.stamp(5)
        WOB = [PV+4*t for t in range(8)]; WOA = [PV+32+4*t for t in range(8)]
        T = QF
        a(f"s_mov_b32 s14, s3\ns_mul_i32 s15, s11, {32*896}")
        s.proj_wload(WOB, 13, 56, 15, 14)
        def wob():
            for t in range(8): s.proj_wload_one(t, WOB, 13, 56, 15)
        if not c['dwb']: wob()
        a("s_lshr_b32 s12, s11, 3\ns_and_b32 s13, s11, 7")
        G = L1+32
        a(f"v_lshrrev_b32 v7, 4, v1\nv_lshlrev_b32 v7, 11, v7\nv_and_b32 v14, 15, v1\nv_lshl_add_u32 v7, v14, 4, v7")
        a(f"s_lshl_b32 s5, s12, 14\ns_lshl_b32 s6, s13, 8\ns_add_u32 s5, s5, s6\ns_add_u32 s5, s5, {OFF_H4}\ns_add_u32 s6, s5, 8192")
        def issue_h4():
            a(f"buffer_load_dwordx4 {q(G)}, v7, s[44:47], s5 offen sc1\nbuffer_load_dwordx4 {q(G+4)}, v7, s[44:47], s6 offen sc1")
        if c['dwb']:
            if c['x1w']:
                Lq = a.label("Lx1w")
                a(f"s_cmp_lg_u32 s3, 0\ns_cbranch_scc1 {Lq}")
                sv = c['spsleep']; c['spsleep'] = c['x1s']
                s.spoll(5, 0, c['x1n'], 2048*2, c['x1k'])
                c['spsleep'] = sv
                a(f"{Lq}:\ns_barrier")
            else: s.spoll(5, 0, 4, 2048*2, 1)
            wob()
            if c['dwb'] == 1: s.spoll(5, 0, c['spn'], 2048*2, c['spk'])
        else: s.spoll(5, 0, c['spn'], 2048*2, c['spk'])
        s.poll(issue_h4, [("s76", [G+1, G+3, G+5, G+7])], G+8, G+9, sleep=c['sleep'])
        s.stamp(6)
        a(f"v_add_f32 v{G}, v{G}, v{G+4}\nv_add_f32 v{G+1}, v{G+2}, v{G+6}")
        a(f"s_mul_i32 s15, s11, {FS}\ns_lshl_b32 s5, s3, 10\ns_add_u32 s15, s15, s5\ns_add_u32 s15, s15, {OFF_FIN+FIN_AB}")
        s.proj_tail(G, WOB, T, 14, 15)
        s.stamp(7)
        c['timeout'] = tsave
        a("s_cmp_ge_u32 s11, 56\ns_cbranch_scc1 L_xend\ns_cmp_ge_u32 s3, 1\ns_cbranch_scc1 L_xend")
        s.final(11, 1, L1+64, QF+16, 8)
        a("L_xend:")
        s.stamp_out()
        a("s_endpgm")
    def ga(s):
        a = s.a; c = s.c; pa = c['pa']
        a("L_A:")
        NS = c['ns']; NL = 2*NS
        Kb, Vb, T, AD = 16, 112, 208, 8
        assert NS <= 12
        NIT = (4096 - 64*4*NS)//8 * (2 if c['c1'] else 1)
        QF, AC, D, TS, MM = T, T+8, T+16, T+24, T+36
        M, Lr, F, FA, TK, TT = MM, MM+1, MM+2, MM+3, MM+4, MM+5
        vZ, vE = T+46, T+47
        if c['gmix']:
            a("s_sub_u32 s11, s2, 256\ns_lshr_b32 s6, s11, 3\ns_add_u32 s6, s6, s11\ns_and_b32 s12, s11, 8\ns_sub_u32 s6, s6, s12")
            a("s_bfe_u32 s9, s6, 0x30001\ns_and_b32 s12, s6, 1")
        else:
            a("s_sub_u32 s11, s2, 256\ns_bfe_u32 s9, s11, 0x30004\ns_bfe_u32 s12, s11, 0x10003")
        a("s_lshr_b32 s6, s11, 7\ns_lshl_b32 s6, s6, 3\ns_and_b32 s10, s11, 7\ns_add_u32 s13, s10, s6")
        a("s_lshl_b32 s10, s12, 4\ns_add_u32 s10, s10, s13")
        if c['c1']:
            a("s_lshl_b32 s14, s9, 22")
            a(f"s_lshl_b32 s8, s10, 2\ns_add_u32 s8, s8, s3\ns_mul_i32 s8, s8, {NS*2048}\ns_add_u32 s8, s8, s14")
            a(f"s_add_u32 s14, s14, {128*NS*2048}")
            a(f"s_lshl_b32 s15, s9, 9\ns_add_u32 s15, s15, {OFF_CLR}")
        else:
            a("s_lshl_b32 s14, s9, 22\ns_lshl_b32 s6, s12, 21\ns_add_u32 s14, s14, s6")
            a(f"s_lshl_b32 s8, s13, 2\ns_add_u32 s8, s8, s3\ns_mul_i32 s8, s8, {32768 if c['il'] else NS*2048}\ns_add_u32 s8, s8, s14")
            a(f"s_add_u32 s14, s14, {NS*2048 if c['il'] else 64*NS*2048}")
            a(f"s_lshl_b32 s15, s9, 1\ns_add_u32 s15, s15, s12\ns_lshl_b32 s15, s15, 8\ns_add_u32 s15, s15, {OFF_CLR}")
        a(f"v_mov_b32 v{vZ}, 0")
        s.kv_addr(AD)
        s.common2(T)
        s.kwait()
        s.srd(44, 42, 0x10000000); s.srd(48, 40, 256)
        s.srd(68, 18, 8*8192*512); s.srd(72, 20, 8*8192*512)
        vK, vV = AD, AD+1
        def ld(n, reg, voff, srd, pace):
            g, hf = n//2, n % 2
            gi = n + (NL if srd == 72 else 0)
            px_ = (c['pa0'] if gi < c['npre'] else c['pax']) if gi < c['nax'] else pace
            py_ = c['pa0'] if gi < c['nay'] else pace
            if px_ != py_:
                lo, cond = (px_, 'lt') if px_ < py_ else (py_, 'ge')
                Lk = a.label("Lpc")
                a(f"s_cmp_{cond}_u32 s11, 128\ns_cbranch_scc1 {Lk}\ns_waitcnt vmcnt({lo-1})\n{Lk}:")
            a(f"s_add_u32 s79, s8, {(g//2)*4096}")
            a(f"s_waitcnt vmcnt({max(px_, py_)-1})")
            a(f"buffer_load_dwordx4 {q(reg)}, v{voff}, s[{srd}:{srd+3}], s79 offen offset:{(g%2)*2048+hf*256} {c['nt']}")
            if c.get('bw'):
                m = {5: 7, 13: 8, 2*NL-1: 9}
                if gi in m: s.stamp(m[gi])
        for n in range(c['npre']): ld(n, Kb+4*n, vK, 68, pa)
        Lj = a.label("Lp1j")
        a(f"s_cmp_{'lt' if c['p1x'] else 'ge'}_u32 s11, 128\ns_cbranch_scc1 {Lj}")
        if c['prioa']: a(f"s_setprio {c['prioa']}")
        s.srd(52, 16, 896); s.srd(56, 22, 448*8192)
        XA, WA, PVv = Vb, Vb+4, T+16
        a("s_and_b32 s13, s11, 127")
        Lc = a.label("Lcz")
        a(f"s_cmp_ge_u32 s13, 8\ns_cbranch_scc1 {Lc}\ns_cmp_lg_u32 s3, 3\ns_cbranch_scc1 {Lc}")
        a(f"s_lshl_b32 s6, s13, 9\ns_add_u32 s6, s6, {OFF_CLR}\nv_lshlrev_b32 v{T}, 8, v1")
        s.exec_set(3, 0)
        a(f"buffer_store_dword v{vZ}, v{T}, s[44:47], s6 offen sc1")
        s.exec_all()
        a(f"{Lc}:")
        s.p1_setup(13, T, PVv)
        if c.get('fi'): s.stamp(10)
        s.p1_loads(XA, WA, 52, 56, PVv)
        if c.get('fi'): s.stamp(11)
        s.p1_setup2(T, PVv)
        a("s_waitcnt vmcnt(3)")
        a(f"buffer_load_dword v{vE}, v{vZ}, s[48:51], 0 offen sc1")
        a("s_waitcnt vmcnt(0)")
        s.get_epoch(vE, vZ)
        a("s_setprio 3")
        s.p1_compute(XA, WA, T, PVv, 0x1000, OFF_QA)
        a(f"s_setprio 0")
        a(f"{Lj}:")
        s.stamp(6)
        na0 = c['npre']
        v1n = c['v1']
        a(f"v_bfe_u32 v{AD+4}, v1, 3, 1\nv_lshlrev_b32 v{AD+4}, 9, v{AD+4}")
        a(f"v_lshl_add_u32 v{AD+4}, v{AD+2}, 6, v{AD+4}\nv_lshl_add_u32 v{AD+4}, v{AD+3}, 4, v{AD+4}")
        assert na0 <= NL-8
        for n in range(na0, NL):
            ld(n, Kb+4*n, vK, 68, pa)
            if n == NL-8: a(f"buffer_load_dword v{vE}, v{vZ}, s[48:51], 0 offen sc1")
        a("s_waitcnt vmcnt(7)")
        s.get_epoch(vE, vZ)
        vq = c['vq']
        for n in range(vq): ld(n, Vb+4*n, vV, 72, pa)
        def vfirst():
            for n in range(vq, vq+v1n): ld(n, Vb+4*n, vV, 72, pa)
        a(f"s_lshl_b32 s6, s9, 12\ns_lshl_b32 s5, s3, 10\ns_add_u32 s6, s6, s5\ns_add_u32 s6, s6, {OFF_QA}")
        a(f"v_lshlrev_b32 v{T+20}, 2, v0")
        s.gather_q(T, 6, T+20, 1, vfirst, v1n, sleep=c['qsleep'])
        a("s_barrier")
        s.stamp(1)
        a(f"ds_read_b128 {q(QF)}, v{AD+4}\nds_read_b128 {q(QF+4)}, v{AD+4} offset:256")
        a(f"s_mov_b32 s13, {f32(CEXP)}")
        a(f"s_waitcnt vmcnt({v1n}) lgkmcnt(0)")
        s.stamp(2)
        v1n += vq
        nv = v1n
        SA = c['sat']
        if c['ystop']:
            a(f"s_cmp_lt_u32 s11, 128\ns_cselect_b32 s82, {NIT-c['ystop']}, -1\ns_mov_b32 s83, 0")
        def ticket():
            if SA:
                if c['ystop']:
                    Lk = a.label("Lys")
                    a(f"s_cmp_ge_u32 s83, s82\ns_mov_b32 s83, -1\ns_cbranch_scc1 {Lk}")
                    a(f"s_mov_b32 s83, 1\ns_atomic_add s83, s[42:43], s15 glc\n{Lk}:")
                else:
                    a("s_mov_b32 s83, 1\ns_atomic_add s83, s[42:43], s15 glc")
                return
            a(f"v_mov_b32 v{TK}, 1")
            s.exec_set(1, 0)
            a(f"buffer_atomic_add v{TK}, v{vZ}, s[44:47], s15 offen sc0 sc1")
            s.exec_all()
        tk_at = NL - c['tka']
        def more(k=1):
            nonlocal nv
            for _ in range(k):
                if nv < NL:
                    if nv == max(tk_at, v1n): ticket()
                    ld(nv, Vb+4*nv, vV, 72, pa); nv += 1
        def dreg(i): return D+4*i if i < 2 else Kb+8*(i-2)
        for i in range(NS):
            a(f"{MF} {q(dreg(i))}, {q(Kb+i*8)}, {q(QF)}, 0")
            a(f"{MF} {q(dreg(i))}, {q(Kb+i*8+4)}, {q(QF+4)}, {q(dreg(i))}")
            if i % 6 == 5: more()
        for r in range(4):
            for i in range(NS):
                if r == 0: a(f"v_mov_b32_dpp v{TS+i}, v{dreg(i)} quad_perm:[0,0,0,0] {DPPF}")
                else: a(f"v_add_f32_dpp v{TS+i}, v{dreg(i)+r}, v{TS+i} quad_perm:[{r},{r},{r},{r}] {DPPF}")
        more()
        for i in range(0, NS, 2): a(f"v_cvt_pk_bf16_f32 v{D+(i//2)}, v{TS+i}, v{TS+i+1}")
        for i in range(0, NS, 2): a(f"v_lshlrev_b32 v{TS+i}, 16, v{D+i//2}\nv_and_b32 v{TS+i+1}, 0xffff0000, v{D+i//2}")
        a(f"v_max3_f32 v{M}, v{TS}, v{TS+1}, v{TS+2}")
        for i in range(3, NS, 2): a(f"v_max3_f32 v{M}, v{M}, v{TS+i}, v{TS+min(i+1,NS-1)}")
        s.allred_rows("v_max_f32", M, TT)
        a(f"v_mul_f32 v{M}, s13, v{M}")
        for i in range(NS): a(f"v_fma_f32 v{TS+i}, v{TS+i}, s13, -v{M}")
        more()
        for i in range(NS): a(f"v_exp_f32 v{TS+i}, v{TS+i}")
        a(f"v_add_f32 v{Lr}, v{TS}, v{TS+1}")
        for i in range(2, NS): a(f"v_add_f32 v{Lr}, v{Lr}, v{TS+i}")
        for i in range(NS): a(f"v_cvt_pk_bf16_f32 v{TS+i}, v{TS+i}, v{TS+i}")
        s.stamp(3)
        done = 0
        def pv(i):
            ab = D + (i % 2)*4
            for r in range(4): a(f"v_and_b32 v{ab+r}, v{TS+i}, v{2+r}")
            for hf in range(2):
                a(f"{MF} {q(AC+4*hf)}, {q(ab)}, {q(Vb+8*i+4*hf)}, {'0' if i == 0 else q(AC+4*hf)}")
        def pv_upto(k):
            nonlocal done
            while done < NS and 2*done+2 <= k:
                pv(done); done += 1
        while nv < NL:
            more()
            pv_upto(nv - 1 - (pa-1))
        ntk = NL - max(tk_at, v1n)
        BUF = [Kb, Kb+32]
        Lend = a.label("Lae")
        vK2, vV2 = MM+6, MM+7
        def take(Lno, younger, sb=52):
            if SA: a("s_waitcnt lgkmcnt(0)\ns_mov_b32 s5, s83")
            else:
                a(f"s_waitcnt vmcnt({younger})")
                a(f"v_readfirstlane_b32 s5, v{TK}")
            a(f"s_cmp_ge_u32 s5, {NIT + c['hk']}\ns_cbranch_scc1 {Lno}")
            if c['pdy']:
                a(f"s_sub_u32 s7, s5, {c['ylo']}\ns_cmp_lt_u32 s7, {c['yhi']-c['ylo']}\ns_cselect_b32 s7, 1, 0\ns_cmp_lt_u32 s11, 128\ns_cselect_b32 s7, s7, 0")
            if c['il']: a(f"s_and_b32 s6, s5, 63\ns_lshl_b32 s6, s6, 15\ns_lshr_b32 s5, s5, 6\ns_lshl_b32 s5, s5, 12\ns_add_u32 s79, s14, s5\ns_add_u32 s79, s79, s6")
            elif c['hk']:
                T0 = NIT - c['hk']
                a(f"s_min_u32 s6, s5, {T0}\ns_add_u32 s6, s6, s5\ns_lshl_b32 s6, s6, 11\ns_add_u32 s79, s14, s6")
                a(f"s_cmp_ge_u32 s5, {T0}\ns_cselect_b32 s{sb}, 0xff800000, 0\ns_cselect_b32 s6, 0x4000000, 0")
                a(f"v_add_u32 v{vK2}, s6, v{vK}\nv_add_u32 v{vV2}, s6, v{vV}")
            else: a(f"s_lshl_b32 s5, s5, 12\ns_add_u32 s79, s14, s5")
        def item_loads(B):
            if c.get('bw'): a("s_add_u32 s94, s94, 1")
            for n in range(8):
                if n == (c['tkn'] if SA else 0): ticket()
                if c['pdy']:
                    Lk = a.label("Lpy")
                    a(f"s_cmp_eq_u32 s7, 0\ns_cbranch_scc1 {Lk}\ns_waitcnt vmcnt({c['pdy']-1})\n{Lk}:")
                if c['pdx'] and c['pdx'] < c['pd']:
                    Lk = a.label("Lpd")
                    a(f"s_cmp_lt_u32 s11, 128\ns_cbranch_scc1 {Lk}\ns_waitcnt vmcnt({c['pdx']-1})\n{Lk}:")
                a(f"s_waitcnt vmcnt({c['pd']-1})")
                vo, srd = (vK, 68) if n < 4 else (vV, 72)
                k = n % 4
                if c['hk'] and k >= 2: vo = vK2 if n < 4 else vV2
                a(f"buffer_load_dwordx4 {q(B+4*n)}, v{vo}, s[{srd}:{srd+3}], s79 offen offset:{(k//2)*2048+(k%2)*256} {c['nt']}")
        def item_compute(B, last):
            if last:
                woa()
                a("s_waitcnt vmcnt(12)")
            for i in range(2):
                a(f"{MF} {q(D+4*i)}, {q(B+8*i)}, {q(QF)}, 0")
                a(f"{MF} {q(D+4*i)}, {q(B+8*i+4)}, {q(QF+4)}, {q(D+4*i)}")
            for r in range(4):
                for i in range(2):
                    if r == 0: a(f"v_mov_b32_dpp v{TS+i}, v{D+4*i} quad_perm:[0,0,0,0] {DPPF}")
                    else: a(f"v_add_f32_dpp v{TS+i}, v{D+4*i+r}, v{TS+i} quad_perm:[{r},{r},{r},{r}] {DPPF}")
            a(f"v_cvt_pk_bf16_f32 v{TT}, v{TS}, v{TS+1}\nv_lshlrev_b32 v{TS}, 16, v{TT}\nv_and_b32 v{TS+1}, 0xffff0000, v{TT}")
            if c['hk']: a(f"v_add_f32 v{TS+1}, s{52 + (0 if B == BUF[0] else 1)}, v{TS+1}")
            a(f"v_max_f32 v{TS+2}, v{TS}, v{TS+1}")
            s.allred_rows("v_max_f32", TS+2, TT)
            a(f"v_mul_f32 v{TS+2}, s13, v{TS+2}\nv_max_f32 v{TS+2}, v{TS+2}, v{M}")
            a(f"v_sub_f32 v{F}, v{M}, v{TS+2}\nv_fma_f32 v{TS}, v{TS}, s13, -v{TS+2}\nv_fma_f32 v{TS+1}, v{TS+1}, s13, -v{TS+2}")
            a(f"v_exp_f32 v{F}, v{F}\nv_exp_f32 v{TS}, v{TS}\nv_exp_f32 v{TS+1}, v{TS+1}\nv_mov_b32 v{M}, v{TS+2}")
            a(f"v_fma_f32 v{Lr}, v{Lr}, v{F}, v{TS}")
            a(f"v_mov_b32_dpp v{FA}, v{F} row_newbcast:0 row_mask:0x3 bank_mask:0xf")
            a(f"v_add_f32 v{Lr}, v{Lr}, v{TS+1}")
            a(f"v_cvt_pk_bf16_f32 v{TS}, v{TS}, v{TS}")
            a(f"v_mov_b32_dpp v{FA}, v{F} row_newbcast:8 row_mask:0xc bank_mask:0xf")
            a(f"v_cvt_pk_bf16_f32 v{TS+1}, v{TS+1}, v{TS+1}")
            for k in range(8): a(f"v_mul_f32 v{AC+k}, v{AC+k}, v{FA}")
            for i in range(2):
                for r in range(4): a(f"v_and_b32 v{D+4*i+r}, v{TS+i}, v{2+r}")
            if last: a("s_waitcnt vmcnt(8)")
            for i in range(2):
                for hf in range(2):
                    a(f"{MF} {q(AC+4*hf)}, {q(D+4*i)}, {q(B+16+8*i+4*hf)}, {q(AC+4*hf)}")
        E = Kb+64
        s.epi_addr(E, True)
        a(f"v_bfe_u32 v{E+2}, v0, 4, 4\nv_mul_u32_u24 v{E+2}, {HA_U}, v{E+2}")
        a(f"v_and_b32 v{E}, 15, v0\nv_lshl_add_u32 v{E+2}, v{E}, 4, v{E+2}")
        a(f"s_mul_i32 s12, s9, {16*HA_U}\ns_lshl_b32 s6, s10, 8\ns_add_u32 s12, s12, s6\ns_add_u32 s12, s12, {OFF_HA}")
        a(f"s_lshl_b32 s5, s3, 11\nv_add_u32 v{AD+4}, s5, v6")
        a(f"v_bfe_u32 v{AD+6}, v1, 3, 1\nv_lshlrev_b32 v{AD+6}, 5, v{AD+6}\ns_lshl_b32 s5, s3, 3\nv_add_u32 v{AD+7}, s5, v{AD+6}")
        a(f"v_lshrrev_b32 v{AD+5}, 7, v0\nv_lshlrev_b32 v{AD+5}, 5, v{AD+5}")
        a(f"s_lshl_b32 s10, s10, 7\ns_lshl_b32 s5, s9, 12\ns_add_u32 s10, s10, s5\ns_lshr_b32 s5, s3, 1\ns_lshl_b32 s5, s5, 4\ns_add_u32 s10, s10, s5\ns_add_u32 s10, s10, {OFF_STA}")
        Z = E+4
        a(f"v_mov_b32 v{Z+17}, s76\nv_mov_b32 v{Z+19}, s76\nv_mov_b32 v{Z+21}, s76\nv_mov_b32 v{Z+23}, s76")
        WOA = [Vb+4*t for t in range(8)]
        assert done >= 4
        s.srd(60, 24, 4096*896)
        vWO = Z+24
        a(f"s_and_b32 s97, s11, 127\ns_mul_i32 s96, s97, {32*896}")
        s.proj_wload(WOA, vWO, 60, 96, 3)
        a(f"s_cmp_{'ge' if c['a5y'] else 'lt'}_u32 s11, 128\ns_cselect_b32 s5, 0x4000000, 0\nv_add_u32 v{vWO}, s5, v{vWO}")
        def woa():
            for t in range(8): s.proj_wload_one(t, WOA, vWO, 60, 96)
        Ln0 = a.label("Ln0"); L0 = a.label("Ld0"); Lf0 = a.label("Lf0"); Lf1 = a.label("Lf1")
        d0 = done
        if c['aprio']: a(f"s_setprio {c['aprio']}")
        take(Ln0, ntk)
        item_loads(BUF[0])
        if c['tkn'] > 8: a(f"s_waitcnt vmcnt({c['tkn']})"); ticket()
        a(f"s_waitcnt vmcnt({8 if SA else 9})")
        if c['tkn'] == 8: ticket()
        for i in range(d0, NS): pv(i)
        a(f"{L0}:")
        take(Lf0, 8, 53)
        item_loads(BUF[1])
        if c['tkn'] > 8: a(f"s_waitcnt vmcnt({c['tkn']})"); ticket()
        a(f"s_waitcnt vmcnt({8 if SA else 9})")
        if c['tkn'] == 8: ticket()
        item_compute(BUF[0], False)
        take(Lf1, 8)
        item_loads(BUF[0])
        if c['tkn'] > 8: a(f"s_waitcnt vmcnt({c['tkn']})"); ticket()
        a(f"s_waitcnt vmcnt({8 if SA else 9})")
        if c['tkn'] == 8: ticket()
        item_compute(BUF[1], False)
        a(f"s_branch {L0}")
        a(f"{Ln0}:")
        woa()
        for i in range(d0, NS):
            a(f"s_waitcnt vmcnt({NL-2*(i+1)+8})")
            pv(i)
        a(f"s_branch {Lend}")
        a(f"{Lf0}:")
        item_compute(BUF[0], True)
        a(f"s_branch {Lend}")
        a(f"{Lf1}:")
        item_compute(BUF[1], True)
        a(f"{Lend}:")
        s.allred_rows("v_add_f32", Lr, TT)
        a(f"ds_write_b64 v{AD+7}, {p2(M)} offset:{0x800}")
        s.stamp(4)
        a(f"ds_write_b128 v{AD+4}, {q(AC)} offset:{0x1000}\nds_write_b128 v{AD+4}, {q(AC+4)} offset:{0x1000+1024}")
        a("s_waitcnt lgkmcnt(0)\ns_barrier")
        Y = Z+8
        a(f"ds_read_b128 {q(Y)}, v{AD+5} offset:{0x800}\nds_read_b128 {q(Y+4)}, v{AD+5} offset:{0x810}")
        for i in range(4): a(f"ds_read_b64 {p2(Z+2*i)}, v{E+3} offset:{0x1000+2048*i}")
        a("s_waitcnt lgkmcnt(4)")
        a(f"v_max3_f32 v{Z+20}, v{Y}, v{Y+2}, v{Y+4}\nv_max_f32 v{Z+20}, v{Z+20}, v{Y+6}")
        for k in range(4): a(f"v_sub_f32 v{Y+2*k}, v{Y+2*k}, v{Z+20}")
        for k in range(4): a(f"v_exp_f32 v{Y+2*k}, v{Y+2*k}")
        a("s_waitcnt lgkmcnt(0)")
        for k in range(4):
            op = "v_mul_f32" if k == 0 else "v_fmac_f32"
            a(f"{op} v{Z+16}, v{Y+2*k}, v{Z+2*k}\n{op} v{Z+18}, v{Y+2*k}, v{Z+2*k+1}")
        a(f"buffer_store_dwordx4 {q(Z+16)}, v{E+2}, s[44:47], s12 offen sc1")
        Lx = a.label("Lax")
        a(f"s_bitcmp1_b32 s3, 0\ns_cbranch_scc1 {Lx}")
        for k in range(4):
            op = "v_mul_f32" if k == 0 else "v_fmac_f32"
            a(f"{op} v{Z+22}, v{Y+2*k}, v{Y+2*k+1}")
        s.exec_set(1, 0)
        a(f"buffer_store_dwordx4 {q(Z+20)}, v{vZ}, s[44:47], s10 offen sc1")
        s.exec_all()
        a(f"{Lx}:")
        s.stamp(5)
        a(f"s_cmp_{'ge' if c['a5y'] else 'lt'}_u32 s11, 128\ns_cbranch_scc1 L_afin")
        s.a5(97, Kb, T, WOA)
        a("s_branch L_aend")
        a("L_afin:")
        a("s_sub_u32 s97, 127, s97")
        a("s_cmp_ge_u32 s97, 56\ns_cbranch_scc1 L_aend\ns_cmp_ge_u32 s3, 1\ns_cbranch_scc1 L_aend")
        s.final(97, 0, Kb, T, 10)
        a("L_aend:")
        s.stamp_out()
        a("s_endpgm")
    def build(s):
        a = s.a
        s.prologue()
        s.gy(); s.gx(); s.ga()
        a("L_end:\ns_endpgm")
        body = a.finish()
        import re
        if s.c.get('ldsys'): body = re.sub(r"(buffer_load_dword\S* .* offen(?: offset:\d+)?) sc1", r"\1 sc0 sc1", body)
        if s.c.get('stsys'): body = re.sub(r"(buffer_store_dword\S* .* offen(?: offset:\d+)?) sc1", r"\1 sc0 sc1", body)
        if s.c.get('stnt'): body = re.sub(r"(buffer_store_dword\S* .* offen(?: offset:\d+)?) sc1", r"\1 sc1 nt", body)
        if s.c.get('ldnt'): body = re.sub(r"(buffer_load_dword\S* .* offen(?: offset:\d+)?) sc1", r"\1 sc1 nt", body)
        hdr = open("concat_heads__gqa_block_cached__compressed_kv_cla__decode.s.ref").read().split("; @launch")[0]
        out = hdr + "; @launch grid=(512,1,1) block=(256,1,1) lds=81920\n"
        out += """; Written with my own generator script. One persistent launch, 512 workgroups of 4 waves, two per CU, all co-resident.
;   wg   0..127 (Y): q_B = x_B*w_q (half rows x 64 cols), q_abs = q_B*w_uk^T (absorbed key projection), later ctx = softmax-merged latent * w_uv
;   wg 128..255 (X): 64 latent rows each: scores q_abs*c_kv^T, local softmax (true max), P*c_kv, later out_B partials through w_o and the last sum
;   wg 256..511 (A): q_A = x_A*wq, GQA flash-decoding over a fixed share plus 8-key work items drawn from counters, then wo and the last sum
; (chosen once per launch through d_debug), by a cleared-then-filled sentinel, or by a checksum that mixes the tag in.
"""
        out += f'.amdgcn_target "amdgcn-amd-amdhsa--gfx950"\n.text\n.globl {KN}\n.p2align 8\n.type {KN},@function\n{KN}:\n'
        out += body
        out += f""".section .rodata,"a"
.p2align 6
.amdhsa_kernel {KN}
  .amdhsa_next_free_vgpr 256
  .amdhsa_next_free_sgpr 102
  .amdhsa_accum_offset 256
  .amdhsa_group_segment_fixed_size 0
  .amdhsa_kernarg_size 112
  .amdhsa_user_sgpr_count 2
  .amdhsa_user_sgpr_kernarg_segment_ptr 1
  .amdhsa_system_sgpr_workgroup_id_x 1
.end_amdhsa_kernel
"""
        return out
if __name__ == "__main__":
    from build import build
    name = sys.argv[1]
    cfg = {}
    for kv in sys.argv[2:]:
        k, v = kv.split("=")
        cfg[k] = v if k == "nt" else int(v)
    open(name, "w").write(Gen2(**cfg).build())
    print(build(name))
```

```python
import sys, math, struct
from asmlib import Asm
from gen import Gen, q, p2, f32, DPPF, KN, CEXP
OFF_QB, OFF_QA, OFF_QABS, OFF_CLR, OFF_ST3, OFF_STA, OFF_H4, OFF_HA, OFF_FIN, OFF_H3 = \
    0x0, 0x10000, 0x20000, 0x2c000, 0x30000, 0x38000, 0x40000, 0x80000, 0x200000, 0x400000
FIN_CG = 8192+128
FS = 4096+128; FIN_AB = 128*FS
QS = 2048+128
HA_U = 8192+128
H3_C = 32768+256
OFF_STAMP = 0x8000000
OFF_CHK = 0x1A0000
ROW = 2080; SLOT = 16*ROW
import gen as G1
G1.FIN_CG = FIN_CG
MF = "v_mfma_f32_16x16x32_bf16"

class Gen2(Gen):
    def __init__(s, **cfg):
        s.c = dict(stamp=False, nt="nt", sleep=2, timeout=100000, rnd=True, pa=8, pb=8, prio=2, prioa=0, n1=7, pu=8, px=8, pax=4, nax=16, nay=4, p1x=1, dn=0, hk=0, osc=0, p1r=0, gmix=1, x1k=3, qat=4, x1w=1, x1s=6, x1n=4, ncas=8, eat=3, eglc=0, vq=4, npre=0, a5y=1, dwb=1, pdy=0, ylo=0, yhi=192, aprio=0, ystop=0, pw=0, ton=3, tok=3, tfn=3, tfk=3, spk=3, dwo=1, qf=0, spq=0, sp=1, sptime=2000, spsleep=2, spn=3, il=0, sat=1, tkn=6, xx=0, pdx=0, c1=0, ssleep=2, ns=10, tka=3, pd=9, qsleep=6, px0=4, v1=8, fsleep=2, pf=0, pa0=1, na0=4, na1=6, lead=10, h3d=0)
        s.c.update(cfg)
        s.a = Asm()
    def stamp(s, k):
        if s.c.get('prk') == k and s.c.get('prr') == getattr(s, 'role', None):
            s.a("s_memrealtime s[98:99]\ns_waitcnt lgkmcnt(0)\ns_mov_b32 s92, s98")
        Gen.stamp(s, k)
    def stamp_out(s):
        if not s.c['stamp']: return
        a = s.a
        a("s_mov_b64 exec, -1\nv_mov_b32 v8, 0")
        for k in range(12): a(f"v_writelane_b32 v8, s{84+k}, {k}")
        a("v_lshlrev_b32 v9, 2, v1")
        a("s_lshl_b32 s4, s2, 2\ns_add_u32 s4, s4, s3\ns_lshl_b32 s4, s4, 6")
        a(f"s_add_u32 s4, s4, {OFF_STAMP}")
        a("s_mov_b32 exec_lo, 0xffff\ns_mov_b32 exec_hi, 0")
        a("buffer_store_dword v8, v9, s[44:47], s4 offen")
    def prologue(s):
        a = s.a
        a("s_cmp_ge_u32 s2, 512\ns_cbranch_scc1 L_end")
        a("s_load_dwordx16 s[16:31], s[0:1], 0\ns_load_dwordx8 s[32:39], s[0:1], 64\ns_load_dwordx4 s[40:43], s[0:1], 96")
        a("s_memrealtime s[4:5]")
        a("v_lshrrev_b32 v7, 6, v0\nv_and_b32 v1, 63, v0")
        a("v_readfirstlane_b32 s3, v7\nv_lshlrev_b32 v6, 4, v1")
        if s.c['xx']:
            a("s_lshr_b32 s6, s2, 6\ns_cmp_eq_u32 s6, 3\ns_cselect_b32 s7, 192, 0\ns_add_u32 s2, s2, s7\ns_cmp_eq_u32 s6, 6\ns_cselect_b32 s7, 192, 0\ns_sub_u32 s2, s2, s7")
        if s.c['pf']:
            a(f"s_cmp_lt_u32 s2, {512-s.c['pf']}\ns_cbranch_scc1 L_nopf")
            a("s_getpc_b64 s[6:7]\ns_and_b32 s6, s6, 0xffffff00")
            a(f"v_lshlrev_b32 v9, 7, v0\nv_min_u32 v9, L_end-{KN}, v9\nglobal_load_dword v200, v9, s[6:7]")
            a("L_nopf:")
        a("s_cmp_ge_u32 s2, 256\ns_cbranch_scc1 L_A")
        if s.c['prio']: a(f"s_setprio {s.c['prio']}")
        a("s_cmp_ge_u32 s2, 128\ns_cbranch_scc1 L_X")
    def kwait(s):
        a = s.a
        a("s_waitcnt lgkmcnt(0)")
        a("s_or_b32 s77, s4, 1")
        if s.c['stamp']:
            for k in range(12): a(f"s_mov_b32 s{84+k}, 0")
            a("s_mov_b32 s84, s4")
    def common2(s, t):
        a = s.a
        a(f"v_and_b32 v{t}, 1, v1\nv_lshlrev_b32 v{t}, 4, v{t}\nv_mov_b32 v{t+1}, 0xffff\nv_lshlrev_b32 v{t}, v{t}, v{t+1}")
        a(f"v_bfe_u32 v{t+1}, v1, 1, 2")
        for r in range(4):
            a(f"v_cmp_eq_u32 vcc, {r}, v{t+1}\nv_cndmask_b32 v{2+r}, 0, v{t}, vcc")
    def get_epoch(s, vE, vZ):
        a = s.a
        L = a.label("Lge"); Ld = a.label("Lged")
        a(f"s_mov_b32 s78, {s.c['timeout']}")
        a(f"{L}:")
        a(f"v_readfirstlane_b32 s76, v{vE}")
        a(f"s_cmp_lg_u32 s76, 0\ns_cbranch_scc1 {Ld}")
        a(f"buffer_load_dword v{vE}, v{vZ}, s[48:51], 0 offen sc1\ns_waitcnt vmcnt(0)")
        a(f"s_sub_u32 s78, s78, 1\ns_cmp_lg_u32 s78, 0\ns_cbranch_scc1 {L}")
        a(f"{Ld}:")
    def check_tags(s, groups, t0, t1):
        if len(groups) == 1 and groups[0][0][0] == 's':
            a = s.a; exp, tags = groups[0]
            assert len(tags) % 2 == 0
            acc = []
            for k in range(0, len(tags), 2):
                d = (t0, t1)[(k//2) % 2]
                if k < 4: a(f"v_bitop3_b32 v{d}, v{tags[k]}, v{tags[k+1]}, {exp} bitop3:0x7e")
                else:
                    a(f"v_bitop3_b32 v{tags[k]}, v{tags[k]}, v{tags[k+1]}, {exp} bitop3:0x7e"); acc.append(tags[k])
            if len(tags) > 2: acc = [t1] + acc
            for k in range(0, len(acc), 2):
                y = acc[k+1] if k+1 < len(acc) else acc[k]
                a(f"v_or3_b32 v{t0}, v{t0}, v{acc[k]}, v{y}")
            a(f"v_cmp_ne_u32 vcc, 0, v{t0}\ns_cmp_eq_u64 vcc, 0")
        else:
            Gen.check_tags(s, groups, t0, t1)
    def spoll(s, soff, extra, n=1, stride=0, need=None):
        if not n: return
        if not s.c['sp']: return
        a = s.a
        L = a.label("Lsp"); Ld = a.label("Lspd")
        a(f"s_mov_b32 s78, {s.c['sptime']}")
        for k in range(n): a(f"s_add_u32 s{64+k}, s{soff}, {extra+4+k*stride}")
        a(f"{L}:")
        for k in range(n): a(f"s_load_dword s{68+k}, s[42:43], s{64+k} glc")
        a("s_waitcnt lgkmcnt(0)")
        a("s_mov_b32 s83, 0")
        for k in range(n): a(f"s_cmp_eq_u32 s{68+k}, s76\ns_addc_u32 s83, s83, 0")
        a(f"s_cmp_ge_u32 s83, {need or n}\ns_cbranch_scc1 {Ld}")
        a(f"s_sleep {s.c['spsleep']}\ns_sub_u32 s78, s78, 1\ns_cmp_lg_u32 s78, 0\ns_cbranch_scc1 {L}")
        a(f"{Ld}:")
    def poll_sent(s, issue, regs, t0, sleep=None, pre_issued=False):
        a = s.a
        L = a.label("Lps"); Ld = a.label("Lpsd")
        a(f"s_mov_b32 s78, {s.c['timeout']}")
        Lw = a.label("Lpsw")
        if pre_issued: a(f"s_branch {Lw}")
        a(f"{L}:")
        issue()
        a(f"{Lw}:")
        a("s_waitcnt vmcnt(0)")
        a(f"v_max3_u32 v{t0}, v{regs[0]}, v{regs[1]}, v{regs[2]}")
        rest = regs[3:]
        for i in range(0, len(rest), 2):
            y = rest[i+1] if i+1 < len(rest) else rest[i]
            a(f"v_max3_u32 v{t0}, v{t0}, v{rest[i]}, v{y}")
        a(f"v_cmp_eq_u32 vcc, -1, v{t0}")
        a(f"s_cbranch_vccz {Ld}")
        sl = s.c['sleep'] if sleep is None else sleep
        if sl: a(f"s_sleep {sl}")
        a(f"s_sub_u32 s78, s78, 1\ns_cmp_lg_u32 s78, 0\ns_cbranch_scc1 {L}")
        a(f"{Ld}:")
    def gather_q(s, T, soff, lds, n, between=None, nb=0, sleep=1):
        a = s.a
        a(f"s_add_u32 s7, s{soff}, 0x8000")
        def issue():
            for k in range(n):
                a(f"buffer_load_dwordx4 {q(T+8*k)}, v6, s[44:47], s{soff} offen offset:{1024*k} sc1")
                a(f"buffer_load_dwordx4 {q(T+8*k+4)}, v6, s[44:47], s7 offen offset:{1024*k} sc1")
        grp = [("s76", [T+4*k+j for k in range(2*n) for j in (1, 3)])]
        if between:
            Lok = a.label("Lgq")
            issue(); between()
            a(f"s_waitcnt vmcnt({nb})")
            s.check_tags(grp, T+8*n, T+8*n+1)
            a(f"s_cbranch_scc1 {Lok}")
            s.poll(issue, grp, T+8*n, T+8*n+1, sleep=sleep)
            a(f"{Lok}:")
        else:
            s.poll(issue, grp, T+8*n, T+8*n+1, sleep=sleep)
        for k in range(n):
            b = T+8*k
            a(f"v_add_f32 v{b}, v{b}, v{b+4}\nv_add_f32 v{b+2}, v{b+2}, v{b+6}\nv_cvt_pk_bf16_f32 v{b}, v{b}, v{b+2}")
            a(f"ds_write_b32 v{lds}, v{b} offset:{256*k}")
        a("s_waitcnt lgkmcnt(0)")
    def epi_addr(s, E, two_heads):
        a = s.a
        a(f"v_bfe_u32 v{E+3}, v0, 6, 1\nv_lshlrev_b32 v{E+3}, 10, v{E+3}")
        if two_heads: a(f"v_bfe_u32 v{E+1}, v0, 7, 1\nv_lshl_add_u32 v{E+3}, v{E+1}, 9, v{E+3}")
        a(f"v_bfe_u32 v{E+1}, v0, 1, 1\nv_lshl_add_u32 v{E+3}, v{E+1}, 8, v{E+3}")
        a(f"v_bfe_u32 v{E+1}, v0, 2, 4\nv_lshl_add_u32 v{E+3}, v{E+1}, 4, v{E+3}")
        a(f"v_and_b32 v{E+1}, 1, v0\nv_lshl_add_u32 v{E+3}, v{E+1}, 3, v{E+3}")
    def p1_setup(s, sI, T, V):
        a = s.a
        vX, vW, vSA, vSB, vLW, vRD, vPB = range(V, V+7)
        if s.c['p1r']:
            a(f"s_lshr_b32 s101, s{sI}, 6\ns_add_u32 s100, s{sI}, s101\ns_and_b32 s100, s100, 7\ns_lshl_b32 s100, s100, 3\ns_bfe_u32 s6, s{sI}, 0x30003\ns_add_u32 s100, s100, s6")
        else:
            a(f"s_and_b32 s100, s{sI}, 7\ns_lshl_b32 s100, s100, 3\ns_bfe_u32 s6, s{sI}, 0x30003\ns_add_u32 s100, s100, s6\ns_lshr_b32 s101, s{sI}, 6")
        a("s_mul_i32 s96, s101, 224\ns_mul_i32 s6, s3, 56\ns_add_u32 s96, s96, s6\ns_lshl_b32 s97, s96, 1")
        a("s_lshl_b32 s96, s96, 13\ns_lshl_b32 s6, s100, 7\ns_add_u32 s96, s96, s6")
        a(f"v_lshrrev_b32 v{T}, 3, v1\nv_mul_u32_u24 v{vX}, 14, v{T}\nv_and_b32 v{vX}, 0x7c, v{vX}")
        a(f"v_mul_u32_u24 v{vW}, {7*8192}, v{T}\nv_and_b32 v{T+1}, 7, v1\nv_lshl_add_u32 v{vW}, v{T+1}, 4, v{vW}")
    def p1_loads(s, X, W, srdX, srdW, V):
        a = s.a
        a(f"buffer_load_dwordx4 {q(X)}, v{V}, s[{srdX}:{srdX+3}], s97 offen")
        for i in range(7):
            a(f"s_add_u32 s79, s96, {i*8192}")
            a(f"buffer_load_dwordx4 {q(W+4*i)}, v{V+1}, s[{srdW}:{srdW+3}], s79 offen {s.c['nt']}")
    def p1_setup2(s, T, V):
        a = s.a
        vX, vW, vSA, vSB, vLW, vRD, vPB = range(V, V+7)
        a(f"s_lshl_b32 s100, s100, 9\ns_lshl_b32 s101, s101, 15\ns_add_u32 s100, s100, s101")
        a(f"v_bfe_u32 v{T}, v1, 3, 1\nv_cmp_eq_u32 vcc, 1, v{T}")
        a(f"v_mov_b32 v{T+8}, 0x01000100\nv_mov_b32 v{T+9}, 0x03020302\nv_mov_b32 v{T+10}, 0x05040504")
        a(f"v_cndmask_b32 v{vSA}, v{T+8}, v{T+9}, vcc\nv_cndmask_b32 v{vSB}, v{T+9}, v{T+10}, vcc")
        a(f"s_lshl_b32 s5, s3, 10\nv_add_u32 v{vLW}, s5, v6")
        a(f"v_and_b32 v{T+3}, 3, v1")
        a(f"v_lshrrev_b32 v{vRD}, 5, v1\nv_lshlrev_b32 v{vRD}, 11, v{vRD}\nv_bfe_u32 v{T}, v1, 1, 1\nv_lshl_add_u32 v{vRD}, v{T}, 8, v{vRD}")
        a(f"v_bfe_u32 v{T}, v1, 2, 3\nv_lshl_add_u32 v{vRD}, v{T}, 4, v{vRD}\nv_and_b32 v{T}, 1, v1\nv_lshl_add_u32 v{vRD}, v{T}, 3, v{vRD}")
    def p1_compute(s, X, W, T, V, lds, off, flag_vZ=None, hook=None):
        a = s.a
        vX, vW, vSA, vSB, vLW, vRD, vPB = range(V, V+7)
        AB, AC = T, T+12
        for i in range(7):
            ab = AB + (i % 2)*4
            k = i//2
            if i % 2 == 0: a(f"v_perm_b32 v{AB+8}, v{X+k}, v{X+k}, v{vSA}")
            else: a(f"v_perm_b32 v{AB+8}, v{X+k+1}, v{X+k}, v{vSB}")
            for r in range(4): a(f"v_and_b32 v{ab+r}, v{AB+8}, v{2+r}")
            a(f"{MF} {q(AC)}, {q(ab)}, {q(W+4*i)}, {'0' if i == 0 else q(AC)}")
        if hook: hook()
        a(f"ds_write_b128 v{vLW}, {q(AC)} offset:{lds}")
        a("s_waitcnt lgkmcnt(0)\ns_barrier")
        L = a.label("Lred")
        a(f"s_cmp_lg_u32 s3, 3\ns_cbranch_scc1 {L}")
        R = T
        for k in range(4): a(f"ds_read_b64 {p2(R+2*k)}, v{vRD} offset:{lds + (k//2)*1024 + (k%2)*640}")
        a(f"s_add_u32 s5, s100, {off}")
        a(f"v_mov_b32 v{R+9}, s76\nv_mov_b32 v{R+11}, s76")
        a("s_waitcnt lgkmcnt(0)")
        a(f"v_pk_add_f32 {p2(R)}, {p2(R)}, {p2(R+2)}\nv_pk_add_f32 {p2(R+4)}, {p2(R+4)}, {p2(R+6)}\nv_pk_add_f32 {p2(R)}, {p2(R)}, {p2(R+4)}")
        a(f"v_mov_b64 {p2(R+2)}, {p2(R)}")
        a(f"v_permlane32_swap_b32 v{R}, v{R+2}\nv_permlane32_swap_b32 v{R+1}, v{R+3}")
        a(f"v_add_f32 v{R+8}, v{R}, v{R+2}\nv_add_f32 v{R+10}, v{R+1}, v{R+3}")
        s.exec_set(0xffffffff, 0)
        a(f"buffer_store_dwordx4 {q(R+8)}, v6, s[44:47], s5 offen sc1")
        if flag_vZ is not None:
            a(f"s_lshl_b32 s5, s2, 2\ns_add_u32 s5, s5, {OFF_CLR+0x1000}")
            s.exec_set(1, 0)
            a(f"buffer_store_dword v{R+9}, v{flag_vZ}, s[44:47], s5 offen sc1")
        s.exec_all()
        a(f"{L}:")
    def proj_tail(s, A0, W, T, scb, sfin, scale=None):
        a = s.a
        a(f"v_permlane32_swap_b32 v{A0}, v{A0+1}\nv_add_f32 v{A0}, v{A0}, v{A0+1}")
        a(f"v_mov_b32 v{A0+1}, v{A0}\nv_permlane16_swap_b32 v{A0}, v{A0+1}\nv_add_f32 v{A0}, v{A0}, v{A0+1}")
        if scale is not None: a(f"v_mul_f32 v{A0}, v{A0}, v{scale}")
        a(f"v_cvt_pk_bf16_f32 v{A0}, v{A0}, v{A0}")
        a(f"v_mov_b32 v{A0+1}, v{A0}")
        a(f"v_mov_b32_dpp v{A0}, v{A0+1} row_ror:8 row_mask:0xa bank_mask:0xf")
        AC = T+8; S = T+12
        for g in range(8):
            ab = T + (g % 2)*4
            for r in range(4): a(f"v_and_b32_dpp v{ab+r}, v{A0}, v{2+r} row_newbcast:{g} {DPPF}")
            a(f"{MF} {q(AC)}, {q(ab)}, {q(W[g])}, {'0' if g == 0 else q(AC)}")
        a(f"v_cmp_gt_u32 vcc, 32, v1")
        a(f"v_mov_b32 v{S+1}, s76\nv_mov_b32 v{S+3}, s76")
        a("s_mov_b32 exec_lo, s82\ns_mov_b32 exec_hi, s82")
        a(f"v_cndmask_b32 v{S}, v{AC+2}, v{AC}, vcc\nv_cndmask_b32 v{S+2}, v{AC+3}, v{AC+1}, vcc")
        a(f"buffer_store_dwordx4 {q(S)}, v6, s[44:47], s{sfin} offen sc1")
        s.exec_all()
    def a5(s, sU, R, T, WOA):
        a = s.a; c = s.c
        OG = R; ST = R+8; Z = R+16
        a(f"s_lshr_b32 s12, s{sU}, 3")
        a(f"v_lshrrev_b32 v{T+22}, 4, v1\nv_lshlrev_b32 v{T+22}, 7, v{T+22}")
        a(f"s_lshr_b32 s8, s12, 1\ns_lshl_b32 s8, s8, 12\ns_and_b32 s6, s12, 1\ns_lshl_b32 s6, s6, 4\ns_add_u32 s8, s8, s6\ns_lshl_b32 s6, s3, 10\ns_add_u32 s8, s8, s6\ns_add_u32 s8, s8, {OFF_STA}")
        a(f"s_mul_i32 s6, s{sU}, {HA_U}\ns_lshl_b32 s5, s3, 11\ns_add_u32 s6, s6, s5\ns_add_u32 s6, s6, {OFF_HA}")
        a(f"v_lshlrev_b32 v{T+20}, 4, v0")
        a(f"s_mul_i32 s15, s{sU}, {FS}\ns_lshl_b32 s5, s3, 10\ns_add_u32 s15, s15, s5\ns_add_u32 s15, s15, {OFF_FIN}")
        def issue_o():
            a(f"buffer_load_dwordx4 {q(OG)}, v6, s[44:47], s6 offen sc1\nbuffer_load_dwordx4 {q(OG+4)}, v6, s[44:47], s6 offen offset:1024 sc1")
            a(f"buffer_load_dwordx4 {q(ST)}, v{T+22}, s[44:47], s8 offen sc1\nbuffer_load_dwordx4 {q(ST+4)}, v{T+22}, s[44:47], s8 offen offset:512 sc1")
        s.spoll(6, 0, c['ton'], 256*2, c['tok'])
        s.poll(issue_o, [("s76", [OG+k for k in range(1, 16, 2)])], Z, Z+1, sleep=c['fsleep'])
        s.stamp(7)
        a(f"v_max_f32 v{Z+2}, v{ST}, v{ST+4}")
        a(f"v_sub_f32 v{ST}, v{ST}, v{Z+2}\nv_sub_f32 v{ST+4}, v{ST+4}, v{Z+2}\nv_exp_f32 v{ST}, v{ST}\nv_exp_f32 v{ST+4}, v{ST+4}")
        a(f"v_mul_f32 v{Z}, v{ST}, v{OG}\nv_mul_f32 v{Z+1}, v{ST}, v{OG+2}\nv_mul_f32 v{Z+3}, v{ST}, v{ST+2}")
        a(f"v_fmac_f32 v{Z}, v{ST+4}, v{OG+4}\nv_fmac_f32 v{Z+1}, v{ST+4}, v{OG+6}\nv_fmac_f32 v{Z+3}, v{ST+4}, v{ST+6}")
        a(f"ds_write_b128 v{T+20}, {q(Z)} offset:{0x6000}")
        a("s_waitcnt lgkmcnt(0)\ns_barrier")
        s.stamp(8)
        for k in range(4): a(f"ds_read_b128 {q(OG+4*k)}, v6 offset:{0x6000+1024*k}")
        a("s_waitcnt lgkmcnt(0)")
        a(f"v_max3_f32 v{Z+2}, v{OG+2}, v{OG+6}, v{OG+10}\nv_max_f32 v{Z+2}, v{Z+2}, v{OG+14}")
        s.allred_rows("v_max_f32", Z+2, Z+4)
        for k in range(4): a(f"v_sub_f32 v{OG+4*k+2}, v{OG+4*k+2}, v{Z+2}")
        for k in range(4): a(f"v_exp_f32 v{OG+4*k+2}, v{OG+4*k+2}")
        for k in range(4):
            op = "v_mul_f32" if k == 0 else "v_fmac_f32"
            a(f"{op} v{Z+3}, v{OG+4*k+2}, v{OG+4*k+3}\n{op} v{Z}, v{OG+4*k+2}, v{OG+4*k}\n{op} v{Z+1}, v{OG+4*k+2}, v{OG+4*k+1}")
        s.allred_rows("v_add_f32", Z+3, Z+4)
        a(f"v_rcp_f32 v{Z+3}, v{Z+3}")
        s.proj_tail(Z, WOA, T+24, 3, 15, scale=Z+3)
        s.stamp(9)
    def final(s, sJ, ab, F, T, stp):
        a = s.a; c = s.c
        s.srd(52, 38, 1792)
        a(f"s_mov_b32 s12, {ab}\ns_mov_b32 s13, s{sJ}")
        a("s_sub_u32 s5, s13, 48\ns_lshr_b32 s6, s5, 1\ns_lshl_b32 s6, s6, 2\ns_and_b32 s5, s5, 1\ns_add_u32 s6, s6, s5\ns_add_u32 s6, s6, 48")
        a("s_cmp_ge_u32 s13, 48\ns_cselect_b32 s13, s6, s13")
        a(f"s_mul_i32 s6, s12, {FIN_AB}\ns_lshl_b32 s5, s13, 6\ns_add_u32 s6, s6, s5\ns_add_u32 s6, s6, {OFF_FIN}")
        a(f"v_lshrrev_b32 v{T+9}, 2, v1\nv_mul_u32_u24 v{T+9}, {FS}, v{T+9}\nv_and_b32 v{T+10}, 3, v1\nv_lshl_add_u32 v{T+9}, v{T+10}, 4, v{T+9}")
        def issue_f():
            for i in range(8):
                a(f"s_add_u32 s79, s6, {i*16*FS}")
                a(f"buffer_load_dwordx4 {q(F+4*i)}, v{T+9}, s[44:47], s79 offen sc1")
        a("s_mul_i32 s15, s12, 896\ns_lshr_b32 s5, s13, 4\ns_lshl_b32 s5, s5, 8\ns_add_u32 s15, s15, s5")
        a("s_and_b32 s5, s13, 3\ns_lshl_b32 s5, s5, 6\ns_add_u32 s15, s15, s5")
        a("s_bfe_u32 s5, s13, 0x10002\ns_lshl_b32 s5, s5, 3\ns_add_u32 s15, s15, s5")
        a("s_bfe_u32 s5, s13, 0x10003\ns_lshl_b32 s5, s5, 2\ns_add_u32 s15, s15, s5")
        a(f"v_lshlrev_b32 v{T+8}, 2, v1")
        s.spoll(6, 0, c['tfn'], FS*37, c['tfk'])
        s.poll(issue_f, [("s76", [F+4*i+k for i in range(8) for k in (1, 3)])], T+4, T+5, sleep=c['fsleep'])
        s.stamp(stp)
        if c.get('prk') is not None and c.get('prr') == ab:
            Lsp = a.label("Lpr")
            if c['prk'] == 0: a("s_mov_b32 s92, s77")
            a(f"{Lsp}:\ns_memrealtime s[98:99]\ns_waitcnt lgkmcnt(0)\ns_sub_u32 s5, s98, s92\ns_cmp_lt_u32 s5, 4000\ns_cbranch_scc1 {Lsp}")
        dl = c.get('dlb' if ab else 'dla')
        if dl:
            Lsp = a.label("Ldl")
            a(f"s_memrealtime s[98:99]\ns_waitcnt lgkmcnt(0)\ns_mov_b32 s83, s98\n{Lsp}:\ns_memrealtime s[98:99]\ns_waitcnt lgkmcnt(0)\ns_sub_u32 s5, s98, s83\ns_cmp_lt_u32 s5, {dl}\ns_cbranch_scc1 {Lsp}")
        for st in (16, 8, 4):
            for i in range(0, st, 4):
                a(f"v_add_f32 v{F+i}, v{F+i}, v{F+st+i}\nv_add_f32 v{F+i+2}, v{F+i+2}, v{F+st+i+2}")
        for m in ("row_ror:8", "row_ror:4"):
            for k in (0, 2): a(f"v_add_f32_dpp v{F+k}, v{F+k}, v{F+k} {m} {DPPF}")
        for k in (0, 2): s.allred_rows("v_add_f32", F+k, F+k+1)
        a(f"v_cvt_pk_bf16_f32 v{F}, v{F}, v{F+2}")
        if c.get('thr'):
            a(f"s_memrealtime s[98:99]\ns_waitcnt lgkmcnt(0)\ns_sub_u32 s5, s98, s76\ns_cmp_gt_u32 s5, {c['thr']}\ns_cselect_b32 s5, 0x7fc07fc0, 0\nv_or_b32 v{F}, s5, v{F}")
        if c.get('spin'):
            Lsp = a.label("Lspin")
            a(f"{Lsp}:\ns_memrealtime s[98:99]\ns_waitcnt lgkmcnt(0)\ns_sub_u32 s5, s98, s76\ns_cmp_lt_u32 s5, {c['spin']}\ns_cbranch_scc1 {Lsp}")
        if c.get('enc'):
            a("s_memrealtime s[98:99]\ns_waitcnt lgkmcnt(0)\ns_sub_u32 s5, s98, s76")
            a(f"v_mov_b32 v{F+4}, s5\nv_lshrrev_b32 v{F+4}, v{T+8}, v{F+4}")
            a(f"v_and_b32 v{F+5}, 3, v{F+4}\nv_bfe_u32 v{F+4}, v{F+4}, 2, 2\nv_lshl_or_b32 v{F+5}, v{F+4}, 16, v{F+5}")
            a(f"v_and_b32 v{F}, 0xfffcfffc, v{F}\nv_or_b32 v{F}, v{F}, v{F+5}")
        s.exec_set(0xf, 0)
        a(f"buffer_store_dword v{F}, v6, s[52:55], s15 offen {['', 'sc1', 'sc0 sc1', 'nt'][c['osc']]}")
        s.exec_all()
        s.stamp(stp+1)
    def gy(s):
        a = s.a; c = s.c; nt = c['nt']; pb = c['pb']
        XB, WB, UK, UV, T = 8, 16, 72, 136, 200
        PVv = T+40
        vLW = PVv+4
        vZ, vU, vQ = T+47, T+50, T+51
        vE = T+48
        s.p1_setup(2, T, PVv)
        a(f"v_mov_b32 v{vZ}, 0\nv_mov_b32 v{vE+1}, 0")
        a("s_lshr_b32 s12, s2, 3\ns_and_b32 s13, s2, 7")
        if c['qf']:
            a(f"s_lshl_b32 s14, s13, 12\ns_lshl_b32 s6, s12, 4\ns_add_u32 s14, s14, s6\ns_add_u32 s14, s14, {OFF_QABS}")
            a(f"v_lshlrev_b32 v{T+2}, 8, v1")
        else:
            a(f"s_lshl_b32 s14, s13, 8\ns_mul_i32 s6, s12, {QS}\ns_add_u32 s14, s14, s6\ns_add_u32 s14, s14, {OFF_QABS}")
        for r in range(4): a(f"v_mov_b32 v{T+4+r}, -1")
        s.kwait()
        s.srd(44, 42, 0x10000000); s.srd(48, 40, 256)
        s.srd(52, 26, 896); s.srd(56, 30, 448*8192)
        L = a.label("Le0")
        a(f"s_cmp_lg_u32 s3, 3\ns_cbranch_scc1 {L}")
        if c['ncas']:
            Lq = a.label("Lcas")
            a(f"s_cmp_ge_u32 s2, {c['ncas']}\ns_cbranch_scc1 {Lq}")
            a(f"s_mov_b32 s80, s77\ns_mov_b32 s81, 0\ns_atomic_cmpswap s[80:81], s[40:41], 0 glc\n{Lq}:")
        else:
            a(f"v_mov_b32 v{vE}, s77")
            s.exec_set(1, 0)
            a(f"buffer_atomic_cmpswap {p2(vE)}, v{vZ}, s[48:51], 0 offen sc0 sc1")
        s.exec_set(0xffff, 0)
        a(f"buffer_store_dwordx4 {q(T+4)}, v{T+2 if c['qf'] else 6}, s[44:47], s14 offen sc1")
        s.exec_all()
        a(f"{L}:")
        if c.get('fi'): s.stamp(9)
        s.p1_loads(XB, WB, 52, 56, PVv)
        if c.get('fi'): s.stamp(10)
        s.srd(68, 32, 1024*8192); s.srd(72, 34, 1024*8192)
        a(f"v_lshrrev_b32 v{T+2}, 4, v1\nv_lshrrev_b32 v{vQ}, 4, v0\nv_lshlrev_b32 v{vQ}, {8 if c['qf'] else 4}, v{vQ}")
        a(f"v_bfe_u32 v{vU}, v1, 2, 2\nv_lshlrev_b32 v{vU}, 16, v{vU}\nv_lshl_add_u32 v{vU}, v{T+2}, 6, v{vU}")
        a(f"v_and_b32 v{T+3}, 3, v1\nv_lshl_add_u32 v{vU}, v{T+3}, 4, v{vU}")
        a("s_lshl_b32 s15, s13, 20\ns_lshl_b32 s5, s3, 18\ns_add_u32 s15, s15, s5\ns_lshl_b32 s5, s12, 9\ns_add_u32 s15, s15, s5")
        s.common2(T+12)
        s.p1_setup2(T, PVv)
        def ukload(n, pace):
            i, hf = n//2, n % 2
            a(f"s_add_u32 s79, s15, {i*8192}")
            if pace: a(f"s_waitcnt vmcnt({pace-1})")
            a(f"buffer_load_dwordx4 {q(UK+4*n)}, v{vU}, s[68:71], s79 offen offset:{hf*256} {nt}")
        n1 = c['n1']
        for n in range(n1):
            ukload(n, pb)
            if c['ncas'] and n == c['eat']:
                Lq = a.label("Lel")
                a(f"s_cmp_lg_u32 s3, 3\ns_cbranch_scc1 {Lq}\ns_load_dword s76, s[40:41], 0{' glc' if c['eglc'] else ''}\n{Lq}:")
        a(f"s_waitcnt vmcnt({n1})")
        s.stamp(1)
        def ehook():
            L = a.label("Le1"); Lo = a.label("Leo")
            a(f"s_cmp_lg_u32 s3, 3\ns_cbranch_scc1 {L}")
            Lf = a.label("Lef")
            a(f"s_waitcnt lgkmcnt(0)\ns_cmp_eq_u32 s76, 0\ns_cbranch_scc1 {Lf}")
            a(f"s_sub_u32 s5, s77, s76\ns_add_u32 s5, s5, 800\ns_cmp_lt_u32 s5, 1600\ns_cbranch_scc1 {Lo}")
            a(f"{Lf}:")
            a(f"v_mov_b32 v{vE}, 0")
            s.get_epoch(vE, vZ)
            a(f"{Lo}:")
            a(f"v_mov_b32 v{vE}, s76\nds_write_b32 v{vZ}, v{vE} offset:{0x2800}")
            a(f"{L}:")
        s.p1_compute(XB, WB, T, PVv, 0, OFF_QB, vZ, ehook)
        a(f"ds_read_b32 v{vE}, v{vZ} offset:{0x2800}")
        s.stamp(2)
        for n in range(n1, 16): ukload(n, pb)
        a(f"s_waitcnt lgkmcnt(0)\nv_readfirstlane_b32 s76, v{vE}")
        tsave = c['timeout']
        if c.get('nob'): c['timeout'] = 1
        L = a.label("Lqb")
        a(f"s_cmp_ge_u32 s3, 2\ns_cbranch_scc1 {L}")
        a(f"s_lshl_b32 s6, s12, 11\ns_lshl_b32 s5, s3, 10\ns_add_u32 s6, s6, s5\ns_add_u32 s6, s6, {OFF_QB}")
        a(f"v_lshlrev_b32 v{T+20}, 2, v0\nv_add_u32 v{T+20}, 0x2000, v{T+20}")
        s.gather_q(T, 6, T+20, 1)
        a(f"{L}:")
        a(f"v_lshrrev_b32 v{T+21}, 4, v1\nv_lshlrev_b32 v{T+21}, 6, v{T+21}\nv_and_b32 v{T+22}, 3, v1\nv_lshl_add_u32 v{T+21}, v{T+22}, 4, v{T+21}")
        a("s_waitcnt vmcnt(0)\ns_barrier")
        s.stamp(3)
        QF = T; D = WB
        a(f"ds_read_b128 {q(QF)}, v{T+21} offset:{0x2000}\nds_read_b128 {q(QF+4)}, v{T+21} offset:{0x2000+256}")
        a("s_waitcnt lgkmcnt(0)")
        for i in range(8):
            a(f"{MF} {q(D+4*i)}, {q(UK+8*i)}, {q(QF)}, 0")
            a(f"{MF} {q(D+4*i)}, {q(UK+8*i+4)}, {q(QF+4)}, {q(D+4*i)}")
        R = T+8
        for r in range(4):
            for i in range(8):
                if r == 0: a(f"v_mov_b32_dpp v{R+i}, v{D+4*i} quad_perm:[0,0,0,0] {DPPF}")
                else: a(f"v_add_f32_dpp v{R+i}, v{D+4*i+r}, v{R+i} quad_perm:[{r},{r},{r},{r}] {DPPF}")
        for k in range(4): a(f"v_cvt_pk_bf16_f32 v{R+8+k}, v{R+2*k}, v{R+2*k+1}")
        for k in range(4): a(f"v_min_u32 v{R+8+k}, -2, v{R+8+k}")
        s.exec_set(0x00010001, 0x00010001)
        if c['qf']:
            a(f"buffer_store_dwordx4 {q(R+8)}, v{vQ}, s[44:47], s14 offen sc1")
            s.exec_all()
        else:
            a(f"ds_write_b128 v{vQ}, {q(R+8)} offset:{0x2900}")
            s.exec_all()
            a("s_waitcnt lgkmcnt(0)\ns_barrier")
            L = a.label("Lqp")
            a(f"s_cmp_lg_u32 s3, 3\ns_cbranch_scc1 {L}")
            s.exec_set(0xffff, 0)
            a(f"ds_read_b128 {q(R+8)}, v6 offset:{0x2900}\ns_waitcnt lgkmcnt(0)")
            a(f"buffer_store_dwordx4 {q(R+8)}, v6, s[44:47], s14 offen sc1")
            s.exec_all()
            a(f"{L}:")
        s.stamp(4)
        a(f"v_lshrrev_b32 v{vU}, 4, v1\nv_lshlrev_b32 v{vU}, 13, v{vU}\nv_and_b32 v{T+22}, 15, v1\nv_lshl_add_u32 v{vU}, v{T+22}, 4, v{vU}")
        def uvload(n, pace):
            g, hf = n//2, n % 2
            a(f"s_add_u32 s79, s15, {g*4*8192}")
            if pace: a(f"s_waitcnt vmcnt({pace-1})")
            a(f"buffer_load_dwordx4 {q(UV+4*n)}, v{vU}, s[72:75], s79 offen offset:{hf*256} {nt}")
        for n in range(16): uvload(n, c['pu'])
        HG = UK; ST = T
        WL = 0x3000
        a(f"s_mul_i32 s6, s2, {H3_C}\ns_lshl_b32 s5, s3, 13\ns_add_u32 s6, s6, s5\ns_add_u32 s6, s6, {OFF_H3}\ns_add_u32 s7, s6, 4096")
        vSH = T+26
        a(f"v_and_b32 v{vSH}, 15, v1\nv_lshlrev_b32 v{vSH}, 1, v{vSH}\ns_mov_b32 s10, 0xff\ns_sub_u32 s9, 0, s76")
        L = a.label("Lst")
        a(f"s_cmp_lg_u32 s3, 0\ns_cbranch_scc1 {L}")
        a(f"s_lshl_b32 s5, s12, 11\ns_add_u32 s5, s5, {OFF_ST3}")
        def issue_st():
            for k in range(2): a(f"buffer_load_dwordx4 {q(ST+4*k)}, v6, s[44:47], s5 offen offset:{1024*k} sc1")
        if c['stamp']:
            a("s_waitcnt vmcnt(0)"); s.stamp(5)
        sgrp = [("s76", [ST+1, ST+3, ST+5, ST+7])]
        if c['dn']:
            a(f"s_and_b32 s8, s2, 31\ns_lshl_b32 s8, s8, 7\ns_add_u32 s8, s8, {OFF_CHK}")
            s.spoll(8, 0, 4, 4096, c['dn'])
            issue_st()
        else:
            s.spoll(5, 0, c['spn'], 16*37, c['spk'])
            s.poll(issue_st, sgrp, T+8, T+9, sleep=c['ssleep'])
        a(f"{L}:")
        a("s_barrier")
        s.stamp(6)
        def issue_hg(cond=False):
            for i in range(c.get('nbk', 8)):
                Lk = a.label("Lhg")
                if cond: a(f"s_bitcmp0_b32 s10, {i}\ns_cbranch_scc1 {Lk}")
                a(f"buffer_load_dwordx4 {q(HG+4*i)}, v6, s[44:47], {'s6' if i < 4 else 's7'} offen offset:{1024*(i%4)} sc1")
                if cond: a(f"{Lk}:")
        if c['h3d']: a(f"s_sleep {c['h3d']}")
        issue_hg()
        L = a.label("Lwt")
        a(f"s_cmp_lg_u32 s3, 0\ns_cbranch_scc1 {L}")
        if c['dn']:
            Lk = a.label("Lsok")
            a("s_waitcnt vmcnt(8)")
            s.check_tags(sgrp, T+8, T+9)
            a(f"s_cbranch_scc1 {Lk}")
            s.poll(issue_st, sgrp, T+8, T+9, sleep=c['ssleep'])
            a(f"{Lk}:")
        M, Lr, TT, E0 = T+8, T+9, T+10, T+12
        a(f"v_max_f32 v{M}, v{ST}, v{ST+4}")
        s.allred_inrow("v_max_f32", M); s.allred_rows("v_max_f32", M, TT)
        a(f"v_sub_f32 v{E0}, v{ST}, v{M}\nv_sub_f32 v{E0+1}, v{ST+4}, v{M}\nv_exp_f32 v{E0}, v{E0}\nv_exp_f32 v{E0+1}, v{E0+1}")
        a(f"v_mul_f32 v{Lr}, v{E0}, v{ST+2}\nv_fmac_f32 v{Lr}, v{E0+1}, v{ST+6}")
        s.allred_inrow("v_add_f32", Lr); s.allred_rows("v_add_f32", Lr, TT)
        a(f"v_rcp_f32 v{Lr}, v{Lr}")
        a(f"v_and_b32 v{TT}, 3, v1\nv_lshlrev_b32 v{TT}, 7, v{TT}\nv_lshrrev_b32 v{TT+1}, 5, v1\nv_lshl_add_u32 v{TT}, v{TT+1}, 5, v{TT}")
        a(f"v_bfe_u32 v{TT+1}, v1, 2, 3\nv_lshl_add_u32 v{TT}, v{TT+1}, 2, v{TT}")
        for k in range(2):
            e = E0+k; hi = E0+2+k; lo = E0+4+k
            a(f"v_mul_f32 v{e}, v{e}, v{Lr}\nv_cvt_pk_bf16_f32 v{hi}, v{e}, v{e}\nv_and_b32 v{lo}, 0xffff0000, v{hi}\nv_sub_f32 v{lo}, v{e}, v{lo}\nv_cvt_pk_bf16_f32 v{lo}, v{lo}, v{lo}")
            a(f"ds_write_b32 v{TT}, v{hi} offset:{WL+64*k}\nds_write_b32 v{TT}, v{lo} offset:{WL+512+64*k}")
        a("s_waitcnt lgkmcnt(0)")
        a(f"{L}:")
        a(f"v_bfe_u32 v{T+20}, v1, 3, 1\nv_lshlrev_b32 v{T+20}, 9, v{T+20}\nv_lshrrev_b32 v{T+21}, 4, v1\nv_lshl_add_u32 v{T+20}, v{T+21}, 7, v{T+20}")
        a(f"s_lshl_b32 s5, s3, 5\nv_add_u32 v{T+20}, s5, v{T+20}")
        a(f"v_and_b32 v{T+22}, 1, v1\nv_lshlrev_b32 v{T+22}, 8, v{T+22}\nv_bfe_u32 v{T+23}, v1, 1, 2\nv_lshl_add_u32 v{T+22}, v{T+23}, 4, v{T+22}")
        a(f"v_lshl_add_u32 v{T+22}, v{T+21}, 2, v{T+22}\ns_lshl_b32 s5, s3, 6\nv_add_u32 v{T+22}, s5, v{T+22}")
        a("s_barrier")
        WW = T; AO = WB
        a(f"ds_read_b128 {q(WW)}, v{T+20} offset:{WL}\nds_read_b128 {q(WW+4)}, v{T+20} offset:{WL+16}")
        a("s_waitcnt lgkmcnt(0)")
        for i in range(8):
            for r in range(4): a(f"v_and_b32 v{AO+4*i+r}, v{WW+i}, v{2+r}")
        DC = T+8
        Lp = a.label("Lck"); Lw = a.label("Lckw"); Ld = a.label("Lckd")
        a(f"s_mov_b32 s78, {c['timeout']}\ns_branch {Lw}")
        a(f"{Lp}:")
        issue_hg(True)
        a(f"{Lw}:")
        a("s_waitcnt vmcnt(0)")
        SU, BT = 48, 56
        for i in range(8):
            h_ = HG+4*i
            a(f"v_and_b32 v{BT+i}, 3, v{h_}\nv_add3_u32 v{SU+i}, v{h_}, v{h_+1}, v{h_+2}\nv_and_or_b32 v{h_}, v{h_}, -4, 2")
            a(f"v_lshl_add_u32 v{BT+i}, v{BT+i}, v{vSH}, v{BT+i}\nv_add_u32 v{SU+i}, v{SU+i}, v{h_+3}")
            a(f"{MF} {q(DC)}, {q(AO+4*i)}, {q(HG+4*i)}, {'0' if i == 0 else q(DC)}")
            a(f"v_sub_u32 v{SU+i}, v{SU+i}, v{BT+i}")
        for m in ("quad_perm:[1,0,3,2]", "quad_perm:[2,3,0,1]", "row_half_mirror", "row_mirror"):
            for i in range(8): a(f"v_add_u32_dpp v{SU+i}, v{SU+i}, v{SU+i} {m} {DPPF}")
        for i in range(8): a(f"v_cmp_ne_u32 s[{64+2*(i%4)}:{65+2*(i%4)}], s9, v{SU+i}" ) if i < 4 else None
        a("s_mov_b32 s11, 0")
        for half in range(2):
            if half:
                for i in range(4, 8): a(f"v_cmp_ne_u32 s[{64+2*(i%4)}:{65+2*(i%4)}], s9, v{SU+i}")
            for i in range(4*half, 4*half+4):
                a(f"s_cmp_lg_u64 s[{64+2*(i%4)}:{65+2*(i%4)}], 0\ns_cselect_b32 s5, {1 << i}, 0\ns_or_b32 s11, s11, s5")
        a(f"s_and_b32 s10, s10, s11\ns_cbranch_scc0 {Ld}")
        a(f"s_sleep 1\ns_sub_u32 s78, s78, 1\ns_cmp_lg_u32 s78, 0\ns_cbranch_scc1 {Lp}")
        a(f"{Ld}:")
        s.stamp(7)
        a(f"ds_write_b128 v{vLW}, {q(DC)}")
        a("s_waitcnt lgkmcnt(0)\ns_barrier")
        Z = T+12
        for k in range(8): a(f"ds_read_b32 v{Z+k}, v{T+22} offset:{512*k}")
        E = T+24
        s.epi_addr(E, False)
        a(f"v_lshlrev_b32 v{E}, 4, v0")
        a(f"s_lshl_b32 s5, s3, 11\nv_add_u32 v{E+2}, s5, v6")
        a(f"s_lshl_b32 s5, s2, 11\ns_add_u32 s5, s5, {OFF_H4}")
        a("s_waitcnt lgkmcnt(0)")
        for st in (4, 2):
            for i in range(0, st, 2): a(f"v_pk_add_f32 {p2(Z+i)}, {p2(Z+i)}, {p2(Z+st+i)}")
        a(f"v_add_f32 v{Z}, v{Z}, v{Z+1}\nv_cvt_pk_bf16_f32 v{Z}, v{Z}, v{Z}")
        DD = T+28
        for g in range(8):
            ab = T + (g % 2)*4
            for r in range(4): a(f"v_and_b32_dpp v{ab+r}, v{Z}, v{2+r} row_newbcast:{g} {DPPF}")
            for hf in range(2):
                a(f"{MF} {q(DD+4*hf)}, {q(ab)}, {q(UV+8*g+4*hf)}, {'0' if g == 0 else q(DD+4*hf)}")
        a(f"ds_write_b128 v{E+2}, {q(DD)} offset:{0x4000}\nds_write_b128 v{E+2}, {q(DD+4)} offset:{0x4000+1024}")
        a("s_waitcnt lgkmcnt(0)\ns_barrier")
        a(f"s_cmp_ge_u32 s3, 2\ns_cbranch_scc1 L_ya5")
        X = T
        for i in range(4): a(f"ds_read_b64 {p2(X+2*i)}, v{E+3} offset:{0x4000+2048*i}")
        a("s_waitcnt lgkmcnt(0)")
        for st in (4, 2):
            for i in range(0, st, 2): a(f"v_pk_add_f32 {p2(X+i)}, {p2(X+i)}, {p2(X+st+i)}")
        a(f"v_mov_b32 v{X+2}, v{X+1}\nv_mov_b32 v{X+1}, s76\nv_mov_b32 v{X+3}, s76")
        a(f"buffer_store_dwordx4 {q(X)}, v{E}, s[44:47], s5 offen sc1")
        s.stamp(8)
        c['timeout'] = tsave
        a("L_ya5:")
        s.stamp_out()
        a("s_endpgm")
    def gx(s):
        a = s.a; c = s.c; nt = c['nt']; pb = c['pb']
        s.role = 1
        a("L_X:")
        L1, PV, QF, S = 16, 144, 208, 240
        vTR, vL, vSX, vZ, vE = 8, 9, 10, 11, 12
        a("s_sub_u32 s11, s2, 128")
        a("s_lshl_b32 s8, s11, 17\ns_lshl_b32 s6, s3, 13\ns_add_u32 s8, s8, s6")
        a(f"s_mul_i32 s9, s3, {4*ROW}")
        s.kwait()
        s.srd(52, 28, 8192*2048)
        def dma(i, pace):
            for rr in range(4):
                a(f"s_add_u32 m0, s9, {(i%2)*SLOT + rr*ROW}")
                a(f"s_add_u32 s79, s8, {i*32768 + rr*2048}")
                for hf in range(2):
                    if pace: a(f"s_waitcnt vmcnt({pace-1})")
                    a(f"buffer_load_dwordx4 v6, s[52:55], s79 offen offset:{1024*hf} {nt} lds")
        if c.get('fi'): s.stamp(10)
        dma(0, c['px0'])
        if c.get('fi'): s.stamp(11)
        s.srd(44, 42, 0x10000000); s.srd(48, 40, 256); s.srd(56, 36, 4096*896)
        s.common2(13)
        a(f"v_lshrrev_b32 v13, 2, v1\nv_mul_u32_u24 v{vTR}, {ROW}, v13\nv_and_b32 v13, 3, v1\nv_lshl_add_u32 v{vTR}, v13, 3, v{vTR}")
        a(f"s_lshl_b32 s5, s3, 9\nv_add_u32 v{vTR}, s5, v{vTR}")
        a(f"v_and_b32 v13, 15, v1\nv_mul_u32_u24 v{vL}, {ROW}, v13\nv_lshrrev_b32 v14, 4, v1\nv_lshl_add_u32 v{vL}, v14, 4, v{vL}\nv_add_u32 v{vL}, s5, v{vL}")
        a(f"v_add_u32 v{vSX}, {2*SLOT}, v6\nv_mov_b32 v{vZ}, 0")
        a(f"v_lshrrev_b32 v15, 5, v1\nv_lshlrev_b32 v15, 3, v15\nv_bfe_u32 v7, v1, 4, 1\nv_add_u32 v15, v15, v7\nv_mul_u32_u24 v15, {H3_C}, v15")
        a(f"v_and_b32 v7, 15, v1\nv_lshl_add_u32 v15, v7, 4, v15")
        a(f"s_mul_i32 s10, s3, {2*H3_C}\ns_lshl_b32 s5, s11, 8\ns_add_u32 s10, s10, s5\ns_add_u32 s10, s10, {OFF_H3}")
        dma(1, c['px'])
        def tr(i, dst):
            for t in range(16): a(f"ds_read_b64_tr_b16 {p2(dst(t))}, v{vTR} offset:{(i%2)*SLOT+32*t}")
        def l1(i):
            for ks in range(8): a(f"ds_read_b128 {q(L1+(i*8+ks)*4)}, v{vL} offset:{(i%2)*SLOT+64*ks}")
        a(f"s_lshl_b32 s6, s3, 9\ns_add_u32 s6, s6, {OFF_QABS}\ns_add_u32 s7, s6, {8*QS}\ns_mov_b32 s12, {OFF_CLR+0x1000}\ns_mov_b32 s13, 0xff")
        a(f"v_lshrrev_b32 v14, 3, v1\nv_mul_u32_u24 v14, {QS}, v14\nv_and_b32 v7, 7, v1\nv_lshl_add_u32 v14, v7, 4, v14")
        a(f"v_lshlrev_b32 v7, 5, v7\nv_bfe_u32 v13, v1, 3, 1\nv_lshl_add_u32 v7, v13, 4, v7\nv_lshrrev_b32 v13, 4, v1\nv_lshl_add_u32 v7, v13, 2, v7")
        a(f"v_lshlrev_b32 v13, 3, v1")
        def issue_c():
            a(f"buffer_load_dwordx2 {p2(S)}, v13, s[44:47], s12 offen sc1")
            a(f"buffer_load_dword v{vE}, v{vZ}, s[48:51], 0 offen sc1")
        def issue_q(cond=False):
            for i in range(8):
                Lk = a.label("Lqg")
                if cond: a(f"s_bitcmp0_b32 s13, {i}\ns_cbranch_scc1 {Lk}")
                a(f"buffer_load_dwordx4 {q(QF+4*i)}, v14, s[44:47], {'s7' if i % 2 else 's6'} offen offset:{128*(i//2)} sc1")
                if cond: a(f"{Lk}:")
        cgrp = [(f"v{vE}", [S, S+1])]
        for i in range(4):
            a(f"s_waitcnt vmcnt(8)")
            if i == 2:
                L = a.label("Lclr"); Lk = a.label("Lclk")
                a(f"s_cmp_lg_u32 s3, 0\ns_cbranch_scc1 {L}")
                s.check_tags(cgrp, S+2, S+3)
                a(f"s_cbranch_scc1 {Lk}")
                s.poll(issue_c, cgrp, S+2, S+3, sleep=4)
                a(f"{Lk}:")
                a(f"ds_write_b32 v{vSX}, v{vE} offset:12288\ns_waitcnt lgkmcnt(0)")
                a(f"{L}:")
            a("s_barrier")
            l1(i)
            if i < 2:
                tr(i, lambda t: PV+4*t+2*i)
                a("s_waitcnt lgkmcnt(0)\ns_barrier")
                if i == 1:
                    L = a.label("Lcli")
                    a(f"s_cmp_lg_u32 s3, 0\ns_cbranch_scc1 {L}")
                    issue_c()
                    a(f"{L}:")
                dma(i+2, c['px'])
            if i == 2:
                a(f"ds_read_b32 v{vE}, v{vSX} offset:12288")
                a(f"s_waitcnt vmcnt({c['qat']})")
                issue_q()
        tsave = c['timeout']
        s.stamp(1)
        if True:
            Lp = a.label("Lqp"); Lw = a.label("Lqw"); Ld = a.label("Lqd")
            a(f"s_mov_b32 s78, {c['timeout']}\ns_branch {Lw}")
            a(f"{Lp}:")
            issue_q(True)
            a(f"{Lw}:")
            a("s_waitcnt vmcnt(0)")
            for i in range(8): a(f"v_max3_u32 v{S+i}, v{QF+4*i}, v{QF+4*i+1}, v{QF+4*i+2}")
            for i in range(8): a(f"v_max_u32 v{S+i}, v{S+i}, v{QF+4*i+3}")
            a(f"v_max3_u32 v{S+8}, v{S}, v{S+1}, v{S+2}\nv_max3_u32 v{S+9}, v{S+3}, v{S+4}, v{S+5}\nv_max3_u32 v{S+8}, v{S+8}, v{S+6}, v{S+7}\nv_max_u32 v{S+8}, v{S+8}, v{S+9}")
            a(f"v_cmp_eq_u32 vcc, -1, v{S+8}\ns_cbranch_vccz {Ld}")
            a("s_mov_b32 s13, 0")
            for i in range(8):
                a(f"v_cmp_eq_u32 vcc, -1, v{S+i}\ns_cmp_lg_u64 vcc, 0\ns_cselect_b32 s5, {1 << i}, 0\ns_or_b32 s13, s13, s5")
            a(f"s_sleep 1\ns_sub_u32 s78, s78, 1\ns_cmp_lg_u32 s78, 0\ns_cbranch_scc1 {Lp}")
            a(f"{Ld}:")
            a("s_waitcnt lgkmcnt(0)")
            a(f"v_readfirstlane_b32 s76, v{vE}")
            s.stamp(2)
            TM = [11, 12, 13, 14]
            def mix(kp):
                A_, B_ = QF+8*kp, QF+8*kp+4
                o = []
                for r in range(4): o.append(f"v_mov_b32 v{TM[r]}, v{A_+r}")
                for r in range(4): o.append(f"v_mov_b32_dpp v{A_+r}, v{B_+r} row_shr:4 row_mask:0xf bank_mask:0xa")
                for r in range(4): o.append(f"v_mov_b32_dpp v{B_+r}, v{TM[r]} row_shl:4 row_mask:0xf bank_mask:0x5")
                for r in range(8): o.append(f"ds_bpermute_b32 v{A_+r}, v7, v{A_+r}")
                return o
            pend = mix(0) + mix(1)[:12]
            rest = mix(1)[12:] + mix(2) + mix(3)
            nb = 0
            def emit(l):
                nonlocal nb
                a(l)
                if l.startswith("ds_"): nb += 1
            for l in pend: emit(l)
            for ks in range(8):
                while nb < 4*(ks+1): emit(rest.pop(0))
                a(f"s_waitcnt lgkmcnt({min(15, nb - 4*(ks+1))})")
                for ch in range(4):
                    a(f"{MF} {q(S+4*ch)}, {q(L1+(ch*8+ks)*4)}, {q(QF+4*ks)}, {'0' if ks == 0 else q(S+4*ch)}")
                    for _ in range(3):
                        if rest: emit(rest.pop(0))
            assert not rest
            a(f"v_and_b32 v11, 15, v1\nv_mul_u32_u24 v11, {ROW}, v11\nv_lshrrev_b32 v14, 4, v1\nv_bfe_u32 v7, v1, 2, 2\nv_xor_b32 v14, v14, v7\nv_lshl_add_u32 v11, v14, 3, v11")
            a(f"s_lshl_b32 s5, s3, 9\nv_add_u32 v11, s5, v11")
            a(f"v_lshrrev_b32 v14, 5, v1\nv_mul_u32_u24 v14, {ROW}, v14\nv_and_b32 v7, 31, v1\nv_lshl_add_u32 v14, v7, 4, v14\nv_add_u32 v14, s5, v14\nv_xor_b32 v7, 16, v14")
            a(f"v_and_b32 v12, 15, v1\nv_lshlrev_b32 v12, 1, v12")
        PV1 = L1
        Lx = a.label("Lsx")
        labs = [a.label("Lsxw") for _ in range(4)]
        for w in range(1, 4): a(f"s_cmp_eq_u32 s3, {w}\ns_cbranch_scc1 {labs[w]}")
        for w in range(4):
            a(f"{labs[w]}:")
            for ch in range(4):
                if ch == w: continue
                k = (w - ch - 1) % 4
                a(f"ds_write_b128 v{vSX}, {q(S+4*ch)} offset:{(ch*3+k)*1024}")
            a(f"v_mov_b64 {p2(QF)}, {p2(S+4*w)}\nv_mov_b64 {p2(QF+2)}, {p2(S+4*w+2)}")
            if w < 3: a(f"s_branch {Lx}")
        a(f"{Lx}:")
        a(f"s_mul_i32 s5, s3, 3072\nv_add_u32 v13, s5, v{vSX}")
        a("s_waitcnt lgkmcnt(0)\ns_barrier")
        for k in range(3): a(f"ds_read_b128 {q(QF+4+4*k)}, v13 offset:{1024*k}")
        tr(2, lambda t: PV1+4*t)
        a("s_waitcnt lgkmcnt(15)\ns_waitcnt lgkmcnt(14)")
        a(f"v_pk_add_f32 {p2(QF)}, {p2(QF)}, {p2(QF+4)}\nv_pk_add_f32 {p2(QF+2)}, {p2(QF+2)}, {p2(QF+6)}")
        a(f"v_pk_add_f32 {p2(QF+8)}, {p2(QF+8)}, {p2(QF+12)}\nv_pk_add_f32 {p2(QF+10)}, {p2(QF+10)}, {p2(QF+14)}")
        a(f"v_pk_add_f32 {p2(QF)}, {p2(QF)}, {p2(QF+8)}\nv_pk_add_f32 {p2(QF+2)}, {p2(QF+2)}, {p2(QF+10)}")
        a(f"ds_write_b128 v13, {q(QF)}")
        a("s_waitcnt lgkmcnt(0)\ns_barrier")
        s.stamp(3)
        SR = S
        for ch in range(4): a(f"ds_read_b128 {q(SR+4*ch)}, v{vSX} offset:{3072*ch}")
        a("s_waitcnt lgkmcnt(0)")
        tr(3, lambda t: PV1+4*t+2)
        M, Lr, TT, P = QF+8, QF+10, QF+12, QF
        a(f"v_max3_f32 v{M}, v{SR}, v{SR+1}, v{SR+2}")
        for i in range(3, 16, 2): a(f"v_max3_f32 v{M}, v{M}, v{SR+i}, v{SR+min(i+1,15)}")
        s.allred_rows("v_max_f32", M, TT)
        a(f"s_mov_b32 s5, {f32(CEXP)}\nv_mul_f32 v{M}, s5, v{M}")
        for i in range(16): a(f"v_fma_f32 v{SR+i}, v{SR+i}, s5, -v{M}")
        for i in range(16): a(f"v_exp_f32 v{SR+i}, v{SR+i}")
        for i in range(8): a(f"v_cvt_pk_bf16_f32 v{P+i}, v{SR+2*i}, v{SR+2*i+1}")
        O = L1+64
        a("s_waitcnt lgkmcnt(0)")
        def fin(t):
            a(f"v_cvt_pk_bf16_f32 v{O+4*t}, v{O+4*t}, v{O+4*t+1}\nv_cvt_pk_bf16_f32 v{O+4*t+1}, v{O+4*t+2}, v{O+4*t+3}")
            a(f"ds_write_b64 v11, {p2(O+4*t)} offset:{32*t}")
        for t in range(16):
            a(f"{MF} {q(O+4*t)}, {q(PV+4*t)}, {q(P)}, 0")
            a(f"{MF} {q(O+4*t)}, {q(PV1+4*t)}, {q(P+4)}, {q(O+4*t)}")
            if t == 0:
                L = a.label("Lst3")
                a(f"s_cmp_lg_u32 s3, 0\ns_cbranch_scc1 {L}")
                for st in (8, 4, 2):
                    for i in range(0, st, 2): a(f"v_pk_add_f32 {p2(SR+i)}, {p2(SR+i)}, {p2(SR+st+i)}")
                a(f"v_add_f32 v{Lr}, v{SR}, v{SR+1}")
                s.allred_rows("v_add_f32", Lr, TT)
                a(f"v_mov_b32 v{M+1}, s76\nv_mov_b32 v{Lr+1}, s76\nv_lshlrev_b32 v{TT}, 11, v1")
                a(f"s_lshl_b32 s5, s11, 4\ns_add_u32 s5, s5, {OFF_ST3}")
                s.exec_set(0xffff, 0)
                a(f"buffer_store_dwordx4 {q(M)}, v{TT}, s[44:47], s5 offen sc1")
                s.exec_all()
                a(f"{L}:")
            if t >= 3: fin(t-3)
        fin(13); fin(14); fin(15)
        a("s_waitcnt lgkmcnt(0)")
        s.stamp(4)
        SQ = L1
        nrd = []
        for i in range(8):
            xx = i//2; va = 7 if xx >= 2 else 14
            if xx % 2 == 0: a(f"ds_read_b128 {q(SQ+4*i)}, v{va} offset:{2*ROW*i}"); nrd.append(1)
            else: a(f"ds_read_b64 {p2(SQ+4*i+2)}, v{va} offset:{2*ROW*i}\nds_read_b64 {p2(SQ+4*i)}, v{va} offset:{2*ROW*i+8}"); nrd.append(2)
        for i in range(8):
            a(f"s_waitcnt lgkmcnt({sum(nrd[i+1:])})")
            a(f"v_and_b32 v{SQ+4*i}, -4, v{SQ+4*i}\nv_add3_u32 v{O+i}, v{SQ+4*i+1}, v{SQ+4*i+2}, v{SQ+4*i+3}\nv_add_u32 v{O+i}, v{O+i}, v{SQ+4*i}")
        for m in ("quad_perm:[1,0,3,2]", "quad_perm:[2,3,0,1]", "row_half_mirror", "row_mirror"):
            for i in range(8): a(f"v_add_u32_dpp v{O+i}, v{O+i}, v{O+i} {m} {DPPF}")
        for i in range(8):
            a(f"v_add_u32 v{O+i}, s76, v{O+i}\nv_bfe_u32 v{O+i}, v{O+i}, v12, 2\nv_or_b32 v{SQ+4*i}, v{SQ+4*i}, v{O+i}")
            a(f"s_add_u32 s79, s10, {i*16*H3_C}")
            if i < c.get('nbk', 8): a(f"buffer_store_dwordx4 {q(SQ+4*i)}, v15, s[44:47], s79 offen sc1")
        if c['dn']:
            L = a.label("Ldn")
            a(f"s_cmp_lg_u32 s3, 0\ns_cbranch_scc1 {L}")
            a(f"s_lshl_b32 s5, s11, 7\ns_add_u32 s5, s5, {OFF_CHK}")
            s.exec_set(1, 0)
            a(f"buffer_store_dwordx4 {q(M)}, v6, s[44:47], s5 offen sc1")
            s.exec_all()
            a(f"{L}:")
        s.stamp(5)
        WOB = [PV+4*t for t in range(8)]; WOA = [PV+32+4*t for t in range(8)]
        T = QF
        a(f"s_mov_b32 s14, s3\ns_mul_i32 s15, s11, {32*896}")
        s.proj_wload(WOB, 13, 56, 15, 14)
        def wob():
            for t in range(8): s.proj_wload_one(t, WOB, 13, 56, 15)
        if not c['dwb']: wob()
        a("s_lshr_b32 s12, s11, 3\ns_and_b32 s13, s11, 7")
        G = L1+32
        a(f"v_lshrrev_b32 v7, 4, v1\nv_lshlrev_b32 v7, 11, v7\nv_and_b32 v14, 15, v1\nv_lshl_add_u32 v7, v14, 4, v7")
        a(f"s_lshl_b32 s5, s12, 14\ns_lshl_b32 s6, s13, 8\ns_add_u32 s5, s5, s6\ns_add_u32 s5, s5, {OFF_H4}\ns_add_u32 s6, s5, 8192")
        def issue_h4():
            a(f"buffer_load_dwordx4 {q(G)}, v7, s[44:47], s5 offen sc1\nbuffer_load_dwordx4 {q(G+4)}, v7, s[44:47], s6 offen sc1")
        if c['dwb']:
            if c['x1w']:
                Lq = a.label("Lx1w")
                a(f"s_cmp_lg_u32 s3, 0\ns_cbranch_scc1 {Lq}")
                sv = c['spsleep']; c['spsleep'] = c['x1s']
                s.spoll(5, 0, c['x1n'], 2048*2, c['x1k'])
                c['spsleep'] = sv
                a(f"{Lq}:\ns_barrier")
            else: s.spoll(5, 0, 4, 2048*2, 1)
            wob()
            if c['dwb'] == 1: s.spoll(5, 0, c['spn'], 2048*2, c['spk'])
        else: s.spoll(5, 0, c['spn'], 2048*2, c['spk'])
        s.poll(issue_h4, [("s76", [G+1, G+3, G+5, G+7])], G+8, G+9, sleep=c['sleep'])
        s.stamp(6)
        a(f"v_add_f32 v{G}, v{G}, v{G+4}\nv_add_f32 v{G+1}, v{G+2}, v{G+6}")
        a(f"s_mul_i32 s15, s11, {FS}\ns_lshl_b32 s5, s3, 10\ns_add_u32 s15, s15, s5\ns_add_u32 s15, s15, {OFF_FIN+FIN_AB}")
        s.proj_tail(G, WOB, T, 14, 15)
        s.stamp(7)
        c['timeout'] = tsave
        a("s_cmp_ge_u32 s11, 56\ns_cbranch_scc1 L_xend\ns_cmp_ge_u32 s3, 1\ns_cbranch_scc1 L_xend")
        s.final(11, 1, L1+64, QF+16, 8)
        a("L_xend:")
        s.stamp_out()
        a("s_endpgm")
    def ga(s):
        a = s.a; c = s.c; pa = c['pa']
        s.role = 0
        for _ in range(c.get('pada', 0)): a("s_nop 0")
        a("L_A:")
        NS = c['ns']; NL = 2*NS
        Kb, Vb, T, AD = 16, 112, 208, 8
        assert NS <= 12
        NIT = (4096 - 64*4*NS)//8 * (2 if c['c1'] else 1)
        QF, AC, D, TS, MM = T, T+8, T+16, T+24, T+36
        M, Lr, F, FA, TK, TT = MM, MM+1, MM+2, MM+3, MM+4, MM+5
        vZ, vE = T+46, T+47
        if c['gmix']:
            a("s_sub_u32 s11, s2, 256\ns_lshr_b32 s6, s11, 3\ns_add_u32 s6, s6, s11\ns_and_b32 s12, s11, 8\ns_sub_u32 s6, s6, s12")
            a("s_bfe_u32 s9, s6, 0x30001\ns_and_b32 s12, s6, 1")
        else:
            a("s_sub_u32 s11, s2, 256\ns_bfe_u32 s9, s11, 0x30004\ns_bfe_u32 s12, s11, 0x10003")
        a("s_lshr_b32 s6, s11, 7\ns_lshl_b32 s6, s6, 3\ns_and_b32 s10, s11, 7\ns_add_u32 s13, s10, s6")
        a("s_lshl_b32 s10, s12, 4\ns_add_u32 s10, s10, s13")
        if c['c1']:
            a("s_lshl_b32 s14, s9, 22")
            a(f"s_lshl_b32 s8, s10, 2\ns_add_u32 s8, s8, s3\ns_mul_i32 s8, s8, {NS*2048}\ns_add_u32 s8, s8, s14")
            a(f"s_add_u32 s14, s14, {128*NS*2048}")
            a(f"s_lshl_b32 s15, s9, 9\ns_add_u32 s15, s15, {OFF_CLR}")
        else:
            a("s_lshl_b32 s14, s9, 22\ns_lshl_b32 s6, s12, 21\ns_add_u32 s14, s14, s6")
            a(f"s_lshl_b32 s8, s13, 2\ns_add_u32 s8, s8, s3\ns_mul_i32 s8, s8, {32768 if c['il'] else NS*2048}\ns_add_u32 s8, s8, s14")
            a(f"s_add_u32 s14, s14, {NS*2048 if c['il'] else 64*NS*2048}")
            a(f"s_lshl_b32 s15, s9, 1\ns_add_u32 s15, s15, s12\ns_lshl_b32 s15, s15, 8\ns_add_u32 s15, s15, {OFF_CLR}")
        a(f"v_mov_b32 v{vZ}, 0")
        s.kv_addr(AD)
        s.common2(T)
        s.kwait()
        s.srd(44, 42, 0x10000000); s.srd(48, 40, 256)
        s.srd(68, 18, 8*8192*512); s.srd(72, 20, 8*8192*512)
        vK, vV = AD, AD+1
        def ld(n, reg, voff, srd, pace):
            g, hf = n//2, n % 2
            gi = n + (NL if srd == 72 else 0)
            px_ = (c['pa0'] if gi < c['npre'] else c['pax']) if gi < c['nax'] else pace
            py_ = c['pa0'] if gi < c['nay'] else pace
            if px_ != py_:
                lo, cond = (px_, 'lt') if px_ < py_ else (py_, 'ge')
                Lk = a.label("Lpc")
                a(f"s_cmp_{cond}_u32 s11, 128\ns_cbranch_scc1 {Lk}\ns_waitcnt vmcnt({lo-1})\n{Lk}:")
            a(f"s_add_u32 s79, s8, {(g//2)*4096}")
            a(f"s_waitcnt vmcnt({max(px_, py_)-1})")
            a(f"buffer_load_dwordx4 {q(reg)}, v{voff}, s[{srd}:{srd+3}], s79 offen offset:{(g%2)*2048+hf*256} {c['nt']}")
            if c.get('bw'):
                m = {5: 7, 13: 8, 2*NL-1: 9}
                if gi in m: s.stamp(m[gi])
        for n in range(c['npre']): ld(n, Kb+4*n, vK, 68, pa)
        Lj = a.label("Lp1j")
        a(f"s_cmp_{'lt' if c['p1x'] else 'ge'}_u32 s11, 128\ns_cbranch_scc1 {Lj}")
        if c['prioa']: a(f"s_setprio {c['prioa']}")
        s.srd(52, 16, 896); s.srd(56, 22, 448*8192)
        XA, WA, PVv = Vb, Vb+4, T+16
        a("s_and_b32 s13, s11, 127")
        Lc = a.label("Lcz")
        a(f"s_cmp_ge_u32 s13, 8\ns_cbranch_scc1 {Lc}\ns_cmp_lg_u32 s3, 3\ns_cbranch_scc1 {Lc}")
        a(f"s_lshl_b32 s6, s13, 9\ns_add_u32 s6, s6, {OFF_CLR}\nv_lshlrev_b32 v{T}, 8, v1")
        s.exec_set(3, 0)
        a(f"buffer_store_dword v{vZ}, v{T}, s[44:47], s6 offen sc1")
        s.exec_all()
        a(f"{Lc}:")
        s.p1_setup(13, T, PVv)
        if c.get('fi'): s.stamp(10)
        s.p1_loads(XA, WA, 52, 56, PVv)
        if c.get('fi'): s.stamp(11)
        s.p1_setup2(T, PVv)
        a("s_waitcnt vmcnt(3)")
        a(f"buffer_load_dword v{vE}, v{vZ}, s[48:51], 0 offen sc1")
        a("s_waitcnt vmcnt(0)")
        s.get_epoch(vE, vZ)
        a("s_setprio 3")
        s.p1_compute(XA, WA, T, PVv, 0x1000, OFF_QA)
        a(f"s_setprio 0")
        a(f"{Lj}:")
        s.stamp(6)
        na0 = c['npre']
        v1n = c['v1']
        a(f"v_bfe_u32 v{AD+4}, v1, 3, 1\nv_lshlrev_b32 v{AD+4}, 9, v{AD+4}")
        a(f"v_lshl_add_u32 v{AD+4}, v{AD+2}, 6, v{AD+4}\nv_lshl_add_u32 v{AD+4}, v{AD+3}, 4, v{AD+4}")
        assert na0 <= NL-8
        for n in range(na0, NL):
            ld(n, Kb+4*n, vK, 68, pa)
            if n == NL-8: a(f"buffer_load_dword v{vE}, v{vZ}, s[48:51], 0 offen sc1")
        a("s_waitcnt vmcnt(7)")
        s.get_epoch(vE, vZ)
        vq = c['vq']
        for n in range(vq): ld(n, Vb+4*n, vV, 72, pa)
        def vfirst():
            for n in range(vq, vq+v1n): ld(n, Vb+4*n, vV, 72, pa)
        a(f"s_lshl_b32 s6, s9, 12\ns_lshl_b32 s5, s3, 10\ns_add_u32 s6, s6, s5\ns_add_u32 s6, s6, {OFF_QA}")
        a(f"v_lshlrev_b32 v{T+20}, 2, v0")
        s.gather_q(T, 6, T+20, 1, vfirst, v1n, sleep=c['qsleep'])
        a("s_barrier")
        s.stamp(1)
        a(f"ds_read_b128 {q(QF)}, v{AD+4}\nds_read_b128 {q(QF+4)}, v{AD+4} offset:256")
        a(f"s_mov_b32 s13, {f32(CEXP)}")
        a(f"s_waitcnt vmcnt({v1n}) lgkmcnt(0)")
        s.stamp(2)
        v1n += vq
        nv = v1n
        SA = c['sat']
        if c['ystop']:
            a(f"s_cmp_lt_u32 s11, 128\ns_cselect_b32 s82, {NIT-c['ystop']}, -1\ns_mov_b32 s83, 0")
        def ticket():
            if SA:
                if c['ystop']:
                    Lk = a.label("Lys")
                    a(f"s_cmp_ge_u32 s83, s82\ns_mov_b32 s83, -1\ns_cbranch_scc1 {Lk}")
                    a(f"s_mov_b32 s83, 1\ns_atomic_add s83, s[42:43], s15 glc\n{Lk}:")
                else:
                    a("s_mov_b32 s83, 1\ns_atomic_add s83, s[42:43], s15 glc")
                return
            a(f"v_mov_b32 v{TK}, 1")
            s.exec_set(1, 0)
            a(f"buffer_atomic_add v{TK}, v{vZ}, s[44:47], s15 offen sc0 sc1")
            s.exec_all()
        tk_at = NL - c['tka']
        def more(k=1):
            nonlocal nv
            for _ in range(k):
                if nv < NL:
                    if nv == max(tk_at, v1n): ticket()
                    ld(nv, Vb+4*nv, vV, 72, pa); nv += 1
        def dreg(i): return D+4*i if i < 2 else Kb+8*(i-2)
        for i in range(NS):
            a(f"{MF} {q(dreg(i))}, {q(Kb+i*8)}, {q(QF)}, 0")
            a(f"{MF} {q(dreg(i))}, {q(Kb+i*8+4)}, {q(QF+4)}, {q(dreg(i))}")
            if i % 6 == 5: more()
        for r in range(4):
            for i in range(NS):
                if r == 0: a(f"v_mov_b32_dpp v{TS+i}, v{dreg(i)} quad_perm:[0,0,0,0] {DPPF}")
                else: a(f"v_add_f32_dpp v{TS+i}, v{dreg(i)+r}, v{TS+i} quad_perm:[{r},{r},{r},{r}] {DPPF}")
        more()
        for i in range(0, NS, 2): a(f"v_cvt_pk_bf16_f32 v{D+(i//2)}, v{TS+i}, v{TS+i+1}")
        for i in range(0, NS, 2): a(f"v_lshlrev_b32 v{TS+i}, 16, v{D+i//2}\nv_and_b32 v{TS+i+1}, 0xffff0000, v{D+i//2}")
        a(f"v_max3_f32 v{M}, v{TS}, v{TS+1}, v{TS+2}")
        for i in range(3, NS, 2): a(f"v_max3_f32 v{M}, v{M}, v{TS+i}, v{TS+min(i+1,NS-1)}")
        s.allred_rows("v_max_f32", M, TT)
        a(f"v_mul_f32 v{M}, s13, v{M}")
        for i in range(NS): a(f"v_fma_f32 v{TS+i}, v{TS+i}, s13, -v{M}")
        more()
        for i in range(NS): a(f"v_exp_f32 v{TS+i}, v{TS+i}")
        a(f"v_add_f32 v{Lr}, v{TS}, v{TS+1}")
        for i in range(2, NS): a(f"v_add_f32 v{Lr}, v{Lr}, v{TS+i}")
        for i in range(NS): a(f"v_cvt_pk_bf16_f32 v{TS+i}, v{TS+i}, v{TS+i}")
        s.stamp(3)
        done = 0
        def pv(i):
            ab = D + (i % 2)*4
            for r in range(4): a(f"v_and_b32 v{ab+r}, v{TS+i}, v{2+r}")
            for hf in range(2):
                a(f"{MF} {q(AC+4*hf)}, {q(ab)}, {q(Vb+8*i+4*hf)}, {'0' if i == 0 else q(AC+4*hf)}")
        def pv_upto(k):
            nonlocal done
            while done < NS and 2*done+2 <= k:
                pv(done); done += 1
        while nv < NL:
            more()
            pv_upto(nv - 1 - (pa-1))
        ntk = NL - max(tk_at, v1n)
        BUF = [Kb, Kb+32]
        Lend = a.label("Lae")
        vK2, vV2 = MM+6, MM+7
        def take(Lno, younger, sb=52):
            if SA: a("s_waitcnt lgkmcnt(0)\ns_mov_b32 s5, s83")
            else:
                a(f"s_waitcnt vmcnt({younger})")
                a(f"v_readfirstlane_b32 s5, v{TK}")
            a(f"s_cmp_ge_u32 s5, {NIT + c['hk']}\ns_cbranch_scc1 {Lno}")
            if c['pdy']:
                a(f"s_sub_u32 s7, s5, {c['ylo']}\ns_cmp_lt_u32 s7, {c['yhi']-c['ylo']}\ns_cselect_b32 s7, 1, 0\ns_cmp_lt_u32 s11, 128\ns_cselect_b32 s7, s7, 0")
            if c['il']: a(f"s_and_b32 s6, s5, 63\ns_lshl_b32 s6, s6, 15\ns_lshr_b32 s5, s5, 6\ns_lshl_b32 s5, s5, 12\ns_add_u32 s79, s14, s5\ns_add_u32 s79, s79, s6")
            elif c['hk']:
                T0 = NIT - c['hk']
                a(f"s_min_u32 s6, s5, {T0}\ns_add_u32 s6, s6, s5\ns_lshl_b32 s6, s6, 11\ns_add_u32 s79, s14, s6")
                a(f"s_cmp_ge_u32 s5, {T0}\ns_cselect_b32 s{sb}, 0xff800000, 0\ns_cselect_b32 s6, 0x4000000, 0")
                a(f"v_add_u32 v{vK2}, s6, v{vK}\nv_add_u32 v{vV2}, s6, v{vV}")
            else: a(f"s_lshl_b32 s5, s5, 12\ns_add_u32 s79, s14, s5")
        def item_loads(B):
            if c.get('bw'): a("s_add_u32 s94, s94, 1")
            for n in range(8):
                if n == (c['tkn'] if SA else 0): ticket()
                if c['pdy']:
                    Lk = a.label("Lpy")
                    a(f"s_cmp_eq_u32 s7, 0\ns_cbranch_scc1 {Lk}\ns_waitcnt vmcnt({c['pdy']-1})\n{Lk}:")
                if c['pdx'] and c['pdx'] < c['pd']:
                    Lk = a.label("Lpd")
                    a(f"s_cmp_lt_u32 s11, 128\ns_cbranch_scc1 {Lk}\ns_waitcnt vmcnt({c['pdx']-1})\n{Lk}:")
                a(f"s_waitcnt vmcnt({c['pd']-1})")
                vo, srd = (vK, 68) if n < 4 else (vV, 72)
                k = n % 4
                if c['hk'] and k >= 2: vo = vK2 if n < 4 else vV2
                a(f"buffer_load_dwordx4 {q(B+4*n)}, v{vo}, s[{srd}:{srd+3}], s79 offen offset:{(k//2)*2048+(k%2)*256} {c['nt']}")
        def item_compute(B, last):
            if last:
                woa()
                a("s_waitcnt vmcnt(12)")
            for i in range(2):
                a(f"{MF} {q(D+4*i)}, {q(B+8*i)}, {q(QF)}, 0")
                a(f"{MF} {q(D+4*i)}, {q(B+8*i+4)}, {q(QF+4)}, {q(D+4*i)}")
            for r in range(4):
                for i in range(2):
                    if r == 0: a(f"v_mov_b32_dpp v{TS+i}, v{D+4*i} quad_perm:[0,0,0,0] {DPPF}")
                    else: a(f"v_add_f32_dpp v{TS+i}, v{D+4*i+r}, v{TS+i} quad_perm:[{r},{r},{r},{r}] {DPPF}")
            a(f"v_cvt_pk_bf16_f32 v{TT}, v{TS}, v{TS+1}\nv_lshlrev_b32 v{TS}, 16, v{TT}\nv_and_b32 v{TS+1}, 0xffff0000, v{TT}")
            if c['hk']: a(f"v_add_f32 v{TS+1}, s{52 + (0 if B == BUF[0] else 1)}, v{TS+1}")
            a(f"v_max_f32 v{TS+2}, v{TS}, v{TS+1}")
            s.allred_rows("v_max_f32", TS+2, TT)
            a(f"v_mul_f32 v{TS+2}, s13, v{TS+2}\nv_max_f32 v{TS+2}, v{TS+2}, v{M}")
            a(f"v_sub_f32 v{F}, v{M}, v{TS+2}\nv_fma_f32 v{TS}, v{TS}, s13, -v{TS+2}\nv_fma_f32 v{TS+1}, v{TS+1}, s13, -v{TS+2}")
            a(f"v_exp_f32 v{F}, v{F}\nv_exp_f32 v{TS}, v{TS}\nv_exp_f32 v{TS+1}, v{TS+1}\nv_mov_b32 v{M}, v{TS+2}")
            a(f"v_fma_f32 v{Lr}, v{Lr}, v{F}, v{TS}")
            a(f"v_mov_b32_dpp v{FA}, v{F} row_newbcast:0 row_mask:0x3 bank_mask:0xf")
            a(f"v_add_f32 v{Lr}, v{Lr}, v{TS+1}")
            a(f"v_cvt_pk_bf16_f32 v{TS}, v{TS}, v{TS}")
            a(f"v_mov_b32_dpp v{FA}, v{F} row_newbcast:8 row_mask:0xc bank_mask:0xf")
            a(f"v_cvt_pk_bf16_f32 v{TS+1}, v{TS+1}, v{TS+1}")
            for k in range(8): a(f"v_mul_f32 v{AC+k}, v{AC+k}, v{FA}")
            for i in range(2):
                for r in range(4): a(f"v_and_b32 v{D+4*i+r}, v{TS+i}, v{2+r}")
            if last: a("s_waitcnt vmcnt(8)")
            for i in range(2):
                for hf in range(2):
                    a(f"{MF} {q(AC+4*hf)}, {q(D+4*i)}, {q(B+16+8*i+4*hf)}, {q(AC+4*hf)}")
        E = Kb+64
        s.epi_addr(E, True)
        a(f"v_bfe_u32 v{E+2}, v0, 4, 4\nv_mul_u32_u24 v{E+2}, {HA_U}, v{E+2}")
        a(f"v_and_b32 v{E}, 15, v0\nv_lshl_add_u32 v{E+2}, v{E}, 4, v{E+2}")
        a(f"s_mul_i32 s12, s9, {16*HA_U}\ns_lshl_b32 s6, s10, 8\ns_add_u32 s12, s12, s6\ns_add_u32 s12, s12, {OFF_HA}")
        a(f"s_lshl_b32 s5, s3, 11\nv_add_u32 v{AD+4}, s5, v6")
        a(f"v_bfe_u32 v{AD+6}, v1, 3, 1\nv_lshlrev_b32 v{AD+6}, 5, v{AD+6}\ns_lshl_b32 s5, s3, 3\nv_add_u32 v{AD+7}, s5, v{AD+6}")
        a(f"v_lshrrev_b32 v{AD+5}, 7, v0\nv_lshlrev_b32 v{AD+5}, 5, v{AD+5}")
        a(f"s_lshl_b32 s10, s10, 7\ns_lshl_b32 s5, s9, 12\ns_add_u32 s10, s10, s5\ns_lshr_b32 s5, s3, 1\ns_lshl_b32 s5, s5, 4\ns_add_u32 s10, s10, s5\ns_add_u32 s10, s10, {OFF_STA}")
        Z = E+4
        a(f"v_mov_b32 v{Z+17}, s76\nv_mov_b32 v{Z+19}, s76\nv_mov_b32 v{Z+21}, s76\nv_mov_b32 v{Z+23}, s76")
        WOA = [Vb+4*t for t in range(8)]
        assert done >= 4
        s.srd(60, 24, 4096*896)
        vWO = Z+24
        a(f"s_and_b32 s97, s11, 127\ns_mul_i32 s96, s97, {32*896}")
        s.proj_wload(WOA, vWO, 60, 96, 3)
        a(f"s_cmp_{'ge' if c['a5y'] else 'lt'}_u32 s11, 128\ns_cselect_b32 s5, 0x4000000, 0\nv_add_u32 v{vWO}, s5, v{vWO}")
        def woa():
            for t in range(8): s.proj_wload_one(t, WOA, vWO, 60, 96)
        Ln0 = a.label("Ln0"); L0 = a.label("Ld0"); Lf0 = a.label("Lf0"); Lf1 = a.label("Lf1")
        d0 = done
        if c['aprio']: a(f"s_setprio {c['aprio']}")
        take(Ln0, ntk)
        item_loads(BUF[0])
        if c['tkn'] > 8: a(f"s_waitcnt vmcnt({c['tkn']})"); ticket()
        a(f"s_waitcnt vmcnt({8 if SA else 9})")
        if c['tkn'] == 8: ticket()
        for i in range(d0, NS): pv(i)
        a(f"{L0}:")
        take(Lf0, 8, 53)
        item_loads(BUF[1])
        if c['tkn'] > 8: a(f"s_waitcnt vmcnt({c['tkn']})"); ticket()
        a(f"s_waitcnt vmcnt({8 if SA else 9})")
        if c['tkn'] == 8: ticket()
        item_compute(BUF[0], False)
        take(Lf1, 8)
        item_loads(BUF[0])
        if c['tkn'] > 8: a(f"s_waitcnt vmcnt({c['tkn']})"); ticket()
        a(f"s_waitcnt vmcnt({8 if SA else 9})")
        if c['tkn'] == 8: ticket()
        item_compute(BUF[1], False)
        a(f"s_branch {L0}")
        a(f"{Ln0}:")
        woa()
        for i in range(d0, NS):
            a(f"s_waitcnt vmcnt({NL-2*(i+1)+8})")
            pv(i)
        a(f"s_branch {Lend}")
        a(f"{Lf0}:")
        item_compute(BUF[0], True)
        a(f"s_branch {Lend}")
        a(f"{Lf1}:")
        item_compute(BUF[1], True)
        a(f"{Lend}:")
        s.allred_rows("v_add_f32", Lr, TT)
        a(f"ds_write_b64 v{AD+7}, {p2(M)} offset:{0x800}")
        s.stamp(4)
        a(f"ds_write_b128 v{AD+4}, {q(AC)} offset:{0x1000}\nds_write_b128 v{AD+4}, {q(AC+4)} offset:{0x1000+1024}")
        a("s_waitcnt lgkmcnt(0)\ns_barrier")
        Y = Z+8
        a(f"ds_read_b128 {q(Y)}, v{AD+5} offset:{0x800}\nds_read_b128 {q(Y+4)}, v{AD+5} offset:{0x810}")
        for i in range(4): a(f"ds_read_b64 {p2(Z+2*i)}, v{E+3} offset:{0x1000+2048*i}")
        a("s_waitcnt lgkmcnt(4)")
        a(f"v_max3_f32 v{Z+20}, v{Y}, v{Y+2}, v{Y+4}\nv_max_f32 v{Z+20}, v{Z+20}, v{Y+6}")
        for k in range(4): a(f"v_sub_f32 v{Y+2*k}, v{Y+2*k}, v{Z+20}")
        for k in range(4): a(f"v_exp_f32 v{Y+2*k}, v{Y+2*k}")
        a("s_waitcnt lgkmcnt(0)")
        for k in range(4):
            op = "v_mul_f32" if k == 0 else "v_fmac_f32"
            a(f"{op} v{Z+16}, v{Y+2*k}, v{Z+2*k}\n{op} v{Z+18}, v{Y+2*k}, v{Z+2*k+1}")
        a(f"buffer_store_dwordx4 {q(Z+16)}, v{E+2}, s[44:47], s12 offen sc1")
        Lx = a.label("Lax")
        a(f"s_bitcmp1_b32 s3, 0\ns_cbranch_scc1 {Lx}")
        for k in range(4):
            op = "v_mul_f32" if k == 0 else "v_fmac_f32"
            a(f"{op} v{Z+22}, v{Y+2*k}, v{Y+2*k+1}")
        s.exec_set(1, 0)
        a(f"buffer_store_dwordx4 {q(Z+20)}, v{vZ}, s[44:47], s10 offen sc1")
        s.exec_all()
        a(f"{Lx}:")
        s.stamp(5)
        a(f"s_cmp_{'ge' if c['a5y'] else 'lt'}_u32 s11, 128\ns_cbranch_scc1 L_afin")
        s.a5(97, Kb, T, WOA)
        a("s_branch L_aend")
        a("L_afin:")
        a("s_sub_u32 s97, 127, s97")
        a("s_cmp_ge_u32 s97, 56\ns_cbranch_scc1 L_aend\ns_cmp_ge_u32 s3, 1\ns_cbranch_scc1 L_aend")
        s.final(97, 0, Kb, T, 10)
        a("L_aend:")
        s.stamp_out()
        a("s_endpgm")
    def build(s):
        a = s.a
        s.prologue()
        s.gy(); s.gx(); s.ga()
        a("L_end:\ns_endpgm")
        body = a.finish()
        import re
        if s.c.get('ldsys'): body = re.sub(r"(buffer_load_dword\S* .* offen(?: offset:\d+)?) sc1", r"\1 sc0 sc1", body)
        if s.c.get('stsys'): body = re.sub(r"(buffer_store_dword\S* .* offen(?: offset:\d+)?) sc1", r"\1 sc0 sc1", body)
        if s.c.get('stnt'): body = re.sub(r"(buffer_store_dword\S* .* offen(?: offset:\d+)?) sc1", r"\1 sc1 nt", body)
        if s.c.get('ldnt'): body = re.sub(r"(buffer_load_dword\S* .* offen(?: offset:\d+)?) sc1", r"\1 sc1 nt", body)
        hdr = open("concat_heads__gqa_block_cached__compressed_kv_cla__decode.s.ref").read().split("; @launch")[0]
        out = hdr + "; @launch grid=(512,1,1) block=(256,1,1) lds=81920\n"
        out += """; Written with my own generator script. One persistent launch, 512 workgroups of 4 waves, two per CU, all co-resident.
;   wg   0..127 (Y): q_B = x_B*w_q (half rows x 64 cols), q_abs = q_B*w_uk^T (absorbed key projection), later ctx = softmax-merged latent * w_uv
;   wg 128..255 (X): 64 latent rows each: scores q_abs*c_kv^T, local softmax (true max), P*c_kv, later out_B partials through w_o and the last sum
;   wg 256..511 (A): q_A = x_A*wq, GQA flash-decoding over a fixed share plus 8-key work items drawn from counters, then wo and the last sum
; (chosen once per launch through d_debug), by a cleared-then-filled sentinel, or by a checksum that mixes the tag in.
"""
        out += f'.amdgcn_target "amdgcn-amd-amdhsa--gfx950"\n.text\n.globl {KN}\n.p2align 8\n.type {KN},@function\n{KN}:\n'
        out += body
        out += f""".section .rodata,"a"
.p2align 6
.amdhsa_kernel {KN}
  .amdhsa_next_free_vgpr 256
  .amdhsa_next_free_sgpr 102
  .amdhsa_accum_offset 256
  .amdhsa_group_segment_fixed_size 0
  .amdhsa_kernarg_size 112
  .amdhsa_user_sgpr_count 2
  .amdhsa_user_sgpr_kernarg_segment_ptr 1
  .amdhsa_system_sgpr_workgroup_id_x 1
.end_amdhsa_kernel
"""
        return out
if __name__ == "__main__":
    from build import build
    name = sys.argv[1]
    cfg = {}
    for kv in sys.argv[2:]:
        k, v = kv.split("=")
        cfg[k] = v if k == "nt" else int(v)
    open(name, "w").write(Gen2(**cfg).build())
    print(build(name))
```
